```python
import torch

def _softmax(x, axis=-1):
    return torch.softmax(x, dim=axis)
def _gelu(x):
    return torch.nn.functional.gelu(x, approximate="tanh")
def _silu(x):
    return torch.nn.functional.silu(x)
def _sigmoid(x):
    return torch.sigmoid(x)
def _layernorm(x, axis=-1, eps=1e-5):
    m = x.mean(dim=axis, keepdim=True)
    v = x.var(dim=axis, keepdim=True, unbiased=False)
    return (x - m) / torch.sqrt(v + eps)
def _scatter_add(tgt, idx, src, axis=0):
    return tgt.clone().index_add_(axis, idx, src)
def _segment_sum(src, seg, n):
    out = torch.zeros((n,) + src.shape[1:], dtype=src.dtype)
    return out.index_add_(0, seg, src)
def _pad(x, pw):
    flat = tuple(v for pair in reversed(pw) for v in pair)
    return torch.nn.functional.pad(x, flat)

kernel_name = 'concat_heads__mha_block_cached__gqa_block_cached__near_ridge'

def setup_inputs():

    _w = (lambda a: (lambda t: t.to(torch.bfloat16) if t.is_floating_point() else t)(torch.as_tensor(a)))
    def _A_setup():
        B, Sq, D = 16, 192, 448
        H, Sk, Dh = 16, 512, 256
        return {
            "x": _w((lambda *s: torch.randn(*s, dtype=torch.bfloat16) * 0.8)(B, Sq, D)),
            "k_cache": _w((lambda *s: torch.randn(*s, dtype=torch.bfloat16) * 0.8)(B, H, Sk, Dh)),
            "v_cache": _w((lambda *s: torch.randn(*s, dtype=torch.bfloat16) * 0.05)(B, H, Sk, Dh)),
            "wq": _w((lambda *s: torch.randn(*s, dtype=torch.bfloat16) * 0.8)(D, H * Dh) * (D ** -0.5)),
            "wo": _w((lambda *s: torch.randn(*s, dtype=torch.bfloat16) * 0.05)(H * Dh, D) * ((H * Dh) ** -0.5)),
        }
    _A_in = _A_setup()

    def _B_setup():
        B, Sq, D = 16, 192, 448
        Hq, Hkv, Sk, Dh = 16, 16, 512, 256
        assert Hq % Hkv == 0, (Hq, Hkv)
        return {
            "x": _w((lambda *s: torch.randn(*s, dtype=torch.bfloat16) * 0.8)(B, Sq, D)),
            "k_cache": _w((lambda *s: torch.randn(*s, dtype=torch.bfloat16) * 0.8)(B, Hkv, Sk, Dh)),
            "v_cache": _w((lambda *s: torch.randn(*s, dtype=torch.bfloat16) * 0.05)(B, Hkv, Sk, Dh)),
            "wq": _w((lambda *s: torch.randn(*s, dtype=torch.bfloat16) * 0.8)(D, Hq * Dh) * (D ** -0.5)),
            "wo": _w((lambda *s: torch.randn(*s, dtype=torch.bfloat16) * 0.05)(Hq * Dh, D) * ((Hq * Dh) ** -0.5)),
        }
    _B_in = _B_setup()

    return {
        "A_x": _A_in["x"],
        "A_k_cache": _A_in["k_cache"],
        "A_v_cache": _A_in["v_cache"],
        "A_wq": _A_in["wq"],
        "A_wo": _A_in["wo"],
        "B_x": _B_in["x"],
        "B_k_cache": _B_in["k_cache"],
        "B_v_cache": _B_in["v_cache"],
        "B_wq": _B_in["wq"],
        "B_wo": _B_in["wo"],
    }

def reference(A_x, A_k_cache, A_v_cache, A_wq, A_wo, B_x, B_k_cache, B_v_cache, B_wq, B_wo):
    def _A_ref(x, k_cache, v_cache, wq, wo):
        B, Sq, D = x.shape
        H, Dh = 16, 256
        q = (lambda x, *d: x.permute(*d))((x @ wq).reshape(B, Sq, H, Dh), 0, 2, 1, 3)
        scores = torch.einsum("bhqd,bhkd->bhqk", q, k_cache) * (Dh ** -0.5)
        p = _softmax(scores, axis=-1)
        o = torch.einsum("bhqk,bhkd->bhqd", p, v_cache)
        return (lambda x, *d: x.permute(*d))(o, 0, 2, 1, 3).reshape(B, Sq, H * Dh) @ wo

    def _B_ref(x, k_cache, v_cache, wq, wo):
        B, Sq, D = x.shape
        Hq, Dh = 16, 256
        Hkv = k_cache.shape[1]
        rep = Hq // Hkv
        q = (lambda x, *d: x.permute(*d))((x @ wq).reshape(B, Sq, Hq, Dh), 0, 2, 1, 3)
        k = (lambda x, n, axis: torch.repeat_interleave(x, n, dim=axis))(k_cache, rep, axis=1)
        v = (lambda x, n, axis: torch.repeat_interleave(x, n, dim=axis))(v_cache, rep, axis=1)
        scores = torch.einsum("bhqd,bhkd->bhqk", q, k) * (Dh ** -0.5)
        p = _softmax(scores, axis=-1)
        o = torch.einsum("bhqk,bhkd->bhqd", p, v)
        return (lambda x, *d: x.permute(*d))(o, 0, 2, 1, 3).reshape(B, Sq, Hq * Dh) @ wo

    a = _A_ref(A_x, A_k_cache, A_v_cache, A_wq, A_wo)
    b = _B_ref(B_x, B_k_cache, B_v_cache, B_wq, B_wo)
    return torch.concatenate([a, b], axis=-1)
```

```python
def V(lo, n=1): return ('v', lo, n)
def A(lo, n=1): return ('a', lo, n)
def S(lo, n=1): return ('s', lo, n)
def rt(r):
    f, lo, n = r
    return f"{f}{lo}" if n == 1 else f"{f}[{lo}:{lo+n-1}]"
def rs(*regs):
    out = set()
    for r in regs:
        if not isinstance(r, tuple): continue
        f, lo, n = r
        for i in range(n): out.add((f, lo+i))
    return out
def sub(r, i, n=1):
    f, lo, _ = r
    return (f, lo+i, n)
VCC={('s',106),('s',107)}
M0={('m',0)}
SCC={('scc',0)}

class Ins:
    __slots__ = ("text","kind","rd","wr","tag","wait","srcc","n","item","slot","sgprwr")
    def __init__(s, text, kind, rd=(), wr=(), tag=None, wait=None, srcc=None, item=None, slot=None):
        s.text=text; s.kind=kind; s.rd=set(rd); s.wr=set(wr); s.tag=tag; s.wait=wait; s.srcc=srcc; s.n=None
        s.item=item; s.slot=slot
    def __repr__(s): return s.text

def opstr(x):
    if isinstance(x, tuple): return rt(x)
    return str(x)
def ev(x, env): return x(env) if callable(x) else x

def mfma(d, a, b, c):
    i = Ins(f"v_mfma_f32_16x16x32_bf16 {rt(d)}, {rt(a)}, {rt(b)}, {opstr(c)}", "mfma", rd=rs(a,b,c), wr=rs(d))
    i.srcc = rs(c)
    return i
def valu(op, d, *src, kind="valu", xrd=(), xwr=(), suffix=""):
    ops = ", ".join(opstr(x) for x in ((d,) if d is not None else ())+src)
    return Ins(f"{op} {ops}{suffix}", kind, rd=rs(*src)|set(xrd), wr=(rs(d) if isinstance(d,tuple) else set())|set(xwr))
def trans(op, d, s): return valu(op, d, s, kind="trans")
def perm(op, a, b): return Ins(f"{op} {rt(a)}, {rt(b)}", "perm", rd=rs(a,b), wr=rs(a,b))
def accrd(d, a): return Ins(f"v_accvgpr_read_b32 {rt(d)}, {rt(a)}", "valu", rd=rs(a), wr=rs(d))
def accwr(a, s): return Ins(f"v_accvgpr_write_b32 {rt(a)}, {opstr(s)}", "valu", rd=rs(s), wr=rs(a))
def salu(op, d, *src, scc=True, xrd=(), xwr=()):
    ops = ", ".join(opstr(x) for x in ((d,) if d is not None else ())+src)
    wr = rs(d) if isinstance(d,tuple) else set()
    if d=="m0": wr=set(M0)
    rd = rs(*src)
    if "m0" in src: rd|=M0
    return Ins(f"{op} {ops}", "salu", rd=rd|set(xrd), wr=wr|set(xwr))
def dsread(op, d, addr, off, tag=None, item=None):
    return Ins(f"{op} {rt(d)}, {rt(addr)} offset:{off}", "ds", rd=rs(addr), wr=rs(d), tag=tag, item=item)
def dswrite(op, addr, s, off, tag=None):
    return Ins(f"{op} {rt(addr)}, {rt(s)} offset:{off}", "dsw", rd=rs(addr, s), tag=tag)
def dma(voff, srd, soff, off, item, slot, mod=""):
    return Ins(f"buffer_load_dwordx4 {rt(voff)}, {rt(srd)}, {opstr(soff)} offen offset:{off}{mod} lds", "dma",
               rd=rs(voff, srd, soff)|M0, tag=item, item=item, slot=slot)
def vload(d, voff, srd, soff, off, tag=None, mod="", op="buffer_load_dwordx4"):
    return Ins(f"{op} {rt(d)}, {rt(voff)}, {rt(srd)}, {opstr(soff)} offen offset:{off}{mod}", "vload",
               rd=rs(voff, srd, soff), wr=rs(d), tag=tag)
def touch(d, voff, srd, soff, off=0, mod=""):
    return Ins(f"buffer_load_dword {rt(d)}, {rt(voff)}, {rt(srd)}, {opstr(soff)} offen offset:{off}{mod}", "vload",
               rd=rs(voff, srd, soff), wr=set(), tag=('touch',))
def vstore(s, voff, srd, soff, off, tag=None, mod="", op="buffer_store_dwordx4"):
    return Ins(f"{op} {rt(s)}, {rt(voff)}, {rt(srd)}, {opstr(soff)} offen offset:{off}{mod}", "vstore",
               rd=rs(s, voff, srd, soff), tag=tag)
def wait_lgkm(*tags): return Ins("s_waitcnt lgkmcnt(?)", "wait", wait=("lgkm", list(tags)))
def wait_vm(*tags):   return Ins("s_waitcnt vmcnt(?)", "wait", wait=("vm", list(tags)))
def wait_fixed(vm=None, lgkm=None):
    t="s_waitcnt"
    if vm is not None: t+=f" vmcnt({vm})"
    if lgkm is not None: t+=f" lgkmcnt({lgkm})"
    i=Ins(t,"waitfix"); i.wait=(vm,lgkm); return i
def barrier(): return Ins("s_barrier", "barrier")
def nop(n): return Ins(f"s_nop {n}", "nop", tag=n)
def label(name): return Ins(f"{name}:", "label")
def raw(text, kind="salu", rd=(), wr=()): return Ins(text, kind, rd=rd, wr=wr)
def branch(text): return Ins(text, "branch")

VMKINDS = ("dma","vload","vstore")
DSKINDS = ("ds","dsw")

def resolve_waits(trace):
    vm=[]; ds=[]
    for ins,env in trace:
        if ins.kind in VMKINDS: vm.append(ev(ins.tag,env))
        elif ins.kind in DSKINDS: ds.append(ev(ins.tag,env))
        elif ins.kind=="wait":
            which,tags=ins.wait
            q = vm if which=="vm" else ds
            best=None
            for t in tags:
                t=ev(t,env)
                if t is None: continue
                idx=None
                for i in range(len(q)-1,-1,-1):
                    if q[i]==t: idx=i; break
                if idx is None:
                    continue
                n=len(q)-1-idx
                best = n if best is None else min(best,n)
            if best is not None:
                ins.n = best if ins.n is None else min(ins.n,best)
    for ins,env in trace:
        if ins.kind=="wait":
            which,_=ins.wait
            mx = 63 if which=="vm" else 15
            n = mx if ins.n is None else min(ins.n,mx)
            ins.text = f"s_waitcnt {'vmcnt' if which=='vm' else 'lgkmcnt'}({n})"
            ins.n = n

class CheckError(Exception): pass

def check(trace, verbose=False, lds_items=True):
    errs=[]
    def err(k,msg):
        errs.append(f"[{k}] {trace[k][0].text.strip()} :: {msg}")
    vmq=[]
    dsq=[]
    pend={}
    pos=0
    last_valu_wr={}; last_trans_wr={}; last_mfma_wr={}; last_mfma_srcc={}; last_valu_sgpr={}; last_salu_m0=-99
    last_store_data={}
    last_scc=None
    SCCW=("s_add_","s_sub_","s_and_","s_or_","s_xor_","s_lshl_","s_lshr_","s_cmp_","s_min_","s_max_","s_addc","s_subb","s_ashr","s_bfe","s_not","s_andn2","s_bitcmp")
    item_state={}
    slot_occ={}
    item_reads_out={}
    item_read_done_barrier={}
    for k,(ins,env) in enumerate(trace):
        kd=ins.kind
        if kd in("label",): continue
        rd=ins.rd; wr=ins.wr
        tx=ins.text
        if tx.startswith("s_cselect") or tx.startswith("s_cbranch_scc"):
            if last_scc is None or not last_scc.startswith("s_cmp"): err(k,f"SCC consumer after non-cmp writer: {last_scc}")
        if tx.startswith("s_addc") and not (last_scc or "").startswith("s_add"): err(k,f"s_addc after {last_scc}")
        if any(tx.startswith(p) for p in SCCW): last_scc=tx
        for r in (rd|wr):
            if r in pend: err(k,f"reg {r} pending from {pend[r]} load")
        isvalu = kd in("valu","trans","perm")
        if kd=="mfma":
            for r in rd:
                if r in last_valu_wr and pos-last_valu_wr[r]-1<2: err(k,f"VALU->MFMA hazard on {r}")
            ab = rd-(ins.srcc or set())
            for r in ab:
                if r in last_mfma_wr and pos-last_mfma_wr[r][0]-1<8: err(k,f"MFMA D->A/B hazard on {r}")
            for r in (ins.srcc or set()):
                if r in last_mfma_wr:
                    p,dset=last_mfma_wr[r]
                    if dset!=ins.srcc and pos-p-1<6: err(k,f"MFMA D->overlap SrcC hazard {r}")
            for r in wr:
                if r in last_mfma_wr:
                    p,dset=last_mfma_wr[r]
                    if not (dset==wr and ins.srcc==wr) and pos-p-1<8 : err(k,f"MFMA WAW hazard {r}")
        else:
            if kd in ("valu","trans","perm","ds","dsw","vload","vstore","dma"):
                chk = (rd|wr)
                for r in chk:
                    if r in last_mfma_wr and pos-last_mfma_wr[r][0]-1<8: err(k,f"MFMA D->{kd} hazard on {r} dist {pos-last_mfma_wr[r][0]-1}")
            if isvalu:
                for r in wr:
                    if r in last_mfma_srcc and pos-last_mfma_srcc[r]-1<3: err(k,f"SrcC WAR hazard {r}")
                    if r in last_store_data and pos-last_store_data[r]-1<2: err(k,f"store data WAR {r}")
        if isvalu or kd in("mfma","ds","dsw","vload","vstore","dma"):
            for r in rd:
                if r in last_trans_wr and pos-last_trans_wr[r]-1<1: err(k,f"trans->use hazard {r}")
        if kd=="perm":
            for r in rd:
                if r in last_valu_wr and pos-last_valu_wr[r]-1<2: err(k,f"VALU->permlane hazard {r}")
        if kd in VMKINDS:
            for r in rd:
                if r[0]=='s' and r in last_valu_sgpr and pos-last_valu_sgpr[r]-1<5: err(k,f"VALU sgpr->VMEM hazard {r}")
            if kd=="dma" and pos-last_salu_m0-1<1: err(k,"m0->dma hazard")
        if isvalu:
            for r in rd:
                if r[0]=='s' and r in last_valu_sgpr and pos-last_valu_sgpr[r]-1<2: err(k,f"VALU sgpr->VALU const hazard {r}")
            if ins.text.startswith("v_readfirstlane") or ins.text.startswith("v_readlane"):
                for r in rd:
                    if r in last_valu_wr and pos-last_valu_wr[r]-1<1: err(k,f"VALU->readlane hazard {r}")
        if kd=="ds" or kd=="dsw":
            it=ev(ins.item,env)
            if kd=="ds" and it is not None and lds_items:
                st=item_state.get(it)
                if st is None or not st["visible"]: err(k,f"ds read of item {it} not visible")
                item_reads_out[it]=item_reads_out.get(it,0)+1
                item_read_done_barrier[it]=False
            dsq.append((set(wr),it if kd=="ds" else None))
            for r in wr: pend[r]="ds"
        elif kd in VMKINDS:
            it=ev(ins.item,env) if kd=="dma" else None
            if kd=="dma":
                sl=ev(ins.slot,env)
                old=slot_occ.get(sl)
                if old is not None and old!=it and lds_items:
                    if item_reads_out.get(old,0)>0 or not item_read_done_barrier.get(old,True):
                        err(k,f"DMA of {it} into slot {sl} while {old} may still be read")
                slot_occ[sl]=it
                st=item_state.setdefault(it,dict(out=0,visible=False,landed=False))
                st["out"]+=1; st["visible"]=False; st["landed"]=False
            vmq.append((set(wr),it))
            for r in wr: pend[r]="vm"
            if len(vmq)>63 and verbose: print("note: >63 vm outstanding at",k)
            if kd=="vstore":
                data=set(list(rs(*[])));
                for r in rd:
                    if r[0] in 'va': last_store_data[r]=pos
        elif kd=="wait" or kd=="waitfix":
            if kd=="wait":
                which,_=ins.wait; vmn,lg=(ins.n,None) if which=="vm" else (None,ins.n)
            else: vmn,lg=ins.wait
            if vmn is not None:
                while len(vmq)>vmn:
                    regs,it=vmq.pop(0)
                    for r in regs: pend.pop(r,None)
                    if it is not None:
                        item_state[it]["out"]-=1
                        if item_state[it]["out"]==0: item_state[it]["landed"]=True
            if lg is not None:
                while len(dsq)>lg:
                    regs,it=dsq.pop(0)
                    for r in regs: pend.pop(r,None)
                    if it is not None: item_reads_out[it]-=1
        elif kd=="barrier":
            for it,st in item_state.items():
                if st["landed"]: st["visible"]=True
            for it,n in item_reads_out.items():
                if n==0: item_read_done_barrier[it]=True
        if isvalu:
            for r in wr:
                if r[0]=='s': last_valu_sgpr[r]=pos
                else: last_valu_wr[r]=pos
                last_trans_wr.pop(r,None); last_mfma_wr.pop(r,None)
            if kd=="trans":
                for r in wr: last_trans_wr[r]=pos
        elif kd=="mfma":
            for r in wr:
                last_mfma_wr[r]=(pos,set(wr)); last_valu_wr.pop(r,None)
            for r in (ins.srcc or ()): last_mfma_srcc[r]=pos
        elif kd=="salu":
            if ('m',0) in wr: last_salu_m0=pos
            for r in wr: last_valu_sgpr.pop(r,None)
        pos += (ins.tag+1) if kd=="nop" else 1
    return errs
```

```python
from ir import *
from sched import *
import struct

def f32bits(x): return struct.unpack("<I", struct.pack("<f", x))[0]

vTID=V(0); vT=V(1)
vKl=V(2); vVl=[V(3),V(4)]; vKa=V(5); vVa=[V(6),V(7)]
vKg=[V(8),V(9)]; vVg=V(10); vWg=V(11); vXg=V(12); vOg=V(13)
vMX=V(14); vTMP=V(15); vL=[V(16),V(17),V(18)]
def KF(f): return V(24+4*(f&3),4)
def VF(f): return V(40+4*(f&3),4)
def QA(T,j):
    t=T>>1
    return V((64 if T%2==0 else 160)+(t*3+j)*4,4)
def QF(t,j): return V(64+(t*3+j)*4,4)
def SB(buf,kt,j): return V(160+24*buf+(kt*3+j)*4,4)
def PF(j): return V(208+4*j,4)
def CI(j): return V(220+4*j,4)
vE=232
def OA(T,j): return A((T*3+j)*4,4)
def XF(s,j): return A(192+((s&3)*3+j)*4,4)

sK=S(4,4); sV=S(8,4); sW=S(12,4); sX=S(16,4); sO=S(20,4)
sWAVE=S(24); sU=S(25); sKs=S(26); sVs=S(27); sWs=S(28)
sKw=S(29); sVw=S(30); sWw=S(31); sKr=S(32); sVr=S(33); sWr=S(34)
sXJ=[0,S(35),S(36)]; sCNT=S(37); sT0=S(38); sT1=S(39); sOu=S(40)
sC2=S(42,2); sTH=S(44); sWvK=[S(46+p) for p in range(4)]; sWvV=[S(50+p) for p in range(4)]
sRET=S(54,2)
W_BASE,K_BASE,V_BASE,LDS_END=0,65536,114688,163840
SCALE=1.4426950408889634/16.0
THRESH=16.0

class K1:
    def __init__(s, ntkv=True, stmod="", prof=False, wmod="", xmod=""):
        s.kvmod=" nt" if ntkv else ""
        s.stmod=stmod; s.prof=prof; s.wmod=wmod; s.xmod=xmod
        s.blocks={}
    def stamp(s, sc, idx, dyn=False):
        if not s.prof: return
        sc.emit(raw("s_memtime s[56:57]")); sc.emit(raw("s_memrealtime s[58:59]"))
        sc.emit(wait_fixed(lgkm=0))
        if not dyn:
            sc.emit(raw(f"s_mov_b32 s{60+2*idx}, s56")); sc.emit(raw(f"s_mov_b32 s{61+2*idx}, s58"))
        else:
            sc.emit(raw("s_cmp_eq_u32 s25, 0"))
            sc.emit(raw(f"s_cselect_b32 s{60+2*idx}, s56, s{60+2*idx}")); sc.emit(raw(f"s_cselect_b32 s{61+2*idx}, s58, s{61+2*idx}"))
            sc.emit(raw(f"s_cselect_b32 s{60+2*(idx+6)}, s{60+2*(idx+6)}, s56")); sc.emit(raw(f"s_cselect_b32 s{61+2*(idx+6)}, s{61+2*(idx+6)}, s58"))
    def item_K(s, item):
        L=[]
        for p in range(4):
            L.append((salu("s_add_u32","m0",sKw,sWvK[p]), dma(vKg[p>>1],sK,sKs,(p&1)*256,item,lambda e,it=item:('K',ev(it,e)[1]%3),s.kvmod)))
        post=[salu("s_add_u32",sKs,sKs,16384), salu("s_add_u32",sKw,sKw,16384),
              salu("s_cmp_eq_u32",None,sKw,V_BASE), salu("s_cselect_b32",sKw,K_BASE,sKw)]
        return L,post
    def item_V(s, item):
        L=[]
        for p in range(4):
            L.append((salu("s_add_u32","m0",sVw,sWvV[p]), dma(vVg,sV,sVs,p*128,item,lambda e,it=item:('V',ev(it,e)[1]%3),s.kvmod)))
        post=[salu("s_add_u32",sVs,sVs,16384), salu("s_add_u32",sVw,sVw,16384),
              salu("s_cmp_eq_u32",None,sVw,LDS_END), salu("s_cselect_b32",sVw,V_BASE,sVw)]
        return L,post
    def item_W(s, item, wrap=False):
        L=[]
        for p in range(4):
            L.append((salu("s_add_u32","m0",sWw,sWvV[p]), dma(vWg,sW,sWs,p*128,item,lambda e,it=item:('W',ev(it,e)[1]%4),s.wmod)))
        post=[salu("s_add_u32",sWs,sWs,262144), salu("s_add_u32",sWw,sWw,16384), salu("s_and_b32",sWw,sWw,0xffff)]
        return L,post
    def emit_item(s, sc, item_pair):
        L,post=item_pair
        for m,d in L: sc.emit(m); sc.emit(d)
        for x in post: sc.emit(x)
    def rdK(s, f, kt, t, item, tagp):
        return [dsread("ds_read_b128",KF(f),vKa,kt*8192+t*256,tag=(tagp,f),item=item)]
    def rdV(s, T, item, tagp):
        r=VF(T); off=(T>>2)*1024+((T>>1)&1)*512
        return [dsread("ds_read_b64_tr_b16",sub(r,0,2),vVa[T&1],off,tag=(tagp,T,0),item=item),
                dsread("ds_read_b64_tr_b16",sub(r,2,2),vVa[T&1],off+8192,tag=(tagp,T,1),item=item)]
    def adv_rd(s, typ):
        if typ=='K': return [salu("s_add_u32",sKr,sKr,16384),salu("s_cmp_eq_u32",None,sKr,V_BASE),salu("s_cselect_b32",sKr,K_BASE,sKr)]
        if typ=='V': return [salu("s_add_u32",sVr,sVr,16384),salu("s_cmp_eq_u32",None,sVr,LDS_END),salu("s_cselect_b32",sVr,V_BASE,sVr)]
        if typ=='W': return [salu("s_add_u32",sWr,sWr,16384),salu("s_and_b32",sWr,sWr,0xffff)]
    def addr_ops(s, typ):
        if typ=='K': return [valu("v_add_u32",vKa,sKr,vKl)]
        p=sVr if typ=='V' else sWr
        return [valu("v_add_u32",vVa[0],p,vVl[0]), valu("v_add_u32",vVa[1],p,vVl[1])]

    def step(s, sc, name, cur, nxt, mf, korder, cur_item, nxt_item, early=(), early_post=(), late=None,
             extra_shadow=(), needs=None, vmwait=(), qfree=None, qds=None, nxt_korder=None, BG=27, nobarrier=False, keep_addr=False):
        shadow=[[] for _ in range(48)]; fixed=[[] for _ in range(48)]
        tagc=cur+"c"; tagn=(nxt or "")+"n"; prevtag=cur+"n"
        def frag_reads(typ,f,order,item,tag):
            if typ=='K':
                kt,t=order[f]; return s.rdK(f,kt,t,item,tag)
            return s.rdV(f,item,tag)
        def tags(typ,f,tag): return [(tag,f)] if typ=='K' else [(tag,f,0),(tag,f,1)]
        for f in range(3,16):
            for q,x in enumerate(frag_reads(cur,f,korder,cur_item,tagc)): fixed[3*(f-3)+q].append(x)
        for f in range(1,16):
            tg = tags(cur,f,tagc) if f>=3 else tags(cur,f,prevtag)
            shadow[3*f-1].append(wait_lgkm(*tg))
        if nxt:
            if not keep_addr:
                adv=s.adv_rd(nxt)
                shadow[30].append(adv[0]); shadow[33].extend(adv[1:])
                ao=s.addr_ops(nxt)
                if nxt=='K': fixed[37].append(ao[0])
                else: fixed[36].append(ao[0]); fixed[37].append(ao[1])
            for f in range(3):
                for q,x in enumerate(frag_reads(nxt,f,nxt_korder,nxt_item,tagn)): fixed[39+3*f+q].append(x)
            shadow[47].append(wait_lgkm(*tags(nxt,0,tagn)))
        if vmwait: shadow[BG].append(wait_vm(*vmwait))
        if not nobarrier: shadow[BG+1].append(barrier())
        g=2
        for m,d in early:
            if m is not None: shadow[g-1].append(m)
            fixed[g].append(d); g+=3
        assert g-3<=BG
        if early_post:
            gp=g-3+1
            grp=[[early_post[0]],[early_post[1]],list(early_post[2:])] if len(early_post)!=1 else [[early_post[0]]]
            for G in grp:
                if not G: continue
                while shadow[gp] or gp%3==2: gp+=1
                shadow[gp].extend(G); gp+=1
            assert gp<=BG+1
        if late:
            L,post=late
            g=32
            for m,d in L:
                shadow[g-1].append(m); fixed[g].append(d); g+=3
            shadow[42].append(post[0]); shadow[43].append(post[1]); shadow[45].extend(post[2:])
        for gi,x in extra_shadow: shadow[gi].append(x)
        for gi in range(48):
            nd = needs(gi) if needs else ()
            if nd: s.flush_needed(sc, nd, (qfree or [])+(qds or []))
            sc.gap(mf[gi], shadow[gi], fixed[gi], fill=False)
            used=max(0,len(shadow[gi])-1)+sum(COST.get(x.kind,1) for x in fixed[gi])
            slots=2-used
            hasds=any(x.kind=="ds" for x in fixed[gi])
            if slots>0: s.fillq(sc, slots, qds if hasds else qfree)
    def fillq(s, sc, slots, queues):
        if not queues: return
        progress=True
        while slots>0 and progress:
            progress=False
            for q in queues:
                if not q: continue
                f=q[0]; c=COST.get(f.ins.kind,1)
                if c<=slots and sc.can(f):
                    q.pop(0); sc.emit(f.ins); slots-=c; progress=True; break
    def flush_needed(s, sc, nd, queues):
        ids={id(i) for i in nd if id(i) not in sc.done}
        guard=0
        while ids:
            prog=False
            for q in queues:
                if q and all(id(a) in sc.done for a in q[0].after):
                    f=q.pop(0); sc.emit(f.ins); ids.discard(id(f.ins)); prog=True
                    break
            assert prog, "flush_needed stuck: "+str([i.text for i in nd if id(i) in ids][:3])
    def flush_all(s, sc, queues):
        while any(queues):
            prog=False
            for q in queues:
                if q and all(id(a) in sc.done for a in q[0].after):
                    f=q.pop(0); sc.emit(f.ins); prog=True
            assert prog, "flush_all stuck"

    def prologue(s, sc):
        e=sc.emit
        e(raw("s_cmp_ge_u32 s2, 256")); e(branch("s_cbranch_scc1 L_k1_end"))
        if s.prof:
            e(raw("s_memtime s[100:101]")); e(raw("s_waitcnt lgkmcnt(0)","waitraw")); e(raw("s_mov_b32 s99, s100")); e(raw("s_memrealtime s[100:101]")); e(raw("s_waitcnt lgkmcnt(0)","waitraw"))
        e(raw("s_load_dwordx16 s[56:71], s[0:1], 0"))
        e(raw("s_load_dwordx4 s[72:75], s[0:1], 64"))
        e(raw("s_load_dwordx2 s[76:77], s[0:1], 96"))
        for t in ["s_and_b32 s80, s2, 7","s_lshr_b32 s81, s2, 3","s_lshr_b32 s82, s80, 2",
                  "s_lshr_b32 s83, s80, 1","s_and_b32 s83, s83, 1","s_lshl_b32 s83, s83, 3","s_lshr_b32 s84, s81, 2","s_add_u32 s83, s83, s84",
                  "s_and_b32 s84, s80, 1","s_lshl_b32 s84, s84, 3","s_and_b32 s85, s81, 3","s_lshl_b32 s85, s85, 1","s_add_u32 s84, s84, s85",
                  ]: e(raw(t))
        e(valu("v_lshrrev_b32",vT,6,vTID)); e(nop(0))
        e(valu("v_readfirstlane_b32",sWAVE,vT))
        L=V(56); I=V(57); G=V(58); t0=V(59); t1=V(60); t2=V(61); KB=V(62); RR=V(63)
        e(valu("v_and_b32",L,63,vTID))
        e(valu("v_and_b32",I,15,L)); e(valu("v_lshrrev_b32",G,4,L))
        e(raw("s_waitcnt lgkmcnt(0)","waitraw"))
        e(raw("s_cmp_eq_u32 s82, 0"))
        for d,a,b in [(86,56,66),(87,57,67),(88,58,68),(89,59,69),(90,60,70),(91,61,71),(92,62,72),(93,63,73)]:
            e(raw(f"s_cselect_b32 s{d}, s{a}, s{b}"))
        for t in [
            "s_lshl_b32 s94, s83, 4","s_add_u32 s94, s94, s84","s_lshl_b32 s94, s94, 18",
            "s_add_u32 s4, s88, s94","s_addc_u32 s5, s89, 0","s_and_b32 s5, s5, 0xffff","s_mov_b32 s6, 524288","s_mov_b32 s7, 0x20000",
            "s_add_u32 s8, s90, s94","s_addc_u32 s9, s91, 0","s_and_b32 s9, s9, 0xffff","s_mov_b32 s10, 524288","s_mov_b32 s11, 0x20000",
            "s_lshl_b32 s95, s84, 9",
            "s_add_u32 s12, s92, s95","s_addc_u32 s13, s93, 0","s_and_b32 s13, s13, 0xffff","s_sub_u32 s14, 3670016, s95","s_mov_b32 s15, 0x20000",
            "s_mul_i32 s96, s83, 172032",
            "s_add_u32 s16, s86, s96","s_addc_u32 s17, s87, 0","s_and_b32 s17, s17, 0xffff","s_mov_b32 s18, 172032","s_mov_b32 s19, 0x20000",
            "s_lshl_b32 s97, s82, 4","s_add_u32 s97, s97, s83","s_mul_i32 s97, s97, 1572864","s_lshl_b32 s98, s84, 13","s_add_u32 s97, s97, s98",
            "s_add_u32 s20, s76, s97","s_addc_u32 s21, s77, 0","s_and_b32 s21, s21, 0xffff","s_sub_u32 s22, 1572864, s98","s_mov_b32 s23, 0x20000",
            ]: e(raw(t))
        e(salu("s_mov_b32",sU,0)); e(salu("s_mov_b32",sKs,0)); e(salu("s_mov_b32",sVs,0)); e(salu("s_mov_b32",sWs,0))
        e(salu("s_mov_b32",sKw,K_BASE)); e(salu("s_mov_b32",sVw,V_BASE)); e(salu("s_mov_b32",sWw,W_BASE))
        e(salu("s_mov_b32",sKr,K_BASE)); e(salu("s_mov_b32",sVr,V_BASE+32768)); e(salu("s_mov_b32",sWr,49152))
        e(salu("s_mov_b32",sXJ[1],14336)); e(salu("s_mov_b32",sXJ[2],28672)); e(salu("s_mov_b32",sOu,0))
        e(salu("s_mov_b32",sub(sC2,0),hex(f32bits(SCALE)))); e(salu("s_mov_b32",sub(sC2,1),hex(f32bits(SCALE))))
        e(salu("s_mov_b32",sTH,hex(f32bits(THRESH))))
        e(salu("s_lshl_b32",sT0,sWAVE,12))
        for p in range(4):
            e(salu("s_add_u32",sWvK[p],sT0,p*1024-(p&1)*256)); e(salu("s_add_u32",sWvV[p],sT0,p*896))
        e(valu("v_bfe_u32",KB,L,4,1)); e(valu("v_bfe_u32",RR,L,2,2))
        e(valu("v_bfe_u32",t0,L,1,1)); e(valu("v_xor_b32",t0,t0,KB)); e(valu("v_lshlrev_b32",t0,5,t0))
        e(valu("v_lshrrev_b32",t1,5,L)); e(valu("v_lshl_add_u32",t0,t1,6,t0))
        e(valu("v_and_b32",t1,1,L)); e(valu("v_lshl_add_u32",t2,t1,4,t0))
        e(salu("s_and_b32",sT0,sWAVE,1)); e(salu("s_lshl_b32",sT0,sT0,4)); e(salu("s_lshr_b32",sT1,sWAVE,1)); e(salu("s_lshl_b32",sT1,sT1,2)); e(salu("s_add_u32",sT0,sT0,sT1))
        e(valu("v_lshl_add_u32",t0,KB,3,RR)); e(valu("v_add_u32",t0,sT0,t0)); e(valu("v_lshl_add_u32",vWg,t0,13,t2))
        e(salu("s_mul_i32",sT0,sWAVE,48)); e(valu("v_add_u32",t0,sT0,I)); e(salu("s_movk_i32",sT1,896))
        e(valu("v_mul_lo_u32",t0,t0,sT1)); e(valu("v_lshl_add_u32",vXg,G,4,t0))
        e(valu("v_lshl_add_u32",t0,KB,2,RR)); e(valu("v_lshl_add_u32",t0,t0,9,t2)); e(salu("s_lshl_b32",sT0,sWAVE,12)); e(valu("v_add_u32",vVg,sT0,t0))
        for q in range(2):
            e(salu("s_and_b32",sT0,sWAVE,1)); e(salu("s_lshl_b32",sT0,sT0,1)); e(salu("s_add_u32",sT0,sT0,q))
            e(salu("s_sub_u32",sT1,4,sT0)); e(salu("s_and_b32",sT1,sT1,3))
            e(valu("v_and_b32",t0,3,L)); e(valu("v_xor_b32",t0,sT1,t0)); e(valu("v_lshlrev_b32",t0,4,t0))
            e(valu("v_lshl_add_u32",t0,G,6,t0))
            e(salu("s_lshl_b32",sT0,sT0,2)); e(salu("s_lshr_b32",sT1,sWAVE,1)); e(salu("s_lshl_b32",sT1,sT1,4)); e(salu("s_add_u32",sT0,sT0,sT1))
            e(valu("v_add_u32",t1,sT0,RR)); e(valu("v_lshl_add_u32",vKg[q],t1,9,t0))
        for k in range(3):
            for j in range(3): e(vload(XF(k,j),vXg,sX,sXJ[j],k*64,tag=('x',0,k),mod=s.xmod))
            s.emit_item(sc,s.item_W(('W',k)))
        s.emit_item(sc,s.item_W(('W',3)))
        for n in range(3): s.emit_item(sc,s.item_K(('K',n)))
        for n in range(2): s.emit_item(sc,s.item_V(('V',n)))
        e(valu("v_lshrrev_b32",t0,2,I)); e(valu("v_sub_u32",t1,4,t0)); e(valu("v_and_b32",t1,3,t1)); e(valu("v_xor_b32",t1,t1,G))
        e(valu("v_lshlrev_b32",t1,4,t1)); e(valu("v_lshl_add_u32",t1,t0,11,t1)); e(valu("v_and_b32",t0,3,I)); e(valu("v_lshl_add_u32",vKl,t0,6,t1))
        e(valu("v_lshrrev_b32",t0,1,G)); e(valu("v_lshlrev_b32",t0,12,t0)); e(valu("v_lshl_add_u32",t0,KB,8,t0))
        e(valu("v_lshl_add_u32",t0,RR,6,t0)); e(valu("v_and_b32",t1,3,L)); e(valu("v_lshl_add_u32",t0,t1,3,t0))
        e(valu("v_lshl_add_u32",vVl[0],KB,5,t0))
        e(valu("v_xor_b32",t1,1,KB)); e(valu("v_lshl_add_u32",vVl[1],t1,5,t0))
        e(valu("v_add_u32",vKa,K_BASE,vKl))
        e(salu("s_mul_i32",sT0,sWAVE,3*131072)); e(valu("v_lshlrev_b32",t0,4,L)); e(valu("v_add_u32",vOg,sT0,t0))
        if s.prof:
            e(raw("s_mov_b32 s84, s99")); e(raw("s_mov_b32 s85, s100")); e(raw("s_mov_b32 s86, s76")); e(raw("s_mov_b32 s87, s77"))

    def conv_ops(s, t, j):
        X=QA(2*t,j); Y=QA(2*t+1,j)
        L=[]
        for r in (sub(X,0,2),sub(X,2,2),sub(Y,0,2),sub(Y,2,2)):
            L.append(valu("v_pk_mul_f32",r,r,sC2))
        c=[valu("v_cvt_pk_bf16_f32",sub(X,0),sub(X,0),sub(X,1)),
           valu("v_cvt_pk_bf16_f32",sub(X,1),sub(X,2),sub(X,3)),
           valu("v_cvt_pk_bf16_f32",sub(X,2),sub(Y,0),sub(Y,1)),
           valu("v_cvt_pk_bf16_f32",sub(X,3),sub(Y,2),sub(Y,3))]
        p1=[perm("v_permlane32_swap_b32",sub(X,0),sub(X,2)),perm("v_permlane32_swap_b32",sub(X,1),sub(X,3))]
        p2=[perm("v_permlane16_swap_b32",sub(X,0),sub(X,2)),perm("v_permlane16_swap_b32",sub(X,1),sub(X,3))]
        return L,c,p1,p2

    def allreduce(s, op, regs, tmps):
        L=[]
        for pm in ("v_permlane32_swap_b32","v_permlane16_swap_b32"):
            for r,t in zip(regs,tmps): L.append(valu("v_mov_b32",t,r))
            for r,t in zip(regs,tmps): L.append(perm(pm,r,t))
            for r,t in zip(regs,tmps): L.append(valu(op,r,r,t))
        return L

    def rare(s, sc, buf, name, ret):
        e=sc.emit
        e(label(name)); e(nop(7)); e(nop(3))
        m=[V(vE+j) for j in range(3)]; tm=[V(vE+4+j) for j in range(3)]; al=[V(vE+8+j) for j in range(3)]
        for j in range(3):
            a=SB(buf,0,j); b=SB(buf,1,j)
            e(valu("v_max3_f32",m[j],sub(a,0),sub(a,1),sub(a,2)))
            e(valu("v_max3_f32",m[j],m[j],sub(a,3),sub(b,0)))
            e(valu("v_max3_f32",m[j],m[j],sub(b,1),sub(b,2)))
            e(valu("v_max_f32",m[j],m[j],sub(b,3)))
        for x in s.allreduce("v_max_f32",m,tm): e(x)
        for j in range(3): e(valu("v_max_f32",m[j],0,m[j]))
        for j in range(3):
            for kt in range(2):
                for r in range(4): e(valu("v_sub_f32",sub(SB(buf,kt,j),r),sub(SB(buf,kt,j),r),m[j]))
            for r in range(4): e(valu("v_sub_f32",sub(CI(j),r),sub(CI(j),r),m[j]))
            e(Ins(f"v_exp_f32_e64 {rt(al[j])}, -{rt(m[j])}","trans",rd=rs(m[j]),wr=rs(al[j])))
        for j in range(3): e(valu("v_mul_f32",vL[j],vL[j],al[j]))
        k=0
        for T in range(16):
            for j in range(3):
                t=[V(vE+12+r) for r in range(4)]
                for r in range(4): e(accrd(t[r],sub(OA(T,j),r)))
                for r in range(4): e(valu("v_mul_f32",t[r],t[r],al[j]))
                for r in range(4): e(accwr(sub(OA(T,j),r),t[r]))
        e(nop(3))
        e(branch(f"s_branch {ret}"))

    def sm_exp(s, buf):
        qe=[]; qc=[]; done={}
        for j in range(3):
            cv=[]
            for kt in range(2):
                S_=SB(buf,kt,j); ex=[]
                for r in range(4):
                    x=trans("v_exp_f32",sub(S_,r),sub(S_,r)); ex.append(x); qe.append(Filler(x))
                c0=valu("v_cvt_pk_bf16_f32",sub(PF(j),2*kt),sub(S_,0),sub(S_,1))
                c1=valu("v_cvt_pk_bf16_f32",sub(PF(j),2*kt+1),sub(S_,2),sub(S_,3))
                qc.append(Filler(c0,ex[:2])); qc.append(Filler(c1,ex[2:4])); cv+= [c0,c1]
            done[j]=cv
        return qe,qc,done
    def sm_add(s, buf):
        q=[]
        for kt in range(2):
            for r in range(4):
                for j in range(3):
                    q.append(Filler(valu("v_add_f32",vL[j],vL[j],sub(SB(buf,kt,j),r))))
        return q
    def sm_max(s, buf):
        vals=[sub(SB(buf,kt,j),r) for kt in range(2) for j in range(3) for r in range(4)]
        q=[Filler(valu("v_max3_f32",vMX,vals[0],vals[1],vals[2]))]
        i=3
        while i+1<24:
            q.append(Filler(valu("v_max3_f32",vMX,vMX,vals[i],vals[i+1]))); i+=2
        q.append(Filler(valu("v_max_f32",vMX,vMX,vals[23])))
        q.append(Filler(Ins(f"v_cmp_lt_f32 vcc, {rt(sTH)}, {rt(vMX)}","valu",rd=rs(sTH,vMX),wr=VCC)))
        return q

    def build(s):
        U=lambda e:e['u']
        blocks=[]
        sc=Sched(); s.prologue(sc); pro=sc.out
        sc=Sched(); e=sc.emit
        e(label("L_k1_unit"))
        itW=lambda k:(lambda en:('W',14*en['u']+k))
        itK=lambda n:(lambda en:('K',16*en['u']+n))
        xt=lambda k,du=0:(lambda en:('x',en['u']+du,k))
        e(wait_vm(itW(0),xt(0)))
        e(barrier())
        s.stamp(sc,0,True)
        for x in s.adv_rd('W'): e(x)
        for x in s.addr_ops('W'): e(x)
        for f in range(3):
            for x in s.rdV(f,itW(0),"Wn"): e(x)
        e(wait_lgkm(("Wn",0,0),("Wn",0,1)))
        qz=[Filler(accwr(A(r),0)) for r in range(192)]
        kmaj=[(kt,t) for kt in range(2) for t in range(8)]
        tmaj=[(kt,t) for t in range(8) for kt in range(2)]
        qconv=[]; convdone={}
        for k in range(14):
            mf=[mfma(QA(T,j),VF(T),XF(k,j),0 if k==0 else QA(T,j)) for T in range(16) for j in range(3)]
            early=[(None,vload(XF(k+3,j),vXg,sX,sXJ[j],(k+3)*64,tag=xt(k+3),mod=s.xmod)) for j in range(3)] if k<=10 else []
            late=s.item_W(itW(k+3)) if k>=1 else None
            xs=[]
            if k==11:
                xs=[(12,salu("s_add_u32",sT0,sU,1)),(13,salu("s_lshl_b32",sWs,sT0,9)),
                    (15,salu("s_cmp_eq_u32",None,sU,1)),(15,salu("s_cselect_b32",sub(sW,2),0,sub(sW,2)))]
            queues=[qz]
            if k==13:
                groups=[]
                for t in range(8):
                    for j in range(3):
                        last=mf[(2*t+1)*3+j]
                        groups.append((t,j,last,s.conv_ops(t,j)))
                n=len(groups)
                for i in range(n+2):
                    if i<n:
                        t,j,last,(m,c,p1,p2)=groups[i]
                        for x in m: qconv.append(Filler(x,[last]))
                        for x in c: qconv.append(Filler(x))
                    if 0<=i-1<n:
                        t,j,last,(m,c,p1,p2)=groups[i-1]
                        for x in p1: qconv.append(Filler(x))
                    if 0<=i-2<n:
                        t,j,last,(m,c,p1,p2)=groups[i-2]
                        for x in p2: qconv.append(Filler(x))
                        convdone[(t,j)]=p2
                queues=[qz,qconv]
            if k<13:
                s.step(sc,"w",'W','W',mf,None,itW(k),itW(k+1),early=early,late=late,extra_shadow=xs,
                       vmwait=[itW(k+1),xt(k+1)],qfree=queues,qds=queues)
            else:
                assert not qz
                s.step(sc,"w",'W','K',mf,None,itW(k),itK(0),early=early,late=late,extra_shadow=xs,
                       vmwait=[itK(0)],qfree=queues,qds=queues,nxt_korder=tmaj,keep_addr=True)
        assert not qz
        s.stamp(sc,1,True)
        mf=[]
        for f,(kt,t) in enumerate(tmaj):
            for j in range(3): mf.append(mfma(SB(0,kt,j),KF(f),QF(t,j),0 if t==0 else SB(0,kt,j)))
        def needs0(gi):
            f,j=divmod(gi,3); kt,t=tmaj[f]
            nd=list(convdone[(t,j)])
            if t==0 and kt==1: nd+=convdone[(1,j)]
            return nd
        early=[(None,vload(XF(k,j),vXg,sX,sXJ[j],k*64,tag=xt(k,1),mod=s.xmod)) for k in range(3) for j in range(3)]
        s.step(sc,"qk0",'K','K',mf,tmaj,itK(0),itK(1),early=early,late=s.item_W(itW(17)),
               vmwait=[itK(1)],qfree=[qconv],qds=[qconv],needs=needs0,nxt_korder=kmaj)
        assert not qconv
        m=[V(vE+j) for j in range(3)]; tm=[V(vE+4+j) for j in range(3)]
        e(barrier())
        L,post=s.item_K(itK(3))
        for mm,d in L: e(mm); e(d)
        for x in post: e(x)
        for j in range(3):
            a=SB(0,0,j); b=SB(0,1,j)
            e(valu("v_max3_f32",m[j],sub(a,0),sub(a,1),sub(a,2)))
        for j in range(3):
            a=SB(0,0,j); b=SB(0,1,j)
            e(valu("v_max3_f32",m[j],m[j],sub(a,3),sub(b,0)))
        for j in range(3):
            b=SB(0,1,j); e(valu("v_max3_f32",m[j],m[j],sub(b,1),sub(b,2)))
        for j in range(3):
            b=SB(0,1,j); e(valu("v_max_f32",m[j],m[j],sub(b,3)))
        for x in s.allreduce("v_max_f32",m,tm): e(x)
        for j in range(3):
            for r in range(4): e(valu("v_sub_f32",sub(CI(j),r),0,m[j]))
        for j in range(3): e(valu("v_mov_b32",vL[j],0))
        for j in range(3):
            for kt in range(2):
                for r in range(4): e(valu("v_sub_f32",sub(SB(0,kt,j),r),sub(SB(0,kt,j),r),m[j]))
        e(salu("s_mov_b32",sCNT,7))
        s.stamp(sc,2,True)
        wblk=sc.out
        def half(sc,buf,nm):
            nb=1-buf
            iK=lambda d:(lambda en:('K',16*en['u']+en['i']+d))
            iV=lambda d:(lambda en:('V',16*en['u']+en['i']+d))
            qe,qc,pd=s.sm_exp(buf)
            mf=[]
            for f,(kt,t) in enumerate(kmaj):
                for j in range(3): mf.append(mfma(SB(nb,kt,j),KF(f),QF(t,j),CI(j) if t==0 else SB(nb,kt,j)))
            s.step(sc,nm+"qk",'K','V',mf,kmaj,iK(1),iV(0),vmwait=[iV(0)],qfree=[qe,qc],qds=[qc])
            s.dbg_left=(len(qe),len(qc))
            qa=s.sm_add(buf); qm=s.sm_max(nb)
            mf=[mfma(OA(T,j),VF(T),PF(j),OA(T,j)) for T in range(16) for j in range(3)]
            def needs(gi):
                return pd[gi] if gi<3 else ()
            Lv,postv=s.item_V(iV(2))
            s.step(sc,nm+"pv",'V','K',mf,None,iV(0),iK(2),early=Lv,early_post=postv,late=s.item_K(iK(4)),
                   vmwait=[iK(2)],qfree=[qe,qc,qm,qa],qds=[qc,qm,qa],needs=needs,nxt_korder=kmaj)
            s.flush_all(sc,[qe,qc,qa,qm])
            sc.emit(branch(f"s_cbranch_vccnz L_k1_rare{nb}")); sc.emit(label(f"L_k1_ret{nb}"))
        sc=Sched(); sc.emit(label("L_k1_loop")); half(sc,0,"a")
        print("half A leftover exp/cvt after QK:",s.dbg_left)
        sc.emit(salu("s_cmp_eq_u32",None,sCNT,0)); sc.emit(branch("s_cbranch_scc1 L_k1_tail"))
        hA=sc.out
        sc=Sched(); half(sc,1,"b")
        sc.emit(salu("s_sub_u32",sCNT,sCNT,1)); sc.emit(branch("s_branch L_k1_loop"))
        hB=sc.out
        sc=Sched(); e=sc.emit
        e(label("L_k1_tail"))
        s.stamp(sc,3,True)
        iV=lambda d:(lambda en:('V',16*en['u']+15+d))
        e(wait_vm(iV(0))); e(barrier())
        for x in s.adv_rd('V'): e(x)
        for x in s.addr_ops('V'): e(x)
        for f in range(3):
            for x in s.rdV(f,iV(0),"Vn"): e(x)
        qe,qc,pd=s.sm_exp(1)
        s.flush_all(sc,[qe,qc]) if False else None
        for j in range(3):
            for _ in range(8): e(qe.pop(0).ins)
            for _ in range(4): e(qc.pop(0).ins)
        e(wait_lgkm(("Vn",0,0),("Vn",0,1)))
        qa=s.sm_add(1)
        mf=[mfma(OA(T,j),VF(T),PF(j),OA(T,j)) for T in range(16) for j in range(3)]
        Lv,postv=s.item_V(iV(2))
        s.step(sc,"tl",'V',None,mf,None,iV(0),None,early=Lv,early_post=postv,nobarrier=True,qfree=[qa],qds=[qa])
        s.flush_all(sc,[qa])
        s.stamp(sc,4,True)
        tm=[V(vE+4+j) for j in range(3)]
        for x in s.allreduce("v_add_f32",vL,tm): e(x)
        RI=[V(vE+8+2*j,2) for j in range(3)]
        for j in range(3): e(trans("v_rcp_f32",sub(RI[j],0),vL[j]))
        for j in range(3): e(valu("v_mov_b32",sub(RI[j],1),sub(RI[j],0)))
        gi=0
        for j in range(3):
            for t in range(8):
                base=160+8*(gi%6); T8=[V(base+r) for r in range(8)]
                for r in range(4): e(accrd(T8[r],sub(OA(2*t,j),r)))
                for r in range(4): e(accrd(T8[4+r],sub(OA(2*t+1,j),r)))
                for r in range(4): e(valu("v_pk_mul_f32",V(base+2*r,2),V(base+2*r,2),RI[j]))
                for r in range(4): e(valu("v_cvt_pk_bf16_f32",T8[r],T8[2*r],T8[2*r+1]))
                if t%4==0: e(salu("s_add_u32",sT0,sOu,j*131072+(t>>2)*4096))
                e(vstore(V(base,4),vOg,sO,sT0,(t&3)*1024,tag=('o',),mod=s.stmod))
                gi+=1
        s.stamp(sc,5,True)
        e(salu("s_add_u32",sOu,sOu,8192)); e(salu("s_add_u32",sU,sU,1))
        e(salu("s_cmp_lt_u32",None,sU,2)); e(branch("s_cbranch_scc1 L_k1_unit"))
        e(branch("s_branch L_k1_fin" if s.prof else "s_branch L_k1_end"))
        tail=sc.out
        sc=Sched(); s.rare(sc,0,"L_k1_rare0","L_k1_ret0"); s.rare(sc,1,"L_k1_rare1","L_k1_ret1"); rare=sc.out
        endb=[]
        if s.prof:
            endb=[label("L_k1_fin"),wait_fixed(vm=0),raw("s_memtime s[56:57]"),raw("s_memrealtime s[58:59]"),raw("s_waitcnt lgkmcnt(0)"),
                  raw("s_mov_b32 s88, s56"),raw("s_mov_b32 s89, s58"),
                  raw("s_add_u32 s92, s86, 0x4000000"),raw("s_addc_u32 s93, s87, 0"),raw("s_and_b32 s93, s93, 0xffff"),raw("s_mov_b32 s94, 0x100000"),raw("s_mov_b32 s95, 0x20000"),
                  raw("s_lshl_b32 s3, s2, 10"),raw("s_lshl_b32 s38, s24, 8"),raw("s_add_u32 s3, s3, s38"),raw("v_mov_b32 v1, s3","valu")]
            for i in range(30):
                endb+=[raw(f"v_mov_b32 v2, s{60+i}","valu"),raw(f"buffer_store_dword v2, v1, s[92:95], 0 offen offset:{4*i}","valu"),raw("s_nop 1")]
            endb+=[raw("s_waitcnt vmcnt(0)")]
        endb+=[label("L_k1_end"),wait_fixed(vm=0),raw("s_endpgm","branch")]
        trace=[(x,{'u':0}) for x in pro]
        for u in range(2):
            trace+=[(x,{'u':u}) for x in wblk]
            for it in range(8):
                trace+=[(x,{'u':u,'i':2*it}) for x in hA]
                if it<7: trace+=[(x,{'u':u,'i':2*it+1}) for x in hB]
            trace+=[(x,{'u':u}) for x in tail]
        resolve_waits(trace)
        errs=check(trace)
        s.trace=trace
        code=pro+wblk+hA+hB+tail+rare+endb
        return code,errs

KD_K1=""".amdhsa_kernel {name}
  .amdhsa_next_free_vgpr 512
  .amdhsa_next_free_sgpr 102
  .amdhsa_accum_offset 256
  .amdhsa_group_segment_fixed_size 0
  .amdhsa_kernarg_size 104
  .amdhsa_user_sgpr_count 2
  .amdhsa_user_sgpr_kernarg_segment_ptr 1
  .amdhsa_system_sgpr_workgroup_id_x 1
.end_amdhsa_kernel
"""
if __name__=="__main__":
    k=K1(); code,errs=k.build()
    print(len(code),"instructions;",len(errs),"errors")
    for x in errs[:40]: print(x)
```

```python
from ir import *
from sched import *

vTID=V(0); vT=V(1)
vWl=V(2); vWa=V(3); vOg=[V(4),V(5),V(6)]; vWg=[V(8+m) for m in range(7)]; vOut=V(15); vOut2=V(7)
def AF(f): return V(16+4*(f&3),4)
def OF(slot,e,jj): return V(32+(((slot&3)*2+e)*3+jj)*4,4)
def ACC(T,jj): return A((T*3+jj)*4,4)
sWo=S(4,4); sO=S(8,4); sOut=S(12,4)
sWAVE=S(24); sWs=S(26); sOs=S(27); sWw=S(29); sWr=S(32); sCNT=S(37); sT0=S(38); sT1=S(39); sWv=S(40); sEND=S(44)
SLOT=28672; NSLOT=5; RING=SLOT*NSLOT

class K2:
    def __init__(s, omod="", wmod="", outmod="", prof=False):
        s.omod=omod; s.wmod=wmod; s.outmod=outmod; s.prof=prof
    def item_W(s,item):
        L=[]
        for m in range(7):
            L.append((salu("s_add_u32","m0",sWw,m*1024), dma(vWg[m],sWo,sWs,0,item,lambda e,it=item:('W',ev(it,e)[1]%NSLOT),s.wmod)))
        post=[salu("s_add_u32",sWs,sWs,57344), salu("s_add_u32",sWw,sWw,SLOT),
              salu("s_cmp_ge_u32",None,sWw,sEND), salu("s_cselect_b32",sWw,sWv,sWw)]
        return L,post
    def rd(s,f,item,tagp):
        e,T=divmod(f,7); r=AF(f); off=e*7168+T*32
        return [dsread("ds_read_b64_tr_b16",sub(r,0,2),vWa,off,tag=(tagp,f,0),item=item),
                dsread("ds_read_b64_tr_b16",sub(r,2,2),vWa,off+3584,tag=(tagp,f,1),item=item)]
    def oloads(s,sl,slotfn):
        L=[]
        for e in range(2):
            for jj in range(3):
                L.append(vload(OF(sl,e,jj),vOg[jj],sO,sOs,e*1024,tag=(lambda en,f=slotfn:('O',f(en))),mod=s.omod))
        return L
    def build(s):
        sc=Sched(); e=sc.emit
        e(raw("s_cmp_ge_u32 s2, 256")); e(branch("s_cbranch_scc1 L_k2_end"))
        e(raw("s_load_dwordx2 s[56:57], s[0:1], 32")); e(raw("s_load_dwordx2 s[58:59], s[0:1], 72"))
        e(raw("s_load_dwordx2 s[60:61], s[0:1], 80")); e(raw("s_load_dwordx2 s[62:63], s[0:1], 96"))
        for t in ["s_and_b32 s80, s2, 7","s_lshr_b32 s81, s2, 3","s_lshr_b32 s82, s80, 2",
                  "s_and_b32 s83, s81, 3",
                  "s_and_b32 s84, s80, 3","s_lshl_b32 s84, s84, 3","s_lshr_b32 s85, s81, 2","s_add_u32 s84, s84, s85",
                  "s_lshr_b32 s85, s84, 1","s_and_b32 s86, s84, 1"]:
            e(raw(t))
        e(valu("v_lshrrev_b32",vT,6,vTID)); e(nop(0)); e(valu("v_readfirstlane_b32",sWAVE,vT))
        L=V(128); I=V(129); G=V(130); t0=V(131); t1=V(132); t2=V(133)
        e(valu("v_and_b32",L,63,vTID)); e(valu("v_and_b32",I,15,L)); e(valu("v_lshrrev_b32",G,4,L))
        e(raw("s_waitcnt lgkmcnt(0)","waitraw"))
        e(raw("s_cmp_eq_u32 s82, 0")); e(raw("s_cselect_b32 s64, s56, s58")); e(raw("s_cselect_b32 s65, s57, s59"))
        for t in ["s_mov_b32 s4, s64","s_and_b32 s5, s65, 0xffff","s_mov_b32 s6, 3670016","s_mov_b32 s7, 0x20000",
                  "s_lshl_b32 s87, s82, 4","s_add_u32 s87, s87, s85","s_mul_i32 s87, s87, 1572864","s_mul_i32 s88, s86, 786432","s_add_u32 s87, s87, s88",
                  "s_add_u32 s8, s62, s87","s_addc_u32 s9, s63, 0","s_and_b32 s9, s9, 0xffff","s_mov_b32 s10, 786432","s_mov_b32 s11, 0x20000",
                  "s_mov_b32 s12, s60","s_and_b32 s13, s61, 0xffff","s_mov_b32 s14, 5505024","s_mov_b32 s15, 0x20000"]:
            e(raw(t))
        e(salu("s_lshr_b32",sT0,sWAVE,1)); e(salu("s_lshl_b32",sT0,sT0,6)); e(salu("s_and_b32",sT1,sWAVE,1)); e(salu("s_add_u32",sT0,sT0,sT1))
        e(salu("s_mul_i32",sT0,sT0,32*896)); e(raw("s_mul_i32 s39, s83, 224")); e(salu("s_add_u32",sT0,sT0,sT1))
        e(salu("s_mov_b32",S(41),4682))
        for m in range(7):
            e(valu("v_add_u32",t0,64*m,L))
            e(valu("v_mul_lo_u32",t1,t0,S(41))); e(valu("v_lshrrev_b32",t1,16,t1))
            e(valu("v_mul_u32_u24",t2,14,t1)); e(valu("v_sub_u32",t2,t0,t2))
            e(valu("v_mul_u32_u24",t1,896,t1)) if False else None
            e(salu("s_movk_i32",S(42),896)) if m==0 else None
            e(valu("v_mul_lo_u32",t1,t1,S(42))); e(valu("v_lshl_add_u32",t1,t2,4,t1)); e(valu("v_add_u32",vWg[m],sT0,t1))
        e(salu("s_and_b32",sT0,sWAVE,1)); e(salu("s_mul_i32",sT0,sT0,3*131072)); e(salu("s_lshr_b32",sT1,sWAVE,1)); e(salu("s_lshl_b32",sT1,sT1,16)); e(salu("s_add_u32",sT0,sT0,sT1))
        e(valu("v_lshlrev_b32",t0,4,L)); e(valu("v_add_u32",vOg[0],sT0,t0))
        e(valu("v_add_u32",vOg[1],131072,vOg[0])); e(valu("v_add_u32",vOg[2],262144,vOg[0]))
        e(salu("s_mov_b32",sWs,0)); e(salu("s_mov_b32",sOs,0))
        e(salu("s_mul_i32",sWv,sWAVE,7168)); e(salu("s_mov_b32",sWw,sWv)); e(salu("s_add_u32",sEND,sWv,RING))
        for sl in range(4):
            if sl<3:
                for x in s.oloads(sl,lambda en,sl=sl:sl): e(x)
                e(salu("s_add_u32",sOs,sOs,2048))
            Lw,post=s.item_W(('W',sl))
            for m,d in Lw: e(m); e(d)
            for x in post: e(x)
        e(valu("v_lshrrev_b32",t0,2,L)); e(salu("s_movk_i32",S(43),224)); e(valu("v_mul_lo_u32",t0,t0,S(43)))
        e(valu("v_and_b32",t1,3,L)); e(valu("v_lshl_add_u32",t0,t1,3,t0))
        e(salu("s_lshr_b32",sT0,sWAVE,1)); e(salu("s_mul_i32",sT0,sT0,14336)); e(valu("v_add_u32",vWl,sT0,t0))
        e(raw("s_mul_i32 s87, s85, 192")); e(raw("s_mul_i32 s88, s86, 96")); e(raw("s_add_u32 s87, s87, s88"))
        e(salu("s_and_b32",sT0,sWAVE,1)); e(salu("s_mul_i32",sT0,sT0,48)); e(raw("s_add_u32 s87, s87, s38"))
        e(valu("v_add_u32",t0,S(87),I)); e(salu("s_movk_i32",S(43),1792)); e(valu("v_mul_lo_u32",t0,t0,S(43)))
        e(raw("s_mul_i32 s88, s82, 896")); e(raw("s_mul_i32 s89, s83, 224")); e(raw("s_add_u32 s88, s88, s89"))
        e(valu("v_add_u32",t0,S(88),t0)); e(valu("v_lshl_add_u32",vOut,G,4,t0)); e(valu("v_lshl_add_u32",vOut2,G,3,t0))
        for r in range(84): e(accwr(A(r),0))
        e(salu("s_mov_b32",sWr,0))
        e(wait_vm(('W',0),('O',0))); e(barrier())
        e(valu("v_mov_b32",vWa,vWl))
        for f in range(3):
            for x in s.rd(f,('W',0),"n"): e(x)
        e(wait_lgkm(("n",0,0),("n",0,1)))
        e(salu("s_mov_b32",sCNT,8))
        pro=sc.out
        sc=Sched(); sc.emit(label("L_k2_loop"))
        for u in range(4):
            sig=lambda en,u=u:4*en['it']+u
            cur=lambda en,u=u:('W',4*en['it']+u); nxt=lambda en,u=u:('W',4*en['it']+u+1)
            shadow=[[] for _ in range(42)]; fixed=[[] for _ in range(42)]
            mf=[mfma(ACC(f%7,jj),AF(f+14*u),OF(u,f//7,jj),ACC(f%7,jj)) for f in range(14) for jj in range(3)]
            def rdf(f,item,tag,ring):
                ee,T=divmod(f,7); r=AF(ring); off=ee*7168+T*32
                return [dsread("ds_read_b64_tr_b16",sub(r,0,2),vWa,off,tag=(tag,f,0),item=item),
                        dsread("ds_read_b64_tr_b16",sub(r,2,2),vWa,off+3584,tag=(tag,f,1),item=item)]
            for f in range(3,14):
                for q,x in enumerate(rdf(f,cur,"c",14*u+f)): fixed[3*(f-3)+q].append(x)
            for f in range(1,14):
                tg=("c" if f>=3 else "n")
                shadow[3*f-1].append(wait_lgkm((tg,f,0),(tg,f,1)))
            shadow[27].append(salu("s_add_u32",sWr,sWr,SLOT))
            shadow[28].extend([salu("s_cmp_eq_u32",None,sWr,RING),salu("s_cselect_b32",sWr,0,sWr)])
            fixed[31].append(valu("v_add_u32",vWa,sWr,vWl))
            for f in range(3):
                for q,x in enumerate(rdf(f,nxt,"n",14*(u+1)+f)): fixed[33+3*f+q].append(x)
            shadow[41].append(wait_lgkm(("n",0,0),("n",0,1)))
            ol=s.oloads(u+3,lambda en,u=u:4*en['it']+u+3)
            for q,x in enumerate(ol): fixed[2+3*q].append(x)
            shadow[18].append(salu("s_add_u32",sOs,sOs,2048))
            if u==0:
                shadow[0].extend([salu("s_cmp_eq_u32",None,sCNT,1),salu("s_cselect_b32",sub(sWo,2),0,sub(sWo,2))])
                shadow[19].extend([salu("s_cmp_eq_u32",None,sCNT,1),salu("s_cselect_b32",sub(sO,2),0,sub(sO,2))])
            shadow[15].append(wait_vm(nxt,lambda en,u=u:('O',4*en['it']+u+1)))
            shadow[16].append(barrier())
            Lw,post=s.item_W(lambda en,u=u:('W',4*en['it']+u+4))
            g=20
            for m,d in Lw:
                shadow[g-1].append(m); fixed[g].append(d); g+=3
            shadow[39].append(post[0]); shadow[40].append(post[1])
            tailpost=post[2:]
            for gi in range(42):
                sc.gap(mf[gi],shadow[gi],fixed[gi],fill=False)
            for x in tailpost: sc.emit(x)
        sc.emit(salu("s_sub_u32",sCNT,sCNT,1)); sc.emit(salu("s_cmp_lg_u32",None,sCNT,0)); sc.emit(branch("s_cbranch_scc1 L_k2_loop"))
        loop=sc.out
        sc=Sched(); e=sc.emit
        e(wait_fixed(vm=0,lgkm=0)); e(barrier())
        vX=V(130);
        e(valu("v_and_b32",V(128),63,vTID)); e(valu("v_lshlrev_b32",vX,4,V(128)))
        e(salu("s_and_b32",sT0,sWAVE,1)); e(salu("s_mul_i32",sT0,sT0,21*1024)); e(valu("v_add_u32",vX,sT0,vX))
        e(salu("s_lshr_b32",sT1,sWAVE,1)); e(salu("s_cmp_eq_u32",None,sT1,0)); e(branch("s_cbranch_scc0 L_k2_kh1"))
        def side(mine,other,nm):
            e(nop(7))
            for T in other:
                for jj in range(3): e(dswrite("ds_write_b128",vX,ACC(T,jj),(T*3+jj)*1024))
            e(wait_fixed(lgkm=0)); e(barrier())
            tmp=lambda i:V(32+4*i,4)
            idx={}
            n=0
            for T in mine:
                for jj in range(3):
                    idx[(T,jj)]=n; e(dsread("ds_read_b128",tmp(n),vX,(T*3+jj)*1024,tag=('r',n))); n+=1
            e(wait_fixed(lgkm=0))
            acc=lambda i:V(96+4*(i%8),4)
            for T in mine:
                for jj in range(3):
                    t=tmp(idx[(T,jj)])
                    for r in range(4):
                        e(accrd(V(128+r),sub(ACC(T,jj),r)))
                    for r in range(4):
                        e(valu("v_add_f32",sub(t,r),sub(t,r),V(128+r)))
            Ts=list(mine)
            while Ts:
                if len(Ts)>=2:
                    a,b=Ts[0],Ts[1]; Ts=Ts[2:]
                    for jj in range(3):
                        X=tmp(idx[(a,jj)]); Y=tmp(idx[(b,jj)])
                        e(valu("v_cvt_pk_bf16_f32",sub(X,0),sub(X,0),sub(X,1))); e(valu("v_cvt_pk_bf16_f32",sub(X,1),sub(X,2),sub(X,3)))
                        e(valu("v_cvt_pk_bf16_f32",sub(X,2),sub(Y,0),sub(Y,1))); e(valu("v_cvt_pk_bf16_f32",sub(X,3),sub(Y,2),sub(Y,3)))
                        e(perm("v_permlane32_swap_b32",sub(X,0),sub(X,2))); e(perm("v_permlane32_swap_b32",sub(X,1),sub(X,3)))
                        e(perm("v_permlane16_swap_b32",sub(X,0),sub(X,2))); e(perm("v_permlane16_swap_b32",sub(X,1),sub(X,3)))
                        e(salu("s_mov_b32",sT0,jj*16*1792))
                        e(vstore(X,vOut,sOut,sT0,a*32,tag='o',mod=s.outmod))
                else:
                    a=Ts[0]; Ts=[]
                    for jj in range(3):
                        X=tmp(idx[(a,jj)])
                        e(valu("v_cvt_pk_bf16_f32",sub(X,0),sub(X,0),sub(X,1))); e(valu("v_cvt_pk_bf16_f32",sub(X,1),sub(X,2),sub(X,3)))
                        e(salu("s_mov_b32",sT0,jj*16*1792))
                        e(vstore(sub(X,0,2),vOut2,sOut,sT0,a*32,tag='o',mod=s.outmod,op="buffer_store_dwordx2"))
        side([0,1,2,3],[4,5,6],"a")
        e(branch("s_branch L_k2_end"))
        epiA=list(sc.out)
        sc=Sched(); e=sc.emit
        e(label("L_k2_kh1"))
        side([4,5,6],[0,1,2,3],"b")
        epiB=sc.out
        endb=[label("L_k2_end"),wait_fixed(vm=0),raw("s_endpgm","branch")]
        trace=[(x,{}) for x in pro]
        for it in range(8): trace+=[(x,{'it':it}) for x in loop]
        t0_=list(trace)
        trA=trace+[(x,{}) for x in epiA]
        resolve_waits(trA)
        errs=check(trA)
        cut=[i for i,x in enumerate(epiA) if x.text.startswith("s_cbranch_scc0")][0]
        trB=t0_+[(x,{}) for x in epiA[:cut+1]]+[(x,{}) for x in epiB]
        errs+=check(trB)
        return pro+loop+epiA+epiB+endb,errs

KD_K2=""".amdhsa_kernel {name}
  .amdhsa_next_free_vgpr 224
  .amdhsa_next_free_sgpr 102
  .amdhsa_accum_offset 136
  .amdhsa_group_segment_fixed_size 0
  .amdhsa_kernarg_size 104
  .amdhsa_user_sgpr_count 2
  .amdhsa_user_sgpr_kernarg_segment_ptr 1
  .amdhsa_system_sgpr_workgroup_id_x 1
.end_amdhsa_kernel
"""
if __name__=="__main__":
    k=K2(); code,errs=k.build()
    print(len(code),"instructions;",len(errs),"errors")
    for x in errs[:40]: print(x)
```

```python
from ir import *

def hazard_need(out, cand, look=14):
    need=0; dist=0
    kd=cand.kind
    isvalu = kd in("valu","trans","perm")
    uses = cand.rd|cand.wr
    for prev in reversed(out[-look-4:]):
        if prev.kind=="label": continue
        pk=prev.kind
        req=0
        if pk=="mfma":
            if kd=="mfma":
                ab=cand.rd-(cand.srcc or set())
                if prev.wr & ab: req=max(req,8)
                if prev.wr & (cand.srcc or set()) and prev.wr!=cand.srcc: req=max(req,6)
                if prev.wr & cand.wr and not (prev.wr==cand.wr and cand.srcc==cand.wr): req=max(req,8)
            elif kd in("valu","trans","perm","ds","dsw","vload","vstore","dma"):
                if prev.wr & uses: req=max(req,8)
                if isvalu and (prev.srcc or set()) & cand.wr: req=max(req,3)
        if pk in("valu","trans","perm"):
            vw={r for r in prev.wr if r[0]!='s'}; sw={r for r in prev.wr if r[0]=='s'}
            if kd=="mfma" and vw & cand.rd: req=max(req,2)
            if kd=="perm" and vw & cand.rd: req=max(req,2)
            if pk=="trans" and vw & cand.rd and kd!="salu": req=max(req,1)
            if kd in VMKINDS and sw & cand.rd: req=max(req,5)
            if isvalu and sw & cand.rd: req=max(req,2)
            if (cand.text.startswith("v_readfirstlane") or cand.text.startswith("v_readlane")) and vw & cand.rd: req=max(req,1)
        if pk=="vstore" and isvalu:
            if {r for r in prev.rd if r[0] in 'va'} & cand.wr: req=max(req,2)
        if pk=="salu" and kd=="dma" and ('m',0) in prev.wr: req=max(req,1)
        if req>dist: need=max(need,req-dist)
        dist += (prev.tag+1) if pk=="nop" else 1
        if dist>look: break
    return need

COST={"valu":1,"perm":1,"trans":2,"ds":1,"dsw":2,"dma":2,"vload":2,"vstore":2}

class Filler:
    __slots__=("ins","after")
    def __init__(s, ins, after=()): s.ins=ins; s.after=list(after)

class Sched:
    def __init__(s):
        s.out=[]; s.done=set(); s.q=[]
    def emit(s, ins, auto=True):
        if auto and ins.kind not in ("label",):
            n=hazard_need(s.out, ins)
            while n>0:
                k=min(n,16); s.out.append(nop(k-1)); n-=k
        s.out.append(ins); s.done.add(id(ins))
        return ins
    def emit_all(s, L):
        for i in L: s.emit(i)
    def push(s, ins, after=()):
        s.q.append(Filler(ins, after)); return ins
    def push_all(s, L, after=()):
        for i in L: s.push(i, after)
    def can(s, f):
        return all(id(a) in s.done for a in f.after) and hazard_need(s.out, f.ins)==0
    def fill(s, slots, first_ok=True):
        while s.q and slots>0:
            f=s.q[0]
            c=COST.get(f.ins.kind,1)
            if c>slots: break
            if f.ins.kind in ("ds",) : break
            if not s.can(f): break
            s.q.pop(0); s.emit(f.ins); slots-=c
        return slots
    def flush_until(s, ins_list):
        ids={id(i) for i in ins_list if id(i) not in s.done}
        while ids:
            assert s.q, "flush_until: required filler not queued"
            f=s.q.pop(0)
            assert all(id(a) in s.done for a in f.after), f"flush: dependency not emitted for {f.ins.text}"
            s.emit(f.ins); ids.discard(id(f.ins))
    def flush(s):
        while s.q:
            f=s.q.pop(0)
            assert all(id(a) in s.done for a in f.after), f"flush: dependency not emitted for {f.ins.text}"
            s.emit(f.ins)
    def gap(s, m, shadow=(), fixed=(), needs=(), fill=True):
        if needs: s.flush_until(needs)
        s.emit(m)
        for x in shadow: s.emit(x)
        slots=2 - max(0,len(shadow)-1)
        for x in fixed:
            s.emit(x); slots-=COST.get(x.kind,1)
        if fill and slots>0: s.fill(slots)
```

```python
import sys
from k1 import K1, KD_K1
NAME="concat_heads__mha_block_cached__gqa_block_cached__near_ridge"
HEADER="""; concat_heads( mha_block_cached(A), gqa_block_cached(B) )  --  hand-scheduled gfx950 kernels (emitted by my own generator)
"""
def kernel_text(name, code):
    out=[f".globl {name}",".p2align 8",f".type {name},@function",f"{name}:"]
    for i in code:
        t=i.text
        out.append(t if i.kind=="label" else "  "+t)
    return "\n".join(out)+"\n"
def make(kernels, launches):
    s=HEADER
    for n,g,b,l in launches: s+=f"; @launch kernel={n} grid=({g},1,1) block=({b},1,1) lds={l}\n"
    s+='.amdgcn_target "amdgcn-amd-amdhsa--gfx950"\n.text\n'
    for n,c,kd in kernels: s+=kernel_text(n,c)
    s+='.section .rodata,"a"\n'
    for n,c,kd in kernels: s+=".p2align 6\n"+kd.format(name=n)
    return s
if __name__=="__main__":
    from k2 import K2, KD_K2
    out=sys.argv[1]
    kw1=eval("dict("+(sys.argv[2] if len(sys.argv)>2 else "")+")")
    kw2=eval("dict("+(sys.argv[3] if len(sys.argv)>3 else "")+")")
    only=sys.argv[4] if len(sys.argv)>4 else "12"
    ks=[];ls=[]
    if "1" in only:
        k=K1(**kw1); code,errs=k.build(); assert not errs, errs[:10]
        ks.append(("attn_kernel",code,KD_K1)); ls.append(("attn_kernel",256,256,163840))
    if "2" in only:
        k=K2(**kw2); code,errs=k.build(); assert not errs, errs[:10]
        ks.append(("oproj_kernel",code,KD_K2)); ls.append(("oproj_kernel",256,256,143360))
    open(out,"w").write(make(ks,ls))
```

```python
from ir import *
from sched import *
import k1
from k1 import (K1, f32bits, vTID, vT, vKl, vVl, vKa, vVa, vKg, vVg, vWg, vMX, vTMP, vL, KF, VF, QA, QF, SB, PF, CI, OA,
                sK, sV, sW, sX, sWAVE, sU, sKs, sVs, sWs, sKw, sVw, sWw, sKr, sVr, sWr, sCNT, sT0, sT1, sC2, sTH, sWvK, sWvV,
                W_BASE, K_BASE, V_BASE, LDS_END, SCALE, THRESH)

vXg=[V(12),V(19),V(20)]; vPst=V(13)
vWo=[V(24+p) for p in range(4)]
def XF(s,j): return A(((s&3)*3+j)*4,4)
def PARK_A(i4):
    if i4<16: return A(192+4*i4,4)
    if i4<22: return V(232+4*(i4-16),4)
    return V(56+4*(i4-22),4)
def PARK_T(i4):
    return A(192+4*i4,4) if i4<16 else A(48+4*(i4-16),4)
def OPA(T,j): return V(160+(T*3+j)*4,4)
def OPK(h,j): return V(208+(h*3+j)*4,4)
sP=S(20,4)
sWo=S(56,4)
sWk=S(35); sWu=S(36); sXk=S(40); sNgC=S(41); sNgN=S(45); sWoS=S(54); sPs=S(55); sPs2=S(60); sWvO=[S(62+p) for p in range(4)]
sRho=S(61); sDum=S(92,4)
PW=172032

class K1F(K1):
    def __init__(s, ntkv=True, stmod=" nt", prof=False, wmod="", xmod="", womod="", rot=True, fine=False, touch=True, defer=True, kvpos=None, prokv=('K0','K1')):
        super().__init__(ntkv=ntkv, stmod=stmod, prof=False, wmod=wmod, xmod=xmod)
        s.prof=prof; s.womod=womod; s.rot=rot; s.fine=fine; s.touch=touch; s.defer=defer; s.only_u0=set(); s.only_u1=set(); s.kvpos=kvpos or {12:['V0','K2'],13:['V1']}; s.prokv=prokv
    def stamp(s, sc, idx, dyn=False):
        if not s.prof: return
        sc.emit(raw("s_memtime s[98:99]")); sc.emit(raw("s_memrealtime s[100:101]"))
        sc.emit(wait_fixed(lgkm=0))
        a=66+2*idx
        if not dyn:
            sc.emit(raw(f"s_mov_b32 s{a}, s98")); sc.emit(raw(f"s_mov_b32 s{a+1}, s100"))
        else:
            b=66+2*(idx+6)
            sc.emit(raw("s_cmp_eq_u32 s25, 0"))
            sc.emit(raw(f"s_cselect_b32 s{a}, s98, s{a}")); sc.emit(raw(f"s_cselect_b32 s{a+1}, s100, s{a+1}"))
            sc.emit(raw(f"s_cselect_b32 s{b}, s{b}, s98")); sc.emit(raw(f"s_cselect_b32 s{b+1}, s{b+1}, s100"))
    def item_W(s, item):
        pre=[salu("s_add_u32",sWk,sWk,262144), [salu("s_add_u32",sWw,sWw,16384),salu("s_and_b32",sWw,sWw,0xffff)],
             [salu("s_cmp_eq_u32",None,sWk,14*262144),salu("s_cselect_b32",sWk,0,sWk)], salu("s_add_u32",sWs,sWk,sWu)]
        pre=[pre[0],pre[2],pre[1],pre[3]]
        L=[(salu("s_add_u32","m0",sWw,sWvV[p]), dma(vWg,sW,sWs,p*128,item,lambda e,it=item:('W',ev(it,e)[1]%4),s.wmod)) for p in range(4)]
        return pre,L
    def item_K(s, item):
        pre=[salu("s_add_u32",sKs,sKs,16384), salu("s_add_u32",sKw,sKw,16384),
             [salu("s_cmp_eq_u32",None,sKw,V_BASE), salu("s_cselect_b32",sKw,K_BASE,sKw)]]
        L=[(salu("s_add_u32","m0",sKw,sWvK[p]), dma(vKg[p>>1],sK,sKs,(p&1)*256,item,lambda e,it=item:('K',ev(it,e)[1]%3),s.kvmod)) for p in range(4)]
        return pre,L
    def item_V(s, item):
        pre=[salu("s_add_u32",sVs,sVs,16384), salu("s_add_u32",sVw,sVw,16384),
             [salu("s_cmp_eq_u32",None,sVw,LDS_END), salu("s_cselect_b32",sVw,V_BASE,sVw)]]
        L=[(salu("s_add_u32","m0",sVw,sWvV[p]), dma(vVg,sV,sVs,p*128,item,lambda e,it=item:('V',ev(it,e)[1]%3),s.kvmod)) for p in range(4)]
        return pre,L
    def item_O(s, item, const, ng):
        pre=[salu("s_add_u32",sWoS,ng,const), [salu("s_add_u32",sWw,sWw,16384), salu("s_and_b32",sWw,sWw,0xffff)]]
        L=[(salu("s_add_u32","m0",sWw,sWvO[p]), dma(vWo[p],sWo,sWoS,0,item,lambda e,it=item:('W',ev(it,e)[1]%4),s.womod)) for p in range(4)]
        return pre,L
    def xpre(s):
        return [salu("s_add_u32",sXk,sXk,128),[salu("s_cmp_eq_u32",None,sXk,896),salu("s_cselect_b32",sXk,0,sXk)]]
    def xloads(s, pos, tagfn):
        return [vload(XF(pos+d,j),vXg[j],sX,sXk,d*64,tag=tagfn(pos+d),mod=s.xmod) for j in range(3) for d in range(2)]
    @staticmethod
    def flat(L):
        out=[]
        for x in L:
            if isinstance(x,list): out+=x
            else: out.append(x)
        return out
    def emit_item(s, sc, item_pair):
        pre,L=item_pair
        for x in s.flat(pre): sc.emit(x)
        for m,d in L: sc.emit(m); sc.emit(d)

    def step(s, sc, cur, nxt, mf, korder, cur_item, nxt_item, early=None, late=None, xearly=(), xpre=(),
             extra_shadow=(), extra_fixed=(), needs=None, vmwait=(), qfree=None, qds=None, nxt_korder=None,
             nobarrier=False, keep_addr=False, forder=None, nxt_forder=None,
             EG=(5,11,17,23), LG=(29,35,41,47), XG=(5,14,23), BG=24):
        if s.fine:
            sc.emit(raw("s_memtime s[98:99]")); sc.emit(wait_fixed(lgkm=0))
            sc.emit(raw("s_and_b32 m0, s3, 63","salu",wr=M0)); sc.emit(raw("s_cmp_lt_u32 s3, 64"))
            sc.emit(raw("s_cselect_b32 s100, 0, 1")); sc.emit(raw("s_add_u32 s3, s3, 1")); sc.emit(raw("s_cmp_eq_u32 s100, 0"))
            lab=f"L_fine{len(s._fl)}"; s._fl.append(lab)
            sc.emit(branch(f"s_cbranch_scc0 {lab}_b"))
            sc.emit(raw("v_writelane_b32 v23, s98, m0","valu")); sc.emit(branch(f"s_branch {lab}_e"))
            sc.emit(label(f"{lab}_b")); sc.emit(raw("v_writelane_b32 v21, s98, m0","valu")); sc.emit(label(f"{lab}_e"))
        shadow=[[] for _ in range(48)]; fixed=[[] for _ in range(48)]
        tagc=cur+"c"; tagn=(nxt or "")+"n"; prevtag=cur+"n"
        def frag_reads(typ,f,order,item,tag,fo):
            if typ=='K':
                kt,t=order[f]; return s.rdK(f,kt,t,item,tag)
            T=fo[f] if fo else f
            r=VF(f); off=(T>>2)*1024+((T>>1)&1)*512
            return [dsread("ds_read_b64_tr_b16",sub(r,0,2),vVa[T&1],off,tag=(tag,f,0),item=item),
                    dsread("ds_read_b64_tr_b16",sub(r,2,2),vVa[T&1],off+8192,tag=(tag,f,1),item=item)]
        def tags(typ,f,tag): return [(tag,f)] if typ=='K' else [(tag,f,0),(tag,f,1)]
        for f in range(3,16):
            for q,x in enumerate(frag_reads(cur,f,korder,cur_item,tagc,forder)): fixed[3*(f-3)+q].append(x)
        for f in range(1,16):
            tg = tags(cur,f,tagc) if f>=3 else tags(cur,f,prevtag)
            shadow[3*f-1].append(wait_lgkm(*tg))
        reserved=set()
        if nxt:
            if not keep_addr:
                adv=s.adv_rd(nxt)
                shadow[30].append(adv[0]); shadow[33].extend(adv[1:])
                ao=s.addr_ops(nxt)
                if nxt=='K': fixed[37].append(ao[0])
                elif cur=='K': fixed[37].append(ao[0]); fixed[38].append(ao[1])
                else: fixed[36].append(ao[0]); fixed[37].append(ao[1])
            for f in range(3):
                for q,x in enumerate(frag_reads(nxt,f,nxt_korder,nxt_item,tagn,nxt_forder)): fixed[39+3*f+q].append(x)
            shadow[47].append(wait_lgkm(*tags(nxt,0,tagn)))
        if vmwait: shadow[BG].append(wait_vm(*vmwait))
        if not nobarrier: shadow[BG+1].append(barrier())
        for it,G in ((early,EG),(late,LG)):
            if not it: continue
            for (m,d),g in zip(it[1],G):
                shadow[g-1].append(m); fixed[g].append(d); reserved.add(g-1)
        for x,g in zip(xearly,XG): fixed[g].append(x)
        for gi,x in extra_shadow: shadow[gi].append(x)
        for gi,x in extra_fixed: fixed[gi].append(x)
        def place(groups, gp, lim):
            for G in groups:
                G = G if isinstance(G,list) else [G]
                while gp<48 and (shadow[gp] or gp%3==2): gp+=1
                assert gp<=lim,(gp,lim,groups)
                shadow[gp].extend(G); gp+=1
            return gp
        gp=0
        if early: gp=place(early[0], 0, EG[0]-2)
        if xpre: gp=place(list(xpre), 0, XG[0]-1)
        if late: gp=place(late[0], gp, LG[0]-2)
        for gi in range(48):
            nd = needs(gi) if needs else ()
            if nd: s.flush_needed(sc, nd, (qfree or [])+(qds or []))
            sc.gap(mf[gi], shadow[gi], fixed[gi], fill=False)
            used=max(0,len(shadow[gi])-1)+sum(COST.get(x.kind,1) for x in fixed[gi])
            slots=2-used
            hasds=any(x.kind=="ds" for x in fixed[gi])
            if slots>0: s.fillq(sc, slots, qds if hasds else qfree)

    def prologue(s, sc):
        e=sc.emit
        e(raw("s_cmp_ge_u32 s2, 256")); e(branch("s_cbranch_scc1 L_k1_end"))
        e(raw("s_load_dwordx16 s[68:83], s[0:1], 0"))
        e(raw("s_load_dwordx4 s[84:87], s[0:1], 64"))
        e(raw("s_load_dwordx2 s[88:89], s[0:1], 96"))
        if s.prof:
            e(raw("s_memtime s[98:99]")); e(raw("s_memrealtime s[100:101]"))
        for t in ["s_and_b32 s90, s2, 7","s_lshr_b32 s91, s2, 3","s_lshr_b32 s92, s90, 2",
                  "s_lshr_b32 s93, s90, 1","s_and_b32 s93, s93, 1","s_lshl_b32 s93, s93, 3","s_lshr_b32 s94, s91, 2","s_add_u32 s93, s93, s94",
                  "s_and_b32 s95, s90, 1","s_lshl_b32 s95, s95, 3","s_and_b32 s96, s91, 3","s_lshl_b32 s97, s96, 1","s_add_u32 s95, s95, s97"]:
            e(raw(t))
        if s.rot:
            for t in ["s_lshl_b32 s61, s96, 1","s_add_u32 s61, s61, s94","s_cmp_ge_u32 s61, 7","s_cselect_b32 s97, 7, 0","s_sub_u32 s61, s61, s97",
                      "s_cmp_ge_u32 s61, 7","s_cselect_b32 s97, 7, 0","s_sub_u32 s61, s61, s97"]: e(raw(t))
        else: e(raw("s_mov_b32 s61, 0"))
        e(valu("v_lshrrev_b32",vT,6,vTID))
        L=V(56); I=V(57); G=V(58); t0=V(59); t1=V(60); t2=V(61); KB=V(62); RR=V(63)
        e(valu("v_and_b32",L,63,vTID))
        e(valu("v_readfirstlane_b32",sWAVE,vT))
        e(valu("v_and_b32",I,15,L)); e(valu("v_lshrrev_b32",G,4,L))
        e(valu("v_bfe_u32",KB,L,4,1)); e(valu("v_bfe_u32",RR,L,2,2))
        e(valu("v_bfe_u32",t0,L,1,1)); e(valu("v_xor_b32",t0,t0,KB)); e(valu("v_lshlrev_b32",t0,5,t0))
        e(valu("v_lshrrev_b32",t1,5,L)); e(valu("v_lshl_add_u32",t0,t1,6,t0))
        e(valu("v_and_b32",t1,1,L)); e(valu("v_lshl_add_u32",t2,t1,4,t0))
        e(salu("s_and_b32",sT0,sWAVE,1)); e(salu("s_lshl_b32",sT0,sT0,4)); e(salu("s_lshr_b32",sT1,sWAVE,1)); e(salu("s_lshl_b32",sT1,sT1,2)); e(salu("s_add_u32",sT0,sT0,sT1))
        e(valu("v_lshl_add_u32",t0,KB,3,RR)); e(valu("v_add_u32",t0,sT0,t0)); e(valu("v_lshl_add_u32",vWg,t0,13,t2))
        e(salu("s_mul_i32",sT0,sWAVE,48)); e(valu("v_add_u32",t0,sT0,I)); e(salu("s_movk_i32",sT1,896))
        e(valu("v_mul_lo_u32",t0,t0,sT1)); e(valu("v_lshl_add_u32",vXg[0],G,4,t0))
        e(valu("v_add_u32",vXg[1],14336,vXg[0])); e(valu("v_add_u32",vXg[2],28672,vXg[0]))
        e(salu("s_lshl_b32",sT0,sWAVE,12))
        for p in range(4):
            e(salu("s_add_u32",sWvK[p],sT0,p*1024-(p&1)*256)); e(salu("s_add_u32",sWvV[p],sT0,p*896)); e(salu("s_add_u32",sWvO[p],sT0,p*1024))
        e(salu("s_mov_b32",sU,0)); e(salu("s_mov_b32",sKs,"0xffffc000")); e(salu("s_mov_b32",sVs,"0xffffc000"))
        e(salu("s_mov_b32",sKw,K_BASE+32768)); e(salu("s_mov_b32",sVw,V_BASE+32768)); e(salu("s_mov_b32",sWw,49152))
        e(salu("s_mov_b32",sKr,K_BASE)); e(salu("s_mov_b32",sVr,V_BASE+32768)); e(salu("s_mov_b32",sWr,49152))
        e(salu("s_lshl_b32",sWk,sRho,1)); e(salu("s_add_u32",sWk,sWk,13)); e(salu("s_cmp_ge_u32",None,sWk,14)); e(salu("s_cselect_b32",sT0,14,0)); e(salu("s_sub_u32",sWk,sWk,sT0)); e(salu("s_lshl_b32",sWk,sWk,18))
        e(salu("s_add_u32",sXk,sRho,6)); e(salu("s_cmp_ge_u32",None,sXk,7)); e(salu("s_cselect_b32",sT0,7,0)); e(salu("s_sub_u32",sXk,sXk,sT0)); e(salu("s_lshl_b32",sXk,sXk,7))
        e(salu("s_mov_b32",sWu,0))
        e(raw("s_waitcnt lgkmcnt(0)","waitraw"))
        e(raw("s_cmp_eq_u32 s92, 0"))
        for d,b in [(68,78),(69,79),(70,80),(71,81),(72,82),(73,83),(74,84),(75,85),(76,86),(77,87)]:
            e(raw(f"s_cselect_b32 s{d}, s{d}, s{b}"))
        for t in [
            "s_lshl_b32 s97, s95, 9",
            "s_add_u32 s12, s74, s97","s_addc_u32 s13, s75, 0","s_and_b32 s13, s13, 0xffff","s_sub_u32 s14, 3670016, s97","s_mov_b32 s15, 0x20000",
            "s_mul_i32 s97, s93, 172032",
            "s_add_u32 s16, s68, s97","s_addc_u32 s17, s69, 0","s_and_b32 s17, s17, 0xffff","s_mov_b32 s18, 172032","s_mov_b32 s19, 0x20000",
            ]: e(raw(t))
        if s.touch:
            e(raw("s_mul_i32 s97, s96, 48")); e(salu("s_mul_i32",sT0,sWAVE,12)); e(raw("s_add_u32 s97, s97, s38")); e(raw("s_mul_i32 s97, s97, 896"))
            e(valu("v_lshlrev_b32",t0,7,L)); e(valu("v_add_u32",t0,S(97),t0))
            e(touch(V(64),t0,sX,0))
            e(valu("v_add_u32",t1,8192,t0)); e(Ins("v_cmp_gt_u32 vcc, 20, v56","valu",rd=rs(L),wr=VCC)); e(valu("v_mov_b32",V(65),"0x7fffffff")); e(nop(0))
            e(Ins(f"v_cndmask_b32 {rt(t1)}, v65, {rt(t1)}, vcc","valu",rd=rs(t1,V(65))|VCC,wr=rs(t1)))
            e(touch(V(64),t1,sX,0))
            e(raw("s_mul_i32 s97, s94, 56")); e(salu("s_mul_i32",sT0,sWAVE,14)); e(raw("s_add_u32 s97, s97, s38"))
            e(valu("v_lshrrev_b32",t0,2,L)); e(valu("v_add_u32",t0,S(97),t0)); e(valu("v_lshlrev_b32",t0,13,t0))
            e(valu("v_and_b32",t1,3,L)); e(valu("v_lshl_add_u32",t0,t1,7,t0))
            e(Ins("v_cmp_gt_u32 vcc, 56, v56","valu",rd=rs(L),wr=VCC)); e(nop(1))
            e(Ins(f"v_cndmask_b32 {rt(t0)}, v65, {rt(t0)}, vcc","valu",rd=rs(t0,V(65))|VCC,wr=rs(t0)))
            e(touch(V(64),t0,sW,0))
        for t in [
            "s_lshl_b32 s97, s93, 4","s_add_u32 s97, s97, s95","s_lshl_b32 s97, s97, 18",
            "s_add_u32 s4, s70, s97","s_addc_u32 s5, s71, 0","s_and_b32 s5, s5, 0xffff","s_mov_b32 s6, 524288","s_mov_b32 s7, 0x20000",
            "s_add_u32 s8, s72, s97","s_addc_u32 s9, s73, 0","s_and_b32 s9, s9, 0xffff","s_mov_b32 s10, 524288","s_mov_b32 s11, 0x20000",
            ]: e(raw(t))
        e(valu("v_lshl_add_u32",t0,KB,2,RR)); e(valu("v_lshl_add_u32",t0,t0,9,t2)); e(salu("s_lshl_b32",sT0,sWAVE,12)); e(valu("v_add_u32",vVg,sT0,t0))
        for q in range(2):
            e(salu("s_and_b32",sT0,sWAVE,1)); e(salu("s_lshl_b32",sT0,sT0,1)); e(salu("s_add_u32",sT0,sT0,q))
            e(salu("s_sub_u32",sT1,4,sT0)); e(salu("s_and_b32",sT1,sT1,3))
            e(valu("v_and_b32",t0,3,L)); e(valu("v_xor_b32",t0,sT1,t0)); e(valu("v_lshlrev_b32",t0,4,t0))
            e(valu("v_lshl_add_u32",t0,G,6,t0))
            e(salu("s_lshl_b32",sT0,sT0,2)); e(salu("s_lshr_b32",sT1,sWAVE,1)); e(salu("s_lshl_b32",sT1,sT1,4)); e(salu("s_add_u32",sT0,sT0,sT1))
            e(valu("v_add_u32",t1,sT0,RR)); e(valu("v_lshl_add_u32",vKg[q],t1,9,t0))
        if s.defer:
            for nm in s.prokv:
                s.emit_item(sc, s.item_K(('K',int(nm[1]))) if nm[0]=='K' else s.item_V(('V',int(nm[1]))))
        s.emit_item(sc,s.item_W(('W',0)))
        for x in s.flat(s.xpre()): e(x)
        for x in s.xloads(0,lambda k:('x',0,k)): e(x)
        s.emit_item(sc,s.item_W(('W',1)))
        for t in [
            "s_mul_i32 s97, s95, 229376",
            "s_add_u32 s56, s76, s97","s_addc_u32 s57, s77, 0","s_and_b32 s57, s57, 0xffff","s_mov_b32 s58, 458752","s_mov_b32 s59, 0x20000",
            "s_lshl_b32 s97, s92, 4","s_add_u32 s97, s97, s93","s_lshl_b32 s97, s97, 3","s_lshr_b32 s90, s95, 1","s_add_u32 s97, s97, s90",
            f"s_mul_i32 s97, s97, {PW}",
            "s_add_u32 s20, s88, s97","s_addc_u32 s21, s89, 0","s_and_b32 s21, s21, 0xffff",f"s_mov_b32 s22, {PW}","s_mov_b32 s23, 0x20000",
            ]: e(raw(t))
        s.emit_item(sc,s.item_W(('W',2)))
        s.emit_item(sc,s.item_W(('W',3)))
        if not s.defer:
            for n in range(3): s.emit_item(sc,s.item_K(('K',n)))
            for n in range(2): s.emit_item(sc,s.item_V(('V',n)))
        e(valu("v_lshrrev_b32",t0,2,I)); e(valu("v_sub_u32",t1,4,t0)); e(valu("v_and_b32",t1,3,t1)); e(valu("v_xor_b32",t1,t1,G))
        e(valu("v_lshlrev_b32",t1,4,t1)); e(valu("v_lshl_add_u32",t1,t0,11,t1)); e(valu("v_and_b32",t0,3,I)); e(valu("v_lshl_add_u32",vKl,t0,6,t1))
        e(valu("v_lshrrev_b32",t0,1,G)); e(valu("v_lshlrev_b32",t0,12,t0)); e(valu("v_lshl_add_u32",t0,KB,8,t0))
        e(valu("v_lshl_add_u32",t0,RR,6,t0)); e(valu("v_and_b32",t1,3,L)); e(valu("v_lshl_add_u32",t0,t1,3,t0))
        e(valu("v_lshl_add_u32",vVl[0],KB,5,t0))
        e(valu("v_xor_b32",t1,1,KB)); e(valu("v_lshl_add_u32",vVl[1],t1,5,t0))
        e(valu("v_add_u32",vKa,K_BASE,vKl))
        e(salu("s_mul_i32",sT0,sWAVE,43008)); e(valu("v_lshlrev_b32",t0,4,L)); e(valu("v_add_u32",vPst,sT0,t0))
        e(salu("s_lshr_b32",sT0,sWAVE,1)); e(salu("s_lshl_b32",sT0,sT0,4)); e(salu("s_and_b32",sT1,sWAVE,1)); e(salu("s_lshl_b32",sT1,sT1,3)); e(salu("s_add_u32",sT0,sT0,sT1))
        e(valu("v_lshl_add_u32",t0,KB,2,RR)); e(valu("v_add_u32",t0,sT0,t0)); e(salu("s_movk_i32",sT1,896)); e(valu("v_mul_lo_u32",t0,t0,sT1)); e(valu("v_add_u32",V(22),t0,t2))
        e(salu("s_mov_b32",sub(sC2,0),hex(f32bits(SCALE)))); e(salu("s_mov_b32",sub(sC2,1),hex(f32bits(SCALE))))
        e(salu("s_mov_b32",sTH,hex(f32bits(THRESH))))
        e(salu("s_lshl_b32",sNgC,sRho,7))
        e(salu("s_mov_b32",sub(sDum,0),sub(sX,0))); e(salu("s_mov_b32",sub(sDum,1),sub(sX,1))); e(salu("s_mov_b32",sub(sDum,2),0)); e(salu("s_mov_b32",sub(sDum,3),"0x20000"))
        if s.prof:
            e(raw("s_mov_b32 s96, s88")); e(raw("s_mov_b32 s97, s89")); e(raw("s_mov_b32 s90, s98")); e(raw("s_mov_b32 s91, s100"))

    def rare(s, sc, buf, name, ret):
        e=sc.emit
        e(label(name)); e(nop(7)); e(nop(3))
        P0=208
        m=[V(P0+j) for j in range(3)]; tm=[V(P0+3+j) for j in range(3)]; al=[V(P0+6+j) for j in range(3)]
        for j in range(3):
            a=SB(buf,0,j); b=SB(buf,1,j)
            e(valu("v_max3_f32",m[j],sub(a,0),sub(a,1),sub(a,2)))
            e(valu("v_max3_f32",m[j],m[j],sub(a,3),sub(b,0)))
            e(valu("v_max3_f32",m[j],m[j],sub(b,1),sub(b,2)))
            e(valu("v_max_f32",m[j],m[j],sub(b,3)))
        for x in s.allreduce("v_max_f32",m,tm): e(x)
        for j in range(3): e(valu("v_max_f32",m[j],0,m[j]))
        for j in range(3):
            for kt in range(2):
                for r in range(4): e(valu("v_sub_f32",sub(SB(buf,kt,j),r),sub(SB(buf,kt,j),r),m[j]))
            for r in range(4): e(valu("v_sub_f32",sub(CI(j),r),sub(CI(j),r),m[j]))
            e(Ins(f"v_exp_f32_e64 {rt(al[j])}, -{rt(m[j])}","trans",rd=rs(m[j]),wr=rs(al[j])))
        for j in range(3): e(valu("v_mul_f32",vL[j],vL[j],al[j]))
        for T in range(16):
            for j in range(3):
                t=[V(P0+r) for r in range(4)] if False else [V(P0+0),V(P0+1),V(P0+2),V(P0+3)]
                t=[V(P0+9),V(P0+10),V(P0+11),vTMP]
                for r in range(4): e(accrd(t[r],sub(OA(T,j),r)))
                for r in range(4): e(valu("v_mul_f32",t[r],t[r],al[j]))
                for r in range(4): e(accwr(sub(OA(T,j),r),t[r]))
        e(nop(3))
        e(branch(f"s_branch {ret}"))

    def build(s):
        s._fl=[]
        sc=Sched(); s.prologue(sc)
        if s.fine: sc.emit(raw('s_mov_b32 s3, 0')); sc.emit(raw('v_mov_b32 v23, 0','valu')); sc.emit(raw('v_mov_b32 v21, 0','valu'))
        pro=sc.out
        sc=Sched(); e=sc.emit
        e(label("L_k1_unit"))
        itW=lambda k:(lambda en:('W',14*en['u']+k))
        itK=lambda n:(lambda en:('K',16*en['u']+n))
        xt=lambda k:(lambda en:('x',en['u'],k))
        e(wait_vm(itW(0),xt(0)))
        e(barrier())
        s.stamp(sc,0,True)
        for x in s.adv_rd('W'): e(x)
        for x in s.addr_ops('W'): e(x)
        for f in range(3):
            for x in s.rdV(f,itW(0),"Wn"): e(x)
        e(wait_lgkm(("Wn",0,0),("Wn",0,1)))
        kmaj=[(kt,t) for kt in range(2) for t in range(8)]
        tmaj=[(kt,t) for t in range(8) for kt in range(2)]
        qconv=[]; convdone={}
        for k in range(14):
            mf=[mfma(QA(T,j),VF(T),XF(k,j),0 if k==0 else QA(T,j)) for T in range(16) for j in range(3)]
            xe=[]; xp=[]
            if k%2==0 and k<=10:
                xl=s.xloads(k+2,xt); xe=xl[0::2]; xp=s.xpre(); xrest=xl[1::2]
            elif k%2==1 and k<=11:
                xe=xrest
            late=s.item_W(itW(k+3)) if k>=1 else None
            xs=[]
            if k==11:
                xs=[(0,salu("s_add_u32",sWu,sWu,512)),
                    (15,salu("s_cmp_eq_u32",None,sU,1)),(15,salu("s_cselect_b32",sub(sW,2),0,sub(sW,2)))]
            if s.defer and k in s.kvpos:
                its=[]
                for nm in s.kvpos[k]:
                    its.append(s.item_K(('K',int(nm[1]))) if nm[0]=='K' else s.item_V(('V',int(nm[1]))))
                e(salu("s_cmp_eq_u32",None,sU,0)); e(branch(f"s_cbranch_scc0 L_k1_skip{k}"))
                n0=len(sc.out)
                for it in its: s.emit_item(sc,it)
                e(branch(f"s_branch L_k1_join{k}"))
                for x in sc.out[n0:]: s.only_u0.add(id(x))
                e(label(f"L_k1_skip{k}"))
                n0=len(sc.out)
                for q in range(4*len(its)): e(touch(V(1),vKa,sDum,0))
                for x in sc.out[n0:]: s.only_u1.add(id(x))
                e(label(f"L_k1_join{k}"))
            queues=[]
            if k==13:
                groups=[]
                for t in range(8):
                    for j in range(3):
                        last=mf[(2*t+1)*3+j]
                        groups.append((t,j,last,s.conv_ops(t,j)))
                n=len(groups)
                for i in range(n+2):
                    if i<n:
                        t,j,last,(m,c,p1,p2)=groups[i]
                        for x in m: qconv.append(Filler(x,[last]))
                        for x in c: qconv.append(Filler(x))
                    if 0<=i-1<n:
                        t,j,last,(m,c,p1,p2)=groups[i-1]
                        for x in p1: qconv.append(Filler(x))
                    if 0<=i-2<n:
                        t,j,last,(m,c,p1,p2)=groups[i-2]
                        for x in p2: qconv.append(Filler(x))
                        convdone[(t,j)]=p2
                queues=[qconv]
            if k<13:
                s.step(sc,'W','W',mf,None,itW(k),itW(k+1),xearly=xe,xpre=xp,late=late,extra_shadow=xs,
                       vmwait=[itW(k+1),xt(k+1)],qfree=queues,qds=queues)
            else:
                s.step(sc,'W','K',mf,None,itW(k),itK(0),late=late,extra_shadow=xs,
                       vmwait=[itK(0)],qfree=queues,qds=queues,nxt_korder=tmaj,keep_addr=True)
        s.stamp(sc,1,True)
        mf=[]
        for f,(kt,t) in enumerate(tmaj):
            for j in range(3): mf.append(mfma(SB(0,kt,j),KF(f),QF(t,j),0 if t==0 else SB(0,kt,j)))
        def needs0(gi):
            f,j=divmod(gi,3); kt,t=tmaj[f]
            nd=list(convdone[(t,j)])
            if t==0 and kt==1: nd+=convdone[(1,j)]
            return nd
        s.step(sc,'K','K',mf,tmaj,itK(0),itK(1),late=s.item_W(itW(17)),
               vmwait=[itK(1)],qfree=[qconv],qds=[qconv],needs=needs0,nxt_korder=kmaj)
        assert not qconv
        m=[V(208+j) for j in range(3)]; tm=[V(211+j) for j in range(3)]
        e(barrier())
        s.emit_item(sc,s.item_K(itK(3)))
        mv=[]
        for i4 in range(16,24):
            for r in range(4): mv.append(accrd(sub(PARK_A(i4),r),sub(PARK_T(i4),r)))
        for j in range(3):
            a=SB(0,0,j); e(valu("v_max3_f32",m[j],sub(a,0),sub(a,1),sub(a,2)))
        for j in range(3):
            a=SB(0,0,j); b=SB(0,1,j); e(valu("v_max3_f32",m[j],m[j],sub(a,3),sub(b,0)))
        for j in range(3):
            b=SB(0,1,j); e(valu("v_max3_f32",m[j],m[j],sub(b,1),sub(b,2)))
        for j in range(3):
            b=SB(0,1,j); e(valu("v_max_f32",m[j],m[j],sub(b,3)))
        for x in s.allreduce("v_max_f32",m,tm): e(x)
        for j in range(3):
            for r in range(4): e(valu("v_sub_f32",sub(CI(j),r),0,m[j]))
        for j in range(3): e(valu("v_mov_b32",vL[j],0))
        for j in range(3):
            for kt in range(2):
                for r in range(4): e(valu("v_sub_f32",sub(SB(0,kt,j),r),sub(SB(0,kt,j),r),m[j]))
        s.stamp(sc,2,True)
        def half(sc,buf,first=False,extraq=None):
            nb=1-buf
            iK=lambda d:(lambda en:('K',16*en['u']+en['i']+d))
            iV=lambda d:(lambda en:('V',16*en['u']+en['i']+d))
            qe,qc,pd=s.sm_exp(buf)
            mf=[]
            for f,(kt,t) in enumerate(kmaj):
                for j in range(3): mf.append(mfma(SB(nb,kt,j),KF(f),QF(t,j),CI(j) if t==0 else SB(nb,kt,j)))
            xq=[extraq] if extraq is not None else []
            s.step(sc,'K','V',mf,kmaj,iK(1),iV(0),vmwait=[iV(0)],qfree=[qe,qc]+xq,qds=[qc]+xq)
            qa=s.sm_add(buf); qm=s.sm_max(nb)
            mf=[mfma(OA(T,j),VF(T),PF(j),0 if first else OA(T,j)) for T in range(16) for j in range(3)]
            def needs(gi):
                nd=list(pd[gi]) if gi<3 else []
                if gi==0 and extraq is not None: nd+=[f.ins for f in extraq]
                return nd
            s.step(sc,'V','K',mf,None,iV(0),iK(2),early=s.item_V(iV(2)),late=s.item_K(iK(4)),
                   vmwait=[iK(2)],qfree=[qe,qc,qm,qa]+xq,qds=[qc,qm,qa]+xq,needs=needs,nxt_korder=kmaj)
            s.flush_all(sc,[qe,qc,qa,qm])
            return nb
        nb=half(sc,0,first=True,extraq=[Filler(x) for x in mv])
        e(branch(f"s_cbranch_vccnz L_k1_rareF")); e(label("L_k1_retF"))
        e(salu("s_mov_b32",sCNT,7))
        wblk=sc.out
        sc=Sched(); sc.emit(label("L_k1_loop"))
        half(sc,1); sc.emit(branch("s_cbranch_vccnz L_k1_rare0")); sc.emit(label("L_k1_ret0"))
        hB=sc.out
        sc=Sched()
        half(sc,0); sc.emit(branch("s_cbranch_vccnz L_k1_rare1")); sc.emit(label("L_k1_ret1"))
        sc.emit(salu("s_sub_u32",sCNT,sCNT,1)); sc.emit(salu("s_cmp_lg_u32",None,sCNT,0)); sc.emit(branch("s_cbranch_scc1 L_k1_loop"))
        hA=sc.out
        sc=Sched(); e=sc.emit
        s.stamp(sc,3,True)
        iV=lambda d:(lambda en:('V',16*en['u']+15+d))
        e(wait_vm(iV(0))); e(barrier())
        for x in s.adv_rd('V'): e(x)
        for x in s.addr_ops('V'): e(x)
        for f in range(3):
            for x in s.rdV(f,iV(0),"Vn"): e(x)
        qe,qc,pd=s.sm_exp(1)
        for j in range(3):
            for _ in range(8): e(qe.pop(0).ins)
            for _ in range(4): e(qc.pop(0).ins)
        e(wait_lgkm(("Vn",0,0),("Vn",0,1)))
        qa=s.sm_add(1)
        mf=[mfma(OA(T,j),VF(T),PF(j),OA(T,j)) for T in range(16) for j in range(3)]
        s.step(sc,'V',None,mf,None,iV(0),None,early=s.item_V(iV(2)),nobarrier=True,qfree=[qa],qds=[qa])
        s.flush_all(sc,[qa])
        s.stamp(sc,4,True)
        tm=[V(208+j) for j in range(3)]
        for x in s.allreduce("v_add_f32",vL,tm): e(x)
        RI=[V(220+2*j,2) for j in range(3)]
        for j in range(3): e(trans("v_rcp_f32",sub(RI[j],0),vL[j]))
        for j in range(3): e(valu("v_mov_b32",sub(RI[j],1),sub(RI[j],0)))
        gi=0
        xl=None
        for t in range(8):
            for j in range(3):
                base=160+8*(gi%6); T8=[V(base+r) for r in range(8)]
                for r in range(4): e(accrd(T8[r],sub(OA(2*t,j),r)))
                for r in range(4): e(accrd(T8[4+r],sub(OA(2*t+1,j),r)))
                for r in range(4): e(valu("v_pk_mul_f32",V(base+2*r,2),V(base+2*r,2),RI[j]))
                for r in range(4): e(valu("v_cvt_pk_bf16_f32",sub(QF(t,j),r),T8[2*r],T8[2*r+1]))
                gi+=1
            if t==1:
                for x in s.flat(s.xpre()): e(x)
                for x in s.xloads(0,lambda k:(lambda en:('x',en['u']+1,k))): e(x)
        s.stamp(sc,5,True)
        e(salu("s_cmp_eq_u32",None,sU,1)); e(branch("s_cbranch_scc1 L_k1_op"))
        epi=sc.out
        sc=Sched(); e=sc.emit
        for i4 in range(24):
            t,j=divmod(i4,3)
            for r in range(4): e(accwr(sub(PARK_T(i4),r),sub(QF(t,j),r)))
        e(salu("s_mov_b32",sU,1)); e(branch("s_branch L_k1_unit"))
        park=sc.out
        sc=Sched(); e=sc.emit
        e(label("L_k1_op"))
        for p in range(4): e(valu("v_add_u32",vWo[p],p*28672,V(22)))
        e(salu("s_mov_b32",sWw,49152)); e(salu("s_mov_b32",sWr,49152))
        def advN(dst,src): return [salu("s_add_u32",dst,src,128),salu("s_cmp_eq_u32",None,dst,896),salu("s_cselect_b32",dst,0,dst)]
        for x in advN(sNgN,sNgC): e(x)
        e(wait_fixed(vm=0)); e(barrier())
        for q in range(3):
            s.emit_item(sc,s.item_O(('P',q),q*114688,sNgC))
        itP=lambda d:(lambda en:('P',4*en['g']+d))
        e(wait_vm(('P',0))); e(barrier())
        for x in s.adv_rd('W'): e(x)
        for x in s.addr_ops('W'): e(x)
        ksmaj=list(range(16))
        Tmaj=[ks*4+T for T in range(4) for ks in range(4)]
        for f in range(3):
            for x in s.rdV(f,('P',0),"Wn"): e(x)
        e(wait_lgkm(("Wn",0,0),("Wn",0,1)))
        e(salu("s_mov_b32",sCNT,7)); e(salu("s_mov_b32",sPs,"0x40000000")); e(salu("s_mov_b32",sPs2,"0x40000000"))
        s.stamp(sc,13)
        oppro=sc.out
        def Bop(kq,ks,j):
            hh=kq>>1; t=4*(kq&1)+ks
            return PARK_A(t*3+j) if hh==0 else QF(t,j)
        sc=Sched(); e=sc.emit
        e(label("L_k1_oploop"))
        def cv(h,j):
            a=OPA(2*h,j); b=OPA(2*h+1,j); d=OPK(h,j)
            return [valu("v_cvt_pk_bf16_f32",sub(d,0),sub(a,0),sub(a,1)),valu("v_cvt_pk_bf16_f32",sub(d,1),sub(a,2),sub(a,3)),
                    valu("v_cvt_pk_bf16_f32",sub(d,2),sub(b,0),sub(b,1)),valu("v_cvt_pk_bf16_f32",sub(d,3),sub(b,2),sub(b,3))]
        def stores(h): return [vstore(OPK(h,j),vPst,sP,(sPs if j<2 else sPs2),((j*2048)%4096)+h*1024,tag='p',mod=s.stmod) for j in range(3)]
        carry_cv=[]
        for j in range(3): carry_cv+=cv(1,j)[2:]
        carry_st=stores(1)
        for kq in range(4):
            fo = Tmaj if kq==3 else ksmaj
            nfo = Tmaj if kq==2 else ksmaj
            mf=[]
            for f in range(16):
                ks,T=divmod(fo[f],4)
                firstk = (kq==0 and ks==0)
                for j in range(3): mf.append(mfma(OPA(T,j),VF(f),Bop(kq,ks,j),0 if firstk else OPA(T,j)))
            kq2=(kq+3)&3
            late=s.item_O(itP(kq+3),kq2*114688,sNgC if kq==0 else sNgN)
            q=[]; xs=[]; xe=[]; nd=None; XG=(5,14,23)
            if kq==0:
                q=[Filler(x) for x in carry_cv]
                def nd(gi,q0=list(carry_cv)):
                    return q0 if gi==9 else ()
                xe=carry_st; XG=(11,17,23)
            if kq==1:
                xs=[(12,salu("s_cmp_eq_u32",None,sCNT,1)),(12,salu("s_cselect_b32",sub(sWo,2),0,sub(sWo,2))),
                    (13,salu("s_mul_i32",sPs,sNgC,48)),(15,salu("s_add_u32",sPs2,sPs,4096))]
            if kq==3:
                c0=[]
                for j in range(3): c0+=[Filler(x,[mf[(7*3)+j]]) for x in cv(0,j)]
                c2=[]
                for j in range(3): c2+=[Filler(x,[mf[(11*3)+j]]) for x in cv(1,j)[:2]]
                q=c0+c2
                xe=stores(0); XG=(38,41,44)
                def nd(gi,c=[f.ins for f in c0]):
                    return c if gi==38 else ()
                adv=advN(sNgN,sNgN)
                xs=[(42,salu("s_mov_b32",sNgC,sNgN)),(43,adv[0]),(45,adv[1]),(45,adv[2])]
            s.step(sc,'W','W',mf,None,itP(kq),itP(kq+1),late=late,extra_shadow=xs,xearly=xe,XG=XG,needs=nd,
                   vmwait=[itP(kq+1)],qfree=[q],qds=[q],forder=fo,nxt_forder=nfo,LG=(29,32,35,47) if kq==3 else (29,35,41,47))
            s.flush_all(sc,[q])
        e(salu("s_sub_u32",sCNT,sCNT,1)); e(salu("s_cmp_lg_u32",None,sCNT,0)); e(branch("s_cbranch_scc1 L_k1_oploop"))
        for x in [y for j in range(3) for y in cv(1,j)[2:]]: e(x)
        for x in stores(1): e(x)
        s.stamp(sc,14)
        e(branch("s_branch L_k1_fin" if s.prof else "s_branch L_k1_end"))
        oploop=sc.out
        sc=Sched(); s.rare(sc,1,"L_k1_rareF","L_k1_retF"); s.rare(sc,0,"L_k1_rare0","L_k1_ret0"); s.rare(sc,1,"L_k1_rare1","L_k1_ret1"); rare=sc.out
        endb=[]
        if s.prof:
            endb=[label("L_k1_fin"),wait_fixed(vm=0),raw("s_memtime s[98:99]"),raw("s_memrealtime s[100:101]"),raw("s_waitcnt lgkmcnt(0)"),
                  raw("s_mov_b32 s4, s98"),raw("s_mov_b32 s5, s100"),
                  raw("s_add_u32 s8, s96, 0x8000000"),raw("s_addc_u32 s9, s97, 0"),raw("s_and_b32 s9, s9, 0xffff"),raw("s_mov_b32 s10, 0x100000"),raw("s_mov_b32 s11, 0x20000"),
                  raw("s_lshl_b32 s3, s2, 10"),raw("s_lshl_b32 s38, s24, 8"),raw("s_add_u32 s3, s3, s38"),raw("v_mov_b32 v1, s3","valu")]
            regs=list(range(66,96))+[4,5]
            for i,r in enumerate(regs):
                endb+=[raw(f"v_mov_b32 v2, s{r}","valu"),raw(f"buffer_store_dword v2, v1, s[8:11], 0 offen offset:{4*i}","valu"),raw("s_nop 1")]
            if s.fine:
                endb+=[raw("v_and_b32 v2, 63, v0","valu"),raw("v_lshlrev_b32 v2, 2, v2","valu"),raw("s_lshl_b32 s3, s2, 11"),raw("s_lshl_b32 s38, s24, 9"),raw("s_add_u32 s3, s3, s38"),
                       raw("s_add_u32 s3, s3, 0x40000"),raw("v_add_u32 v2, s3, v2","valu"),raw("buffer_store_dword v23, v2, s[8:11], 0 offen","valu"),
                       raw("buffer_store_dword v21, v2, s[8:11], 0 offen offset:256","valu")]
            endb+=[raw("s_waitcnt vmcnt(0)")]
        endb+=[label("L_k1_end"),wait_fixed(vm=0),raw("s_endpgm","branch")]
        trace=[(x,{'u':0}) for x in pro]
        for u in range(2):
            trace+=[(x,{'u':u,'i':0}) for x in wblk if not ((u!=0 and id(x) in s.only_u0) or (u!=1 and id(x) in s.only_u1))]
            for it in range(7):
                trace+=[(x,{'u':u,'i':2*it+1}) for x in hB]
                trace+=[(x,{'u':u,'i':2*it+2}) for x in hA]
            trace+=[(x,{'u':u}) for x in epi]
            if u==0: trace+=[(x,{'u':u}) for x in park]
        trace+=[(x,{'u':1}) for x in oppro]
        for g in range(7): trace+=[(x,{'g':g}) for x in oploop]
        resolve_waits(trace)
        errs=check(trace)
        s.trace=trace
        code=pro+wblk+hB+hA+epi+park+oppro+oploop+rare+endb
        return code,errs

if __name__=="__main__":
    k=K1F(); code,errs=k.build()
    print(len(code),"instructions;",len(errs),"errors")
    for x in errs[:40]: print(x)
```

```python
from ir import *
from sched import *

vTID=V(0); vT=V(1)
vWl=V(2); vWa=V(3); vOg=[V(4),V(5),V(6)]; vWg=[V(8+m) for m in range(7)]; vOut=V(15); vOut2=V(7); vTch=V(134); vDum=V(135)
def AF(f): return V(16+4*(f&3),4)
def OF(slot,e,jj): return V(32+(((slot&3)*2+e)*3+jj)*4,4)
def ACC(T,jj): return A((T*3+jj)*4,4)
sWo=S(4,4); sO=S(8,4); sOut=S(12,4)
sWAVE=S(24); sWs=S(26); sOs=S(27); sWw=S(29); sWr=S(32); sCNT=S(37); sT0=S(38); sT1=S(39); sWv=S(40); sEND=S(44); sTch=S(16,4); sTs=S(47); sTd=S(48); sTlim=S(49)
SLOT=28672; NSLOT=5; RING=SLOT*NSLOT

class K2:
    def __init__(s, omod="", wmod="", outmod="", prof=False, noO=False, noW=False, osame=False, rotm=0, rotn=0, P=8, tmod=""):
        s.P=P; s.tmod=tmod
        s.rotm=rotm; s.rotn=rotn
        s.noO=noO; s.noW=noW; s.osame=osame
        s.omod=omod; s.wmod=wmod; s.outmod=outmod; s.prof=prof
    def stamp(s, sc, idx):
        if not s.prof: return
        sc.emit(raw("s_memtime s[66:67]")); sc.emit(raw("s_memrealtime s[68:69]"))
        sc.emit(wait_fixed(lgkm=0))
        sc.emit(raw(f"s_mov_b32 s{70+2*idx}, s66")); sc.emit(raw(f"s_mov_b32 s{71+2*idx}, s68"))
    def item_W(s,item):
        L=[]
        for m in range(7):
            L.append((salu("s_add_u32","m0",sWw,m*1024), dma(vWg[m],sWo,sWs,0,item,lambda e,it=item:('W',ev(it,e)[1]%NSLOT),s.wmod)))
        return L
    def adv_W(s):
        return [[salu("s_add_u32",sWs,sWs,57344)],[salu("s_cmp_eq_u32",None,sWs,32*57344),salu("s_cselect_b32",sWs,0,sWs)],
                [salu("s_add_u32",sWw,sWw,SLOT)],[salu("s_cmp_ge_u32",None,sWw,sEND),salu("s_cselect_b32",sWw,sWv,sWw)]]
    def rd(s,f,item,tagp):
        e,T=divmod(f,7); r=AF(f); off=e*7168+T*32
        return [dsread("ds_read_b64_tr_b16",sub(r,0,2),vWa,off,tag=(tagp,f,0),item=item),
                dsread("ds_read_b64_tr_b16",sub(r,2,2),vWa,off+3584,tag=(tagp,f,1),item=item)]
    def oloads(s,sl,slotfn):
        L=[]
        for e in range(2):
            for jj in range(3):
                L.append(vload(OF(sl,e,jj),vOg[jj],sO,sOs,e*1024,tag=(lambda en,f=slotfn:('O',f(en))),mod=s.omod))
        return L
    def build(s):
        sc=Sched(); e=sc.emit
        e(raw("s_cmp_ge_u32 s2, 256")); e(branch("s_cbranch_scc1 L_k2_end"))
        s.stamp(sc,0)
        e(raw("s_load_dwordx2 s[56:57], s[0:1], 32")); e(raw("s_load_dwordx2 s[58:59], s[0:1], 72"))
        e(raw("s_load_dwordx2 s[60:61], s[0:1], 80")); e(raw("s_load_dwordx2 s[62:63], s[0:1], 96"))
        for t in ["s_and_b32 s80, s2, 7","s_lshr_b32 s81, s2, 3","s_lshr_b32 s82, s80, 2",
                  "s_and_b32 s83, s81, 3",
                  "s_and_b32 s84, s80, 3","s_lshl_b32 s84, s84, 3","s_lshr_b32 s85, s81, 2","s_add_u32 s84, s84, s85",
                  "s_lshr_b32 s85, s84, 1","s_and_b32 s86, s84, 1"]:
            e(raw(t))
        e(valu("v_lshrrev_b32",vT,6,vTID)); e(nop(0)); e(valu("v_readfirstlane_b32",sWAVE,vT))
        L=V(128); I=V(129); G=V(130); t0=V(131); t1=V(132); t2=V(133)
        e(valu("v_and_b32",L,63,vTID)); e(valu("v_and_b32",I,15,L)); e(valu("v_lshrrev_b32",G,4,L))
        e(raw("s_waitcnt lgkmcnt(0)","waitraw"))
        e(raw("s_cmp_eq_u32 s82, 0")); e(raw("s_cselect_b32 s64, s56, s58")); e(raw("s_cselect_b32 s65, s57, s59"))
        for t in ["s_mov_b32 s4, s64","s_and_b32 s5, s65, 0xffff","s_mov_b32 s6, 3670016","s_mov_b32 s7, 0x20000",
                  "s_lshl_b32 s87, s82, 4","s_add_u32 s87, s87, s85","s_mul_i32 s87, s87, 1572864","s_mul_i32 s88, s86, 786432","s_add_u32 s87, s87, s88",
                  "s_add_u32 s8, s62, s87","s_addc_u32 s9, s63, 0","s_and_b32 s9, s9, 0xffff","s_mov_b32 s10, 786432","s_mov_b32 s11, 0x20000",
                  "s_mov_b32 s12, s60","s_and_b32 s13, s61, 0xffff","s_mov_b32 s14, 5505024","s_mov_b32 s15, 0x20000"]:
            e(raw(t))
        if s.noO: e(raw("s_mov_b32 s10, 0"))
        if s.noW: e(raw("s_mov_b32 s6, 0"))
        e(salu("s_lshr_b32",sT0,sWAVE,1)); e(salu("s_lshl_b32",sT0,sT0,6)); e(salu("s_and_b32",sT1,sWAVE,1)); e(salu("s_add_u32",sT0,sT0,sT1))
        e(salu("s_mul_i32",sT0,sT0,32*896)); e(raw("s_mul_i32 s39, s83, 224")); e(salu("s_add_u32",sT0,sT0,sT1))
        e(salu("s_mov_b32",S(41),4682))
        for m in range(7):
            e(valu("v_add_u32",t0,64*m,L))
            e(valu("v_mul_lo_u32",t1,t0,S(41))); e(valu("v_lshrrev_b32",t1,16,t1))
            e(valu("v_mul_u32_u24",t2,14,t1)); e(valu("v_sub_u32",t2,t0,t2))
            e(valu("v_mul_u32_u24",t1,896,t1)) if False else None
            e(salu("s_movk_i32",S(42),896)) if m==0 else None
            e(valu("v_mul_lo_u32",t1,t1,S(42))); e(valu("v_lshl_add_u32",t1,t2,4,t1)); e(valu("v_add_u32",vWg[m],sT0,t1))
        e(salu("s_and_b32",sT0,sWAVE,1)); e(salu("s_mul_i32",sT0,sT0,3*131072)); e(salu("s_lshr_b32",sT1,sWAVE,1)); e(salu("s_lshl_b32",sT1,sT1,16)); e(salu("s_add_u32",sT0,sT0,sT1))
        e(valu("v_lshlrev_b32",t0,4,L)); e(valu("v_add_u32",vOg[0],sT0,t0))
        e(valu("v_add_u32",vOg[1],131072,vOg[0])); e(valu("v_add_u32",vOg[2],262144,vOg[0]))
        e(raw("s_lshr_b32 s45, s81, 2")); e(raw(f"s_mul_i32 s45, s45, {s.rotm}")); e(raw(f"s_mul_i32 s46, s83, {s.rotn}"))
        e(raw("s_add_u32 s45, s45, s46")); e(raw("s_and_b32 s45, s45, 31"))
        e(salu("s_mul_i32",sWs,S(45),57344)); e(salu("s_lshl_b32",sOs,S(45),11))
        e(salu("s_mul_i32",sWv,sWAVE,7168)); e(salu("s_mov_b32",sWw,sWv)); e(salu("s_add_u32",sEND,sWv,RING))
        if s.P:
            e(salu("s_cmp_lt_u32",None,sWAVE,2))
            for i in range(4): e(salu("s_cselect_b32",sub(sTch,i),sub(sWo,i),sub(sO,i)))
            e(salu("s_mov_b32",sub(sTch,3),"0x20000"))
            e(salu("s_mov_b32",sTd,2048)); e(salu("s_cselect_b32",sTd,57344,sTd))
            e(raw("s_mul_i32 s50, s81, 14")); e(valu("v_add_u32",t0,S(50),L)); e(valu("v_lshlrev_b32",t0,7,t0))
            e(salu("s_and_b32",S(51),sWAVE,1)); e(salu("s_mul_i32",S(52),S(51),64*32*896)); e(valu("v_add_u32",t0,S(52),t0))
            e(Ins("v_cmp_gt_u32 vcc, 14, v128","valu",rd=rs(L),wr=VCC)); e(valu("v_mov_b32",t1,"0x7fffffff")); e(nop(0))
            e(Ins(f"v_cndmask_b32 {rt(t0)}, {rt(t1)}, {rt(t0)}, vcc","valu",rd=rs(t0,t1)|VCC,wr=rs(t0)))
            e(raw("s_mul_i32 s50, s83, 48")); e(salu("s_mul_i32",S(52),S(51),24)); e(raw("s_add_u32 s50, s50, s52"))
            e(valu("v_add_u32",t2,S(50),L)); e(valu("v_and_b32",vTch,15,t2)); e(valu("v_lshlrev_b32",vTch,7,vTch))
            e(valu("v_bfe_u32",vDum,t2,4,1)); e(valu("v_lshl_add_u32",vTch,vDum,16,vTch))
            e(valu("v_lshrrev_b32",vDum,5,t2)); e(valu("v_lshl_add_u32",vTch,vDum,17,vTch))
            e(Ins("v_cmp_gt_u32 vcc, 24, v128","valu",rd=rs(L),wr=VCC)); e(nop(1))
            e(Ins(f"v_cndmask_b32 {rt(vTch)}, {rt(t1)}, {rt(vTch)}, vcc","valu",rd=rs(vTch,t1)|VCC,wr=rs(vTch)))
            e(salu("s_cmp_lt_u32",None,sWAVE,2)); e(raw("s_cselect_b64 vcc, -1, 0")); e(nop(1))
            e(Ins(f"v_cndmask_b32 {rt(vTch)}, {rt(vTch)}, {rt(t0)}, vcc","valu",rd=rs(vTch,t0)|VCC,wr=rs(vTch)))
            e(salu("s_mul_i32",sTs,sTd,3))
        for sl in range(4):
            if sl<3:
                for x in s.oloads(sl,lambda en,sl=sl:sl): e(x)
                e(salu("s_add_u32",sOs,sOs,2048)); e(salu("s_and_b32",sOs,sOs,0xffff))
            if sl>0:
                for grp in s.adv_W():
                    for x in grp: e(x)
            for m,d in s.item_W(('W',sl)): e(m); e(d)
        if s.P:
            for q in range(3,s.P):
                e(touch(vDum,vTch,sTch,sTs,mod=s.tmod))
                if q<s.P-1: e(salu("s_add_u32",sTs,sTs,sTd))
        e(valu("v_lshrrev_b32",t0,2,L)); e(salu("s_movk_i32",S(43),224)); e(valu("v_mul_lo_u32",t0,t0,S(43)))
        e(valu("v_and_b32",t1,3,L)); e(valu("v_lshl_add_u32",t0,t1,3,t0))
        e(salu("s_lshr_b32",sT0,sWAVE,1)); e(salu("s_mul_i32",sT0,sT0,14336)); e(valu("v_add_u32",vWl,sT0,t0))
        e(raw("s_mul_i32 s87, s85, 192")); e(raw("s_mul_i32 s88, s86, 96")); e(raw("s_add_u32 s87, s87, s88"))
        e(salu("s_and_b32",sT0,sWAVE,1)); e(salu("s_mul_i32",sT0,sT0,48)); e(raw("s_add_u32 s87, s87, s38"))
        e(valu("v_add_u32",t0,S(87),I)); e(salu("s_movk_i32",S(43),1792)); e(valu("v_mul_lo_u32",t0,t0,S(43)))
        e(raw("s_mul_i32 s88, s82, 896")); e(raw("s_mul_i32 s89, s83, 224")); e(raw("s_add_u32 s88, s88, s89"))
        e(valu("v_add_u32",t0,S(88),t0)); e(valu("v_lshl_add_u32",vOut,G,4,t0)); e(valu("v_lshl_add_u32",vOut2,G,3,t0))
        for r in range(84): e(accwr(A(r),0))
        e(salu("s_mov_b32",sWr,0))
        e(wait_vm(('W',0),('O',0))); e(barrier())
        if s.prof:
            e(raw("s_mov_b32 s90, s70")); e(raw("s_mov_b32 s91, s71"))
        s.stamp(sc,1)
        e(valu("v_mov_b32",vWa,vWl))
        for f in range(3):
            for x in s.rd(f,('W',0),"n"): e(x)
        e(wait_lgkm(("n",0,0),("n",0,1)))
        e(salu("s_mov_b32",sCNT,8))
        pro=sc.out
        sc=Sched(); sc.emit(label("L_k2_loop"))
        for u in range(4):
            sig=lambda en,u=u:4*en['it']+u
            cur=lambda en,u=u:('W',4*en['it']+u); nxt=lambda en,u=u:('W',4*en['it']+u+1)
            shadow=[[] for _ in range(42)]; fixed=[[] for _ in range(42)]
            mf=[mfma(ACC(f%7,jj),AF(f+14*u),OF(u,f//7,jj),ACC(f%7,jj)) for f in range(14) for jj in range(3)]
            def rdf(f,item,tag,ring):
                ee,T=divmod(f,7); r=AF(ring); off=ee*7168+T*32
                return [dsread("ds_read_b64_tr_b16",sub(r,0,2),vWa,off,tag=(tag,f,0),item=item),
                        dsread("ds_read_b64_tr_b16",sub(r,2,2),vWa,off+3584,tag=(tag,f,1),item=item)]
            for f in range(3,14):
                for q,x in enumerate(rdf(f,cur,"c",14*u+f)): fixed[3*(f-3)+q].append(x)
            for f in range(1,14):
                tg=("c" if f>=3 else "n")
                shadow[3*f-1].append(wait_lgkm((tg,f,0),(tg,f,1)))
            shadow[27].append(salu("s_add_u32",sWr,sWr,SLOT))
            shadow[28].extend([salu("s_cmp_eq_u32",None,sWr,RING),salu("s_cselect_b32",sWr,0,sWr)])
            fixed[31].append(valu("v_add_u32",vWa,sWr,vWl))
            for f in range(3):
                for q,x in enumerate(rdf(f,nxt,"n",14*(u+1)+f)): fixed[33+3*f+q].append(x)
            shadow[41].append(wait_lgkm(("n",0,0),("n",0,1)))
            ol=s.oloads(u+3,lambda en,u=u:4*en['it']+u+3)
            for q,x in enumerate(ol): fixed[2+3*q].append(x)
            shadow[18].append(salu("s_add_u32",sOs,sOs,2048)); shadow[21].append(salu("s_and_b32",sOs,sOs,0xffff))
            for gi,grp in zip((1,3,4,6),s.adv_W()): shadow[gi].extend(grp)
            if u==0:
                shadow[0].extend([salu("s_cmp_eq_u32",None,sCNT,1),salu("s_cselect_b32",sub(sWo,2),0,sub(sWo,2))])
                shadow[19].extend([salu("s_cmp_eq_u32",None,sCNT,1),salu("s_cselect_b32",sub(sO,2),0,sub(sO,2))])
            if s.P:
                fixed[23-0].append(None) if False else None
                shadow[7].append(salu("s_add_u32",sTs,sTs,sTd))
                if u==0:
                    shadow[9].extend([salu("s_cmp_eq_u32",None,sCNT,s.P//4),salu("s_cselect_b32",sub(sTch,2),0,sub(sTch,2))])
                fixed[1].append(None) if False else None
            shadow[15].append(wait_vm(nxt,lambda en,u=u:('O',4*en['it']+u+1)))
            shadow[16].append(barrier())
            if s.P:
                fixed[3].insert(0,touch(vDum,vTch,sTch,sTs,mod=s.tmod)) if False else None
                tch=touch(vDum,vTch,sTch,sTs,mod=s.tmod)
            Lw=s.item_W(lambda en,u=u:('W',4*en['it']+u+4))
            g=20
            for m,d in Lw:
                shadow[g-1].append(m); fixed[g].append(d); g+=3
            if s.P: fixed[41].append(tch)
            for gi in range(42):
                sc.gap(mf[gi],shadow[gi],fixed[gi],fill=False)
        sc.emit(salu("s_sub_u32",sCNT,sCNT,1)); sc.emit(salu("s_cmp_lg_u32",None,sCNT,0)); sc.emit(branch("s_cbranch_scc1 L_k2_loop"))
        loop=sc.out
        sc=Sched(); e=sc.emit
        s.stamp(sc,2)
        e(wait_fixed(vm=0,lgkm=0)); e(barrier())
        vX=V(130);
        e(valu("v_and_b32",V(128),63,vTID)); e(valu("v_lshlrev_b32",vX,4,V(128)))
        e(salu("s_and_b32",sT0,sWAVE,1)); e(salu("s_mul_i32",sT0,sT0,21*1024)); e(valu("v_add_u32",vX,sT0,vX))
        e(salu("s_lshr_b32",sT1,sWAVE,1)); e(salu("s_cmp_eq_u32",None,sT1,0)); e(branch("s_cbranch_scc0 L_k2_kh1"))
        def side(mine,other,nm):
            e(nop(7))
            for T in other:
                for jj in range(3): e(dswrite("ds_write_b128",vX,ACC(T,jj),(T*3+jj)*1024))
            e(wait_fixed(lgkm=0)); e(barrier())
            tmp=lambda i:V(32+4*i,4)
            idx={}
            n=0
            for T in mine:
                for jj in range(3):
                    idx[(T,jj)]=n; e(dsread("ds_read_b128",tmp(n),vX,(T*3+jj)*1024,tag=('r',n))); n+=1
            e(wait_fixed(lgkm=0))
            acc=lambda i:V(96+4*(i%8),4)
            for T in mine:
                for jj in range(3):
                    t=tmp(idx[(T,jj)])
                    for r in range(4):
                        e(accrd(V(128+r),sub(ACC(T,jj),r)))
                    for r in range(4):
                        e(valu("v_add_f32",sub(t,r),sub(t,r),V(128+r)))
            Ts=list(mine)
            while Ts:
                if len(Ts)>=2:
                    a,b=Ts[0],Ts[1]; Ts=Ts[2:]
                    for jj in range(3):
                        X=tmp(idx[(a,jj)]); Y=tmp(idx[(b,jj)])
                        e(valu("v_cvt_pk_bf16_f32",sub(X,0),sub(X,0),sub(X,1))); e(valu("v_cvt_pk_bf16_f32",sub(X,1),sub(X,2),sub(X,3)))
                        e(valu("v_cvt_pk_bf16_f32",sub(X,2),sub(Y,0),sub(Y,1))); e(valu("v_cvt_pk_bf16_f32",sub(X,3),sub(Y,2),sub(Y,3)))
                        e(perm("v_permlane32_swap_b32",sub(X,0),sub(X,2))); e(perm("v_permlane32_swap_b32",sub(X,1),sub(X,3)))
                        e(perm("v_permlane16_swap_b32",sub(X,0),sub(X,2))); e(perm("v_permlane16_swap_b32",sub(X,1),sub(X,3)))
                        e(salu("s_mov_b32",sT0,jj*16*1792))
                        e(vstore(X,vOut,sOut,sT0,a*32,tag='o',mod=s.outmod))
                else:
                    a=Ts[0]; Ts=[]
                    for jj in range(3):
                        X=tmp(idx[(a,jj)])
                        e(valu("v_cvt_pk_bf16_f32",sub(X,0),sub(X,0),sub(X,1))); e(valu("v_cvt_pk_bf16_f32",sub(X,1),sub(X,2),sub(X,3)))
                        e(salu("s_mov_b32",sT0,jj*16*1792))
                        e(vstore(sub(X,0,2),vOut2,sOut,sT0,a*32,tag='o',mod=s.outmod,op="buffer_store_dwordx2"))
        side([0,1,2,3],[4,5,6],"a")
        e(branch("s_branch L_k2_fin" if s.prof else "s_branch L_k2_end"))
        epiA=list(sc.out)
        sc=Sched(); e=sc.emit
        e(label("L_k2_kh1"))
        side([4,5,6],[0,1,2,3],"b")
        epiB=sc.out
        endb=[]
        if s.prof:
            endb=[label("L_k2_fin"),wait_fixed(vm=0),raw("s_memtime s[66:67]"),raw("s_memrealtime s[68:69]"),raw("s_waitcnt lgkmcnt(0)"),
                  raw("s_mov_b32 s76, s66"),raw("s_mov_b32 s77, s68"),raw("s_mov_b32 s70, s90"),raw("s_mov_b32 s71, s91"),
                  raw("s_add_u32 s92, s62, 0x4100000"),raw("s_addc_u32 s93, s63, 0"),raw("s_and_b32 s93, s93, 0xffff"),raw("s_mov_b32 s94, 0x100000"),raw("s_mov_b32 s95, 0x20000"),
                  raw("s_lshl_b32 s3, s2, 10"),raw("s_lshl_b32 s38, s24, 8"),raw("s_add_u32 s3, s3, s38"),raw("v_mov_b32 v1, s3","valu")]
            for i in range(8):
                endb+=[raw(f"v_mov_b32 v2, s{70+i}","valu"),raw(f"buffer_store_dword v2, v1, s[92:95], 0 offen offset:{4*i}","valu"),raw("s_nop 1")]
            endb+=[raw("s_waitcnt vmcnt(0)")]
        endb+=[label("L_k2_end"),wait_fixed(vm=0),raw("s_endpgm","branch")]
        trace=[(x,{}) for x in pro]
        for it in range(8): trace+=[(x,{'it':it}) for x in loop]
        t0_=list(trace)
        trA=trace+[(x,{}) for x in epiA]
        resolve_waits(trA)
        errs=check(trA)
        cut=[i for i,x in enumerate(epiA) if x.text.startswith("s_cbranch_scc0")][0]
        trB=t0_+[(x,{}) for x in epiA[:cut+1]]+[(x,{}) for x in epiB]
        errs+=check(trB)
        return pro+loop+epiA+epiB+endb,errs

KD_K2=""".amdhsa_kernel {name}
  .amdhsa_next_free_vgpr 224
  .amdhsa_next_free_sgpr 102
  .amdhsa_accum_offset 136
  .amdhsa_group_segment_fixed_size 0
  .amdhsa_kernarg_size 104
  .amdhsa_user_sgpr_count 2
  .amdhsa_user_sgpr_kernarg_segment_ptr 1
  .amdhsa_system_sgpr_workgroup_id_x 1
.end_amdhsa_kernel
"""
if __name__=="__main__":
    k=K2(); code,errs=k.build()
    print(len(code),"instructions;",len(errs),"errors")
    for x in errs[:40]: print(x)
```

```python
from ir import *
from sched import *
PW=172032
class K3:
    def __init__(s, ldmod=" nt", outmod=""):
        s.ldmod=ldmod; s.outmod=outmod
    def build(s):
        sc=Sched(); e=sc.emit
        sP=S(4,4); sOut=S(8,4); sWAVE=S(24)
        e(raw("s_cmp_ge_u32 s2, 224")); e(branch("s_cbranch_scc1 L_k3_end"))
        e(raw("s_load_dwordx2 s[12:13], s[0:1], 80")); e(raw("s_load_dwordx2 s[14:15], s[0:1], 96"))
        e(raw("s_mul_i32 s16, s2, 9363")); e(raw("s_lshr_b32 s16, s16, 16"))
        e(raw("s_mul_i32 s17, s16, 7")); e(raw("s_sub_u32 s17, s2, s17"))
        vL=V(2); vI=V(3); vG=V(4); vA=[V(5),V(6)]; vO=V(7); t0=V(8)
        e(valu("v_lshrrev_b32",V(1),6,V(0))); e(valu("v_and_b32",vL,63,V(0)))
        e(valu("v_readfirstlane_b32",sWAVE,V(1)))
        e(valu("v_and_b32",vI,15,vL)); e(valu("v_lshrrev_b32",vG,4,vL))
        e(raw("s_mul_i32 s18, s17, 6144")); e(salu("s_mul_i32",S(19),sWAVE,43008)); e(raw("s_add_u32 s18, s18, s19"))
        e(valu("v_lshlrev_b32",t0,4,vL)); e(valu("v_add_u32",vA[0],S(18),t0)); e(valu("v_add_u32",vA[1],4096,vA[0]))
        for hp in range(1,8): e(salu("s_mov_b32",S(32+hp),hp*PW))
        e(raw("s_waitcnt lgkmcnt(0)","waitraw"))
        e(raw(f"s_mul_i32 s20, s16, {8*PW}"))
        for t in ["s_add_u32 s4, s14, s20","s_addc_u32 s5, s15, 0","s_and_b32 s5, s5, 0xffff",f"s_mov_b32 s6, {8*PW}","s_mov_b32 s7, 0x20000",
                  "s_mov_b32 s8, s12","s_and_b32 s9, s13, 0xffff","s_mov_b32 s10, 5505024","s_mov_b32 s11, 0x20000"]: e(raw(t))
        def buf(u,hp): return V(16+(u*8+hp)*4,4)
        def ld(u):
            for hp in range(8):
                e(vload(buf(u,hp),vA[u//4],sP,0 if hp==0 else S(32+hp),(u%4)*1024,tag=(u,hp),mod=s.ldmod))
        ld(0); ld(1)
        e(raw("s_and_b32 s21, s16, 15")); e(raw("s_lshr_b32 s22, s16, 4"))
        e(raw("s_mul_i32 s21, s21, 192")); e(salu("s_mul_i32",S(23),sWAVE,48)); e(raw("s_add_u32 s21, s21, s23"))
        e(valu("v_add_u32",t0,S(21),vI)); e(salu("s_movk_i32",S(25),1792)); e(valu("v_mul_lo_u32",t0,t0,S(25)))
        e(raw("s_mul_i32 s22, s22, 896")); e(raw("s_lshl_b32 s23, s17, 7")); e(raw("s_add_u32 s22, s22, s23"))
        e(valu("v_add_u32",t0,S(22),t0)); e(valu("v_lshl_add_u32",vO,vG,4,t0))
        e(salu("s_mov_b32",S(26),"0xffff0000"))
        acc=[V(208+i) for i in range(8)]; tl=[V(216+i) for i in range(8)]
        for u in range(6):
            j,h=divmod(u,2)
            if u+2<6: ld(u+2)
            for hp in range(8):
                e(wait_vm((u,hp)))
                b=buf(u,hp)
                dst = acc if hp==0 else tl
                for r in range(4):
                    e(valu("v_lshlrev_b32",dst[2*r],16,sub(b,r))); e(valu("v_and_b32",dst[2*r+1],S(26),sub(b,r)))
                if hp:
                    for r in range(8): e(valu("v_add_f32",acc[r],acc[r],tl[r]))
            X=V(224+4*(u&1),4)
            for r in range(4): e(valu("v_cvt_pk_bf16_f32",sub(X,r),acc[2*r],acc[2*r+1]))
            e(perm("v_permlane32_swap_b32",sub(X,0),sub(X,2))); e(perm("v_permlane32_swap_b32",sub(X,1),sub(X,3)))
            e(perm("v_permlane16_swap_b32",sub(X,0),sub(X,2))); e(perm("v_permlane16_swap_b32",sub(X,1),sub(X,3)))
            e(salu("s_mov_b32",S(27),j*16*1792))
            e(vstore(X,vO,sOut,S(27),h*64,tag='o',mod=s.outmod))
        e(label("L_k3_end")); e(wait_fixed(vm=0)); e(raw("s_endpgm","branch"))
        trace=[(x,{}) for x in sc.out]
        resolve_waits(trace); errs=check(trace)
        return sc.out,errs
KD_K3=""".amdhsa_kernel {name}
  .amdhsa_next_free_vgpr 232
  .amdhsa_next_free_sgpr 48
  .amdhsa_accum_offset 232
  .amdhsa_group_segment_fixed_size 0
  .amdhsa_kernarg_size 104
  .amdhsa_user_sgpr_count 2
  .amdhsa_user_sgpr_kernarg_segment_ptr 1
  .amdhsa_system_sgpr_workgroup_id_x 1
.end_amdhsa_kernel
"""
if __name__=="__main__":
    k=K3(); code,errs=k.build(); print(len(code),len(errs)); print(errs[:10])
```

```python
import sys
from emit import make
from k1 import KD_K1
from k1f import K1F
from k3 import K3, KD_K3
out=sys.argv[1]
kw1=eval("dict("+(sys.argv[2] if len(sys.argv)>2 else "")+")")
kw3=eval("dict("+(sys.argv[3] if len(sys.argv)>3 else "")+")")
only=sys.argv[4] if len(sys.argv)>4 else "13"
ks=[];ls=[]
if "1" in only:
    k=K1F(**kw1); code,errs=k.build(); assert not errs, errs[:10]
    ks.append(("attn_kernel",code,KD_K1)); ls.append(("attn_kernel",256,256,163840))
if "3" in only and not kw1.get("fuse"):
    k=K3(**kw3); code,errs=k.build(); assert not errs, errs[:10]
    ks.append(("reduce_kernel",code,KD_K3)); ls.append(("reduce_kernel",224,256,0))
open(out,"w").write(make(ks,ls))
```

```python
def V(lo, n=1): return ('v', lo, n)
def A(lo, n=1): return ('a', lo, n)
def S(lo, n=1): return ('s', lo, n)
def rt(r):
    f, lo, n = r
    return f"{f}{lo}" if n == 1 else f"{f}[{lo}:{lo+n-1}]"
def rs(*regs):
    out = set()
    for r in regs:
        if not isinstance(r, tuple): continue
        f, lo, n = r
        for i in range(n): out.add((f, lo+i))
    return out
def sub(r, i, n=1):
    f, lo, _ = r
    return (f, lo+i, n)
VCC={('s',106),('s',107)}
M0={('m',0)}
SCC={('scc',0)}

class Ins:
    __slots__ = ("text","kind","rd","wr","tag","wait","srcc","n","item","slot","sgprwr")
    def __init__(s, text, kind, rd=(), wr=(), tag=None, wait=None, srcc=None, item=None, slot=None):
        s.text=text; s.kind=kind; s.rd=set(rd); s.wr=set(wr); s.tag=tag; s.wait=wait; s.srcc=srcc; s.n=None
        s.item=item; s.slot=slot
    def __repr__(s): return s.text

def opstr(x):
    if isinstance(x, tuple): return rt(x)
    return str(x)
def ev(x, env): return x(env) if callable(x) else x

def mfma(d, a, b, c):
    i = Ins(f"v_mfma_f32_16x16x32_bf16 {rt(d)}, {rt(a)}, {rt(b)}, {opstr(c)}", "mfma", rd=rs(a,b,c), wr=rs(d))
    i.srcc = rs(c)
    return i
def valu(op, d, *src, kind="valu", xrd=(), xwr=(), suffix=""):
    ops = ", ".join(opstr(x) for x in ((d,) if d is not None else ())+src)
    return Ins(f"{op} {ops}{suffix}", kind, rd=rs(*src)|set(xrd), wr=(rs(d) if isinstance(d,tuple) else set())|set(xwr))
def trans(op, d, s): return valu(op, d, s, kind="trans")
def perm(op, a, b): return Ins(f"{op} {rt(a)}, {rt(b)}", "perm", rd=rs(a,b), wr=rs(a,b))
def accrd(d, a): return Ins(f"v_accvgpr_read_b32 {rt(d)}, {rt(a)}", "valu", rd=rs(a), wr=rs(d))
def accwr(a, s): return Ins(f"v_accvgpr_write_b32 {rt(a)}, {opstr(s)}", "valu", rd=rs(s), wr=rs(a))
def salu(op, d, *src, scc=True, xrd=(), xwr=()):
    ops = ", ".join(opstr(x) for x in ((d,) if d is not None else ())+src)
    wr = rs(d) if isinstance(d,tuple) else set()
    if d=="m0": wr=set(M0)
    rd = rs(*src)
    if "m0" in src: rd|=M0
    return Ins(f"{op} {ops}", "salu", rd=rd|set(xrd), wr=wr|set(xwr))
def dsread(op, d, addr, off, tag=None, item=None):
    return Ins(f"{op} {rt(d)}, {rt(addr)} offset:{off}", "ds", rd=rs(addr), wr=rs(d), tag=tag, item=item)
def dswrite(op, addr, s, off, tag=None):
    return Ins(f"{op} {rt(addr)}, {rt(s)} offset:{off}", "dsw", rd=rs(addr, s), tag=tag)
def dma(voff, srd, soff, off, item, slot, mod=""):
    return Ins(f"buffer_load_dwordx4 {rt(voff)}, {rt(srd)}, {opstr(soff)} offen offset:{off}{mod} lds", "dma",
               rd=rs(voff, srd, soff)|M0, tag=item, item=item, slot=slot)
def vload(d, voff, srd, soff, off, tag=None, mod="", op="buffer_load_dwordx4"):
    return Ins(f"{op} {rt(d)}, {rt(voff)}, {rt(srd)}, {opstr(soff)} offen offset:{off}{mod}", "vload",
               rd=rs(voff, srd, soff), wr=rs(d), tag=tag)
def touch(d, voff, srd, soff, off=0, mod=""):
    return Ins(f"buffer_load_dword {rt(d)}, {rt(voff)}, {rt(srd)}, {opstr(soff)} offen offset:{off}{mod}", "vload",
               rd=rs(voff, srd, soff), wr=set(), tag=('touch',))
def vstore(s, voff, srd, soff, off, tag=None, mod="", op="buffer_store_dwordx4"):
    return Ins(f"{op} {rt(s)}, {rt(voff)}, {rt(srd)}, {opstr(soff)} offen offset:{off}{mod}", "vstore",
               rd=rs(s, voff, srd, soff), tag=tag)
def wait_lgkm(*tags): return Ins("s_waitcnt lgkmcnt(?)", "wait", wait=("lgkm", list(tags)))
def wait_vm(*tags):   return Ins("s_waitcnt vmcnt(?)", "wait", wait=("vm", list(tags)))
def wait_fixed(vm=None, lgkm=None):
    t="s_waitcnt"
    if vm is not None: t+=f" vmcnt({vm})"
    if lgkm is not None: t+=f" lgkmcnt({lgkm})"
    i=Ins(t,"waitfix"); i.wait=(vm,lgkm); return i
def barrier(): return Ins("s_barrier", "barrier")
def nop(n): return Ins(f"s_nop {n}", "nop", tag=n)
def label(name): return Ins(f"{name}:", "label")
def raw(text, kind="salu", rd=(), wr=()): return Ins(text, kind, rd=rd, wr=wr)
def branch(text): return Ins(text, "branch")

VMKINDS = ("dma","vload","vstore")
DSKINDS = ("ds","dsw")

def resolve_waits(trace):
    vm=[]; ds=[]
    for ins,env in trace:
        if ins.kind in VMKINDS: vm.append(ev(ins.tag,env))
        elif ins.kind in DSKINDS: ds.append(ev(ins.tag,env))
        elif ins.kind=="wait":
            which,tags=ins.wait
            q = vm if which=="vm" else ds
            best=None
            for t in tags:
                t=ev(t,env)
                if t is None: continue
                idx=None
                for i in range(len(q)-1,-1,-1):
                    if q[i]==t: idx=i; break
                if idx is None:
                    continue
                n=len(q)-1-idx
                best = n if best is None else min(best,n)
            if best is not None:
                ins.n = best if ins.n is None else min(ins.n,best)
    for ins,env in trace:
        if ins.kind=="wait":
            which,_=ins.wait
            mx = 63 if which=="vm" else 15
            n = mx if ins.n is None else min(ins.n,mx)
            ins.text = f"s_waitcnt {'vmcnt' if which=='vm' else 'lgkmcnt'}({n})"
            ins.n = n

class CheckError(Exception): pass

def check(trace, verbose=False, lds_items=True, min_parts=4):
    errs=[]
    def err(k,msg):
        errs.append(f"[{k}] {trace[k][0].text.strip()} :: {msg}")
    vmq=[]
    dsq=[]
    pend={}
    pos=0
    last_valu_wr={}; last_trans_wr={}; last_mfma_wr={}; last_mfma_srcc={}; last_valu_sgpr={}; last_salu_m0=-99
    last_store_data={}
    last_scc=None
    SCCW=("s_add_","s_sub_","s_and_","s_or_","s_xor_","s_lshl_","s_lshr_","s_cmp_","s_min_","s_max_","s_addc","s_subb","s_ashr","s_bfe","s_not","s_andn2","s_bitcmp")
    item_state={}
    slot_occ={}
    item_reads_out={}
    item_read_done_barrier={}
    for k,(ins,env) in enumerate(trace):
        kd=ins.kind
        if kd in("label",): continue
        rd=ins.rd; wr=ins.wr
        tx=ins.text
        if tx.startswith("s_cselect") or tx.startswith("s_cbranch_scc"):
            if last_scc is None or not last_scc.startswith("s_cmp"): err(k,f"SCC consumer after non-cmp writer: {last_scc}")
        if tx.startswith("s_addc") and not (last_scc or "").startswith("s_add"): err(k,f"s_addc after {last_scc}")
        if any(tx.startswith(p) for p in SCCW): last_scc=tx
        for r in (rd|wr):
            if r in pend: err(k,f"reg {r} pending from {pend[r]} load")
        isvalu = kd in("valu","trans","perm")
        if kd=="mfma":
            for r in rd:
                if r in last_valu_wr and pos-last_valu_wr[r]-1<2: err(k,f"VALU->MFMA hazard on {r}")
            ab = rd-(ins.srcc or set())
            for r in ab:
                if r in last_mfma_wr and pos-last_mfma_wr[r][0]-1<8: err(k,f"MFMA D->A/B hazard on {r}")
            for r in (ins.srcc or set()):
                if r in last_mfma_wr:
                    p,dset=last_mfma_wr[r]
                    if dset!=ins.srcc and pos-p-1<6: err(k,f"MFMA D->overlap SrcC hazard {r}")
            for r in wr:
                if r in last_mfma_wr:
                    p,dset=last_mfma_wr[r]
                    if not (dset==wr and ins.srcc==wr) and pos-p-1<8 : err(k,f"MFMA WAW hazard {r}")
        else:
            if kd in ("valu","trans","perm","ds","dsw","vload","vstore","dma"):
                chk = (rd|wr)
                for r in chk:
                    if r in last_mfma_wr and pos-last_mfma_wr[r][0]-1<8: err(k,f"MFMA D->{kd} hazard on {r} dist {pos-last_mfma_wr[r][0]-1}")
            if isvalu:
                for r in wr:
                    if r in last_mfma_srcc and pos-last_mfma_srcc[r]-1<3: err(k,f"SrcC WAR hazard {r}")
                    if r in last_store_data and pos-last_store_data[r]-1<2: err(k,f"store data WAR {r}")
        if isvalu or kd in("mfma","ds","dsw","vload","vstore","dma"):
            for r in rd:
                if r in last_trans_wr and pos-last_trans_wr[r]-1<1: err(k,f"trans->use hazard {r}")
        if kd=="perm":
            for r in rd:
                if r in last_valu_wr and pos-last_valu_wr[r]-1<2: err(k,f"VALU->permlane hazard {r}")
        if kd in VMKINDS:
            for r in rd:
                if r[0]=='s' and r in last_valu_sgpr and pos-last_valu_sgpr[r]-1<5: err(k,f"VALU sgpr->VMEM hazard {r}")
            if kd=="dma" and pos-last_salu_m0-1<1: err(k,"m0->dma hazard")
        if isvalu:
            for r in rd:
                if r[0]=='s' and r in last_valu_sgpr and pos-last_valu_sgpr[r]-1<2: err(k,f"VALU sgpr->VALU const hazard {r}")
            if ins.text.startswith("v_readfirstlane") or ins.text.startswith("v_readlane"):
                for r in rd:
                    if r in last_valu_wr and pos-last_valu_wr[r]-1<1: err(k,f"VALU->readlane hazard {r}")
        if kd=="ds" or kd=="dsw":
            it=ev(ins.item,env)
            if kd=="ds" and it is not None and lds_items:
                st=item_state.get(it)
                if st is None or not st["visible"]: err(k,f"ds read of item {it} not visible")
                elif st["n"]<min_parts: err(k,f"ds read of item {it} with only {st['n']} parts issued")
                item_reads_out[it]=item_reads_out.get(it,0)+1
                item_read_done_barrier[it]=False
            dsq.append((set(wr),it if kd=="ds" else None))
            for r in wr: pend[r]="ds"
        elif kd in VMKINDS:
            it=ev(ins.item,env) if kd=="dma" else None
            if kd=="dma":
                sl=ev(ins.slot,env)
                old=slot_occ.get(sl)
                if old is not None and old!=it and lds_items:
                    if item_reads_out.get(old,0)>0 or not item_read_done_barrier.get(old,True):
                        err(k,f"DMA of {it} into slot {sl} while {old} may still be read")
                slot_occ[sl]=it
                st=item_state.setdefault(it,dict(out=0,visible=False,landed=False,n=0))
                st["out"]+=1; st["n"]+=1; st["visible"]=False; st["landed"]=False
            vmq.append((set(wr),it))
            for r in wr: pend[r]="vm"
            if len(vmq)>63 and verbose: print("note: >63 vm outstanding at",k)
            if kd=="vstore":
                data=set(list(rs(*[])));
                for r in rd:
                    if r[0] in 'va': last_store_data[r]=pos
        elif kd=="wait" or kd=="waitfix":
            if kd=="wait":
                which,_=ins.wait; vmn,lg=(ins.n,None) if which=="vm" else (None,ins.n)
            else: vmn,lg=ins.wait
            if vmn is not None:
                while len(vmq)>vmn:
                    regs,it=vmq.pop(0)
                    for r in regs: pend.pop(r,None)
                    if it is not None:
                        item_state[it]["out"]-=1
                        if item_state[it]["out"]==0: item_state[it]["landed"]=True
            if lg is not None:
                while len(dsq)>lg:
                    regs,it=dsq.pop(0)
                    for r in regs: pend.pop(r,None)
                    if it is not None: item_reads_out[it]-=1
        elif kd=="barrier":
            for it,st in item_state.items():
                if st["landed"]: st["visible"]=True
            for it,n in item_reads_out.items():
                if n==0: item_read_done_barrier[it]=True
        if isvalu:
            for r in wr:
                if r[0]=='s': last_valu_sgpr[r]=pos
                else: last_valu_wr[r]=pos
                last_trans_wr.pop(r,None); last_mfma_wr.pop(r,None)
            if kd=="trans":
                for r in wr: last_trans_wr[r]=pos
        elif kd=="mfma":
            for r in wr:
                last_mfma_wr[r]=(pos,set(wr)); last_valu_wr.pop(r,None)
            for r in (ins.srcc or ()): last_mfma_srcc[r]=pos
        elif kd=="salu":
            if ('m',0) in wr: last_salu_m0=pos
            for r in wr: last_valu_sgpr.pop(r,None)
        pos += (ins.tag+1) if kd=="nop" else 1
    return errs
```

```python
from ir import *
from sched import *
import k1
from k1 import (K1, f32bits, vTID, vT, vKl, vVl, vKa, vVa, vKg, vVg, vWg, vMX, vTMP, vL, KF, VF, QA, QF, SB, PF, CI, OA,
                sK, sV, sW, sX, sWAVE, sU, sKs, sVs, sWs, sKw, sVw, sWw, sKr, sVr, sWr, sCNT, sT0, sT1, sC2, sTH, sWvK, sWvV,
                W_BASE, K_BASE, V_BASE, LDS_END, SCALE, THRESH)

vXg=[V(12),V(19),V(20)]; vPst=V(13)
vWo=[V(24+p) for p in range(4)]
def XF(s,j): return A(((s&3)*3+j)*4,4)
def PARK_A(i4):
    if i4<16: return A(192+4*i4,4)
    if i4<22: return V(232+4*(i4-16),4)
    return V(56+4*(i4-22),4)
def PARK_T(i4):
    return A(192+4*i4,4) if i4<16 else A(48+4*(i4-16),4)
def OPA(T,j): return V(160+(T*3+j)*4,4)
def OPK(h,j): return V(208+(h*3+j)*4,4)
sP=S(20,4)
sWo=S(56,4)
sWk=S(35); sWu=S(36); sXk=S(40); sNgC=S(41); sNgN=S(45); sWoS=S(54); sPs=S(55); sPs2=S(60); sWvO=[S(62+p) for p in range(4)]
sRho=S(61); sDum=S(92,4); sNgNN=S(53)
PW=172032

class K1F(K1):
    def __init__(s, ntkv=True, stmod=" nt", prof=False, wmod="", xmod="", womod="", rot=True, fine=False, touch=True, defer=True, kvpos=None, prokv=('K0','K1'), even=True, fuse=False, rdmod=' sc1', outmod='', rel=False, latest=False, deep=True):
        super().__init__(ntkv=ntkv, stmod=stmod, prof=False, wmod=wmod, xmod=xmod)
        s.prof=prof; s.womod=womod; s.rot=rot; s.fine=fine; s.touch=touch; s.defer=defer; s.only_u0=set(); s.only_u1=set(); s.kvpos=kvpos or {12:['V0','K2'],13:['V1']}; s.prokv=prokv; s.even=even; s.fuse=fuse; s.rdmod=rdmod; s.outmod=outmod
        s.rel=rel; s.latest=latest; s.deep=deep; s.oring=0x1ffff if deep else 0xffff; s.onsl=8 if deep else 4; s.olook=7 if deep else 3
        if fuse and not rel: s.stmod=' sc1'
    def stamp(s, sc, idx, dyn=False):
        if not s.prof: return
        sc.emit(raw("s_memtime s[98:99]")); sc.emit(raw("s_memrealtime s[100:101]"))
        sc.emit(wait_fixed(lgkm=0))
        a=66+2*idx
        if not dyn:
            sc.emit(raw(f"s_mov_b32 s{a}, s98")); sc.emit(raw(f"s_mov_b32 s{a+1}, s100"))
        else:
            b=66+2*(idx+6)
            sc.emit(raw("s_cmp_eq_u32 s25, 0"))
            sc.emit(raw(f"s_cselect_b32 s{a}, s98, s{a}")); sc.emit(raw(f"s_cselect_b32 s{a+1}, s100, s{a+1}"))
            sc.emit(raw(f"s_cselect_b32 s{b}, s{b}, s98")); sc.emit(raw(f"s_cselect_b32 s{b+1}, s{b+1}, s100"))
    def item_W(s, item):
        pre=[salu("s_add_u32",sWk,sWk,262144), [salu("s_add_u32",sWw,sWw,16384),salu("s_and_b32",sWw,sWw,0xffff)],
             [salu("s_cmp_eq_u32",None,sWk,14*262144),salu("s_cselect_b32",sWk,0,sWk)], salu("s_add_u32",sWs,sWk,sWu)]
        pre=[pre[0],pre[2],pre[1],pre[3]]
        L=[(salu("s_add_u32","m0",sWw,sWvV[p]), dma(vWg,sW,sWs,p*128,item,lambda e,it=item:('W',ev(it,e)[1]%4),s.wmod)) for p in range(4)]
        return pre,L
    def item_K(s, item):
        pre=[salu("s_add_u32",sKs,sKs,16384), salu("s_add_u32",sKw,sKw,16384),
             [salu("s_cmp_eq_u32",None,sKw,V_BASE), salu("s_cselect_b32",sKw,K_BASE,sKw)]]
        L=[(salu("s_add_u32","m0",sKw,sWvK[p]), dma(vKg[p>>1],sK,sKs,(p&1)*256,item,lambda e,it=item:('K',ev(it,e)[1]%3),s.kvmod)) for p in range(4)]
        return pre,L
    def item_V(s, item):
        pre=[salu("s_add_u32",sVs,sVs,16384), salu("s_add_u32",sVw,sVw,16384),
             [salu("s_cmp_eq_u32",None,sVw,LDS_END), salu("s_cselect_b32",sVw,V_BASE,sVw)]]
        L=[(salu("s_add_u32","m0",sVw,sWvV[p]), dma(vVg,sV,sVs,p*128,item,lambda e,it=item:('V',ev(it,e)[1]%3),s.kvmod)) for p in range(4)]
        return pre,L
    def item_O(s, item, const, ng):
        pre=[salu("s_add_u32",sWoS,ng,const), [salu("s_add_u32",sWw,sWw,16384), salu("s_and_b32",sWw,sWw,s.oring)]]
        def slot(e,it=item):
            q=ev(it,e)[1]%s.onsl
            return ('W',q) if q<4 else (('K',q-4) if q<7 else ('V',0))
        L=[(salu("s_add_u32","m0",sWw,sWvO[p]), dma(vWo[p],sWo,sWoS,0,item,slot,s.womod)) for p in range(4)]
        return pre,L
    def adv_rd(s, typ):
        if typ=='O': return [salu("s_add_u32",sWr,sWr,16384),salu("s_and_b32",sWr,sWr,s.oring)]
        return super().adv_rd(typ)
    def addr_ops(s, typ):
        return super().addr_ops('W' if typ=='O' else typ)
    def xpre(s):
        return [salu("s_add_u32",sXk,sXk,128),[salu("s_cmp_eq_u32",None,sXk,896),salu("s_cselect_b32",sXk,0,sXk)]]
    def xloads(s, pos, tagfn):
        return [vload(XF(pos+d,j),vXg[j],sX,sXk,d*64,tag=tagfn(pos+d),mod=s.xmod) for j in range(3) for d in range(2)]
    @staticmethod
    def flat(L):
        out=[]
        for x in L:
            if isinstance(x,list): out+=x
            else: out.append(x)
        return out
    def emit_item(s, sc, item_pair):
        pre,L=item_pair
        for x in s.flat(pre): sc.emit(x)
        for m,d in L: sc.emit(m); sc.emit(d)

    def step(s, sc, cur, nxt, mf, korder, cur_item, nxt_item, early=None, late=None, xearly=(), xpre=(),
             extra_shadow=(), extra_fixed=(), needs=None, vmwait=(), qfree=None, qds=None, nxt_korder=None,
             nobarrier=False, keep_addr=False, forder=None, nxt_forder=None,
             EG=(5,11,17,23), LG=(29,35,41,47), XG=(5,14,23), BG=24, dmas=(), pres=()):
        if s.fine:
            sc.emit(raw("s_memtime s[98:99]")); sc.emit(wait_fixed(lgkm=0))
            sc.emit(raw("s_and_b32 m0, s3, 63","salu",wr=M0)); sc.emit(raw("s_cmp_lt_u32 s3, 64"))
            sc.emit(raw("s_cselect_b32 s100, 0, 1")); sc.emit(raw("s_add_u32 s3, s3, 1")); sc.emit(raw("s_cmp_eq_u32 s100, 0"))
            lab=f"L_fine{len(s._fl)}"; s._fl.append(lab)
            sc.emit(branch(f"s_cbranch_scc0 {lab}_b"))
            sc.emit(raw("v_writelane_b32 v23, s98, m0","valu")); sc.emit(branch(f"s_branch {lab}_e"))
            sc.emit(label(f"{lab}_b")); sc.emit(raw("v_writelane_b32 v21, s98, m0","valu")); sc.emit(label(f"{lab}_e"))
        shadow=[[] for _ in range(48)]; fixed=[[] for _ in range(48)]
        tagc=cur+"c"; tagn=(nxt or "")+"n"; prevtag=cur+"n"
        def frag_reads(typ,f,order,item,tag,fo):
            if typ=='K':
                kt,t=order[f]; return s.rdK(f,kt,t,item,tag)
            T=fo[f] if fo else f
            r=VF(f); off=(T>>2)*1024+((T>>1)&1)*512
            return [dsread("ds_read_b64_tr_b16",sub(r,0,2),vVa[T&1],off,tag=(tag,f,0),item=item),
                    dsread("ds_read_b64_tr_b16",sub(r,2,2),vVa[T&1],off+8192,tag=(tag,f,1),item=item)]
        def tags(typ,f,tag): return [(tag,f)] if typ=='K' else [(tag,f,0),(tag,f,1)]
        for f in range(3,16):
            for q,x in enumerate(frag_reads(cur,f,korder,cur_item,tagc,forder)): fixed[3*(f-3)+q].append(x)
        for f in range(1,16):
            tg = tags(cur,f,tagc) if f>=3 else tags(cur,f,prevtag)
            shadow[3*f-1].append(wait_lgkm(*tg))
        reserved=set()
        if nxt:
            if not keep_addr:
                adv=s.adv_rd(nxt)
                ao=s.addr_ops(nxt)
                if cur=='K' and nxt!='K':
                    shadow[27].append(adv[0]); shadow[30].extend(adv[1:])
                    fixed[33].append(ao[0]); fixed[36].append(ao[1])
                else:
                    shadow[30].append(adv[0]); shadow[33].extend(adv[1:])
                    if nxt=='K': fixed[37].append(ao[0])
                    else: fixed[36].append(ao[0]); fixed[37].append(ao[1])
            for f in range(3):
                for q,x in enumerate(frag_reads(nxt,f,nxt_korder,nxt_item,tagn,nxt_forder)): fixed[39+3*f+q].append(x)
            shadow[47].append(wait_lgkm(*tags(nxt,0,tagn)))
        if vmwait: shadow[BG].append(wait_vm(*vmwait))
        if not nobarrier: shadow[BG+1].append(barrier())
        for it,G in ((early,EG),(late,LG)):
            if not it: continue
            for (m,d),g in zip(it[1],G):
                shadow[g-1].append(m); fixed[g].append(d); reserved.add(g-1)
        for g,(m,d) in dmas:
            shadow[g-1].append(m); fixed[g].append(d)
        for x,g in zip(xearly,XG): fixed[g].append(x)
        for gi,x in extra_shadow: shadow[gi].append(x)
        for gi,x in extra_fixed: fixed[gi].append(x)
        def place(groups, gp, lim):
            for G in groups:
                G = G if isinstance(G,list) else [G]
                while gp<48 and (shadow[gp] or gp%3==2): gp+=1
                assert gp<=lim,(gp,lim,groups)
                shadow[gp].extend(G); gp+=1
            return gp
        gp=0
        if early: gp=place(early[0], 0, EG[0]-2)
        if xpre: gp=place(list(xpre), 0, XG[0]-1)
        if late: gp=place(late[0], gp, LG[0]-2)
        for groups,lo,hi in pres: place(groups, lo, hi)
        for gi in range(48):
            nd = needs(gi) if needs else ()
            if nd: s.flush_needed(sc, nd, (qfree or [])+(qds or []))
            sc.gap(mf[gi], shadow[gi], fixed[gi], fill=False)
            used=max(0,len(shadow[gi])-1)+sum(COST.get(x.kind,1) for x in fixed[gi])
            slots=2-used
            hasds=any(x.kind=="ds" for x in fixed[gi])
            if slots>0: s.fillq(sc, slots, qds if hasds else qfree)

    def prologue(s, sc):
        e=sc.emit
        e(raw("s_cmp_ge_u32 s2, 256")); e(branch("s_cbranch_scc1 L_k1_end"))
        e(raw("s_load_dwordx16 s[68:83], s[0:1], 0"))
        e(raw("s_load_dwordx4 s[84:87], s[0:1], 64"))
        e(raw("s_load_dwordx2 s[88:89], s[0:1], 96"))
        if s.prof:
            e(raw("s_memtime s[98:99]")); e(raw("s_memrealtime s[100:101]"))
        for t in ["s_and_b32 s90, s2, 7","s_lshr_b32 s91, s2, 3","s_lshr_b32 s92, s90, 2",
                  "s_lshr_b32 s93, s90, 1","s_and_b32 s93, s93, 1","s_lshl_b32 s93, s93, 3","s_lshr_b32 s94, s91, 2","s_add_u32 s93, s93, s94",
                  "s_and_b32 s95, s90, 1","s_lshl_b32 s95, s95, 3","s_and_b32 s96, s91, 3","s_lshl_b32 s97, s96, 1","s_add_u32 s95, s95, s97"]:
            e(raw(t))
        if s.rot:
            for t in ["s_lshl_b32 s61, s96, 1","s_add_u32 s61, s61, s94","s_cmp_ge_u32 s61, 7","s_cselect_b32 s97, 7, 0","s_sub_u32 s61, s61, s97",
                      "s_cmp_ge_u32 s61, 7","s_cselect_b32 s97, 7, 0","s_sub_u32 s61, s61, s97"]: e(raw(t))
        else: e(raw("s_mov_b32 s61, 0"))
        e(valu("v_lshrrev_b32",vT,6,vTID))
        L=V(56); I=V(57); G=V(58); t0=V(59); t1=V(60); t2=V(61); KB=V(62); RR=V(63)
        e(valu("v_and_b32",L,63,vTID))
        e(valu("v_readfirstlane_b32",sWAVE,vT))
        e(valu("v_and_b32",I,15,L)); e(valu("v_lshrrev_b32",G,4,L))
        e(valu("v_bfe_u32",KB,L,4,1)); e(valu("v_bfe_u32",RR,L,2,2))
        e(valu("v_bfe_u32",t0,L,1,1)); e(valu("v_xor_b32",t0,t0,KB)); e(valu("v_lshlrev_b32",t0,5,t0))
        e(valu("v_lshrrev_b32",t1,5,L)); e(valu("v_lshl_add_u32",t0,t1,6,t0))
        e(valu("v_and_b32",t1,1,L)); e(valu("v_lshl_add_u32",t2,t1,4,t0))
        e(salu("s_and_b32",sT0,sWAVE,1)); e(salu("s_lshl_b32",sT0,sT0,4)); e(salu("s_lshr_b32",sT1,sWAVE,1)); e(salu("s_lshl_b32",sT1,sT1,2)); e(salu("s_add_u32",sT0,sT0,sT1))
        e(valu("v_lshl_add_u32",t0,KB,3,RR)); e(valu("v_add_u32",t0,sT0,t0)); e(valu("v_lshl_add_u32",vWg,t0,13,t2))
        e(salu("s_mul_i32",sT0,sWAVE,48)); e(valu("v_add_u32",t0,sT0,I)); e(salu("s_movk_i32",sT1,896))
        e(valu("v_mul_lo_u32",t0,t0,sT1)); e(valu("v_lshl_add_u32",vXg[0],G,4,t0))
        e(valu("v_add_u32",vXg[1],14336,vXg[0])); e(valu("v_add_u32",vXg[2],28672,vXg[0]))
        e(salu("s_lshl_b32",sT0,sWAVE,12))
        for p in range(4):
            e(salu("s_add_u32",sWvK[p],sT0,p*1024-(p&1)*256)); e(salu("s_add_u32",sWvV[p],sT0,p*896)); e(salu("s_add_u32",sWvO[p],sT0,p*1024))
        e(salu("s_mov_b32",sU,0)); e(salu("s_mov_b32",sKs,"0xffffc000")); e(salu("s_mov_b32",sVs,"0xffffc000"))
        e(salu("s_mov_b32",sKw,K_BASE+32768)); e(salu("s_mov_b32",sVw,V_BASE+32768)); e(salu("s_mov_b32",sWw,49152))
        e(salu("s_mov_b32",sKr,K_BASE)); e(salu("s_mov_b32",sVr,V_BASE+32768)); e(salu("s_mov_b32",sWr,49152))
        e(salu("s_lshl_b32",sWk,sRho,1)); e(salu("s_add_u32",sWk,sWk,13)); e(salu("s_cmp_ge_u32",None,sWk,14)); e(salu("s_cselect_b32",sT0,14,0)); e(salu("s_sub_u32",sWk,sWk,sT0)); e(salu("s_lshl_b32",sWk,sWk,18))
        e(salu("s_add_u32",sXk,sRho,6)); e(salu("s_cmp_ge_u32",None,sXk,7)); e(salu("s_cselect_b32",sT0,7,0)); e(salu("s_sub_u32",sXk,sXk,sT0)); e(salu("s_lshl_b32",sXk,sXk,7))
        e(salu("s_mov_b32",sWu,0))
        e(raw("s_waitcnt lgkmcnt(0)","waitraw"))
        e(raw("s_cmp_eq_u32 s92, 0"))
        for d,b in [(68,78),(69,79),(70,80),(71,81),(72,82),(73,83),(74,84),(75,85),(76,86),(77,87)]:
            e(raw(f"s_cselect_b32 s{d}, s{d}, s{b}"))
        for t in [
            "s_lshl_b32 s97, s95, 9",
            "s_add_u32 s12, s74, s97","s_addc_u32 s13, s75, 0","s_and_b32 s13, s13, 0xffff","s_sub_u32 s14, 3670016, s97","s_mov_b32 s15, 0x20000",
            "s_mul_i32 s97, s93, 172032",
            "s_add_u32 s16, s68, s97","s_addc_u32 s17, s69, 0","s_and_b32 s17, s17, 0xffff","s_mov_b32 s18, 172032","s_mov_b32 s19, 0x20000",
            ]: e(raw(t))
        if s.touch:
            e(raw("s_mul_i32 s97, s96, 48")); e(salu("s_mul_i32",sT0,sWAVE,12)); e(raw("s_add_u32 s97, s97, s38")); e(raw("s_mul_i32 s97, s97, 896"))
            e(valu("v_lshlrev_b32",t0,7,L)); e(valu("v_add_u32",t0,S(97),t0))
            e(touch(V(64),t0,sX,0))
            e(valu("v_add_u32",t1,8192,t0)); e(Ins("v_cmp_gt_u32 vcc, 20, v56","valu",rd=rs(L),wr=VCC)); e(valu("v_mov_b32",V(65),"0x7fffffff")); e(nop(0))
            e(Ins(f"v_cndmask_b32 {rt(t1)}, v65, {rt(t1)}, vcc","valu",rd=rs(t1,V(65))|VCC,wr=rs(t1)))
            e(touch(V(64),t1,sX,0))
            e(raw("s_mul_i32 s97, s94, 56")); e(salu("s_mul_i32",sT0,sWAVE,14)); e(raw("s_add_u32 s97, s97, s38"))
            e(valu("v_lshrrev_b32",t0,2,L)); e(valu("v_add_u32",t0,S(97),t0)); e(valu("v_lshlrev_b32",t0,13,t0))
            e(valu("v_and_b32",t1,3,L)); e(valu("v_lshl_add_u32",t0,t1,7,t0))
            e(Ins("v_cmp_gt_u32 vcc, 56, v56","valu",rd=rs(L),wr=VCC)); e(nop(1))
            e(Ins(f"v_cndmask_b32 {rt(t0)}, v65, {rt(t0)}, vcc","valu",rd=rs(t0,V(65))|VCC,wr=rs(t0)))
            e(touch(V(64),t0,sW,0))
        for t in [
            "s_lshl_b32 s97, s93, 4","s_add_u32 s97, s97, s95","s_lshl_b32 s97, s97, 18",
            "s_add_u32 s4, s70, s97","s_addc_u32 s5, s71, 0","s_and_b32 s5, s5, 0xffff","s_mov_b32 s6, 524288","s_mov_b32 s7, 0x20000",
            "s_add_u32 s8, s72, s97","s_addc_u32 s9, s73, 0","s_and_b32 s9, s9, 0xffff","s_mov_b32 s10, 524288","s_mov_b32 s11, 0x20000",
            ]: e(raw(t))
        e(valu("v_lshl_add_u32",t0,KB,2,RR)); e(valu("v_lshl_add_u32",t0,t0,9,t2)); e(salu("s_lshl_b32",sT0,sWAVE,12)); e(valu("v_add_u32",vVg,sT0,t0))
        for q in range(2):
            e(salu("s_and_b32",sT0,sWAVE,1)); e(salu("s_lshl_b32",sT0,sT0,1)); e(salu("s_add_u32",sT0,sT0,q))
            e(salu("s_sub_u32",sT1,4,sT0)); e(salu("s_and_b32",sT1,sT1,3))
            e(valu("v_and_b32",t0,3,L)); e(valu("v_xor_b32",t0,sT1,t0)); e(valu("v_lshlrev_b32",t0,4,t0))
            e(valu("v_lshl_add_u32",t0,G,6,t0))
            e(salu("s_lshl_b32",sT0,sT0,2)); e(salu("s_lshr_b32",sT1,sWAVE,1)); e(salu("s_lshl_b32",sT1,sT1,4)); e(salu("s_add_u32",sT0,sT0,sT1))
            e(valu("v_add_u32",t1,sT0,RR)); e(valu("v_lshl_add_u32",vKg[q],t1,9,t0))
        if s.defer:
            for nm in s.prokv:
                s.emit_item(sc, s.item_K(('K',int(nm[1]))) if nm[0]=='K' else s.item_V(('V',int(nm[1]))))
        s.emit_item(sc,s.item_W(('W',0)))
        for x in s.flat(s.xpre()): e(x)
        for x in s.xloads(0,lambda k:('x',0,k)): e(x)
        s.emit_item(sc,s.item_W(('W',1)))
        for t in [
            "s_mul_i32 s97, s95, 229376",
            "s_add_u32 s56, s76, s97","s_addc_u32 s57, s77, 0","s_and_b32 s57, s57, 0xffff","s_mov_b32 s58, 458752","s_mov_b32 s59, 0x20000",
            "s_lshl_b32 s97, s92, 4","s_add_u32 s97, s97, s93","s_lshl_b32 s97, s97, 3","s_lshr_b32 s90, s95, 1","s_add_u32 s97, s97, s90",
            f"s_mul_i32 s97, s97, {PW}",
            "s_add_u32 s20, s88, s97","s_addc_u32 s21, s89, 0","s_and_b32 s21, s21, 0xffff",f"s_mov_b32 s22, {PW}","s_mov_b32 s23, 0x20000",
            ]: e(raw(t))
        s.emit_item(sc,s.item_W(('W',2)))
        s.emit_item(sc,s.item_W(('W',3)))
        if not s.defer:
            for n in range(3): s.emit_item(sc,s.item_K(('K',n)))
            for n in range(2): s.emit_item(sc,s.item_V(('V',n)))
        e(valu("v_lshrrev_b32",t0,2,I)); e(valu("v_sub_u32",t1,4,t0)); e(valu("v_and_b32",t1,3,t1)); e(valu("v_xor_b32",t1,t1,G))
        e(valu("v_lshlrev_b32",t1,4,t1)); e(valu("v_lshl_add_u32",t1,t0,11,t1)); e(valu("v_and_b32",t0,3,I)); e(valu("v_lshl_add_u32",vKl,t0,6,t1))
        e(valu("v_lshrrev_b32",t0,1,G)); e(valu("v_lshlrev_b32",t0,12,t0)); e(valu("v_lshl_add_u32",t0,KB,8,t0))
        e(valu("v_lshl_add_u32",t0,RR,6,t0)); e(valu("v_and_b32",t1,3,L)); e(valu("v_lshl_add_u32",t0,t1,3,t0))
        e(valu("v_lshl_add_u32",vVl[0],KB,5,t0))
        e(valu("v_xor_b32",t1,1,KB)); e(valu("v_lshl_add_u32",vVl[1],t1,5,t0))
        e(valu("v_add_u32",vKa,K_BASE,vKl))
        e(salu("s_mul_i32",sT0,sWAVE,43008)); e(valu("v_lshlrev_b32",t0,4,L)); e(valu("v_add_u32",vPst,sT0,t0))
        e(salu("s_lshr_b32",sT0,sWAVE,1)); e(salu("s_lshl_b32",sT0,sT0,4)); e(salu("s_and_b32",sT1,sWAVE,1)); e(salu("s_lshl_b32",sT1,sT1,3)); e(salu("s_add_u32",sT0,sT0,sT1))
        e(valu("v_lshl_add_u32",t0,KB,2,RR)); e(valu("v_add_u32",t0,sT0,t0)); e(salu("s_movk_i32",sT1,896)); e(valu("v_mul_lo_u32",t0,t0,sT1)); e(valu("v_add_u32",V(22),t0,t2))
        e(salu("s_mov_b32",sub(sC2,0),hex(f32bits(SCALE)))); e(salu("s_mov_b32",sub(sC2,1),hex(f32bits(SCALE))))
        e(salu("s_mov_b32",sTH,hex(f32bits(THRESH))))
        e(salu("s_lshl_b32",sNgC,sRho,7))
        e(salu("s_mov_b32",sub(sDum,0),sub(sX,0))); e(salu("s_mov_b32",sub(sDum,1),sub(sX,1))); e(salu("s_mov_b32",sub(sDum,2),0)); e(salu("s_mov_b32",sub(sDum,3),"0x20000"))
        if s.prof:
            e(raw("s_mov_b32 s96, s88")); e(raw("s_mov_b32 s97, s89")); e(raw("s_mov_b32 s90, s98")); e(raw("s_mov_b32 s91, s100"))

    def rare(s, sc, buf, name, ret):
        e=sc.emit
        e(label(name)); e(nop(7)); e(nop(3))
        P0=208
        m=[V(P0+j) for j in range(3)]; tm=[V(P0+3+j) for j in range(3)]; al=[V(P0+6+j) for j in range(3)]
        for j in range(3):
            a=SB(buf,0,j); b=SB(buf,1,j)
            e(valu("v_max3_f32",m[j],sub(a,0),sub(a,1),sub(a,2)))
            e(valu("v_max3_f32",m[j],m[j],sub(a,3),sub(b,0)))
            e(valu("v_max3_f32",m[j],m[j],sub(b,1),sub(b,2)))
            e(valu("v_max_f32",m[j],m[j],sub(b,3)))
        for x in s.allreduce("v_max_f32",m,tm): e(x)
        for j in range(3): e(valu("v_max_f32",m[j],0,m[j]))
        for j in range(3):
            for kt in range(2):
                for r in range(4): e(valu("v_sub_f32",sub(SB(buf,kt,j),r),sub(SB(buf,kt,j),r),m[j]))
            for r in range(4): e(valu("v_sub_f32",sub(CI(j),r),sub(CI(j),r),m[j]))
            e(Ins(f"v_exp_f32_e64 {rt(al[j])}, -{rt(m[j])}","trans",rd=rs(m[j]),wr=rs(al[j])))
        for j in range(3): e(valu("v_mul_f32",vL[j],vL[j],al[j]))
        for T in range(16):
            for j in range(3):
                t=[V(P0+r) for r in range(4)] if False else [V(P0+0),V(P0+1),V(P0+2),V(P0+3)]
                t=[V(P0+9),V(P0+10),V(P0+11),vTMP]
                for r in range(4): e(accrd(t[r],sub(OA(T,j),r)))
                for r in range(4): e(valu("v_mul_f32",t[r],t[r],al[j]))
                for r in range(4): e(accwr(sub(OA(T,j),r),t[r]))
        e(nop(3))
        e(branch(f"s_branch {ret}"))

    def rstamp(s, sc, r):
        if not s.prof: return
        sc.emit(raw("s_memrealtime s[98:99]")); sc.emit(raw("s_waitcnt lgkmcnt(0)")); sc.emit(raw(f"s_mov_b32 s{r}, s98"))
    def dump_code(s):
        L=[raw("s_add_u32 s56, s96, 0x8000000"),raw("s_addc_u32 s57, s97, 0"),raw("s_and_b32 s57, s57, 0xffff"),raw("s_mov_b32 s58, 0x100000"),raw("s_mov_b32 s59, 0x20000"),
           raw("s_lshl_b32 s3, s2, 10"),raw("s_lshl_b32 s38, s24, 8"),raw("s_add_u32 s3, s3, s38"),raw("v_mov_b32 v1, s3","valu")]
        for i,r in enumerate(range(66,96)):
            L+=[raw(f"v_mov_b32 v2, s{r}","valu"),raw(f"buffer_store_dword v2, v1, s[56:59], 0 offen offset:{4*i}","valu"),raw("s_nop 1")]
        return L
    def reduce_tail(s, sc):
        e=sc.emit
        sDbg=S(4,4); sGP=S(8,4); sOut=S(12,4)
        e(raw("s_load_dwordx4 s[68:71], s[0:1], 80"))
        e(raw("s_load_dwordx2 s[72:73], s[0:1], 96"))
        for t in ["s_and_b32 s74, s2, 7","s_lshr_b32 s75, s2, 3","s_lshr_b32 s76, s74, 2",
                  "s_lshr_b32 s77, s74, 1","s_and_b32 s77, s77, 1","s_lshl_b32 s77, s77, 3","s_lshr_b32 s78, s75, 2","s_add_u32 s77, s77, s78",
                  "s_and_b32 s79, s74, 1","s_lshl_b32 s79, s79, 2","s_and_b32 s80, s75, 3","s_add_u32 s79, s79, s80",
                  "s_lshl_b32 s81, s76, 4","s_add_u32 s81, s81, s77"]:
            e(raw(t))
        e(wait_fixed(vm=0,lgkm=0))
        s.rstamp(sc,60)
        for t in ["s_mov_b32 s4, s70","s_and_b32 s5, s71, 0xffff","s_mov_b32 s6, 256","s_mov_b32 s7, 0x20000",
                  f"s_mul_i32 s82, s81, {8*PW}",
                  "s_add_u32 s8, s72, s82","s_addc_u32 s9, s73, 0","s_and_b32 s9, s9, 0xffff",f"s_mov_b32 s10, {8*PW}","s_mov_b32 s11, 0x20000",
                  "s_mov_b32 s12, s68","s_and_b32 s13, s69, 0xffff","s_mov_b32 s14, 5505024","s_mov_b32 s15, 0x20000"]:
            e(raw(t))
        e(barrier())
        e(salu("s_cmp_eq_u32",None,sWAVE,0)); e(branch("s_cbranch_scc0 L_k1_rwait"))
        e(raw("s_lshl_b32 s82, s81, 2")); e(valu("v_mov_b32",V(2),S(82))); e(valu("v_mov_b32",V(3),1))
        if s.rel:
            e(raw("buffer_wbl2 sc1","vmemraw")); e(raw("s_waitcnt vmcnt(0)"))
        e(raw("s_mov_b64 exec, 1"))
        e(raw("buffer_atomic_add v3, v2, s[4:7], 0 offen sc1","vmemraw"))
        e(raw("s_waitcnt vmcnt(0)"))
        e(raw("s_mov_b32 s83, 0x40000"))
        e(label("L_k1_poll"))
        e(raw("buffer_load_dword v4, v2, s[4:7], 0 offen sc1","vmemraw"))
        e(raw("s_waitcnt vmcnt(0)"))
        e(raw("v_readfirstlane_b32 s84, v4","valu"))
        e(raw("s_sub_u32 s83, s83, 1"))
        e(raw("s_cmp_eq_u32 s83, 0")); e(branch("s_cbranch_scc1 L_k1_pollend"))
        e(raw("s_cmp_lt_u32 s84, 8")); e(branch("s_cbranch_scc1 L_k1_poll"))
        e(label("L_k1_pollend"))
        e(raw("s_mov_b64 exec, -1"))
        if s.rel:
            e(raw("buffer_inv sc1","vmemraw")); e(raw("s_waitcnt vmcnt(0)"))
        e(label("L_k1_rwait"))
        e(barrier())
        s.rstamp(sc,61)
        vL_=V(2); vI=V(3); vG=V(4); vA=V(5); vO=V(6); t0=V(7)
        e(valu("v_and_b32",vL_,63,vTID)); e(valu("v_and_b32",vI,15,vL_)); e(valu("v_lshrrev_b32",vG,4,vL_))
        e(valu("v_lshlrev_b32",vA,4,vL_))
        e(raw("s_mul_i32 s85, s79, 21")); e(salu("s_add_u32",S(86),S(85),sWAVE)); e(raw("s_add_u32 s85, s85, 21"))
        for hp in range(1,8): e(salu("s_mov_b32",S(26+hp),hp*PW))
        def buf(i,hp): return V(64+(i*8+hp)*4,4)
        uo=[S(40+i) for i in range(6)]
        for i in range(6):
            e(salu("s_add_u32",S(87),S(86),4*i)); e(salu("s_lshl_b32",uo[i],S(87),10))
            e(salu("s_cmp_lt_u32",None,S(87),S(85))); e(salu("s_cselect_b32",uo[i],uo[i],"0x40000000"))
        va=[V(8+i) for i in range(6)]
        for i in range(6): e(valu("v_add_u32",va[i],uo[i],vA))
        def ld(i):
            for hp in range(8): e(vload(buf(i,hp),va[i],sGP,0 if hp==0 else S(26+hp),0,tag=('r',i,hp),mod=s.rdmod))
        ld(0); ld(1)
        e(raw("s_mul_i32 s88, s77, 192")); e(raw("s_mul_i32 s89, s76, 896"))
        e(valu("v_mov_b32",t0,1792)) if False else None
        e(salu("s_movk_i32",S(90),1792)); e(valu("v_mul_lo_u32",vO,vI,S(90))); e(valu("v_lshl_add_u32",vO,vG,4,vO))
        oo=[S(46+i) for i in range(6)]
        for i in range(6):
            e(salu("s_add_u32",S(87),S(86),4*i))
            e(raw("s_mul_i32 s91, s87, 1561")); e(raw("s_lshr_b32 s91, s91, 16"))
            e(raw("s_mul_i32 s92, s91, 42")); e(raw("s_sub_u32 s92, s87, s92"))
            e(raw("s_mul_i32 s93, s92, 43")); e(raw("s_lshr_b32 s93, s93, 8"))
            e(raw("s_mul_i32 s94, s93, 6")); e(raw("s_sub_u32 s94, s92, s94"))
            e(raw("s_lshr_b32 s95, s94, 1")); e(raw("s_and_b32 s94, s94, 1"))
            e(raw("s_mul_i32 s91, s91, 48")); e(raw("s_lshl_b32 s95, s95, 4")); e(raw("s_add_u32 s91, s91, s95")); e(raw("s_add_u32 s91, s91, s88"))
            e(raw("s_mul_i32 s91, s91, 1792")); e(raw("s_lshl_b32 s93, s93, 7")); e(raw("s_lshl_b32 s94, s94, 6"))
            e(raw("s_add_u32 s91, s91, s93")); e(raw("s_add_u32 s91, s91, s94")); e(salu("s_add_u32",oo[i],S(91),S(89)))
            e(salu("s_cmp_lt_u32",None,S(87),S(85))); e(salu("s_cselect_b32",oo[i],oo[i],"0x40000000"))
        e(salu("s_mov_b32",S(52),"0xffff0000"))
        s.rstamp(sc,62)
        acc=[V(16+i) for i in range(8)]; tl=[V(24+i) for i in range(8)]
        for i in range(6):
            if i+2<6: ld(i+2)
            for hp in range(8):
                e(wait_vm(('r',i,hp)))
                b=buf(i,hp); dst = acc if hp==0 else tl
                for r in range(4):
                    e(valu("v_lshlrev_b32",dst[2*r],16,sub(b,r))); e(valu("v_and_b32",dst[2*r+1],S(52),sub(b,r)))
                if hp:
                    for r in range(8): e(valu("v_add_f32",acc[r],acc[r],tl[r]))
            X=V(32+4*(i&1),4)
            for r in range(4): e(valu("v_cvt_pk_bf16_f32",sub(X,r),acc[2*r],acc[2*r+1]))
            e(perm("v_permlane32_swap_b32",sub(X,0),sub(X,2))); e(perm("v_permlane32_swap_b32",sub(X,1),sub(X,3)))
            e(perm("v_permlane16_swap_b32",sub(X,0),sub(X,2))); e(perm("v_permlane16_swap_b32",sub(X,1),sub(X,3)))
            e(vstore(X,vO,sOut,oo[i],0,tag='o',mod=s.outmod))
        if s.prof:
            s.rstamp(sc,63); e(wait_fixed(vm=0)); s.rstamp(sc,64)
            for i,r in enumerate((60,61,62,63,64)):
                e(raw(f"v_mov_b32 v2, s{r}","valu")); e(raw(f"buffer_store_dword v2, v1, s[56:59], 0 offen offset:{128+4*i}","valu")); e(raw("s_nop 1"))

    def build(s):
        s._fl=[]
        sc=Sched(); s.prologue(sc)
        if s.fine: sc.emit(raw('s_mov_b32 s3, 0')); sc.emit(raw('v_mov_b32 v23, 0','valu')); sc.emit(raw('v_mov_b32 v21, 0','valu'))
        pro=sc.out
        sc=Sched(); e=sc.emit
        e(label("L_k1_unit"))
        itW=lambda k:(lambda en:('W',14*en['u']+k))
        itK=lambda n:(lambda en:('K',16*en['u']+n))
        xt=lambda k:(lambda en:('x',en['u'],k))
        e(wait_vm(itW(0),xt(0)))
        e(barrier())
        s.stamp(sc,0,True)
        for x in s.adv_rd('W'): e(x)
        for x in s.addr_ops('W'): e(x)
        for f in range(3):
            for x in s.rdV(f,itW(0),"Wn"): e(x)
        e(wait_lgkm(("Wn",0,0),("Wn",0,1)))
        kmaj=[(kt,t) for kt in range(2) for t in range(8)]
        tmaj=[(kt,t) for t in range(8) for kt in range(2)]
        qconv=[]; convdone={}
        for k in range(14):
            mf=[mfma(QA(T,j),VF(T),XF(k,j),0 if k==0 else QA(T,j)) for T in range(16) for j in range(3)]
            xe=[]; xp=[]
            if k%2==0 and k<=10:
                xl=s.xloads(k+2,xt); xe=xl[0::2]; xp=s.xpre(); xrest=xl[1::2]
            elif k%2==1 and k<=11:
                xe=xrest
            late=s.item_W(itW(k+3)) if k>=1 else None
            xs=[]
            if k==11:
                xs=[(0,salu("s_add_u32",sWu,sWu,512)),
                    (15,salu("s_cmp_eq_u32",None,sU,1)),(15,salu("s_cselect_b32",sub(sW,2),0,sub(sW,2)))]
            if s.defer and k in s.kvpos:
                its=[]
                for nm in s.kvpos[k]:
                    its.append(s.item_K(('K',int(nm[1]))) if nm[0]=='K' else s.item_V(('V',int(nm[1]))))
                e(salu("s_cmp_eq_u32",None,sU,0)); e(branch(f"s_cbranch_scc0 L_k1_skip{k}"))
                n0=len(sc.out)
                for it in its: s.emit_item(sc,it)
                e(branch(f"s_branch L_k1_join{k}"))
                for x in sc.out[n0:]: s.only_u0.add(id(x))
                e(label(f"L_k1_skip{k}"))
                n0=len(sc.out)
                for q in range(4*len(its)): e(touch(V(1),vKa,sDum,0))
                for x in sc.out[n0:]: s.only_u1.add(id(x))
                e(label(f"L_k1_join{k}"))
            queues=[]
            if k==13:
                groups=[]
                for t in range(8):
                    for j in range(3):
                        last=mf[(2*t+1)*3+j]
                        groups.append((t,j,last,s.conv_ops(t,j)))
                n=len(groups)
                for i in range(n+2):
                    if i<n:
                        t,j,last,(m,c,p1,p2)=groups[i]
                        for x in m: qconv.append(Filler(x,[last]))
                        for x in c: qconv.append(Filler(x))
                    if 0<=i-1<n:
                        t,j,last,(m,c,p1,p2)=groups[i-1]
                        for x in p1: qconv.append(Filler(x))
                    if 0<=i-2<n:
                        t,j,last,(m,c,p1,p2)=groups[i-2]
                        for x in p2: qconv.append(Filler(x))
                        convdone[(t,j)]=p2
                queues=[qconv]
            if k<13:
                s.step(sc,'W','W',mf,None,itW(k),itW(k+1),xearly=xe,xpre=xp,late=late,extra_shadow=xs,
                       vmwait=[itW(k+1),xt(k+1)],qfree=queues,qds=queues)
            else:
                s.step(sc,'W','K',mf,None,itW(k),itK(0),late=late,extra_shadow=xs,
                       vmwait=[itK(0)],qfree=queues,qds=queues,nxt_korder=tmaj,keep_addr=True)
        s.stamp(sc,1,True)
        mf=[]
        for f,(kt,t) in enumerate(tmaj):
            for j in range(3): mf.append(mfma(SB(0,kt,j),KF(f),QF(t,j),0 if t==0 else SB(0,kt,j)))
        def needs0(gi):
            f,j=divmod(gi,3); kt,t=tmaj[f]
            nd=list(convdone[(t,j)])
            if t==0 and kt==1: nd+=convdone[(1,j)]
            return nd
        s.step(sc,'K','K',mf,tmaj,itK(0),itK(1),late=s.item_W(itW(17)),
               vmwait=[itK(1)],qfree=[qconv],qds=[qconv],needs=needs0,nxt_korder=kmaj)
        assert not qconv
        m=[V(208+j) for j in range(3)]; tm=[V(211+j) for j in range(3)]
        e(barrier())
        if s.even:
            pre,L=s.item_K(itK(3))
            for x in s.flat(pre): e(x)
            for m_,d_ in L[:2]: e(m_); e(d_)
        else: s.emit_item(sc,s.item_K(itK(3)))
        mv=[]
        for i4 in range(16,24):
            for r in range(4): mv.append(accrd(sub(PARK_A(i4),r),sub(PARK_T(i4),r)))
        for j in range(3):
            a=SB(0,0,j); e(valu("v_max3_f32",m[j],sub(a,0),sub(a,1),sub(a,2)))
        for j in range(3):
            a=SB(0,0,j); b=SB(0,1,j); e(valu("v_max3_f32",m[j],m[j],sub(a,3),sub(b,0)))
        for j in range(3):
            b=SB(0,1,j); e(valu("v_max3_f32",m[j],m[j],sub(b,1),sub(b,2)))
        for j in range(3):
            b=SB(0,1,j); e(valu("v_max_f32",m[j],m[j],sub(b,3)))
        for x in s.allreduce("v_max_f32",m,tm): e(x)
        for j in range(3):
            for r in range(4): e(valu("v_sub_f32",sub(CI(j),r),0,m[j]))
        for j in range(3): e(valu("v_mov_b32",vL[j],0))
        for j in range(3):
            for kt in range(2):
                for r in range(4): e(valu("v_sub_f32",sub(SB(0,kt,j),r),sub(SB(0,kt,j),r),m[j]))
        s.stamp(sc,2,True)
        def half(sc,buf,first=False,extraq=None):
            nb=1-buf
            iK=lambda d:(lambda en:('K',16*en['u']+en['i']+d))
            iV=lambda d:(lambda en:('V',16*en['u']+en['i']+d))
            qe,qc,pd=s.sm_exp(buf)
            mf=[]
            for f,(kt,t) in enumerate(kmaj):
                for j in range(3): mf.append(mfma(SB(nb,kt,j),KF(f),QF(t,j),CI(j) if t==0 else SB(nb,kt,j)))
            xq=[extraq] if extraq is not None else []
            if s.even:
                preV,LV=s.item_V(iV(2)); _,LKprev=s.item_K(iK(3)); preK,LK=s.item_K(iK(4))
                s.step(sc,'K','V',mf,kmaj,iK(1),iV(0),vmwait=[iV(0)],qfree=[qe,qc]+xq,qds=[qc]+xq,
                       dmas=[(5,LKprev[2]),(17,LKprev[3]),(29,LV[0]),(41,LV[1])],pres=[(preV,18,27)])
            else:
                s.step(sc,'K','V',mf,kmaj,iK(1),iV(0),vmwait=[iV(0)],qfree=[qe,qc]+xq,qds=[qc]+xq)
            qa=s.sm_add(buf); qm=s.sm_max(nb)
            mf=[mfma(OA(T,j),VF(T),PF(j),0 if first else OA(T,j)) for T in range(16) for j in range(3)]
            def needs(gi):
                nd=list(pd[gi]) if gi<3 else []
                if gi==0 and extraq is not None: nd+=[f.ins for f in extraq]
                return nd
            if s.even:
                s.step(sc,'V','K',mf,None,iV(0),iK(2),vmwait=[iK(2)],qfree=[qe,qc,qm,qa]+xq,qds=[qc,qm,qa]+xq,needs=needs,nxt_korder=kmaj,
                       dmas=[(5,LV[2]),(17,LV[3]),(29,LK[0]),(41,LK[1])],pres=[(preK,18,27)])
            else:
                s.step(sc,'V','K',mf,None,iV(0),iK(2),early=s.item_V(iV(2)),late=s.item_K(iK(4)),
                       vmwait=[iK(2)],qfree=[qe,qc,qm,qa]+xq,qds=[qc,qm,qa]+xq,needs=needs,nxt_korder=kmaj)
            s.flush_all(sc,[qe,qc,qa,qm])
            return nb
        nb=half(sc,0,first=True,extraq=[Filler(x) for x in mv])
        e(branch(f"s_cbranch_vccnz L_k1_rareF")); e(label("L_k1_retF"))
        e(salu("s_mov_b32",sCNT,7))
        wblk=sc.out
        sc=Sched(); sc.emit(label("L_k1_loop"))
        half(sc,1); sc.emit(branch("s_cbranch_vccnz L_k1_rare0")); sc.emit(label("L_k1_ret0"))
        hB=sc.out
        sc=Sched()
        half(sc,0); sc.emit(branch("s_cbranch_vccnz L_k1_rare1")); sc.emit(label("L_k1_ret1"))
        sc.emit(salu("s_sub_u32",sCNT,sCNT,1)); sc.emit(salu("s_cmp_lg_u32",None,sCNT,0)); sc.emit(branch("s_cbranch_scc1 L_k1_loop"))
        hA=sc.out
        sc=Sched(); e=sc.emit
        s.stamp(sc,3,True)
        iV=lambda d:(lambda en:('V',16*en['u']+15+d))
        e(wait_vm(iV(0))); e(barrier())
        if s.even:
            _,L=s.item_K(lambda en:('K',16*en['u']+18))
            for m_,d_ in L[2:]: e(m_); e(d_)
        for x in s.adv_rd('V'): e(x)
        for x in s.addr_ops('V'): e(x)
        for f in range(3):
            for x in s.rdV(f,iV(0),"Vn"): e(x)
        qe,qc,pd=s.sm_exp(1)
        for j in range(3):
            for _ in range(8): e(qe.pop(0).ins)
            for _ in range(4): e(qc.pop(0).ins)
        e(wait_lgkm(("Vn",0,0),("Vn",0,1)))
        qa=s.sm_add(1)
        mf=[mfma(OA(T,j),VF(T),PF(j),OA(T,j)) for T in range(16) for j in range(3)]
        s.step(sc,'V',None,mf,None,iV(0),None,early=s.item_V(iV(2)),nobarrier=True,qfree=[qa],qds=[qa])
        s.flush_all(sc,[qa])
        s.stamp(sc,4,True)
        if s.deep:
            e(salu("s_cmp_eq_u32",None,sU,1)); e(branch("s_cbranch_scc0 L_k1_nop0"))
            n0=len(sc.out)
            for p in range(4): e(valu("v_add_u32",vWo[p],p*28672,V(22)))
            e(salu("s_mov_b32",sWw,s.oring+1-16384))
            e(barrier())
            for q in range(4): s.emit_item(sc,s.item_O(('P',q),q*114688,sNgC))
            for x in sc.out[n0:]: s.only_u1.add(id(x))
            e(label("L_k1_nop0"))
        tm=[V(208+j) for j in range(3)]
        for x in s.allreduce("v_add_f32",vL,tm): e(x)
        RI=[V(220+2*j,2) for j in range(3)]
        for j in range(3): e(trans("v_rcp_f32",sub(RI[j],0),vL[j]))
        for j in range(3): e(valu("v_mov_b32",sub(RI[j],1),sub(RI[j],0)))
        gi=0
        xl=None
        for t in range(8):
            for j in range(3):
                base=160+8*(gi%6); T8=[V(base+r) for r in range(8)]
                for r in range(4): e(accrd(T8[r],sub(OA(2*t,j),r)))
                for r in range(4): e(accrd(T8[4+r],sub(OA(2*t+1,j),r)))
                for r in range(4): e(valu("v_pk_mul_f32",V(base+2*r,2),V(base+2*r,2),RI[j]))
                for r in range(4): e(valu("v_cvt_pk_bf16_f32",sub(QF(t,j),r),T8[2*r],T8[2*r+1]))
                gi+=1
            if t==1:
                for x in s.flat(s.xpre()): e(x)
                for x in s.xloads(0,lambda k:(lambda en:('x',en['u']+1,k))): e(x)
        s.stamp(sc,5,True)
        e(salu("s_cmp_eq_u32",None,sU,1)); e(branch("s_cbranch_scc1 L_k1_op"))
        epi=sc.out
        sc=Sched(); e=sc.emit
        for i4 in range(24):
            t,j=divmod(i4,3)
            for r in range(4): e(accwr(sub(PARK_T(i4),r),sub(QF(t,j),r)))
        e(salu("s_mov_b32",sU,1)); e(branch("s_branch L_k1_unit"))
        park=sc.out
        sc=Sched(); e=sc.emit
        e(label("L_k1_op"))
        last=(s.oring+1-16384)
        if not s.deep:
            for p in range(4): e(valu("v_add_u32",vWo[p],p*28672,V(22)))
            e(salu("s_mov_b32",sWw,last))
        e(salu("s_mov_b32",sWr,last))
        def advN(dst,src): return [salu("s_add_u32",dst,src,128),salu("s_cmp_eq_u32",None,dst,896),salu("s_cselect_b32",dst,0,dst)]
        for x in advN(sNgN,sNgC): e(x)
        if not s.deep:
            e(wait_fixed(vm=0)); e(barrier())
            for q in range(3): s.emit_item(sc,s.item_O(('P',q),q*114688,sNgC))
        else:
            e(barrier())
            for q in range(4,7): s.emit_item(sc,s.item_O(('P',q),(q&3)*114688,sNgN))
        if s.deep:
            for x in advN(sNgNN,sNgN): e(x)
        itP=lambda d:(lambda en:('P',4*en['g']+d))
        e(wait_vm(('P',0))); e(barrier())
        for x in s.adv_rd('O'): e(x)
        for x in s.addr_ops('O'): e(x)
        ksmaj=list(range(16))
        Tmaj=[ks*4+T for T in range(4) for ks in range(4)]
        for f in range(3):
            for x in s.rdV(f,('P',0),"On"): e(x)
        e(wait_lgkm(("On",0,0),("On",0,1)))
        e(salu("s_mov_b32",sCNT,7)); e(salu("s_mov_b32",sPs,"0x40000000")); e(salu("s_mov_b32",sPs2,"0x40000000"))
        s.stamp(sc,13)
        oppro=sc.out
        def Bop(kq,ks,j):
            hh=kq>>1; t=4*(kq&1)+ks
            return PARK_A(t*3+j) if hh==0 else QF(t,j)
        sc=Sched(); e=sc.emit
        e(label("L_k1_oploop"))
        def cv(h,j):
            a=OPA(2*h,j); b=OPA(2*h+1,j); d=OPK(h,j)
            return [valu("v_cvt_pk_bf16_f32",sub(d,0),sub(a,0),sub(a,1)),valu("v_cvt_pk_bf16_f32",sub(d,1),sub(a,2),sub(a,3)),
                    valu("v_cvt_pk_bf16_f32",sub(d,2),sub(b,0),sub(b,1)),valu("v_cvt_pk_bf16_f32",sub(d,3),sub(b,2),sub(b,3))]
        def stores(h): return [vstore(OPK(h,j),vPst,sP,(sPs if j<2 else sPs2),((j*2048)%4096)+h*1024,tag='p',mod=s.stmod) for j in range(3)]
        carry_cv=[]
        for j in range(3): carry_cv+=cv(1,j)[2:]
        carry_st=stores(1)
        for kq in range(4):
            fo = Tmaj if kq==3 else ksmaj
            nfo = Tmaj if kq==2 else ksmaj
            mf=[]
            for f in range(16):
                ks,T=divmod(fo[f],4)
                firstk = (kq==0 and ks==0)
                for j in range(3): mf.append(mfma(OPA(T,j),VF(f),Bop(kq,ks,j),0 if firstk else OPA(T,j)))
            kq2=(kq+s.olook)&3
            if s.deep: ngr = sNgN if kq==0 else sNgNN
            else: ngr = sNgC if kq==0 else sNgN
            late=s.item_O(itP(kq+s.olook),kq2*114688,ngr)
            q=[]; xs=[]; xe=[]; nd=None; XG=(5,14,23)
            if kq==0:
                q=[Filler(x) for x in carry_cv]
                def nd(gi,q0=list(carry_cv)):
                    return q0 if gi==9 else ()
                xe=carry_st; XG=(11,17,23) if not s.latest else (38,44,44)
            if kq==1:
                xs=[(12,salu("s_cmp_eq_u32",None,sCNT,2 if s.deep else 1)),(12,salu("s_cselect_b32",sub(sWo,2),0,sub(sWo,2))),
                    (13,salu("s_mul_i32",sPs,sNgC,48)),(15,salu("s_add_u32",sPs2,sPs,4096))]
            if kq==3:
                c0=[]
                for j in range(3): c0+=[Filler(x,[mf[(7*3)+j]]) for x in cv(0,j)]
                c2=[]
                for j in range(3): c2+=[Filler(x,[mf[(11*3)+j]]) for x in cv(1,j)[:2]]
                q=c0+c2
                xe=stores(0); XG=(38,41,44)
                def nd(gi,c=[f.ins for f in c0]):
                    return c if gi==38 else ()
                if s.deep:
                    adv=advN(sNgNN,sNgNN)
                    xs=[(42,salu("s_mov_b32",sNgC,sNgN)),(42,salu("s_mov_b32",sNgN,sNgNN)),(43,adv[0]),(45,adv[1]),(45,adv[2])]
                else:
                    adv=advN(sNgN,sNgN)
                    xs=[(42,salu("s_mov_b32",sNgC,sNgN)),(43,adv[0]),(45,adv[1]),(45,adv[2])]
            s.step(sc,'O','O',mf,None,itP(kq),itP(kq+1),late=late,extra_shadow=xs,xearly=xe,XG=XG,needs=nd,
                   vmwait=[itP(kq+1)],qfree=[q],qds=[q],forder=fo,nxt_forder=nfo,LG=(29,32,35,47) if kq==3 else (29,35,41,47))
            s.flush_all(sc,[q])
        e(salu("s_sub_u32",sCNT,sCNT,1)); e(salu("s_cmp_lg_u32",None,sCNT,0)); e(branch("s_cbranch_scc1 L_k1_oploop"))
        for x in [y for j in range(3) for y in cv(1,j)[2:]]: e(x)
        for x in stores(1): e(x)
        s.stamp(sc,14)
        if s.fuse:
            if s.prof:
                for x in s.dump_code(): e(x)
            s.reduce_tail(sc)
        e(branch("s_branch L_k1_fin" if (s.prof and not s.fuse) else "s_branch L_k1_end"))
        oploop=sc.out
        sc=Sched(); s.rare(sc,1,"L_k1_rareF","L_k1_retF"); s.rare(sc,0,"L_k1_rare0","L_k1_ret0"); s.rare(sc,1,"L_k1_rare1","L_k1_ret1"); rare=sc.out
        endb=[]
        if s.prof:
            endb=[label("L_k1_fin"),wait_fixed(vm=0),raw("s_memtime s[98:99]"),raw("s_memrealtime s[100:101]"),raw("s_waitcnt lgkmcnt(0)"),
                  raw("s_mov_b32 s4, s98"),raw("s_mov_b32 s5, s100"),
                  raw("s_add_u32 s8, s96, 0x8000000"),raw("s_addc_u32 s9, s97, 0"),raw("s_and_b32 s9, s9, 0xffff"),raw("s_mov_b32 s10, 0x100000"),raw("s_mov_b32 s11, 0x20000"),
                  raw("s_lshl_b32 s3, s2, 10"),raw("s_lshl_b32 s38, s24, 8"),raw("s_add_u32 s3, s3, s38"),raw("v_mov_b32 v1, s3","valu")]
            regs=list(range(66,96))+[4,5]
            for i,r in enumerate(regs):
                endb+=[raw(f"v_mov_b32 v2, s{r}","valu"),raw(f"buffer_store_dword v2, v1, s[8:11], 0 offen offset:{4*i}","valu"),raw("s_nop 1")]
            if s.fine:
                endb+=[raw("v_and_b32 v2, 63, v0","valu"),raw("v_lshlrev_b32 v2, 2, v2","valu"),raw("s_lshl_b32 s3, s2, 11"),raw("s_lshl_b32 s38, s24, 9"),raw("s_add_u32 s3, s3, s38"),
                       raw("s_add_u32 s3, s3, 0x40000"),raw("v_add_u32 v2, s3, v2","valu"),raw("buffer_store_dword v23, v2, s[8:11], 0 offen","valu"),
                       raw("buffer_store_dword v21, v2, s[8:11], 0 offen offset:256","valu")]
            endb+=[raw("s_waitcnt vmcnt(0)")]
        endb+=[label("L_k1_end"),wait_fixed(vm=0),raw("s_endpgm","branch")]
        trace=[(x,{'u':0}) for x in pro]
        for u in range(2):
            trace+=[(x,{'u':u,'i':0}) for x in wblk if not ((u!=0 and id(x) in s.only_u0) or (u!=1 and id(x) in s.only_u1))]
            for it in range(7):
                trace+=[(x,{'u':u,'i':2*it+1}) for x in hB]
                trace+=[(x,{'u':u,'i':2*it+2}) for x in hA]
            trace+=[(x,{'u':u}) for x in epi if not ((u!=0 and id(x) in s.only_u0) or (u!=1 and id(x) in s.only_u1))]
            if u==0: trace+=[(x,{'u':u}) for x in park]
        trace+=[(x,{'u':1}) for x in oppro]
        for g in range(7): trace+=[(x,{'g':g}) for x in oploop]
        resolve_waits(trace)
        errs=check(trace)
        s.trace=trace
        code=pro+wblk+hB+hA+epi+park+oppro+oploop+rare+endb
        return code,errs

if __name__=="__main__":
    k=K1F(); code,errs=k.build()
    print(len(code),"instructions;",len(errs),"errors")
    for x in errs[:40]: print(x)
```

```python
from ir import *
from sched import *
import k1
from k1 import (K1, f32bits, vTID, vT, vKl, vVl, vKa, vVa, vKg, vVg, vWg, vMX, vTMP, vL, KF, VF, QA, QF, SB, PF, CI, OA,
                sK, sV, sW, sX, sWAVE, sU, sKs, sVs, sWs, sKw, sVw, sWw, sKr, sVr, sWr, sCNT, sT0, sT1, sC2, sTH, sWvK, sWvV,
                W_BASE, K_BASE, V_BASE, LDS_END, SCALE, THRESH)

vXg=[V(12),V(19),V(20)]; vPst=V(13)
vWo=[V(24+p) for p in range(4)]
def XF(s,j): return A(((s&3)*3+j)*4,4)
def PARK_A(i4):
    if i4<16: return A(192+4*i4,4)
    if i4<22: return V(232+4*(i4-16),4)
    return V(56+4*(i4-22),4)
def PARK_T(i4):
    return A(192+4*i4,4) if i4<16 else A(48+4*(i4-16),4)
def OPA(T,j): return V(160+(T*3+j)*4,4)
def OPK(h,j): return V(208+(h*3+j)*4,4)
sP=S(20,4)
sWo=S(56,4)
sWk=S(35); sWu=S(36); sXk=S(40); sNgC=S(41); sNgN=S(45); sWoS=S(54); sPs=S(55); sPs2=S(60); sWvO=[S(62+p) for p in range(4)]
sRho=S(61); sDum=S(92,4); sNgNN=S(53)
PW=172032

class K1F(K1):
    def __init__(s, ntkv=True, stmod=" nt", prof=False, wmod="", xmod="", womod="", rot=True, fine=False, touch=True, defer=True, kvpos=None, prokv=('K0','K1'), even=True, fuse=False, rdmod=' sc1', outmod='', rel=False, latest=False, deep=True, dbgprof=False):
        super().__init__(ntkv=ntkv, stmod=stmod, prof=False, wmod=wmod, xmod=xmod)
        s.prof=prof; s.womod=womod; s.rot=rot; s.fine=fine; s.touch=touch; s.defer=defer; s.only_u0=set(); s.only_u1=set(); s.kvpos=kvpos or {12:['V0','K2'],13:['V1']}; s.prokv=prokv; s.even=even; s.fuse=fuse; s.rdmod=rdmod; s.outmod=outmod
        s.rel=rel; s.latest=latest; s.deep=deep; s.dbgprof=dbgprof; s.oring=0x1ffff if deep else 0xffff; s.onsl=8 if deep else 4; s.olook=7 if deep else 3
        if fuse and not rel: s.stmod=' sc1'
    def stamp(s, sc, idx, dyn=False):
        if not s.prof: return
        sc.emit(raw("s_memtime s[98:99]")); sc.emit(raw("s_memrealtime s[100:101]"))
        sc.emit(wait_fixed(lgkm=0))
        a=66+2*idx
        if not dyn:
            sc.emit(raw(f"s_mov_b32 s{a}, s98")); sc.emit(raw(f"s_mov_b32 s{a+1}, s100"))
        else:
            b=66+2*(idx+6)
            sc.emit(raw("s_cmp_eq_u32 s25, 0"))
            sc.emit(raw(f"s_cselect_b32 s{a}, s98, s{a}")); sc.emit(raw(f"s_cselect_b32 s{a+1}, s100, s{a+1}"))
            sc.emit(raw(f"s_cselect_b32 s{b}, s{b}, s98")); sc.emit(raw(f"s_cselect_b32 s{b+1}, s{b+1}, s100"))
    def item_W(s, item):
        pre=[salu("s_add_u32",sWk,sWk,262144), [salu("s_add_u32",sWw,sWw,16384),salu("s_and_b32",sWw,sWw,0xffff)],
             [salu("s_cmp_eq_u32",None,sWk,14*262144),salu("s_cselect_b32",sWk,0,sWk)], salu("s_add_u32",sWs,sWk,sWu)]
        pre=[pre[0],pre[2],pre[1],pre[3]]
        L=[(salu("s_add_u32","m0",sWw,sWvV[p]), dma(vWg,sW,sWs,p*128,item,lambda e,it=item:('W',ev(it,e)[1]%4),s.wmod)) for p in range(4)]
        return pre,L
    def item_K(s, item):
        pre=[salu("s_add_u32",sKs,sKs,16384), salu("s_add_u32",sKw,sKw,16384),
             [salu("s_cmp_eq_u32",None,sKw,V_BASE), salu("s_cselect_b32",sKw,K_BASE,sKw)]]
        L=[(salu("s_add_u32","m0",sKw,sWvK[p]), dma(vKg[p>>1],sK,sKs,(p&1)*256,item,lambda e,it=item:('K',ev(it,e)[1]%3),s.kvmod)) for p in range(4)]
        return pre,L
    def item_V(s, item):
        pre=[salu("s_add_u32",sVs,sVs,16384), salu("s_add_u32",sVw,sVw,16384),
             [salu("s_cmp_eq_u32",None,sVw,LDS_END), salu("s_cselect_b32",sVw,V_BASE,sVw)]]
        L=[(salu("s_add_u32","m0",sVw,sWvV[p]), dma(vVg,sV,sVs,p*128,item,lambda e,it=item:('V',ev(it,e)[1]%3),s.kvmod)) for p in range(4)]
        return pre,L
    def item_O(s, item, const, ng):
        pre=[salu("s_add_u32",sWoS,ng,const), [salu("s_add_u32",sWw,sWw,16384), salu("s_and_b32",sWw,sWw,s.oring)]]
        def slot(e,it=item):
            q=ev(it,e)[1]%s.onsl
            return ('W',q) if q<4 else (('K',q-4) if q<7 else ('V',0))
        L=[(salu("s_add_u32","m0",sWw,sWvO[p]), dma(vWo[p],sWo,sWoS,0,item,slot,s.womod)) for p in range(4)]
        return pre,L
    def adv_rd(s, typ):
        if typ=='O': return [salu("s_add_u32",sWr,sWr,16384),salu("s_and_b32",sWr,sWr,s.oring)]
        return super().adv_rd(typ)
    def addr_ops(s, typ):
        return super().addr_ops('W' if typ=='O' else typ)
    def xpre(s):
        return [salu("s_add_u32",sXk,sXk,128),[salu("s_cmp_eq_u32",None,sXk,896),salu("s_cselect_b32",sXk,0,sXk)]]
    def xloads(s, pos, tagfn):
        return [vload(XF(pos+d,j),vXg[j],sX,sXk,d*64,tag=tagfn(pos+d),mod=s.xmod) for j in range(3) for d in range(2)]
    @staticmethod
    def flat(L):
        out=[]
        for x in L:
            if isinstance(x,list): out+=x
            else: out.append(x)
        return out
    def emit_item(s, sc, item_pair):
        pre,L=item_pair
        for x in s.flat(pre): sc.emit(x)
        for m,d in L: sc.emit(m); sc.emit(d)

    def step(s, sc, cur, nxt, mf, korder, cur_item, nxt_item, early=None, late=None, xearly=(), xpre=(),
             extra_shadow=(), extra_fixed=(), needs=None, vmwait=(), qfree=None, qds=None, nxt_korder=None,
             nobarrier=False, keep_addr=False, forder=None, nxt_forder=None,
             EG=(5,11,17,23), LG=(29,35,41,47), XG=(5,14,23), BG=24, dmas=(), pres=()):
        if s.fine:
            sc.emit(raw("s_memtime s[98:99]")); sc.emit(wait_fixed(lgkm=0))
            sc.emit(raw("s_and_b32 m0, s3, 63","salu",wr=M0)); sc.emit(raw("s_cmp_lt_u32 s3, 64"))
            sc.emit(raw("s_cselect_b32 s100, 0, 1")); sc.emit(raw("s_add_u32 s3, s3, 1")); sc.emit(raw("s_cmp_eq_u32 s100, 0"))
            lab=f"L_fine{len(s._fl)}"; s._fl.append(lab)
            sc.emit(branch(f"s_cbranch_scc0 {lab}_b"))
            sc.emit(raw("v_writelane_b32 v23, s98, m0","valu")); sc.emit(branch(f"s_branch {lab}_e"))
            sc.emit(label(f"{lab}_b")); sc.emit(raw("v_writelane_b32 v21, s98, m0","valu")); sc.emit(label(f"{lab}_e"))
        shadow=[[] for _ in range(48)]; fixed=[[] for _ in range(48)]
        tagc=cur+"c"; tagn=(nxt or "")+"n"; prevtag=cur+"n"
        def frag_reads(typ,f,order,item,tag,fo):
            if typ=='K':
                kt,t=order[f]; return s.rdK(f,kt,t,item,tag)
            T=fo[f] if fo else f
            r=VF(f); off=(T>>2)*1024+((T>>1)&1)*512
            return [dsread("ds_read_b64_tr_b16",sub(r,0,2),vVa[T&1],off,tag=(tag,f,0),item=item),
                    dsread("ds_read_b64_tr_b16",sub(r,2,2),vVa[T&1],off+8192,tag=(tag,f,1),item=item)]
        def tags(typ,f,tag): return [(tag,f)] if typ=='K' else [(tag,f,0),(tag,f,1)]
        for f in range(3,16):
            for q,x in enumerate(frag_reads(cur,f,korder,cur_item,tagc,forder)): fixed[3*(f-3)+q].append(x)
        for f in range(1,16):
            tg = tags(cur,f,tagc) if f>=3 else tags(cur,f,prevtag)
            shadow[3*f-1].append(wait_lgkm(*tg))
        reserved=set()
        if nxt:
            if not keep_addr:
                adv=s.adv_rd(nxt)
                ao=s.addr_ops(nxt)
                if cur=='K' and nxt!='K':
                    shadow[27].append(adv[0]); shadow[30].extend(adv[1:])
                    fixed[33].append(ao[0]); fixed[36].append(ao[1])
                else:
                    shadow[30].append(adv[0]); shadow[33].extend(adv[1:])
                    if nxt=='K': fixed[37].append(ao[0])
                    else: fixed[36].append(ao[0]); fixed[37].append(ao[1])
            for f in range(3):
                for q,x in enumerate(frag_reads(nxt,f,nxt_korder,nxt_item,tagn,nxt_forder)): fixed[39+3*f+q].append(x)
            shadow[47].append(wait_lgkm(*tags(nxt,0,tagn)))
        if vmwait: shadow[BG].append(wait_vm(*vmwait))
        if not nobarrier: shadow[BG+1].append(barrier())
        for it,G in ((early,EG),(late,LG)):
            if not it: continue
            for (m,d),g in zip(it[1],G):
                shadow[g-1].append(m); fixed[g].append(d); reserved.add(g-1)
        for g,(m,d) in dmas:
            shadow[g-1].append(m); fixed[g].append(d)
        for x,g in zip(xearly,XG): fixed[g].append(x)
        for gi,x in extra_shadow: shadow[gi].append(x)
        for gi,x in extra_fixed: fixed[gi].append(x)
        def place(groups, gp, lim):
            for G in groups:
                G = G if isinstance(G,list) else [G]
                while gp<48 and (shadow[gp] or gp%3==2): gp+=1
                assert gp<=lim,(gp,lim,groups)
                shadow[gp].extend(G); gp+=1
            return gp
        gp=0
        if early: gp=place(early[0], 0, EG[0]-2)
        if xpre: gp=place(list(xpre), 0, XG[0]-1)
        if late: gp=place(late[0], gp, LG[0]-2)
        for groups,lo,hi in pres: place(groups, lo, hi)
        for gi in range(48):
            nd = needs(gi) if needs else ()
            if nd: s.flush_needed(sc, nd, (qfree or [])+(qds or []))
            sc.gap(mf[gi], shadow[gi], fixed[gi], fill=False)
            used=max(0,len(shadow[gi])-1)+sum(COST.get(x.kind,1) for x in fixed[gi])
            slots=2-used
            hasds=any(x.kind=="ds" for x in fixed[gi])
            if slots>0: s.fillq(sc, slots, qds if hasds else qfree)

    def prologue(s, sc):
        e=sc.emit
        e(raw("s_cmp_ge_u32 s2, 256")); e(branch("s_cbranch_scc1 L_k1_end"))
        e(raw("s_load_dwordx16 s[68:83], s[0:1], 0"))
        e(raw("s_load_dwordx4 s[84:87], s[0:1], 64"))
        e(raw("s_load_dwordx2 s[88:89], s[0:1], 96"))
        if s.prof:
            e(raw("s_memtime s[98:99]")); e(raw("s_memrealtime s[100:101]"))
        for t in ["s_and_b32 s90, s2, 7","s_lshr_b32 s91, s2, 3","s_lshr_b32 s92, s90, 2",
                  "s_lshr_b32 s93, s90, 1","s_and_b32 s93, s93, 1","s_lshl_b32 s93, s93, 3","s_lshr_b32 s94, s91, 2","s_add_u32 s93, s93, s94",
                  "s_and_b32 s95, s90, 1","s_lshl_b32 s95, s95, 3","s_and_b32 s96, s91, 3","s_lshl_b32 s97, s96, 1","s_add_u32 s95, s95, s97"]:
            e(raw(t))
        if s.rot:
            for t in ["s_lshl_b32 s61, s96, 1","s_add_u32 s61, s61, s94","s_cmp_ge_u32 s61, 7","s_cselect_b32 s97, 7, 0","s_sub_u32 s61, s61, s97",
                      "s_cmp_ge_u32 s61, 7","s_cselect_b32 s97, 7, 0","s_sub_u32 s61, s61, s97"]: e(raw(t))
        else: e(raw("s_mov_b32 s61, 0"))
        e(valu("v_lshrrev_b32",vT,6,vTID))
        L=V(56); I=V(57); G=V(58); t0=V(59); t1=V(60); t2=V(61); KB=V(62); RR=V(63)
        e(valu("v_and_b32",L,63,vTID))
        e(valu("v_readfirstlane_b32",sWAVE,vT))
        e(valu("v_and_b32",I,15,L)); e(valu("v_lshrrev_b32",G,4,L))
        e(valu("v_bfe_u32",KB,L,4,1)); e(valu("v_bfe_u32",RR,L,2,2))
        e(valu("v_bfe_u32",t0,L,1,1)); e(valu("v_xor_b32",t0,t0,KB)); e(valu("v_lshlrev_b32",t0,5,t0))
        e(valu("v_lshrrev_b32",t1,5,L)); e(valu("v_lshl_add_u32",t0,t1,6,t0))
        e(valu("v_and_b32",t1,1,L)); e(valu("v_lshl_add_u32",t2,t1,4,t0))
        e(salu("s_and_b32",sT0,sWAVE,1)); e(salu("s_lshl_b32",sT0,sT0,4)); e(salu("s_lshr_b32",sT1,sWAVE,1)); e(salu("s_lshl_b32",sT1,sT1,2)); e(salu("s_add_u32",sT0,sT0,sT1))
        e(valu("v_lshl_add_u32",t0,KB,3,RR)); e(valu("v_add_u32",t0,sT0,t0)); e(valu("v_lshl_add_u32",vWg,t0,13,t2))
        e(salu("s_mul_i32",sT0,sWAVE,48)); e(valu("v_add_u32",t0,sT0,I)); e(salu("s_movk_i32",sT1,896))
        e(valu("v_mul_lo_u32",t0,t0,sT1)); e(valu("v_lshl_add_u32",vXg[0],G,4,t0))
        e(valu("v_add_u32",vXg[1],14336,vXg[0])); e(valu("v_add_u32",vXg[2],28672,vXg[0]))
        e(salu("s_lshl_b32",sT0,sWAVE,12))
        for p in range(4):
            e(salu("s_add_u32",sWvK[p],sT0,p*1024-(p&1)*256)); e(salu("s_add_u32",sWvV[p],sT0,p*896)); e(salu("s_add_u32",sWvO[p],sT0,p*1024))
        e(salu("s_mov_b32",sU,0)); e(salu("s_mov_b32",sKs,"0xffffc000")); e(salu("s_mov_b32",sVs,"0xffffc000"))
        e(salu("s_mov_b32",sKw,K_BASE+32768)); e(salu("s_mov_b32",sVw,V_BASE+32768)); e(salu("s_mov_b32",sWw,49152))
        e(salu("s_mov_b32",sKr,K_BASE)); e(salu("s_mov_b32",sVr,V_BASE+32768)); e(salu("s_mov_b32",sWr,49152))
        e(salu("s_lshl_b32",sWk,sRho,1)); e(salu("s_add_u32",sWk,sWk,13)); e(salu("s_cmp_ge_u32",None,sWk,14)); e(salu("s_cselect_b32",sT0,14,0)); e(salu("s_sub_u32",sWk,sWk,sT0)); e(salu("s_lshl_b32",sWk,sWk,18))
        e(salu("s_add_u32",sXk,sRho,6)); e(salu("s_cmp_ge_u32",None,sXk,7)); e(salu("s_cselect_b32",sT0,7,0)); e(salu("s_sub_u32",sXk,sXk,sT0)); e(salu("s_lshl_b32",sXk,sXk,7))
        e(salu("s_mov_b32",sWu,0))
        e(raw("s_waitcnt lgkmcnt(0)","waitraw"))
        e(raw("s_cmp_eq_u32 s92, 0"))
        for d,b in [(68,78),(69,79),(70,80),(71,81),(72,82),(73,83),(74,84),(75,85),(76,86),(77,87)]:
            e(raw(f"s_cselect_b32 s{d}, s{d}, s{b}"))
        for t in [
            "s_lshl_b32 s97, s95, 9",
            "s_add_u32 s12, s74, s97","s_addc_u32 s13, s75, 0","s_and_b32 s13, s13, 0xffff","s_sub_u32 s14, 3670016, s97","s_mov_b32 s15, 0x20000",
            "s_mul_i32 s97, s93, 172032",
            "s_add_u32 s16, s68, s97","s_addc_u32 s17, s69, 0","s_and_b32 s17, s17, 0xffff","s_mov_b32 s18, 172032","s_mov_b32 s19, 0x20000",
            ]: e(raw(t))
        if s.touch:
            e(raw("s_mul_i32 s97, s96, 48")); e(salu("s_mul_i32",sT0,sWAVE,12)); e(raw("s_add_u32 s97, s97, s38")); e(raw("s_mul_i32 s97, s97, 896"))
            e(valu("v_lshlrev_b32",t0,7,L)); e(valu("v_add_u32",t0,S(97),t0))
            e(touch(V(64),t0,sX,0))
            e(valu("v_add_u32",t1,8192,t0)); e(Ins("v_cmp_gt_u32 vcc, 20, v56","valu",rd=rs(L),wr=VCC)); e(valu("v_mov_b32",V(65),"0x7fffffff")); e(nop(0))
            e(Ins(f"v_cndmask_b32 {rt(t1)}, v65, {rt(t1)}, vcc","valu",rd=rs(t1,V(65))|VCC,wr=rs(t1)))
            e(touch(V(64),t1,sX,0))
            e(raw("s_mul_i32 s97, s94, 56")); e(salu("s_mul_i32",sT0,sWAVE,14)); e(raw("s_add_u32 s97, s97, s38"))
            e(valu("v_lshrrev_b32",t0,2,L)); e(valu("v_add_u32",t0,S(97),t0)); e(valu("v_lshlrev_b32",t0,13,t0))
            e(valu("v_and_b32",t1,3,L)); e(valu("v_lshl_add_u32",t0,t1,7,t0))
            e(Ins("v_cmp_gt_u32 vcc, 56, v56","valu",rd=rs(L),wr=VCC)); e(nop(1))
            e(Ins(f"v_cndmask_b32 {rt(t0)}, v65, {rt(t0)}, vcc","valu",rd=rs(t0,V(65))|VCC,wr=rs(t0)))
            e(touch(V(64),t0,sW,0))
        for t in [
            "s_lshl_b32 s97, s93, 4","s_add_u32 s97, s97, s95","s_lshl_b32 s97, s97, 18",
            "s_add_u32 s4, s70, s97","s_addc_u32 s5, s71, 0","s_and_b32 s5, s5, 0xffff","s_mov_b32 s6, 524288","s_mov_b32 s7, 0x20000",
            "s_add_u32 s8, s72, s97","s_addc_u32 s9, s73, 0","s_and_b32 s9, s9, 0xffff","s_mov_b32 s10, 524288","s_mov_b32 s11, 0x20000",
            ]: e(raw(t))
        e(valu("v_lshl_add_u32",t0,KB,2,RR)); e(valu("v_lshl_add_u32",t0,t0,9,t2)); e(salu("s_lshl_b32",sT0,sWAVE,12)); e(valu("v_add_u32",vVg,sT0,t0))
        for q in range(2):
            e(salu("s_and_b32",sT0,sWAVE,1)); e(salu("s_lshl_b32",sT0,sT0,1)); e(salu("s_add_u32",sT0,sT0,q))
            e(salu("s_sub_u32",sT1,4,sT0)); e(salu("s_and_b32",sT1,sT1,3))
            e(valu("v_and_b32",t0,3,L)); e(valu("v_xor_b32",t0,sT1,t0)); e(valu("v_lshlrev_b32",t0,4,t0))
            e(valu("v_lshl_add_u32",t0,G,6,t0))
            e(salu("s_lshl_b32",sT0,sT0,2)); e(salu("s_lshr_b32",sT1,sWAVE,1)); e(salu("s_lshl_b32",sT1,sT1,4)); e(salu("s_add_u32",sT0,sT0,sT1))
            e(valu("v_add_u32",t1,sT0,RR)); e(valu("v_lshl_add_u32",vKg[q],t1,9,t0))
        if s.defer:
            for nm in s.prokv:
                s.emit_item(sc, s.item_K(('K',int(nm[1]))) if nm[0]=='K' else s.item_V(('V',int(nm[1]))))
        s.emit_item(sc,s.item_W(('W',0)))
        for x in s.flat(s.xpre()): e(x)
        for x in s.xloads(0,lambda k:('x',0,k)): e(x)
        s.emit_item(sc,s.item_W(('W',1)))
        for t in [
            "s_mul_i32 s97, s95, 229376",
            "s_add_u32 s56, s76, s97","s_addc_u32 s57, s77, 0","s_and_b32 s57, s57, 0xffff","s_mov_b32 s58, 458752","s_mov_b32 s59, 0x20000",
            "s_lshl_b32 s97, s92, 4","s_add_u32 s97, s97, s93","s_lshl_b32 s97, s97, 3","s_lshr_b32 s90, s95, 1","s_add_u32 s97, s97, s90",
            f"s_mul_i32 s97, s97, {PW}",
            "s_add_u32 s20, s88, s97","s_addc_u32 s21, s89, 0","s_and_b32 s21, s21, 0xffff",f"s_mov_b32 s22, {PW}","s_mov_b32 s23, 0x20000",
            ]: e(raw(t))
        s.emit_item(sc,s.item_W(('W',2)))
        s.emit_item(sc,s.item_W(('W',3)))
        if not s.defer:
            for n in range(3): s.emit_item(sc,s.item_K(('K',n)))
            for n in range(2): s.emit_item(sc,s.item_V(('V',n)))
        e(valu("v_lshrrev_b32",t0,2,I)); e(valu("v_sub_u32",t1,4,t0)); e(valu("v_and_b32",t1,3,t1)); e(valu("v_xor_b32",t1,t1,G))
        e(valu("v_lshlrev_b32",t1,4,t1)); e(valu("v_lshl_add_u32",t1,t0,11,t1)); e(valu("v_and_b32",t0,3,I)); e(valu("v_lshl_add_u32",vKl,t0,6,t1))
        e(valu("v_lshrrev_b32",t0,1,G)); e(valu("v_lshlrev_b32",t0,12,t0)); e(valu("v_lshl_add_u32",t0,KB,8,t0))
        e(valu("v_lshl_add_u32",t0,RR,6,t0)); e(valu("v_and_b32",t1,3,L)); e(valu("v_lshl_add_u32",t0,t1,3,t0))
        e(valu("v_lshl_add_u32",vVl[0],KB,5,t0))
        e(valu("v_xor_b32",t1,1,KB)); e(valu("v_lshl_add_u32",vVl[1],t1,5,t0))
        e(valu("v_add_u32",vKa,K_BASE,vKl))
        e(salu("s_mul_i32",sT0,sWAVE,43008)); e(valu("v_lshlrev_b32",t0,4,L)); e(valu("v_add_u32",vPst,sT0,t0))
        e(salu("s_lshr_b32",sT0,sWAVE,1)); e(salu("s_lshl_b32",sT0,sT0,4)); e(salu("s_and_b32",sT1,sWAVE,1)); e(salu("s_lshl_b32",sT1,sT1,3)); e(salu("s_add_u32",sT0,sT0,sT1))
        e(valu("v_lshl_add_u32",t0,KB,2,RR)); e(valu("v_add_u32",t0,sT0,t0)); e(salu("s_movk_i32",sT1,896)); e(valu("v_mul_lo_u32",t0,t0,sT1)); e(valu("v_add_u32",V(22),t0,t2))
        e(salu("s_mov_b32",sub(sC2,0),hex(f32bits(SCALE)))); e(salu("s_mov_b32",sub(sC2,1),hex(f32bits(SCALE))))
        e(salu("s_mov_b32",sTH,hex(f32bits(THRESH))))
        e(salu("s_lshl_b32",sNgC,sRho,7))
        e(salu("s_mov_b32",sub(sDum,0),sub(sX,0))); e(salu("s_mov_b32",sub(sDum,1),sub(sX,1))); e(salu("s_mov_b32",sub(sDum,2),0)); e(salu("s_mov_b32",sub(sDum,3),"0x20000"))
        if s.prof:
            e(raw("s_mov_b32 s96, s88")); e(raw("s_mov_b32 s97, s89")); e(raw("s_mov_b32 s90, s98")); e(raw("s_mov_b32 s91, s100"))

    def rare(s, sc, buf, name, ret):
        e=sc.emit
        e(label(name)); e(nop(7)); e(nop(3))
        P0=208
        m=[V(P0+j) for j in range(3)]; tm=[V(P0+3+j) for j in range(3)]; al=[V(P0+6+j) for j in range(3)]
        for j in range(3):
            a=SB(buf,0,j); b=SB(buf,1,j)
            e(valu("v_max3_f32",m[j],sub(a,0),sub(a,1),sub(a,2)))
            e(valu("v_max3_f32",m[j],m[j],sub(a,3),sub(b,0)))
            e(valu("v_max3_f32",m[j],m[j],sub(b,1),sub(b,2)))
            e(valu("v_max_f32",m[j],m[j],sub(b,3)))
        for x in s.allreduce("v_max_f32",m,tm): e(x)
        for j in range(3): e(valu("v_max_f32",m[j],0,m[j]))
        for j in range(3):
            for kt in range(2):
                for r in range(4): e(valu("v_sub_f32",sub(SB(buf,kt,j),r),sub(SB(buf,kt,j),r),m[j]))
            for r in range(4): e(valu("v_sub_f32",sub(CI(j),r),sub(CI(j),r),m[j]))
            e(Ins(f"v_exp_f32_e64 {rt(al[j])}, -{rt(m[j])}","trans",rd=rs(m[j]),wr=rs(al[j])))
        for j in range(3): e(valu("v_mul_f32",vL[j],vL[j],al[j]))
        for T in range(16):
            for j in range(3):
                t=[V(P0+r) for r in range(4)] if False else [V(P0+0),V(P0+1),V(P0+2),V(P0+3)]
                t=[V(P0+9),V(P0+10),V(P0+11),vTMP]
                for r in range(4): e(accrd(t[r],sub(OA(T,j),r)))
                for r in range(4): e(valu("v_mul_f32",t[r],t[r],al[j]))
                for r in range(4): e(accwr(sub(OA(T,j),r),t[r]))
        e(nop(3))
        e(branch(f"s_branch {ret}"))

    def rstamp(s, sc, r):
        if not s.prof: return
        sc.emit(raw("s_memrealtime s[98:99]")); sc.emit(raw("s_waitcnt lgkmcnt(0)")); sc.emit(raw(f"s_mov_b32 s{r}, s98"))
    def dump_code(s):
        L=[raw("s_add_u32 s56, s96, 0x8000000"),raw("s_addc_u32 s57, s97, 0"),raw("s_and_b32 s57, s57, 0xffff"),raw("s_mov_b32 s58, 0x100000"),raw("s_mov_b32 s59, 0x20000"),
           raw("s_lshl_b32 s3, s2, 10"),raw("s_lshl_b32 s38, s24, 8"),raw("s_add_u32 s3, s3, s38"),raw("v_mov_b32 v1, s3","valu")]
        for i,r in enumerate(range(66,96)):
            L+=[raw(f"v_mov_b32 v2, s{r}","valu"),raw(f"buffer_store_dword v2, v1, s[56:59], 0 offen offset:{4*i}","valu"),raw("s_nop 1")]
        return L
    def reduce_tail(s, sc):
        e=sc.emit
        sDbg=S(4,4); sGP=S(8,4); sOut=S(12,4)
        e(raw("s_load_dwordx4 s[68:71], s[0:1], 80"))
        e(raw("s_load_dwordx2 s[72:73], s[0:1], 96"))
        for t in ["s_and_b32 s74, s2, 7","s_lshr_b32 s75, s2, 3","s_lshr_b32 s76, s74, 2",
                  "s_lshr_b32 s77, s74, 1","s_and_b32 s77, s77, 1","s_lshl_b32 s77, s77, 3","s_lshr_b32 s78, s75, 2","s_add_u32 s77, s77, s78",
                  "s_and_b32 s79, s74, 1","s_lshl_b32 s79, s79, 2","s_and_b32 s80, s75, 3","s_add_u32 s79, s79, s80",
                  "s_lshl_b32 s81, s76, 4","s_add_u32 s81, s81, s77"]:
            e(raw(t))
        e(wait_fixed(vm=0,lgkm=0))
        s.rstamp(sc,60)
        for t in ["s_mov_b32 s4, s70","s_and_b32 s5, s71, 0xffff","s_mov_b32 s6, 256","s_mov_b32 s7, 0x20000",
                  f"s_mul_i32 s82, s81, {8*PW}",
                  "s_add_u32 s8, s72, s82","s_addc_u32 s9, s73, 0","s_and_b32 s9, s9, 0xffff",f"s_mov_b32 s10, {8*PW}","s_mov_b32 s11, 0x20000",
                  "s_mov_b32 s12, s68","s_and_b32 s13, s69, 0xffff","s_mov_b32 s14, 5505024","s_mov_b32 s15, 0x20000"]:
            e(raw(t))
        e(barrier())
        e(salu("s_cmp_eq_u32",None,sWAVE,0)); e(branch("s_cbranch_scc0 L_k1_rwait"))
        e(raw("s_lshl_b32 s82, s81, 2")); e(valu("v_mov_b32",V(2),S(82))); e(valu("v_mov_b32",V(3),1))
        if s.rel:
            e(raw("buffer_wbl2 sc1","vmemraw")); e(raw("s_waitcnt vmcnt(0)"))
        e(raw("s_mov_b64 exec, 1"))
        e(raw("buffer_atomic_add v3, v2, s[4:7], 0 offen sc1","vmemraw"))
        e(raw("s_waitcnt vmcnt(0)"))
        e(raw("s_mov_b32 s83, 0x40000"))
        e(label("L_k1_poll"))
        e(raw("buffer_load_dword v4, v2, s[4:7], 0 offen sc1","vmemraw"))
        e(raw("s_waitcnt vmcnt(0)"))
        e(raw("v_readfirstlane_b32 s84, v4","valu"))
        e(raw("s_sub_u32 s83, s83, 1"))
        e(raw("s_cmp_eq_u32 s83, 0")); e(branch("s_cbranch_scc1 L_k1_pollend"))
        e(raw("s_cmp_lt_u32 s84, 8")); e(branch("s_cbranch_scc1 L_k1_poll"))
        e(label("L_k1_pollend"))
        e(raw("s_mov_b64 exec, -1"))
        if s.rel:
            e(raw("buffer_inv sc1","vmemraw")); e(raw("s_waitcnt vmcnt(0)"))
        e(label("L_k1_rwait"))
        e(barrier())
        s.rstamp(sc,61)
        vL_=V(2); vI=V(3); vG=V(4); vA=V(5); vO=V(6); t0=V(7)
        e(valu("v_and_b32",vL_,63,vTID)); e(valu("v_and_b32",vI,15,vL_)); e(valu("v_lshrrev_b32",vG,4,vL_))
        e(valu("v_lshlrev_b32",vA,4,vL_))
        e(raw("s_mul_i32 s85, s79, 21")); e(salu("s_add_u32",S(86),S(85),sWAVE)); e(raw("s_add_u32 s85, s85, 21"))
        for hp in range(1,8): e(salu("s_mov_b32",S(26+hp),hp*PW))
        def buf(i,hp): return V(64+(i*8+hp)*4,4)
        uo=[S(40+i) for i in range(6)]
        for i in range(6):
            e(salu("s_add_u32",S(87),S(86),4*i)); e(salu("s_lshl_b32",uo[i],S(87),10))
            e(salu("s_cmp_lt_u32",None,S(87),S(85))); e(salu("s_cselect_b32",uo[i],uo[i],"0x40000000"))
        va=[V(8+i) for i in range(6)]
        for i in range(6): e(valu("v_add_u32",va[i],uo[i],vA))
        def ld(i):
            for hp in range(8): e(vload(buf(i,hp),va[i],sGP,0 if hp==0 else S(26+hp),0,tag=('r',i,hp),mod=s.rdmod))
        ld(0); ld(1)
        e(raw("s_mul_i32 s88, s77, 192")); e(raw("s_mul_i32 s89, s76, 896"))
        e(valu("v_mov_b32",t0,1792)) if False else None
        e(salu("s_movk_i32",S(90),1792)); e(valu("v_mul_lo_u32",vO,vI,S(90))); e(valu("v_lshl_add_u32",vO,vG,4,vO))
        oo=[S(46+i) for i in range(6)]
        for i in range(6):
            e(salu("s_add_u32",S(87),S(86),4*i))
            e(raw("s_mul_i32 s91, s87, 1561")); e(raw("s_lshr_b32 s91, s91, 16"))
            e(raw("s_mul_i32 s92, s91, 42")); e(raw("s_sub_u32 s92, s87, s92"))
            e(raw("s_mul_i32 s93, s92, 43")); e(raw("s_lshr_b32 s93, s93, 8"))
            e(raw("s_mul_i32 s94, s93, 6")); e(raw("s_sub_u32 s94, s92, s94"))
            e(raw("s_lshr_b32 s95, s94, 1")); e(raw("s_and_b32 s94, s94, 1"))
            e(raw("s_mul_i32 s91, s91, 48")); e(raw("s_lshl_b32 s95, s95, 4")); e(raw("s_add_u32 s91, s91, s95")); e(raw("s_add_u32 s91, s91, s88"))
            e(raw("s_mul_i32 s91, s91, 1792")); e(raw("s_lshl_b32 s93, s93, 7")); e(raw("s_lshl_b32 s94, s94, 6"))
            e(raw("s_add_u32 s91, s91, s93")); e(raw("s_add_u32 s91, s91, s94")); e(salu("s_add_u32",oo[i],S(91),S(89)))
            e(salu("s_cmp_lt_u32",None,S(87),S(85))); e(salu("s_cselect_b32",oo[i],oo[i],"0x40000000"))
        e(salu("s_mov_b32",S(52),"0xffff0000"))
        s.rstamp(sc,62)
        acc=[V(16+i) for i in range(8)]; tl=[V(24+i) for i in range(8)]
        for i in range(6):
            if i+2<6: ld(i+2)
            for hp in range(8):
                e(wait_vm(('r',i,hp)))
                b=buf(i,hp); dst = acc if hp==0 else tl
                for r in range(4):
                    e(valu("v_lshlrev_b32",dst[2*r],16,sub(b,r))); e(valu("v_and_b32",dst[2*r+1],S(52),sub(b,r)))
                if hp:
                    for r in range(8): e(valu("v_add_f32",acc[r],acc[r],tl[r]))
            X=V(32+4*(i&1),4)
            for r in range(4): e(valu("v_cvt_pk_bf16_f32",sub(X,r),acc[2*r],acc[2*r+1]))
            e(perm("v_permlane32_swap_b32",sub(X,0),sub(X,2))); e(perm("v_permlane32_swap_b32",sub(X,1),sub(X,3)))
            e(perm("v_permlane16_swap_b32",sub(X,0),sub(X,2))); e(perm("v_permlane16_swap_b32",sub(X,1),sub(X,3)))
            e(vstore(X,vO,sOut,oo[i],0,tag='o',mod=s.outmod))
        if s.prof:
            s.rstamp(sc,63); e(wait_fixed(vm=0)); s.rstamp(sc,64)
            for i,r in enumerate((60,61,62,63,64)):
                e(raw(f"v_mov_b32 v2, s{r}","valu")); e(raw(f"buffer_store_dword v2, v1, s[56:59], 0 offen offset:{128+4*i}","valu")); e(raw("s_nop 1"))

    def build(s):
        s._fl=[]
        sc=Sched(); s.prologue(sc)
        if s.fine: sc.emit(raw('s_mov_b32 s3, 0')); sc.emit(raw('v_mov_b32 v23, 0','valu')); sc.emit(raw('v_mov_b32 v21, 0','valu'))
        pro=sc.out
        sc=Sched(); e=sc.emit
        e(label("L_k1_unit"))
        itW=lambda k:(lambda en:('W',14*en['u']+k))
        itK=lambda n:(lambda en:('K',16*en['u']+n))
        xt=lambda k:(lambda en:('x',en['u'],k))
        e(wait_vm(itW(0),xt(0)))
        e(barrier())
        s.stamp(sc,0,True)
        for x in s.adv_rd('W'): e(x)
        for x in s.addr_ops('W'): e(x)
        for f in range(3):
            for x in s.rdV(f,itW(0),"Wn"): e(x)
        e(wait_lgkm(("Wn",0,0),("Wn",0,1)))
        kmaj=[(kt,t) for kt in range(2) for t in range(8)]
        tmaj=[(kt,t) for t in range(8) for kt in range(2)]
        qconv=[]; convdone={}
        for k in range(14):
            mf=[mfma(QA(T,j),VF(T),XF(k,j),0 if k==0 else QA(T,j)) for T in range(16) for j in range(3)]
            xe=[]; xp=[]
            if k%2==0 and k<=10:
                xl=s.xloads(k+2,xt); xe=xl[0::2]; xp=s.xpre(); xrest=xl[1::2]
            elif k%2==1 and k<=11:
                xe=xrest
            late=s.item_W(itW(k+3)) if k>=1 else None
            xs=[]
            if k==11:
                xs=[(0,salu("s_add_u32",sWu,sWu,512)),
                    (15,salu("s_cmp_eq_u32",None,sU,1)),(15,salu("s_cselect_b32",sub(sW,2),0,sub(sW,2)))]
            if s.defer and k in s.kvpos:
                its=[]
                for nm in s.kvpos[k]:
                    its.append(s.item_K(('K',int(nm[1]))) if nm[0]=='K' else s.item_V(('V',int(nm[1]))))
                e(salu("s_cmp_eq_u32",None,sU,0)); e(branch(f"s_cbranch_scc0 L_k1_skip{k}"))
                n0=len(sc.out)
                for it in its: s.emit_item(sc,it)
                e(branch(f"s_branch L_k1_join{k}"))
                for x in sc.out[n0:]: s.only_u0.add(id(x))
                e(label(f"L_k1_skip{k}"))
                n0=len(sc.out)
                for q in range(4*len(its)): e(touch(V(1),vKa,sDum,0))
                for x in sc.out[n0:]: s.only_u1.add(id(x))
                e(label(f"L_k1_join{k}"))
            queues=[]
            if k==13:
                groups=[]
                for t in range(8):
                    for j in range(3):
                        last=mf[(2*t+1)*3+j]
                        groups.append((t,j,last,s.conv_ops(t,j)))
                n=len(groups)
                for i in range(n+2):
                    if i<n:
                        t,j,last,(m,c,p1,p2)=groups[i]
                        for x in m: qconv.append(Filler(x,[last]))
                        for x in c: qconv.append(Filler(x))
                    if 0<=i-1<n:
                        t,j,last,(m,c,p1,p2)=groups[i-1]
                        for x in p1: qconv.append(Filler(x))
                    if 0<=i-2<n:
                        t,j,last,(m,c,p1,p2)=groups[i-2]
                        for x in p2: qconv.append(Filler(x))
                        convdone[(t,j)]=p2
                queues=[qconv]
            if k<13:
                s.step(sc,'W','W',mf,None,itW(k),itW(k+1),xearly=xe,xpre=xp,late=late,extra_shadow=xs,
                       vmwait=[itW(k+1),xt(k+1)],qfree=queues,qds=queues)
            else:
                s.step(sc,'W','K',mf,None,itW(k),itK(0),late=late,extra_shadow=xs,
                       vmwait=[itK(0)],qfree=queues,qds=queues,nxt_korder=tmaj,keep_addr=True)
        s.stamp(sc,1,True)
        mf=[]
        for f,(kt,t) in enumerate(tmaj):
            for j in range(3): mf.append(mfma(SB(0,kt,j),KF(f),QF(t,j),0 if t==0 else SB(0,kt,j)))
        def needs0(gi):
            f,j=divmod(gi,3); kt,t=tmaj[f]
            nd=list(convdone[(t,j)])
            if t==0 and kt==1: nd+=convdone[(1,j)]
            return nd
        s.step(sc,'K','K',mf,tmaj,itK(0),itK(1),late=s.item_W(itW(17)),
               vmwait=[itK(1)],qfree=[qconv],qds=[qconv],needs=needs0,nxt_korder=kmaj)
        assert not qconv
        m=[V(208+j) for j in range(3)]; tm=[V(211+j) for j in range(3)]
        e(barrier())
        if s.even:
            pre,L=s.item_K(itK(3))
            for x in s.flat(pre): e(x)
            for m_,d_ in L[:2]: e(m_); e(d_)
        else: s.emit_item(sc,s.item_K(itK(3)))
        mv=[]
        for i4 in range(16,24):
            for r in range(4): mv.append(accrd(sub(PARK_A(i4),r),sub(PARK_T(i4),r)))
        for j in range(3):
            a=SB(0,0,j); e(valu("v_max3_f32",m[j],sub(a,0),sub(a,1),sub(a,2)))
        for j in range(3):
            a=SB(0,0,j); b=SB(0,1,j); e(valu("v_max3_f32",m[j],m[j],sub(a,3),sub(b,0)))
        for j in range(3):
            b=SB(0,1,j); e(valu("v_max3_f32",m[j],m[j],sub(b,1),sub(b,2)))
        for j in range(3):
            b=SB(0,1,j); e(valu("v_max_f32",m[j],m[j],sub(b,3)))
        for x in s.allreduce("v_max_f32",m,tm): e(x)
        for j in range(3):
            for r in range(4): e(valu("v_sub_f32",sub(CI(j),r),0,m[j]))
        for j in range(3): e(valu("v_mov_b32",vL[j],0))
        for j in range(3):
            for kt in range(2):
                for r in range(4): e(valu("v_sub_f32",sub(SB(0,kt,j),r),sub(SB(0,kt,j),r),m[j]))
        s.stamp(sc,2,True)
        def half(sc,buf,first=False,extraq=None):
            nb=1-buf
            iK=lambda d:(lambda en:('K',16*en['u']+en['i']+d))
            iV=lambda d:(lambda en:('V',16*en['u']+en['i']+d))
            qe,qc,pd=s.sm_exp(buf)
            mf=[]
            for f,(kt,t) in enumerate(kmaj):
                for j in range(3): mf.append(mfma(SB(nb,kt,j),KF(f),QF(t,j),CI(j) if t==0 else SB(nb,kt,j)))
            xq=[extraq] if extraq is not None else []
            if s.even:
                preV,LV=s.item_V(iV(2)); _,LKprev=s.item_K(iK(3)); preK,LK=s.item_K(iK(4))
                s.step(sc,'K','V',mf,kmaj,iK(1),iV(0),vmwait=[iV(0)],qfree=[qe,qc]+xq,qds=[qc]+xq,
                       dmas=[(5,LKprev[2]),(17,LKprev[3]),(29,LV[0]),(41,LV[1])],pres=[(preV,18,27)])
            else:
                s.step(sc,'K','V',mf,kmaj,iK(1),iV(0),vmwait=[iV(0)],qfree=[qe,qc]+xq,qds=[qc]+xq)
            qa=s.sm_add(buf); qm=s.sm_max(nb)
            mf=[mfma(OA(T,j),VF(T),PF(j),0 if first else OA(T,j)) for T in range(16) for j in range(3)]
            def needs(gi):
                nd=list(pd[gi]) if gi<3 else []
                if gi==0 and extraq is not None: nd+=[f.ins for f in extraq]
                return nd
            if s.even:
                s.step(sc,'V','K',mf,None,iV(0),iK(2),vmwait=[iK(2)],qfree=[qe,qc,qm,qa]+xq,qds=[qc,qm,qa]+xq,needs=needs,nxt_korder=kmaj,
                       dmas=[(5,LV[2]),(17,LV[3]),(29,LK[0]),(41,LK[1])],pres=[(preK,18,27)])
            else:
                s.step(sc,'V','K',mf,None,iV(0),iK(2),early=s.item_V(iV(2)),late=s.item_K(iK(4)),
                       vmwait=[iK(2)],qfree=[qe,qc,qm,qa]+xq,qds=[qc,qm,qa]+xq,needs=needs,nxt_korder=kmaj)
            s.flush_all(sc,[qe,qc,qa,qm])
            return nb
        nb=half(sc,0,first=True,extraq=[Filler(x) for x in mv])
        e(branch(f"s_cbranch_vccnz L_k1_rareF")); e(label("L_k1_retF"))
        e(salu("s_mov_b32",sCNT,7))
        wblk=sc.out
        sc=Sched(); sc.emit(label("L_k1_loop"))
        half(sc,1); sc.emit(branch("s_cbranch_vccnz L_k1_rare0")); sc.emit(label("L_k1_ret0"))
        hB=sc.out
        sc=Sched()
        half(sc,0); sc.emit(branch("s_cbranch_vccnz L_k1_rare1")); sc.emit(label("L_k1_ret1"))
        sc.emit(salu("s_sub_u32",sCNT,sCNT,1)); sc.emit(salu("s_cmp_lg_u32",None,sCNT,0)); sc.emit(branch("s_cbranch_scc1 L_k1_loop"))
        hA=sc.out
        sc=Sched(); e=sc.emit
        s.stamp(sc,3,True)
        iV=lambda d:(lambda en:('V',16*en['u']+15+d))
        e(wait_vm(iV(0))); e(barrier())
        if s.even:
            _,L=s.item_K(lambda en:('K',16*en['u']+18))
            for m_,d_ in L[2:]: e(m_); e(d_)
        for x in s.adv_rd('V'): e(x)
        for x in s.addr_ops('V'): e(x)
        for f in range(3):
            for x in s.rdV(f,iV(0),"Vn"): e(x)
        qe,qc,pd=s.sm_exp(1)
        for j in range(3):
            for _ in range(8): e(qe.pop(0).ins)
            for _ in range(4): e(qc.pop(0).ins)
        e(wait_lgkm(("Vn",0,0),("Vn",0,1)))
        qa=s.sm_add(1)
        mf=[mfma(OA(T,j),VF(T),PF(j),OA(T,j)) for T in range(16) for j in range(3)]
        s.step(sc,'V',None,mf,None,iV(0),None,early=s.item_V(iV(2)),nobarrier=True,qfree=[qa],qds=[qa])
        s.flush_all(sc,[qa])
        s.stamp(sc,4,True)
        if s.deep:
            e(salu("s_cmp_eq_u32",None,sU,1)); e(branch("s_cbranch_scc0 L_k1_nop0"))
            n0=len(sc.out)
            for p in range(4): e(valu("v_add_u32",vWo[p],p*28672,V(22)))
            e(salu("s_mov_b32",sWw,s.oring+1-16384))
            e(barrier())
            for q in range(4): s.emit_item(sc,s.item_O(('P',q),q*114688,sNgC))
            for x in sc.out[n0:]: s.only_u1.add(id(x))
            e(label("L_k1_nop0"))
        tm=[V(208+j) for j in range(3)]
        for x in s.allreduce("v_add_f32",vL,tm): e(x)
        RI=[V(220+2*j,2) for j in range(3)]
        for j in range(3): e(trans("v_rcp_f32",sub(RI[j],0),vL[j]))
        for j in range(3): e(valu("v_mov_b32",sub(RI[j],1),sub(RI[j],0)))
        gi=0
        xl=None
        for t in range(8):
            for j in range(3):
                base=160+8*(gi%6); T8=[V(base+r) for r in range(8)]
                for r in range(4): e(accrd(T8[r],sub(OA(2*t,j),r)))
                for r in range(4): e(accrd(T8[4+r],sub(OA(2*t+1,j),r)))
                for r in range(4): e(valu("v_pk_mul_f32",V(base+2*r,2),V(base+2*r,2),RI[j]))
                for r in range(4): e(valu("v_cvt_pk_bf16_f32",sub(QF(t,j),r),T8[2*r],T8[2*r+1]))
                gi+=1
            if t==1:
                for x in s.flat(s.xpre()): e(x)
                for x in s.xloads(0,lambda k:(lambda en:('x',en['u']+1,k))): e(x)
        s.stamp(sc,5,True)
        e(salu("s_cmp_eq_u32",None,sU,1)); e(branch("s_cbranch_scc1 L_k1_op"))
        epi=sc.out
        sc=Sched(); e=sc.emit
        for i4 in range(24):
            t,j=divmod(i4,3)
            for r in range(4): e(accwr(sub(PARK_T(i4),r),sub(QF(t,j),r)))
        e(salu("s_mov_b32",sU,1)); e(branch("s_branch L_k1_unit"))
        park=sc.out
        sc=Sched(); e=sc.emit
        e(label("L_k1_op"))
        last=(s.oring+1-16384)
        if not s.deep:
            for p in range(4): e(valu("v_add_u32",vWo[p],p*28672,V(22)))
            e(salu("s_mov_b32",sWw,last))
        e(salu("s_mov_b32",sWr,last))
        def advN(dst,src): return [salu("s_add_u32",dst,src,128),salu("s_cmp_eq_u32",None,dst,896),salu("s_cselect_b32",dst,0,dst)]
        for x in advN(sNgN,sNgC): e(x)
        if not s.deep:
            e(wait_fixed(vm=0)); e(barrier())
            for q in range(3): s.emit_item(sc,s.item_O(('P',q),q*114688,sNgC))
        else:
            e(barrier())
            for q in range(4,7): s.emit_item(sc,s.item_O(('P',q),(q&3)*114688,sNgN))
        if s.deep:
            for x in advN(sNgNN,sNgN): e(x)
        itP=lambda d:(lambda en:('P',4*en['g']+d))
        e(wait_vm(('P',0))); e(barrier())
        for x in s.adv_rd('O'): e(x)
        for x in s.addr_ops('O'): e(x)
        ksmaj=list(range(16))
        Tmaj=[ks*4+T for T in range(4) for ks in range(4)]
        for f in range(3):
            for x in s.rdV(f,('P',0),"On"): e(x)
        e(wait_lgkm(("On",0,0),("On",0,1)))
        e(salu("s_mov_b32",sCNT,7)); e(salu("s_mov_b32",sPs,"0x40000000")); e(salu("s_mov_b32",sPs2,"0x40000000"))
        s.stamp(sc,13)
        oppro=sc.out
        def Bop(kq,ks,j):
            hh=kq>>1; t=4*(kq&1)+ks
            return PARK_A(t*3+j) if hh==0 else QF(t,j)
        sc=Sched(); e=sc.emit
        e(label("L_k1_oploop"))
        def cv(h,j):
            a=OPA(2*h,j); b=OPA(2*h+1,j); d=OPK(h,j)
            return [valu("v_cvt_pk_bf16_f32",sub(d,0),sub(a,0),sub(a,1)),valu("v_cvt_pk_bf16_f32",sub(d,1),sub(a,2),sub(a,3)),
                    valu("v_cvt_pk_bf16_f32",sub(d,2),sub(b,0),sub(b,1)),valu("v_cvt_pk_bf16_f32",sub(d,3),sub(b,2),sub(b,3))]
        def stores(h): return [vstore(OPK(h,j),vPst,sP,(sPs if j<2 else sPs2),((j*2048)%4096)+h*1024,tag='p',mod=s.stmod) for j in range(3)]
        carry_cv=[]
        for j in range(3): carry_cv+=cv(1,j)[2:]
        carry_st=stores(1)
        for kq in range(4):
            fo = Tmaj if kq==3 else ksmaj
            nfo = Tmaj if kq==2 else ksmaj
            mf=[]
            for f in range(16):
                ks,T=divmod(fo[f],4)
                firstk = (kq==0 and ks==0)
                for j in range(3): mf.append(mfma(OPA(T,j),VF(f),Bop(kq,ks,j),0 if firstk else OPA(T,j)))
            kq2=(kq+s.olook)&3
            if s.deep: ngr = sNgN if kq==0 else sNgNN
            else: ngr = sNgC if kq==0 else sNgN
            late=s.item_O(itP(kq+s.olook),kq2*114688,ngr)
            q=[]; xs=[]; xe=[]; nd=None; XG=(5,14,23)
            if kq==0:
                q=[Filler(x) for x in carry_cv]
                def nd(gi,q0=list(carry_cv)):
                    return q0 if gi==9 else ()
                xe=carry_st; XG=(11,17,23) if not s.latest else (38,44,44)
            if kq==1:
                xs=[(12,salu("s_cmp_eq_u32",None,sCNT,2 if s.deep else 1)),(12,salu("s_cselect_b32",sub(sWo,2),0,sub(sWo,2))),
                    (13,salu("s_mul_i32",sPs,sNgC,48)),(15,salu("s_add_u32",sPs2,sPs,4096))]
            if kq==3:
                c0=[]
                for j in range(3): c0+=[Filler(x,[mf[(7*3)+j]]) for x in cv(0,j)]
                c2=[]
                for j in range(3): c2+=[Filler(x,[mf[(11*3)+j]]) for x in cv(1,j)[:2]]
                q=c0+c2
                xe=stores(0); XG=(38,41,44)
                def nd(gi,c=[f.ins for f in c0]):
                    return c if gi==38 else ()
                if s.deep:
                    adv=advN(sNgNN,sNgNN)
                    xs=[(42,salu("s_mov_b32",sNgC,sNgN)),(42,salu("s_mov_b32",sNgN,sNgNN)),(43,adv[0]),(45,adv[1]),(45,adv[2])]
                else:
                    adv=advN(sNgN,sNgN)
                    xs=[(42,salu("s_mov_b32",sNgC,sNgN)),(43,adv[0]),(45,adv[1]),(45,adv[2])]
            s.step(sc,'O','O',mf,None,itP(kq),itP(kq+1),late=late,extra_shadow=xs,xearly=xe,XG=XG,needs=nd,
                   vmwait=[itP(kq+1)],qfree=[q],qds=[q],forder=fo,nxt_forder=nfo,LG=(29,32,35,47) if kq==3 else (29,35,41,47))
            s.flush_all(sc,[q])
        e(salu("s_sub_u32",sCNT,sCNT,1)); e(salu("s_cmp_lg_u32",None,sCNT,0)); e(branch("s_cbranch_scc1 L_k1_oploop"))
        for x in [y for j in range(3) for y in cv(1,j)[2:]]: e(x)
        for x in stores(1): e(x)
        s.stamp(sc,14)
        if s.fuse:
            if s.prof:
                for x in s.dump_code(): e(x)
            s.reduce_tail(sc)
        e(branch("s_branch L_k1_fin" if (s.prof and not s.fuse) else "s_branch L_k1_end"))
        oploop=sc.out
        sc=Sched(); s.rare(sc,1,"L_k1_rareF","L_k1_retF"); s.rare(sc,0,"L_k1_rare0","L_k1_ret0"); s.rare(sc,1,"L_k1_rare1","L_k1_ret1"); rare=sc.out
        endb=[]
        if s.prof:
            endb=[label("L_k1_fin"),wait_fixed(vm=0),raw("s_memtime s[98:99]"),raw("s_memrealtime s[100:101]"),raw("s_waitcnt lgkmcnt(0)"),
                  raw("s_mov_b32 s4, s98"),raw("s_mov_b32 s5, s100"),
                  raw("s_add_u32 s8, s96, 0x8000000"),raw("s_addc_u32 s9, s97, 0"),raw("s_and_b32 s9, s9, 0xffff"),raw("s_mov_b32 s10, 0x100000"),raw("s_mov_b32 s11, 0x20000"),
                  raw("s_lshl_b32 s3, s2, 10"),raw("s_lshl_b32 s38, s24, 8"),raw("s_add_u32 s3, s3, s38"),raw("v_mov_b32 v1, s3","valu")]
            regs=list(range(66,96))+[4,5]
            for i,r in enumerate(regs):
                endb+=[raw(f"v_mov_b32 v2, s{r}","valu"),raw(f"buffer_store_dword v2, v1, s[8:11], 0 offen offset:{4*i}","valu"),raw("s_nop 1")]
            if s.fine:
                endb+=[raw("v_and_b32 v2, 63, v0","valu"),raw("v_lshlrev_b32 v2, 2, v2","valu"),raw("s_lshl_b32 s3, s2, 11"),raw("s_lshl_b32 s38, s24, 9"),raw("s_add_u32 s3, s3, s38"),
                       raw("s_add_u32 s3, s3, 0x40000"),raw("v_add_u32 v2, s3, v2","valu"),raw("buffer_store_dword v23, v2, s[8:11], 0 offen","valu"),
                       raw("buffer_store_dword v21, v2, s[8:11], 0 offen offset:256","valu")]
            endb+=[raw("s_waitcnt vmcnt(0)")]
            if s.dbgprof:
                endb+=[raw("s_load_dwordx2 s[12:13], s[0:1], 88"),raw("s_waitcnt lgkmcnt(0)"),raw("s_and_b32 s13, s13, 0xffff"),raw("s_mov_b32 s14, 256"),raw("s_mov_b32 s15, 0x20000"),
                       raw("s_not_b32 s38, s91"),raw("v_mov_b32 v2, s38","valu"),raw("v_mov_b32 v3, 0","valu"),raw("v_mov_b32 v4, s5","valu"),raw("v_mov_b32 v5, 4","valu"),
                       raw("s_mov_b64 exec, 1"),
                       raw("buffer_atomic_umax v2, v3, s[12:15], 0 offen sc1","valu"),raw("buffer_atomic_umax v4, v5, s[12:15], 0 offen sc1","valu"),
                       raw("s_cmp_eq_u32 s2, 0"),branch("s_cbranch_scc0 L_k1_dbgskip"),raw("s_cmp_eq_u32 s24, 0"),branch("s_cbranch_scc0 L_k1_dbgskip")]
                rts=[67,69,71,73,75,77,79,81,83,85,87,89,93,95]
                for i,r in enumerate(rts):
                    endb+=[raw(f"s_sub_u32 s38, s{r}, s91"),raw("v_mov_b32 v2, s38","valu"),raw(f"v_mov_b32 v3, {8+4*i}","valu"),raw("buffer_store_dword v2, v3, s[12:15], 0 offen","valu"),raw("s_nop 1")]
                endb+=[label("L_k1_dbgskip"),raw("s_waitcnt vmcnt(0)"),raw("s_mov_b64 exec, -1")]
        endb+=[label("L_k1_end"),wait_fixed(vm=0),raw("s_endpgm","branch")]
        trace=[(x,{'u':0}) for x in pro]
        for u in range(2):
            trace+=[(x,{'u':u,'i':0}) for x in wblk if not ((u!=0 and id(x) in s.only_u0) or (u!=1 and id(x) in s.only_u1))]
            for it in range(7):
                trace+=[(x,{'u':u,'i':2*it+1}) for x in hB]
                trace+=[(x,{'u':u,'i':2*it+2}) for x in hA]
            trace+=[(x,{'u':u}) for x in epi if not ((u!=0 and id(x) in s.only_u0) or (u!=1 and id(x) in s.only_u1))]
            if u==0: trace+=[(x,{'u':u}) for x in park]
        trace+=[(x,{'u':1}) for x in oppro]
        for g in range(7): trace+=[(x,{'g':g}) for x in oploop]
        resolve_waits(trace)
        errs=check(trace)
        s.trace=trace
        code=pro+wblk+hB+hA+epi+park+oppro+oploop+rare+endb
        return code,errs

if __name__=="__main__":
    k=K1F(); code,errs=k.build()
    print(len(code),"instructions;",len(errs),"errors")
    for x in errs[:40]: print(x)
```

```python
from ir import *
from sched import *
PW=172032
class K3:
    def __init__(s, ldmod=" nt", outmod="", dbg=False, wgsel=0):
        s.dbg=dbg; s.wgsel=wgsel
        s.ldmod=ldmod; s.outmod=outmod
    def build(s):
        sc=Sched(); e=sc.emit
        sP=S(4,4); sOut=S(8,4); sWAVE=S(24)
        e(raw("s_cmp_ge_u32 s2, 224")); e(branch("s_cbranch_scc1 L_k3_end"))
        if s.dbg: e(raw("s_memrealtime s[44:45]"))
        e(raw("s_load_dwordx2 s[12:13], s[0:1], 80")); e(raw("s_load_dwordx2 s[14:15], s[0:1], 96"))
        e(raw("s_mul_i32 s16, s2, 9363")); e(raw("s_lshr_b32 s16, s16, 16"))
        e(raw("s_mul_i32 s17, s16, 7")); e(raw("s_sub_u32 s17, s2, s17"))
        vL=V(2); vI=V(3); vG=V(4); vA=[V(5),V(6)]; vO=V(7); t0=V(8)
        e(valu("v_lshrrev_b32",V(1),6,V(0))); e(valu("v_and_b32",vL,63,V(0)))
        e(valu("v_readfirstlane_b32",sWAVE,V(1)))
        e(valu("v_and_b32",vI,15,vL)); e(valu("v_lshrrev_b32",vG,4,vL))
        e(raw("s_mul_i32 s18, s17, 6144")); e(salu("s_mul_i32",S(19),sWAVE,43008)); e(raw("s_add_u32 s18, s18, s19"))
        e(valu("v_lshlrev_b32",t0,4,vL)); e(valu("v_add_u32",vA[0],S(18),t0)); e(valu("v_add_u32",vA[1],4096,vA[0]))
        for hp in range(1,8): e(salu("s_mov_b32",S(32+hp),hp*PW))
        e(raw("s_waitcnt lgkmcnt(0)","waitraw"))
        e(raw(f"s_mul_i32 s20, s16, {8*PW}"))
        for t in ["s_add_u32 s4, s14, s20","s_addc_u32 s5, s15, 0","s_and_b32 s5, s5, 0xffff",f"s_mov_b32 s6, {8*PW}","s_mov_b32 s7, 0x20000",
                  "s_mov_b32 s8, s12","s_and_b32 s9, s13, 0xffff","s_mov_b32 s10, 5505024","s_mov_b32 s11, 0x20000"]: e(raw(t))
        def buf(u,hp): return V(16+(u*8+hp)*4,4)
        def ld(u):
            for hp in range(8):
                e(vload(buf(u,hp),vA[u//4],sP,0 if hp==0 else S(32+hp),(u%4)*1024,tag=(u,hp),mod=s.ldmod))
        ld(0); ld(1)
        e(raw("s_and_b32 s21, s16, 15")); e(raw("s_lshr_b32 s22, s16, 4"))
        e(raw("s_mul_i32 s21, s21, 192")); e(salu("s_mul_i32",S(23),sWAVE,48)); e(raw("s_add_u32 s21, s21, s23"))
        e(valu("v_add_u32",t0,S(21),vI)); e(salu("s_movk_i32",S(25),1792)); e(valu("v_mul_lo_u32",t0,t0,S(25)))
        e(raw("s_mul_i32 s22, s22, 896")); e(raw("s_lshl_b32 s23, s17, 7")); e(raw("s_add_u32 s22, s22, s23"))
        e(valu("v_add_u32",t0,S(22),t0)); e(valu("v_lshl_add_u32",vO,vG,4,t0))
        e(salu("s_mov_b32",S(26),"0xffff0000"))
        acc=[V(208+i) for i in range(8)]; tl=[V(216+i) for i in range(8)]
        for u in range(6):
            j,h=divmod(u,2)
            if u+2<6: ld(u+2)
            for hp in range(8):
                e(wait_vm((u,hp)))
                b=buf(u,hp)
                dst = acc if hp==0 else tl
                for r in range(4):
                    e(valu("v_lshlrev_b32",dst[2*r],16,sub(b,r))); e(valu("v_and_b32",dst[2*r+1],S(26),sub(b,r)))
                if hp:
                    for r in range(8): e(valu("v_add_f32",acc[r],acc[r],tl[r]))
            X=V(224+4*(u&1),4)
            for r in range(4): e(valu("v_cvt_pk_bf16_f32",sub(X,r),acc[2*r],acc[2*r+1]))
            e(perm("v_permlane32_swap_b32",sub(X,0),sub(X,2))); e(perm("v_permlane32_swap_b32",sub(X,1),sub(X,3)))
            e(perm("v_permlane16_swap_b32",sub(X,0),sub(X,2))); e(perm("v_permlane16_swap_b32",sub(X,1),sub(X,3)))
            e(salu("s_mov_b32",S(27),j*16*1792))
            e(vstore(X,vO,sOut,S(27),h*64,tag='o',mod=s.outmod))
        if s.dbg:
            e(wait_fixed(vm=0))
            e(raw("s_cmp_eq_u32 s2, 0")); e(branch("s_cbranch_scc0 L_k3_end")); e(raw("s_cmp_eq_u32 s24, 0")); e(branch("s_cbranch_scc0 L_k3_end"))
            e(raw("s_memrealtime s[46:47]")); e(raw("s_load_dwordx2 s[28:29], s[0:1], 88")); e(raw("s_waitcnt lgkmcnt(0)"))
            e(raw(f"s_add_u32 s4, s14, {0x8000000+s.wgsel*1024}")); e(raw("s_addc_u32 s5, s15, 0")); e(raw("s_and_b32 s5, s5, 0xffff")); e(raw("s_mov_b32 s6, 256")); e(raw("s_mov_b32 s7, 0x20000"))
            e(raw("s_mov_b32 s8, s28")); e(raw("s_and_b32 s9, s29, 0xffff")); e(raw("s_mov_b32 s10, 256")); e(raw("s_mov_b32 s11, 0x20000"))
            e(raw("v_and_b32 v2, 63, v0","valu")); e(raw("v_lshlrev_b32 v3, 3, v2","valu")); e(raw("v_add_u32 v3, 4, v3","valu"))
            e(raw("v_cmp_lt_u32 vcc, 11, v2","valu")); e(raw("v_add_u32 v4, 8, v3","valu")); e(raw("s_nop 1")); e(raw("v_cndmask_b32 v3, v3, v4, vcc","valu"))
            e(raw("buffer_load_dword v5, v3, s[4:7], 0 offen sc1","valu")); e(raw("v_mov_b32 v6, 100","valu")); e(raw("buffer_load_dword v7, v6, s[4:7], 0 offen sc1","valu"))
            e(raw("s_waitcnt vmcnt(0)"))
            e(raw("v_writelane_b32 v5, s44, 14","valu")); e(raw("v_writelane_b32 v5, s46, 15","valu")); e(raw("s_nop 1"))
            e(raw("v_sub_u32 v5, v5, v7","valu")); e(raw("v_lshlrev_b32 v3, 2, v2","valu"))
            e(raw("v_cmp_gt_u32 vcc, 16, v2","valu")); e(raw("s_and_saveexec_b64 s[30:31], vcc")); e(branch("s_cbranch_execz L_k3_end"))
            e(raw("buffer_store_dword v5, v3, s[8:11], 0 offen","valu"))
        e(label("L_k3_end")); e(wait_fixed(vm=0)); e(raw("s_endpgm","branch"))
        trace=[(x,{}) for x in sc.out]
        resolve_waits(trace); errs=check(trace)
        return sc.out,errs
KD_K3=""".amdhsa_kernel {name}
  .amdhsa_next_free_vgpr 232
  .amdhsa_next_free_sgpr 48
  .amdhsa_accum_offset 232
  .amdhsa_group_segment_fixed_size 0
  .amdhsa_kernarg_size 104
  .amdhsa_user_sgpr_count 2
  .amdhsa_user_sgpr_kernarg_segment_ptr 1
  .amdhsa_system_sgpr_workgroup_id_x 1
.end_amdhsa_kernel
"""
if __name__=="__main__":
    k=K3(); code,errs=k.build(); print(len(code),len(errs)); print(errs[:10])
```

```python
def V(lo, n=1): return ('v', lo, n)
def A(lo, n=1): return ('a', lo, n)
def S(lo, n=1): return ('s', lo, n)
def rt(r):
    f, lo, n = r
    return f"{f}{lo}" if n == 1 else f"{f}[{lo}:{lo+n-1}]"
def rs(*regs):
    out = set()
    for r in regs:
        if not isinstance(r, tuple): continue
        f, lo, n = r
        for i in range(n): out.add((f, lo+i))
    return out
def sub(r, i, n=1):
    f, lo, _ = r
    return (f, lo+i, n)
VCC={('s',106),('s',107)}
M0={('m',0)}
SCC={('scc',0)}

class Ins:
    __slots__ = ("text","kind","rd","wr","tag","wait","srcc","n","item","slot","sgprwr")
    def __init__(s, text, kind, rd=(), wr=(), tag=None, wait=None, srcc=None, item=None, slot=None):
        s.text=text; s.kind=kind; s.rd=set(rd); s.wr=set(wr); s.tag=tag; s.wait=wait; s.srcc=srcc; s.n=None
        s.item=item; s.slot=slot
    def __repr__(s): return s.text

def opstr(x):
    if isinstance(x, tuple): return rt(x)
    return str(x)
def ev(x, env): return x(env) if callable(x) else x

def mfma(d, a, b, c):
    i = Ins(f"v_mfma_f32_16x16x32_bf16 {rt(d)}, {rt(a)}, {rt(b)}, {opstr(c)}", "mfma", rd=rs(a,b,c), wr=rs(d))
    i.srcc = rs(c)
    return i
def valu(op, d, *src, kind="valu", xrd=(), xwr=(), suffix=""):
    ops = ", ".join(opstr(x) for x in ((d,) if d is not None else ())+src)
    return Ins(f"{op} {ops}{suffix}", kind, rd=rs(*src)|set(xrd), wr=(rs(d) if isinstance(d,tuple) else set())|set(xwr))
def trans(op, d, s): return valu(op, d, s, kind="trans")
def perm(op, a, b): return Ins(f"{op} {rt(a)}, {rt(b)}", "perm", rd=rs(a,b), wr=rs(a,b))
def accrd(d, a): return Ins(f"v_accvgpr_read_b32 {rt(d)}, {rt(a)}", "valu", rd=rs(a), wr=rs(d))
def accwr(a, s): return Ins(f"v_accvgpr_write_b32 {rt(a)}, {opstr(s)}", "valu", rd=rs(s), wr=rs(a))
def salu(op, d, *src, scc=True, xrd=(), xwr=()):
    ops = ", ".join(opstr(x) for x in ((d,) if d is not None else ())+src)
    wr = rs(d) if isinstance(d,tuple) else set()
    if d=="m0": wr=set(M0)
    rd = rs(*src)
    if "m0" in src: rd|=M0
    return Ins(f"{op} {ops}", "salu", rd=rd|set(xrd), wr=wr|set(xwr))
def dsread(op, d, addr, off, tag=None, item=None):
    return Ins(f"{op} {rt(d)}, {rt(addr)} offset:{off}", "ds", rd=rs(addr), wr=rs(d), tag=tag, item=item)
def dswrite(op, addr, s, off, tag=None):
    return Ins(f"{op} {rt(addr)}, {rt(s)} offset:{off}", "dsw", rd=rs(addr, s), tag=tag)
def dma(voff, srd, soff, off, item, slot, mod=""):
    return Ins(f"buffer_load_dwordx4 {rt(voff)}, {rt(srd)}, {opstr(soff)} offen offset:{off}{mod} lds", "dma",
               rd=rs(voff, srd, soff)|M0, tag=item, item=item, slot=slot)
def vload(d, voff, srd, soff, off, tag=None, mod="", op="buffer_load_dwordx4"):
    return Ins(f"{op} {rt(d)}, {rt(voff)}, {rt(srd)}, {opstr(soff)} offen offset:{off}{mod}", "vload",
               rd=rs(voff, srd, soff), wr=rs(d), tag=tag)
def touch(d, voff, srd, soff, off=0, mod=""):
    return Ins(f"buffer_load_dword {rt(d)}, {rt(voff)}, {rt(srd)}, {opstr(soff)} offen offset:{off}{mod}", "vload",
               rd=rs(voff, srd, soff), wr=set(), tag=('touch',))
def vstore(s, voff, srd, soff, off, tag=None, mod="", op="buffer_store_dwordx4"):
    return Ins(f"{op} {rt(s)}, {rt(voff)}, {rt(srd)}, {opstr(soff)} offen offset:{off}{mod}", "vstore",
               rd=rs(s, voff, srd, soff), tag=tag)
def wait_lgkm(*tags): return Ins("s_waitcnt lgkmcnt(?)", "wait", wait=("lgkm", list(tags)))
def wait_vm(*tags):   return Ins("s_waitcnt vmcnt(?)", "wait", wait=("vm", list(tags)))
def wait_fixed(vm=None, lgkm=None):
    t="s_waitcnt"
    if vm is not None: t+=f" vmcnt({vm})"
    if lgkm is not None: t+=f" lgkmcnt({lgkm})"
    i=Ins(t,"waitfix"); i.wait=(vm,lgkm); return i
def barrier(): return Ins("s_barrier", "barrier")
def nop(n): return Ins(f"s_nop {n}", "nop", tag=n)
def label(name): return Ins(f"{name}:", "label")
def raw(text, kind="salu", rd=(), wr=()): return Ins(text, kind, rd=rd, wr=wr)
def branch(text): return Ins(text, "branch")

VMKINDS = ("dma","vload","vstore")
DSKINDS = ("ds","dsw")

def resolve_waits_multi(traces):
    for t in traces: _collect(t)
    for t in traces: _finalize(t)
def resolve_waits(trace):
    _collect(trace); _finalize(trace)
def _collect(trace):
    vm=[]; ds=[]
    for ins,env in trace:
        if ins.kind in VMKINDS: vm.append(ev(ins.tag,env))
        elif ins.kind in DSKINDS: ds.append(ev(ins.tag,env))
        elif ins.kind=="wait":
            which,tags=ins.wait
            q = vm if which=="vm" else ds
            best=None
            for t in tags:
                t=ev(t,env)
                if t is None: continue
                idx=None
                for i in range(len(q)-1,-1,-1):
                    if q[i]==t: idx=i; break
                if idx is None:
                    continue
                n=len(q)-1-idx
                best = n if best is None else min(best,n)
            if best is not None:
                ins.n = best if ins.n is None else min(ins.n,best)
def _finalize(trace):
    for ins,env in trace:
        if ins.kind=="wait":
            which,_=ins.wait
            mx = 63 if which=="vm" else 15
            n = mx if ins.n is None else min(ins.n,mx)
            ins.text = f"s_waitcnt {'vmcnt' if which=='vm' else 'lgkmcnt'}({n})"
            ins.n = n

class CheckError(Exception): pass

def check(trace, verbose=False, lds_items=True, min_parts=4):
    errs=[]
    def err(k,msg):
        errs.append(f"[{k}] {trace[k][0].text.strip()} :: {msg}")
    vmq=[]
    dsq=[]
    pend={}
    pos=0
    last_valu_wr={}; last_trans_wr={}; last_mfma_wr={}; last_mfma_srcc={}; last_valu_sgpr={}; last_salu_m0=-99
    last_store_data={}
    last_scc=None
    SCCW=("s_add_","s_sub_","s_and_","s_or_","s_xor_","s_lshl_","s_lshr_","s_cmp_","s_min_","s_max_","s_addc","s_subb","s_ashr","s_bfe","s_not","s_andn2","s_bitcmp")
    item_state={}
    slot_occ={}
    item_reads_out={}
    item_read_done_barrier={}
    for k,(ins,env) in enumerate(trace):
        kd=ins.kind
        if kd in("label",): continue
        rd=ins.rd; wr=ins.wr
        tx=ins.text
        if tx.startswith("s_cselect") or tx.startswith("s_cbranch_scc"):
            if last_scc is None or not last_scc.startswith("s_cmp"): err(k,f"SCC consumer after non-cmp writer: {last_scc}")
        if tx.startswith("s_addc") and not (last_scc or "").startswith("s_add"): err(k,f"s_addc after {last_scc}")
        if any(tx.startswith(p) for p in SCCW): last_scc=tx
        for r in (rd|wr):
            if r in pend: err(k,f"reg {r} pending from {pend[r]} load")
        isvalu = kd in("valu","trans","perm")
        if kd=="mfma":
            for r in rd:
                if r in last_valu_wr and pos-last_valu_wr[r]-1<2: err(k,f"VALU->MFMA hazard on {r}")
            ab = rd-(ins.srcc or set())
            for r in ab:
                if r in last_mfma_wr and pos-last_mfma_wr[r][0]-1<8: err(k,f"MFMA D->A/B hazard on {r}")
            for r in (ins.srcc or set()):
                if r in last_mfma_wr:
                    p,dset=last_mfma_wr[r]
                    if dset!=ins.srcc and pos-p-1<6: err(k,f"MFMA D->overlap SrcC hazard {r}")
            for r in wr:
                if r in last_mfma_wr:
                    p,dset=last_mfma_wr[r]
                    if not (dset==wr and ins.srcc==wr) and pos-p-1<8 : err(k,f"MFMA WAW hazard {r}")
        else:
            if kd in ("valu","trans","perm","ds","dsw","vload","vstore","dma"):
                chk = (rd|wr)
                for r in chk:
                    if r in last_mfma_wr and pos-last_mfma_wr[r][0]-1<8: err(k,f"MFMA D->{kd} hazard on {r} dist {pos-last_mfma_wr[r][0]-1}")
            if isvalu:
                for r in wr:
                    if r in last_mfma_srcc and pos-last_mfma_srcc[r]-1<3: err(k,f"SrcC WAR hazard {r}")
                    if r in last_store_data and pos-last_store_data[r]-1<2: err(k,f"store data WAR {r}")
        if isvalu or kd in("mfma","ds","dsw","vload","vstore","dma"):
            for r in rd:
                if r in last_trans_wr and pos-last_trans_wr[r]-1<1: err(k,f"trans->use hazard {r}")
        if kd=="perm":
            for r in rd:
                if r in last_valu_wr and pos-last_valu_wr[r]-1<2: err(k,f"VALU->permlane hazard {r}")
        if kd in VMKINDS:
            for r in rd:
                if r[0]=='s' and r in last_valu_sgpr and pos-last_valu_sgpr[r]-1<5: err(k,f"VALU sgpr->VMEM hazard {r}")
            if kd=="dma" and pos-last_salu_m0-1<1: err(k,"m0->dma hazard")
        if isvalu:
            for r in rd:
                if r[0]=='s' and r in last_valu_sgpr and pos-last_valu_sgpr[r]-1<2: err(k,f"VALU sgpr->VALU const hazard {r}")
            if ins.text.startswith("v_readfirstlane") or ins.text.startswith("v_readlane"):
                for r in rd:
                    if r in last_valu_wr and pos-last_valu_wr[r]-1<1: err(k,f"VALU->readlane hazard {r}")
        if kd=="ds" or kd=="dsw":
            it=ev(ins.item,env)
            if kd=="ds" and it is not None and lds_items:
                st=item_state.get(it)
                if st is None or not st["visible"]: err(k,f"ds read of item {it} not visible")
                elif st["n"]<(3 if it[0]=='X' else min_parts): err(k,f"ds read of item {it} with only {st['n']} parts issued")
                item_reads_out[it]=item_reads_out.get(it,0)+1
                item_read_done_barrier[it]=False
            dsq.append((set(wr),it if kd=="ds" else None))
            for r in wr: pend[r]="ds"
        elif kd in VMKINDS:
            it=ev(ins.item,env) if kd=="dma" else None
            if kd=="dma" and it is not None:
                sl=ev(ins.slot,env)
                old=slot_occ.get(sl)
                if old is not None and old!=it and lds_items:
                    if item_reads_out.get(old,0)>0 or (not item_read_done_barrier.get(old,True) and not (old[0]=='X' and it[0]=='X')):
                        err(k,f"DMA of {it} into slot {sl} while {old} may still be read")
                slot_occ[sl]=it
                st=item_state.setdefault(it,dict(out=0,visible=False,landed=False,n=0))
                st["out"]+=1; st["n"]+=1; st["visible"]=False; st["landed"]=False
            vmq.append((set(wr),it))
            for r in wr: pend[r]="vm"
            if len(vmq)>63 and verbose: print("note: >63 vm outstanding at",k)
            if kd=="vstore":
                data=set(list(rs(*[])));
                for r in rd:
                    if r[0] in 'va': last_store_data[r]=pos
        elif kd=="wait" or kd=="waitfix":
            if kd=="wait":
                which,_=ins.wait; vmn,lg=(ins.n,None) if which=="vm" else (None,ins.n)
            else: vmn,lg=ins.wait
            if vmn is not None:
                while len(vmq)>vmn:
                    regs,it=vmq.pop(0)
                    for r in regs: pend.pop(r,None)
                    if it is not None:
                        item_state[it]["out"]-=1
                        if item_state[it]["out"]==0:
                            item_state[it]["landed"]=True
                            if it[0]=='X': item_state[it]["visible"]=True
            if lg is not None:
                while len(dsq)>lg:
                    regs,it=dsq.pop(0)
                    for r in regs: pend.pop(r,None)
                    if it is not None: item_reads_out[it]-=1
        elif kd=="barrier":
            for it,st in item_state.items():
                if st["landed"]: st["visible"]=True
            for it,n in item_reads_out.items():
                if n==0: item_read_done_barrier[it]=True
        if isvalu:
            for r in wr:
                if r[0]=='s': last_valu_sgpr[r]=pos
                else: last_valu_wr[r]=pos
                last_trans_wr.pop(r,None); last_mfma_wr.pop(r,None)
            if kd=="trans":
                for r in wr: last_trans_wr[r]=pos
        elif kd=="mfma":
            for r in wr:
                last_mfma_wr[r]=(pos,set(wr)); last_valu_wr.pop(r,None)
            for r in (ins.srcc or ()): last_mfma_srcc[r]=pos
        elif kd=="salu":
            if ('m',0) in wr: last_salu_m0=pos
            for r in wr: last_valu_sgpr.pop(r,None)
        pos += (ins.tag+1) if kd=="nop" else 1
    return errs

def clone(i):
    c=Ins(i.text,i.kind,rd=i.rd,wr=i.wr,tag=i.tag,wait=i.wait,srcc=i.srcc,item=i.item,slot=i.slot)
    return c
```

```python
from ir import *
from sched import *
import k1
from k1 import (K1, f32bits, vTID, vT, vKl, vVl, vKa, vVa, vKg, vVg, vWg, vMX, vTMP, vL, KF, VF, QA, QF, SB, PF, CI, OA,
                sK, sV, sW, sX, sWAVE, sU, sKs, sVs, sWs, sKw, sVw, sWw, sKr, sVr, sWr, sCNT, sT0, sT1, sC2, sTH, sWvK, sWvV,
                W_BASE, K_BASE, V_BASE, LDS_END, SCALE, THRESH)

vXg=[V(12),V(19),V(20)]; vPst=V(13); vXd=V(21); vXr=V(14); vXrl=V(23)
vWo=[V(24+p) for p in range(4)]
XBASE=[0]
XKEEP=[False]
def XF(s,j):
    st = (s if s<2 else 2+(s&1)) if XKEEP[0] else (s&3)
    return A(XBASE[0]+(st*3+j)*4,4)
def PARK_A(i4):
    if i4<16: return A(192+4*i4,4)
    if i4<22: return V(232+4*(i4-16),4)
    return V(56+4*(i4-22),4)
def PARK_T(i4):
    return A(192+4*i4,4) if i4<16 else A(48+4*(i4-16),4)
def OPA(T,j): return V(160+(T*3+j)*4,4)
def OPK(h,j): return V(208+(h*3+j)*4,4)
sP=S(20,4)
sWo=S(56,4)
sWk=S(35); sWu=S(36); sXk=S(40); sNgC=S(41); sNgN=S(45); sWoS=S(54); sPs=S(55); sPs2=S(60); sWvO=[S(62+p) for p in range(4)]
sRho=S(61); sDum=S(92,4); sNgNN=S(53); sC=S(42); sCinv=S(43); sXl=S(39,1); sXw=[S(40),S(54),S(55)]
PW=172032

class K1F(K1):
    def __init__(s, ntkv=True, stmod=" nt", prof=False, wmod="", xmod="", womod="", rot=True, fine=False, touch=True, defer=True, kvpos=None, prokv=('K0','K1'), even=True, fuse=False, rdmod=' sc1', outmod='', rel=False, latest=False, deep=True, dbgprof=False, pad=0, align=None, lscale=True, hide=True, xlds=True, xkeep=True, exp_delay=0):
        super().__init__(ntkv=ntkv, stmod=stmod, prof=False, wmod=wmod, xmod=xmod)
        s.prof=prof; s.womod=womod; s.rot=rot; s.fine=fine; s.touch=touch; s.defer=defer; s.only_u0=set(); s.only_u1=set(); s.kvpos=kvpos or {12:['V0','K2'],13:['V1']}; s.prokv=prokv; s.even=even; s.fuse=fuse; s.rdmod=rdmod; s.outmod=outmod
        s.rel=rel; s.latest=latest; s.deep=deep; s.dbgprof=dbgprof; s.pad=pad; s.lscale=lscale; s.hide=hide; s.xlds=xlds; s.exp_delay=exp_delay; s.xkeep=xkeep and xlds and hide; s.align=align; s.oring=0x1ffff if deep else 0xffff; s.onsl=8 if deep else 4; s.olook=7 if deep else 3
        if fuse and not rel: s.stmod=' sc1'
    def stamp(s, sc, idx, dyn=False):
        if not s.prof: return
        sc.emit(raw("s_memtime s[98:99]")); sc.emit(raw("s_memrealtime s[100:101]"))
        sc.emit(wait_fixed(lgkm=0))
        a=66+2*idx
        if not dyn:
            sc.emit(raw(f"s_mov_b32 s{a}, s98")); sc.emit(raw(f"s_mov_b32 s{a+1}, s100"))
        else:
            b=66+2*(idx+6)
            sc.emit(raw("s_cmp_eq_u32 s25, 0"))
            sc.emit(raw(f"s_cselect_b32 s{a}, s98, s{a}")); sc.emit(raw(f"s_cselect_b32 s{a+1}, s100, s{a+1}"))
            sc.emit(raw(f"s_cselect_b32 s{b}, s{b}, s98")); sc.emit(raw(f"s_cselect_b32 s{b+1}, s{b+1}, s100"))
    def item_W(s, item):
        pre=[salu("s_add_u32",sWk,sWk,262144), [salu("s_add_u32",sWw,sWw,16384),salu("s_and_b32",sWw,sWw,0xffff)],
             [salu("s_cmp_eq_u32",None,sWk,14*262144),salu("s_cselect_b32",sWk,0,sWk)], salu("s_add_u32",sWs,sWk,sWu)]
        pre=[pre[0],pre[2],pre[1],pre[3]]
        L=[(salu("s_add_u32","m0",sWw,sWvV[p]), dma(vWg,sW,sWs,p*128,item,lambda e,it=item:('W',ev(it,e)[1]%4),s.wmod)) for p in range(4)]
        return pre,L
    def item_K(s, item):
        pre=[salu("s_add_u32",sKs,sKs,16384), salu("s_add_u32",sKw,sKw,16384),
             [salu("s_cmp_eq_u32",None,sKw,V_BASE), salu("s_cselect_b32",sKw,K_BASE,sKw)]]
        L=[(salu("s_add_u32","m0",sKw,sWvK[p]), dma(vKg[p>>1],sK,sKs,(p&1)*256,item,lambda e,it=item:('K',ev(it,e)[1]%3),s.kvmod)) for p in range(4)]
        return pre,L
    def item_V(s, item):
        pre=[salu("s_add_u32",sVs,sVs,16384), salu("s_add_u32",sVw,sVw,16384),
             [salu("s_cmp_eq_u32",None,sVw,LDS_END), salu("s_cselect_b32",sVw,V_BASE,sVw)]]
        L=[(salu("s_add_u32","m0",sVw,sWvV[p]), dma(vVg,sV,sVs,p*128,item,lambda e,it=item:('V',ev(it,e)[1]%3),s.kvmod)) for p in range(4)]
        return pre,L
    def item_O(s, item, const, ng):
        pre=[salu("s_add_u32",sWoS,ng,const), [salu("s_add_u32",sWw,sWw,16384), salu("s_and_b32",sWw,sWw,s.oring)]]
        def slot(e,it=item):
            q=ev(it,e)[1]%s.onsl
            return ('W',q) if q<4 else (('K',q-4) if q<7 else ('V',0))
        L=[(salu("s_add_u32","m0",sWw,sWvO[p]), dma(vWo[p],sWo,sWoS,0,item,slot,s.womod)) for p in range(4)]
        return pre,L
    def adv_rd(s, typ):
        if typ=='O': return [salu("s_add_u32",sWr,sWr,16384),salu("s_and_b32",sWr,sWr,s.oring)]
        return super().adv_rd(typ)
    def addr_ops(s, typ):
        return super().addr_ops('W' if typ=='O' else typ)
    def xpre(s):
        return [salu("s_add_u32",sXk,sXk,128),[salu("s_cmp_eq_u32",None,sXk,896),salu("s_cselect_b32",sXk,0,sXk)]]
    def xloads(s, pos, tagfn):
        return [vload(XF(pos+d,j),vXg[j],sX,sXk,d*64,tag=tagfn(pos+d),mod=s.xmod) for j in range(3) for d in range(2)]
    def item_X(s, pos, tagfn, slotfn):
        item=tagfn(pos)
        L=[(salu("s_add_u32","m0",sXl,j*1024), dma(vXd,sX,sXw[j],(pos&1)*64,item,slotfn,s.xmod)) for j in range(3)]
        L=[(salu("s_add_u32","m0",sXl,j*1024+64-(pos&1)*64), dma(vXd,sX,sXw[j],(pos&1)*64,item,slotfn,s.xmod)) for j in range(3)]
        R=[dsread("ds_read_b128",XF(pos,j),vXr,j*1024,tag=('xr',pos&3,j),item=item) for j in range(3)]
        return L,R
    @staticmethod
    def flat(L):
        out=[]
        for x in L:
            if isinstance(x,list): out+=x
            else: out.append(x)
        return out
    def emit_item(s, sc, item_pair):
        pre,L=item_pair
        for x in s.flat(pre): sc.emit(x)
        for m,d in L: sc.emit(m); sc.emit(d)

    def step(s, sc, cur, nxt, mf, korder, cur_item, nxt_item, early=None, late=None, xearly=(), xpre=(),
             extra_shadow=(), extra_fixed=(), needs=None, vmwait=(), qfree=None, qds=None, nxt_korder=None,
             nobarrier=False, keep_addr=False, forder=None, nxt_forder=None,
             EG=(5,11,17,23), LG=(29,35,41,47), XG=(5,14,23), BG=24, dmas=(), pres=(), xwait=None):
        if s.fine:
            sc.emit(raw("s_memtime s[98:99]")); sc.emit(wait_fixed(lgkm=0))
            sc.emit(raw("s_and_b32 m0, s3, 63","salu",wr=M0)); sc.emit(raw("s_cmp_lt_u32 s3, 64"))
            sc.emit(raw("s_cselect_b32 s100, 0, 1")); sc.emit(raw("s_add_u32 s3, s3, 1")); sc.emit(raw("s_cmp_eq_u32 s100, 0"))
            lab=f"L_fine{len(s._fl)}"; s._fl.append(lab)
            sc.emit(branch(f"s_cbranch_scc0 {lab}_b"))
            sc.emit(raw("v_writelane_b32 v1, s98, m0","valu")); sc.emit(branch(f"s_branch {lab}_e"))
            sc.emit(label(f"{lab}_b")); sc.emit(raw("v_writelane_b32 v15, s98, m0","valu")); sc.emit(label(f"{lab}_e"))
        shadow=[[] for _ in range(48)]; fixed=[[] for _ in range(48)]
        tagc=cur+"c"; tagn=(nxt or "")+"n"; prevtag=cur+"n"
        def frag_reads(typ,f,order,item,tag,fo):
            if typ=='K':
                kt,t=order[f]; return s.rdK(f,kt,t,item,tag)
            T=fo[f] if fo else f
            r=VF(f); off=(T>>2)*1024+((T>>1)&1)*512
            return [dsread("ds_read_b64_tr_b16",sub(r,0,2),vVa[T&1],off,tag=(tag,f,0),item=item),
                    dsread("ds_read_b64_tr_b16",sub(r,2,2),vVa[T&1],off+8192,tag=(tag,f,1),item=item)]
        def tags(typ,f,tag): return [(tag,f)] if typ=='K' else [(tag,f,0),(tag,f,1)]
        for f in range(3,16):
            for q,x in enumerate(frag_reads(cur,f,korder,cur_item,tagc,forder)): fixed[3*(f-3)+q].append(x)
        for f in range(1,16):
            tg = tags(cur,f,tagc) if f>=3 else tags(cur,f,prevtag)
            shadow[3*f-1].append(wait_lgkm(*tg))
        reserved=set()
        if nxt:
            if not keep_addr:
                adv=s.adv_rd(nxt)
                ao=s.addr_ops(nxt)
                if cur=='K' and nxt!='K':
                    shadow[27].append(adv[0]); shadow[30].extend(adv[1:])
                    fixed[33].append(ao[0]); fixed[36].append(ao[1])
                else:
                    shadow[30].append(adv[0]); shadow[33].extend(adv[1:])
                    if nxt=='K': fixed[37].append(ao[0])
                    else: fixed[36].append(ao[0]); fixed[37].append(ao[1])
            for f in range(3):
                for q,x in enumerate(frag_reads(nxt,f,nxt_korder,nxt_item,tagn,nxt_forder)): fixed[39+3*f+q].append(x)
            shadow[47].append(wait_lgkm(*(tags(nxt,0,tagn)+([xwait] if xwait else []))))
        if vmwait: shadow[BG].append(wait_vm(*vmwait))
        if not nobarrier: shadow[BG+1].append(barrier())
        for it,G in ((early,EG),(late,LG)):
            if not it: continue
            for (m,d),g in zip(it[1],G):
                shadow[g-1].append(m); fixed[g].append(d); reserved.add(g-1)
        for g,(m,d) in dmas:
            shadow[g-1].append(m); fixed[g].append(d)
        for x,g in zip(xearly,XG): fixed[g].append(x)
        for gi,x in extra_shadow: shadow[gi].append(x)
        for gi,x in extra_fixed: fixed[gi].append(x)
        def place(groups, gp, lim):
            for G in groups:
                G = G if isinstance(G,list) else [G]
                while gp<48 and (shadow[gp] or gp%3==2): gp+=1
                assert gp<=lim,(gp,lim,groups)
                shadow[gp].extend(G); gp+=1
            return gp
        gp=0
        if early: gp=place(early[0], 0, EG[0]-2)
        if xpre: gp=place(list(xpre), 0, XG[0]-1)
        for groups,lo,hi in pres: place(groups, lo, hi)
        if late: gp=place(late[0], gp, LG[0]-2)
        for gi in range(48):
            nd = needs(gi) if needs else ()
            if nd: s.flush_needed(sc, nd, (qfree or [])+(qds or []))
            sc.gap(mf[gi], shadow[gi], fixed[gi], fill=False)
            used=max(0,len(shadow[gi])-1)+sum(COST.get(x.kind,1) for x in fixed[gi])
            slots=2-used
            hasds=any(x.kind=="ds" for x in fixed[gi])
            if slots>0: s.fillq(sc, slots, qds if hasds else qfree)

    def prologue(s, sc):
        e=sc.emit
        e(raw("s_cmp_ge_u32 s2, 256")); e(branch("s_cbranch_scc1 L_k1_end"))
        if s.exp_delay:
            e(raw("s_and_b32 s68, s2, 8")); e(raw("s_cmp_eq_u32 s68, 8")); e(branch("s_cbranch_scc0 L_k1_nodelay"))
            e(raw("s_memrealtime s[68:69]")); e(raw("s_waitcnt lgkmcnt(0)","waitraw"))
            e(label("L_k1_dl")); e(raw("s_memrealtime s[70:71]")); e(raw("s_waitcnt lgkmcnt(0)","waitraw"))
            e(raw("s_sub_u32 s72, s70, s68")); e(raw(f"s_cmp_lt_u32 s72, {s.exp_delay}")); e(branch("s_cbranch_scc1 L_k1_dl"))
            e(label("L_k1_nodelay"))
        e(raw("s_load_dwordx16 s[68:83], s[0:1], 0"))
        e(raw("s_load_dwordx4 s[84:87], s[0:1], 64"))
        e(raw("s_load_dwordx2 s[88:89], s[0:1], 96"))
        if s.prof:
            e(raw("s_memtime s[98:99]")); e(raw("s_memrealtime s[100:101]"))
        for t in ["s_and_b32 s90, s2, 7","s_lshr_b32 s91, s2, 3","s_lshr_b32 s92, s90, 2",
                  "s_lshr_b32 s93, s90, 1","s_and_b32 s93, s93, 1","s_lshl_b32 s93, s93, 3","s_lshr_b32 s94, s91, 2","s_add_u32 s93, s93, s94",
                  "s_and_b32 s95, s90, 1","s_lshl_b32 s95, s95, 3","s_and_b32 s96, s91, 3","s_lshl_b32 s97, s96, 1","s_add_u32 s95, s95, s97"]:
            e(raw(t))
        if s.rot:
            for t in ["s_lshl_b32 s61, s96, 1","s_add_u32 s61, s61, s94","s_cmp_ge_u32 s61, 7","s_cselect_b32 s97, 7, 0","s_sub_u32 s61, s61, s97",
                      "s_cmp_ge_u32 s61, 7","s_cselect_b32 s97, 7, 0","s_sub_u32 s61, s61, s97"]: e(raw(t))
        else: e(raw("s_mov_b32 s61, 0"))
        e(valu("v_lshrrev_b32",vT,6,vTID))
        L=V(56); I=V(57); G=V(58); t0=V(59); t1=V(60); t2=V(61); KB=V(62); RR=V(63)
        e(valu("v_and_b32",L,63,vTID))
        e(valu("v_readfirstlane_b32",sWAVE,vT))
        e(valu("v_and_b32",I,15,L)); e(valu("v_lshrrev_b32",G,4,L))
        e(valu("v_bfe_u32",KB,L,4,1)); e(valu("v_bfe_u32",RR,L,2,2))
        e(valu("v_bfe_u32",t0,L,1,1)); e(valu("v_xor_b32",t0,t0,KB)); e(valu("v_lshlrev_b32",t0,5,t0))
        e(valu("v_lshrrev_b32",t1,5,L)); e(valu("v_lshl_add_u32",t0,t1,6,t0))
        e(valu("v_and_b32",t1,1,L)); e(valu("v_lshl_add_u32",t2,t1,4,t0))
        e(salu("s_and_b32",sT0,sWAVE,1)); e(salu("s_lshl_b32",sT0,sT0,4)); e(salu("s_lshr_b32",sT1,sWAVE,1)); e(salu("s_lshl_b32",sT1,sT1,2)); e(salu("s_add_u32",sT0,sT0,sT1))
        e(valu("v_lshl_add_u32",t0,KB,3,RR)); e(valu("v_add_u32",t0,sT0,t0)); e(valu("v_lshl_add_u32",vWg,t0,13,t2))
        e(salu("s_mul_i32",sT0,sWAVE,48)); e(valu("v_add_u32",t0,sT0,I)); e(salu("s_movk_i32",sT1,896))
        e(valu("v_mul_lo_u32",t0,t0,sT1)); e(valu("v_lshl_add_u32",vXg[0],G,4,t0))
        e(valu("v_add_u32",vXg[1],14336,vXg[0])); e(valu("v_add_u32",vXg[2],28672,vXg[0]))
        e(salu("s_lshl_b32",sT0,sWAVE,12))
        for p in range(4):
            e(salu("s_add_u32",sWvK[p],sT0,p*1024-(p&1)*256)); e(salu("s_add_u32",sWvV[p],sT0,p*896)); e(salu("s_add_u32",sWvO[p],sT0,p*1024))
        e(salu("s_mov_b32",sU,0)); e(salu("s_mov_b32",sKs,"0xffffc000")); e(salu("s_mov_b32",sVs,"0xffffc000"))
        e(salu("s_mov_b32",sKw,K_BASE+32768)); e(salu("s_mov_b32",sVw,V_BASE+32768)); e(salu("s_mov_b32",sWw,49152))
        e(salu("s_mov_b32",sKr,K_BASE)); e(salu("s_mov_b32",sVr,V_BASE+32768)); e(salu("s_mov_b32",sWr,49152))
        e(salu("s_lshl_b32",sWk,sRho,1)); e(salu("s_add_u32",sWk,sWk,13)); e(salu("s_cmp_ge_u32",None,sWk,14)); e(salu("s_cselect_b32",sT0,14,0)); e(salu("s_sub_u32",sWk,sWk,sT0)); e(salu("s_lshl_b32",sWk,sWk,18))
        e(salu("s_add_u32",sXk,sRho,6)); e(salu("s_cmp_ge_u32",None,sXk,7)); e(salu("s_cselect_b32",sT0,7,0)); e(salu("s_sub_u32",sXk,sXk,sT0)); e(salu("s_lshl_b32",sXk,sXk,7))
        e(salu("s_mov_b32",sWu,0))
        e(raw("s_waitcnt lgkmcnt(0)","waitraw"))
        e(raw("s_cmp_eq_u32 s92, 0"))
        for d,b in [(68,78),(69,79),(70,80),(71,81),(72,82),(73,83),(74,84),(75,85),(76,86),(77,87)]:
            e(raw(f"s_cselect_b32 s{d}, s{d}, s{b}"))
        for t in [
            "s_lshl_b32 s97, s95, 9",
            "s_add_u32 s12, s74, s97","s_addc_u32 s13, s75, 0","s_and_b32 s13, s13, 0xffff","s_sub_u32 s14, 3670016, s97","s_mov_b32 s15, 0x20000",
            "s_mul_i32 s97, s93, 172032",
            "s_add_u32 s16, s68, s97","s_addc_u32 s17, s69, 0","s_and_b32 s17, s17, 0xffff","s_mov_b32 s18, 172032","s_mov_b32 s19, 0x20000",
            ]: e(raw(t))
        if s.touch:
            e(raw("s_mul_i32 s97, s96, 48")); e(salu("s_mul_i32",sT0,sWAVE,12)); e(raw("s_add_u32 s97, s97, s38")); e(raw("s_mul_i32 s97, s97, 896"))
            e(valu("v_lshlrev_b32",t0,7,L)); e(valu("v_add_u32",t0,S(97),t0))
            e(touch(V(64),t0,sX,0))
            e(valu("v_add_u32",t1,8192,t0)); e(Ins("v_cmp_gt_u32 vcc, 20, v56","valu",rd=rs(L),wr=VCC)); e(valu("v_mov_b32",V(65),"0x7fffffff")); e(nop(0))
            e(Ins(f"v_cndmask_b32 {rt(t1)}, v65, {rt(t1)}, vcc","valu",rd=rs(t1,V(65))|VCC,wr=rs(t1)))
            e(touch(V(64),t1,sX,0))
        if s.touch is True:
            e(raw("s_mul_i32 s97, s94, 56")); e(salu("s_mul_i32",sT0,sWAVE,14)); e(raw("s_add_u32 s97, s97, s38"))
            e(valu("v_lshrrev_b32",t0,2,L)); e(valu("v_add_u32",t0,S(97),t0)); e(valu("v_lshlrev_b32",t0,13,t0))
            e(valu("v_and_b32",t1,3,L)); e(valu("v_lshl_add_u32",t0,t1,7,t0))
            e(Ins("v_cmp_gt_u32 vcc, 56, v56","valu",rd=rs(L),wr=VCC)); e(nop(1))
            e(Ins(f"v_cndmask_b32 {rt(t0)}, v65, {rt(t0)}, vcc","valu",rd=rs(t0,V(65))|VCC,wr=rs(t0)))
            e(touch(V(64),t0,sW,0))
        def kvsetup():
            for t in [
                "s_lshl_b32 s97, s93, 4","s_add_u32 s97, s97, s95","s_lshl_b32 s97, s97, 18",
                "s_add_u32 s4, s70, s97","s_addc_u32 s5, s71, 0","s_and_b32 s5, s5, 0xffff","s_mov_b32 s6, 524288","s_mov_b32 s7, 0x20000",
                "s_add_u32 s8, s72, s97","s_addc_u32 s9, s73, 0","s_and_b32 s9, s9, 0xffff","s_mov_b32 s10, 524288","s_mov_b32 s11, 0x20000",
                ]: e(raw(t))
            e(valu("v_lshl_add_u32",t0,KB,2,RR)); e(valu("v_lshl_add_u32",t0,t0,9,t2)); e(salu("s_lshl_b32",sT0,sWAVE,12)); e(valu("v_add_u32",vVg,sT0,t0))
            for q in range(2):
                e(salu("s_and_b32",sT0,sWAVE,1)); e(salu("s_lshl_b32",sT0,sT0,1)); e(salu("s_add_u32",sT0,sT0,q))
                e(salu("s_sub_u32",sT1,4,sT0)); e(salu("s_and_b32",sT1,sT1,3))
                e(valu("v_and_b32",t0,3,L)); e(valu("v_xor_b32",t0,sT1,t0)); e(valu("v_lshlrev_b32",t0,4,t0))
                e(valu("v_lshl_add_u32",t0,G,6,t0))
                e(salu("s_lshl_b32",sT0,sT0,2)); e(salu("s_lshr_b32",sT1,sWAVE,1)); e(salu("s_lshl_b32",sT1,sT1,4)); e(salu("s_add_u32",sT0,sT0,sT1))
                e(valu("v_add_u32",t1,sT0,RR)); e(valu("v_lshl_add_u32",vKg[q],t1,9,t0))
        if s.prokv or not s.defer: kvsetup()
        if s.defer:
            for nm in s.prokv:
                s.emit_item(sc, s.item_K(('K',int(nm[1]))) if nm[0]=='K' else s.item_V(('V',int(nm[1]))))
        s.emit_item(sc,s.item_W(('W',0)))
        for x in s.flat(s.xpre()): e(x)
        for x in s.xloads(0,lambda k:('x',0,k)): e(x)
        s.emit_item(sc,s.item_W(('W',1)))
        for t in [
            "s_mul_i32 s97, s95, 229376",
            "s_add_u32 s56, s76, s97","s_addc_u32 s57, s77, 0","s_and_b32 s57, s57, 0xffff","s_mov_b32 s58, 458752","s_mov_b32 s59, 0x20000",
            "s_lshl_b32 s97, s92, 4","s_add_u32 s97, s97, s93","s_lshl_b32 s97, s97, 3","s_lshr_b32 s90, s95, 1","s_add_u32 s97, s97, s90",
            f"s_mul_i32 s97, s97, {PW}",
            "s_add_u32 s20, s88, s97","s_addc_u32 s21, s89, 0","s_and_b32 s21, s21, 0xffff",f"s_mov_b32 s22, {PW}","s_mov_b32 s23, 0x20000",
            ]: e(raw(t))
        s.emit_item(sc,s.item_W(('W',2)))
        s.emit_item(sc,s.item_W(('W',3)))
        if s.defer and not s.prokv: kvsetup()
        if not s.defer:
            for n in range(3): s.emit_item(sc,s.item_K(('K',n)))
            for n in range(2): s.emit_item(sc,s.item_V(('V',n)))
        e(valu("v_lshrrev_b32",t0,2,I)); e(valu("v_sub_u32",t1,4,t0)); e(valu("v_and_b32",t1,3,t1)); e(valu("v_xor_b32",t1,t1,G))
        e(valu("v_lshlrev_b32",t1,4,t1)); e(valu("v_lshl_add_u32",t1,t0,11,t1)); e(valu("v_and_b32",t0,3,I)); e(valu("v_lshl_add_u32",vKl,t0,6,t1))
        e(valu("v_lshrrev_b32",t0,1,G)); e(valu("v_lshlrev_b32",t0,12,t0)); e(valu("v_lshl_add_u32",t0,KB,8,t0))
        e(valu("v_lshl_add_u32",t0,RR,6,t0)); e(valu("v_and_b32",t1,3,L)); e(valu("v_lshl_add_u32",t0,t1,3,t0))
        e(valu("v_lshl_add_u32",vVl[0],KB,5,t0))
        e(valu("v_xor_b32",t1,1,KB)); e(valu("v_lshl_add_u32",vVl[1],t1,5,t0))
        e(valu("v_add_u32",vKa,K_BASE,vKl))
        if s.xlds:
            e(valu("v_lshrrev_b32",t0,4,L)); e(valu("v_sub_u32",t0,4,t0)); e(valu("v_and_b32",t0,3,t0)); e(valu("v_and_b32",t1,3,L)); e(valu("v_xor_b32",t0,t0,t1))
            e(valu("v_lshlrev_b32",t0,4,t0)); e(valu("v_lshrrev_b32",t1,2,L)); e(salu("s_mul_i32",sT0,sWAVE,48)); e(valu("v_add_u32",t1,sT0,t1))
            e(salu("s_movk_i32",S(97),896)); e(valu("v_mul_lo_u32",t1,t1,S(97))); e(valu("v_add_u32",vXd,t0,t1))
            e(valu("v_lshrrev_b32",t0,2,I)); e(valu("v_sub_u32",t0,4,t0)); e(valu("v_and_b32",t0,3,t0)); e(valu("v_xor_b32",t0,t0,G))
            e(valu("v_lshlrev_b32",t0,4,t0)); e(valu("v_lshl_add_u32",t0,I,6,t0)); e(valu("v_add_u32",vXrl,64,t0))
        e(salu("s_mul_i32",sT0,sWAVE,43008)); e(valu("v_lshlrev_b32",t0,4,L)); e(valu("v_add_u32",vPst,sT0,t0))
        e(salu("s_lshr_b32",sT0,sWAVE,1)); e(salu("s_lshl_b32",sT0,sT0,4)); e(salu("s_and_b32",sT1,sWAVE,1)); e(salu("s_lshl_b32",sT1,sT1,3)); e(salu("s_add_u32",sT0,sT0,sT1))
        e(valu("v_lshl_add_u32",t0,KB,2,RR)); e(valu("v_add_u32",t0,sT0,t0)); e(salu("s_movk_i32",sT1,896)); e(valu("v_mul_lo_u32",t0,t0,sT1)); e(valu("v_add_u32",V(22),t0,t2))
        e(salu("s_mov_b32",sub(sC2,0),hex(f32bits(SCALE)))); e(salu("s_mov_b32",sub(sC2,1),hex(f32bits(1.0/SCALE if s.lscale else SCALE))))
        e(salu("s_mov_b32",sTH,hex(f32bits(THRESH))))
        e(salu("s_lshl_b32",sNgC,sRho,7))
        e(salu("s_mov_b32",sub(sDum,0),sub(sX,0))); e(salu("s_mov_b32",sub(sDum,1),sub(sX,1))); e(salu("s_mov_b32",sub(sDum,2),0)); e(salu("s_mov_b32",sub(sDum,3),"0x20000"))
        if s.prof:
            e(raw("s_mov_b32 s96, s88")); e(raw("s_mov_b32 s97, s89")); e(raw("s_mov_b32 s90, s98")); e(raw("s_mov_b32 s91, s100"))

    def conv_ops(s, t, j):
        m,c,p1,p2=super().conv_ops(t,j)
        return ([] if s.lscale else m),c,p1,p2
    def sm_add2(s, buf, qe):
        ex={list(f.ins.wr)[0]:f.ins for f in qe}
        q=[]
        for j in range(3):
            for kt in range(2):
                for r in range(4):
                    x=sub(SB(buf,kt,j),r); q.append(Filler(valu("v_add_f32",vL[j],vL[j],x),[ex[('v',x[1])]]))
        out=[]
        for i in range(8):
            for j in range(3): out.append(q[j*8+i])
        return q if False else [q[i] for i in range(24)]
    def sm_mul(s, buf):
        return [Filler(valu("v_mul_f32",sub(SB(buf,kt,j),r),sC,sub(SB(buf,kt,j),r))) for kt in range(2) for j in range(3) for r in range(4)]
    def rare(s, sc, buf, name, ret):
        e=sc.emit
        e(label(name)); e(nop(7)); e(nop(3))
        P0=208
        m=[V(P0+j) for j in range(3)]; tm=[V(P0+3+j) for j in range(3)]; al=[V(P0+6+j) for j in range(3)]
        for j in range(3):
            a=SB(buf,0,j); b=SB(buf,1,j)
            e(valu("v_max3_f32",m[j],sub(a,0),sub(a,1),sub(a,2)))
            e(valu("v_max3_f32",m[j],m[j],sub(a,3),sub(b,0)))
            e(valu("v_max3_f32",m[j],m[j],sub(b,1),sub(b,2)))
            e(valu("v_max_f32",m[j],m[j],sub(b,3)))
        for x in s.allreduce("v_max_f32",m,tm): e(x)
        for j in range(3): e(valu("v_max_f32",m[j],0,m[j]))
        for j in range(3):
            for kt in range(2):
                for r in range(4): e(valu("v_sub_f32",sub(SB(buf,kt,j),r),sub(SB(buf,kt,j),r),m[j]))
            if s.lscale:
                for r in range(4): e(Ins(f"v_fma_f32 {rt(sub(CI(j),r))}, -{rt(m[j])}, {rt(sCinv)}, {rt(sub(CI(j),r))}","valu",rd=rs(m[j],sCinv,sub(CI(j),r)),wr=rs(sub(CI(j),r))))
            else:
                for r in range(4): e(valu("v_sub_f32",sub(CI(j),r),sub(CI(j),r),m[j]))
            e(Ins(f"v_exp_f32_e64 {rt(al[j])}, -{rt(m[j])}","trans",rd=rs(m[j]),wr=rs(al[j])))
        for j in range(3): e(valu("v_mul_f32",vL[j],vL[j],al[j]))
        for T in range(16):
            for j in range(3):
                t=[V(P0+r) for r in range(4)] if False else [V(P0+0),V(P0+1),V(P0+2),V(P0+3)]
                t=[V(P0+9),V(P0+10),V(P0+11),vTMP]
                for r in range(4): e(accrd(t[r],sub(OA(T,j),r)))
                for r in range(4): e(valu("v_mul_f32",t[r],t[r],al[j]))
                for r in range(4): e(accwr(sub(OA(T,j),r),t[r]))
        e(nop(3))
        e(branch(f"s_branch {ret}"))

    def rstamp(s, sc, r):
        if not s.prof: return
        sc.emit(raw("s_memrealtime s[98:99]")); sc.emit(raw("s_waitcnt lgkmcnt(0)")); sc.emit(raw(f"s_mov_b32 s{r}, s98"))
    def dump_code(s):
        L=[raw("s_add_u32 s56, s96, 0x8000000"),raw("s_addc_u32 s57, s97, 0"),raw("s_and_b32 s57, s57, 0xffff"),raw("s_mov_b32 s58, 0x100000"),raw("s_mov_b32 s59, 0x20000"),
           raw("s_lshl_b32 s3, s2, 10"),raw("s_lshl_b32 s38, s24, 8"),raw("s_add_u32 s3, s3, s38"),raw("v_mov_b32 v1, s3","valu")]
        for i,r in enumerate(range(66,96)):
            L+=[raw(f"v_mov_b32 v2, s{r}","valu"),raw(f"buffer_store_dword v2, v1, s[56:59], 0 offen offset:{4*i}","valu"),raw("s_nop 1")]
        return L
    def reduce_tail(s, sc):
        e=sc.emit
        sDbg=S(4,4); sGP=S(8,4); sOut=S(12,4)
        e(raw("s_load_dwordx4 s[68:71], s[0:1], 80"))
        e(raw("s_load_dwordx2 s[72:73], s[0:1], 96"))
        for t in ["s_and_b32 s74, s2, 7","s_lshr_b32 s75, s2, 3","s_lshr_b32 s76, s74, 2",
                  "s_lshr_b32 s77, s74, 1","s_and_b32 s77, s77, 1","s_lshl_b32 s77, s77, 3","s_lshr_b32 s78, s75, 2","s_add_u32 s77, s77, s78",
                  "s_and_b32 s79, s74, 1","s_lshl_b32 s79, s79, 2","s_and_b32 s80, s75, 3","s_add_u32 s79, s79, s80",
                  "s_lshl_b32 s81, s76, 4","s_add_u32 s81, s81, s77"]:
            e(raw(t))
        e(wait_fixed(vm=0,lgkm=0))
        s.rstamp(sc,60)
        for t in ["s_mov_b32 s4, s70","s_and_b32 s5, s71, 0xffff","s_mov_b32 s6, 256","s_mov_b32 s7, 0x20000",
                  f"s_mul_i32 s82, s81, {8*PW}",
                  "s_add_u32 s8, s72, s82","s_addc_u32 s9, s73, 0","s_and_b32 s9, s9, 0xffff",f"s_mov_b32 s10, {8*PW}","s_mov_b32 s11, 0x20000",
                  "s_mov_b32 s12, s68","s_and_b32 s13, s69, 0xffff","s_mov_b32 s14, 5505024","s_mov_b32 s15, 0x20000"]:
            e(raw(t))
        e(barrier())
        e(salu("s_cmp_eq_u32",None,sWAVE,0)); e(branch("s_cbranch_scc0 L_k1_rwait"))
        e(raw("s_lshl_b32 s82, s81, 2")); e(valu("v_mov_b32",V(2),S(82))); e(valu("v_mov_b32",V(3),1))
        if s.rel:
            e(raw("buffer_wbl2 sc1","vmemraw")); e(raw("s_waitcnt vmcnt(0)"))
        e(raw("s_mov_b64 exec, 1"))
        e(raw("buffer_atomic_add v3, v2, s[4:7], 0 offen sc1","vmemraw"))
        e(raw("s_waitcnt vmcnt(0)"))
        e(raw("s_mov_b32 s83, 0x40000"))
        e(label("L_k1_poll"))
        e(raw("buffer_load_dword v4, v2, s[4:7], 0 offen sc1","vmemraw"))
        e(raw("s_waitcnt vmcnt(0)"))
        e(raw("v_readfirstlane_b32 s84, v4","valu"))
        e(raw("s_sub_u32 s83, s83, 1"))
        e(raw("s_cmp_eq_u32 s83, 0")); e(branch("s_cbranch_scc1 L_k1_pollend"))
        e(raw("s_cmp_lt_u32 s84, 8")); e(branch("s_cbranch_scc1 L_k1_poll"))
        e(label("L_k1_pollend"))
        e(raw("s_mov_b64 exec, -1"))
        if s.rel:
            e(raw("buffer_inv sc1","vmemraw")); e(raw("s_waitcnt vmcnt(0)"))
        e(label("L_k1_rwait"))
        e(barrier())
        s.rstamp(sc,61)
        vL_=V(2); vI=V(3); vG=V(4); vA=V(5); vO=V(6); t0=V(7)
        e(raw("v_mbcnt_lo_u32_b32 v2, -1, 0","valu")); e(raw("v_mbcnt_hi_u32_b32 v2, -1, v2","valu")); e(valu("v_and_b32",vI,15,vL_)); e(valu("v_lshrrev_b32",vG,4,vL_))
        e(valu("v_lshlrev_b32",vA,4,vL_))
        e(raw("s_mul_i32 s85, s79, 21")); e(salu("s_add_u32",S(86),S(85),sWAVE)); e(raw("s_add_u32 s85, s85, 21"))
        for hp in range(1,8): e(salu("s_mov_b32",S(26+hp),hp*PW))
        def buf(i,hp): return V(64+(i*8+hp)*4,4)
        uo=[S(40+i) for i in range(6)]
        for i in range(6):
            e(salu("s_add_u32",S(87),S(86),4*i)); e(salu("s_lshl_b32",uo[i],S(87),10))
            e(salu("s_cmp_lt_u32",None,S(87),S(85))); e(salu("s_cselect_b32",uo[i],uo[i],"0x40000000"))
        va=[V(8+i) for i in range(6)]
        for i in range(6): e(valu("v_add_u32",va[i],uo[i],vA))
        def ld(i):
            for hp in range(8): e(vload(buf(i,hp),va[i],sGP,0 if hp==0 else S(26+hp),0,tag=('r',i,hp),mod=s.rdmod))
        ld(0); ld(1)
        e(raw("s_mul_i32 s88, s77, 192")); e(raw("s_mul_i32 s89, s76, 896"))
        e(valu("v_mov_b32",t0,1792)) if False else None
        e(salu("s_movk_i32",S(90),1792)); e(valu("v_mul_lo_u32",vO,vI,S(90))); e(valu("v_lshl_add_u32",vO,vG,4,vO))
        oo=[S(46+i) for i in range(6)]
        for i in range(6):
            e(salu("s_add_u32",S(87),S(86),4*i))
            e(raw("s_mul_i32 s91, s87, 1561")); e(raw("s_lshr_b32 s91, s91, 16"))
            e(raw("s_mul_i32 s92, s91, 42")); e(raw("s_sub_u32 s92, s87, s92"))
            e(raw("s_mul_i32 s93, s92, 43")); e(raw("s_lshr_b32 s93, s93, 8"))
            e(raw("s_mul_i32 s94, s93, 6")); e(raw("s_sub_u32 s94, s92, s94"))
            e(raw("s_lshr_b32 s95, s94, 1")); e(raw("s_and_b32 s94, s94, 1"))
            e(raw("s_mul_i32 s91, s91, 48")); e(raw("s_lshl_b32 s95, s95, 4")); e(raw("s_add_u32 s91, s91, s95")); e(raw("s_add_u32 s91, s91, s88"))
            e(raw("s_mul_i32 s91, s91, 1792")); e(raw("s_lshl_b32 s93, s93, 7")); e(raw("s_lshl_b32 s94, s94, 6"))
            e(raw("s_add_u32 s91, s91, s93")); e(raw("s_add_u32 s91, s91, s94")); e(salu("s_add_u32",oo[i],S(91),S(89)))
            e(salu("s_cmp_lt_u32",None,S(87),S(85))); e(salu("s_cselect_b32",oo[i],oo[i],"0x40000000"))
        e(salu("s_mov_b32",S(52),"0xffff0000"))
        s.rstamp(sc,62)
        acc=[V(16+i) for i in range(8)]; tl=[V(24+i) for i in range(8)]
        for i in range(6):
            if i+2<6: ld(i+2)
            for hp in range(8):
                e(wait_vm(('r',i,hp)))
                b=buf(i,hp); dst = acc if hp==0 else tl
                for r in range(4):
                    e(valu("v_lshlrev_b32",dst[2*r],16,sub(b,r))); e(valu("v_and_b32",dst[2*r+1],S(52),sub(b,r)))
                if hp:
                    for r in range(8): e(valu("v_add_f32",acc[r],acc[r],tl[r]))
            X=V(32+4*(i&1),4)
            for r in range(4): e(valu("v_cvt_pk_bf16_f32",sub(X,r),acc[2*r],acc[2*r+1]))
            e(perm("v_permlane32_swap_b32",sub(X,0),sub(X,2))); e(perm("v_permlane32_swap_b32",sub(X,1),sub(X,3)))
            e(perm("v_permlane16_swap_b32",sub(X,0),sub(X,2))); e(perm("v_permlane16_swap_b32",sub(X,1),sub(X,3)))
            e(vstore(X,vO,sOut,oo[i],0,tag='o',mod=s.outmod))
        if s.prof:
            s.rstamp(sc,63); e(wait_fixed(vm=0)); s.rstamp(sc,64)
            for i,r in enumerate((60,61,62,63,64)):
                e(raw(f"v_mov_b32 v2, s{r}","valu")); e(raw(f"buffer_store_dword v2, v1, s[56:59], 0 offen offset:{128+4*i}","valu")); e(raw("s_nop 1"))

    def accmov(s,d,a): return Ins(f"v_accvgpr_mov_b32 {rt(d)}, {rt(a)}","valu",rd=rs(a),wr=rs(d))
    def drain_group(s,t,j,T8,RI,dst):
        L=[]
        base=T8[0][1]
        for r in range(4): L.append(accrd(T8[r],sub(OA(2*t,j),r)))
        for r in range(4): L.append(accrd(T8[4+r],sub(OA(2*t+1,j),r)))
        for r in range(8): L.append(valu("v_mul_f32",T8[r],T8[r],sub(RI,0)))
        if dst[0]=='v':
            for r in range(4): L.append(valu("v_cvt_pk_bf16_f32",sub(dst,r),T8[2*r],T8[2*r+1]))
        else:
            for r in range(4): L.append(valu("v_cvt_pk_bf16_f32",T8[r],T8[2*r],T8[2*r+1]))
            for r in range(4): L.append(accwr(sub(dst,r),T8[r]))
        return L
    def build(s):
        XBASE[0]=192 if s.hide else 0
        XKEEP[0]=s.xkeep
        s._fl=[]
        sc=Sched(); s.prologue(sc)
        if s.fine: sc.emit(raw('s_mov_b32 s3, 0')); sc.emit(raw('v_mov_b32 v1, 0','valu')); sc.emit(raw('v_mov_b32 v15, 0','valu'))
        sc.emit(wait_vm(('W',0),('x',0,0))); sc.emit(barrier())
        pro=sc.out
        sc=Sched(); e=sc.emit
        if s.align: e(raw(f".p2align {s.align}","label"))
        for q in range(s.pad): e(nop(0))
        e(label("L_k1_unit"))
        itW=lambda k:(lambda en:('W',14*en['u']+k))
        itK=lambda n:(lambda en:('K',16*en['u']+n))
        xt=lambda k:(lambda en:('x',en['u'],k))
        s.stamp(sc,0,True)
        if s.xlds:
            e(salu("s_cmp_eq_u32",None,sU,0)); e(salu("s_cselect_b32",sXl,32768,0)); e(salu("s_add_u32",sXl,sXl,V_BASE))
            e(salu("s_lshl_b32",sT0,sWAVE,12)); e(salu("s_add_u32",sXl,sXl,sT0)); e(valu("v_add_u32",vXr,sXl,vXrl))
        for x in s.adv_rd('W'): e(x)
        for x in s.addr_ops('W'): e(x)
        for f in range(3):
            for x in s.rdV(f,itW(0),"Wn"): e(x)
        e(wait_lgkm(("Wn",0,0),("Wn",0,1)))
        kmaj=[(kt,t) for kt in range(2) for t in range(8)]
        tmaj=[(kt,t) for t in range(8) for kt in range(2)]
        qconv=[]; convdone={}
        qepi=[]
        RI0=[V(56+2*j,1) for j in range(3)]
        def PT(i4):
            t,j=divmod(i4,3)
            return PARK_A(i4) if 12<=i4<16 else OA(2*t,j)
        if s.hide:
            for n,i4 in enumerate([6,7,8,9,10,11,12,13,14,15,0,1,2,3,4,5]+list(range(16,24))):
                t,j=divmod(i4,3); base=24+8*(n&1)
                qepi+=[Filler(x) for x in s.drain_group(t,j,[V(base+r) for r in range(8)],RI0[j],PT(i4))]
        for k in range(14):
            mf=[mfma(QA(T,j),VF(T),XF(k,j),0 if k==0 else QA(T,j)) for T in range(16) for j in range(3)]
            xe=[]; xp=[]; xd=[]; xs2=[]; xf2=[]
            if not s.xlds:
                if k%2==0 and k<=10:
                    xl=s.xloads(k+2,xt); xe=xl[0::2]; xp=s.xpre(); xrest=xl[1::2]
                elif k%2==1 and k<=11:
                    xe=xrest
            else:
                xslot=lambda en:('V',(16*en['u']+2)%3)
                xitem=lambda p:(lambda en:('X',14*en['u']+p))
                if k<=11:
                    L,_=s.item_X(k+2,xitem,xslot)
                    xd=list(zip((14,17,20),L))
                    if k%2==0:
                        xp=s.xpre()+[salu("s_add_u32",sXw[1],sXk,14336),salu("s_add_u32",sXw[2],sXk,28672)]
                if 1<=k<=12:
                    _,R=s.item_X(k+1,xitem,xslot)
                    xs2=[(1,wait_vm(xitem(k+1))),(12,wait_lgkm(('xr',(k+1)&3,0),('xr',(k+1)&3,1),('xr',(k+1)&3,2)))]
                    xf2=list(zip((2,5,8),R))
            late=s.item_W(itW(k+3)) if k>=1 else None
            xs=[]
            if k==11:
                xs=[(0,salu("s_add_u32",sWu,sWu,512)),
                    (15,salu("s_cmp_eq_u32",None,sU,1)),(15,salu("s_cselect_b32",sub(sW,2),0,sub(sW,2)))]
            if s.defer and k in s.kvpos:
                its=[]
                for nm in s.kvpos[k]:
                    its.append(s.item_K(('K',int(nm[1]))) if nm[0]=='K' else s.item_V(('V',int(nm[1]))))
                e(salu("s_cmp_eq_u32",None,sU,0)); e(branch(f"s_cbranch_scc0 L_k1_skip{k}"))
                n0=len(sc.out)
                for it in its: s.emit_item(sc,it)
                e(branch(f"s_branch L_k1_join{k}"))
                for x in sc.out[n0:]: s.only_u0.add(id(x))
                e(label(f"L_k1_skip{k}"))
                n0=len(sc.out)
                for q in range(4*len(its)): e(touch(V(0),vKa,sDum,0))
                for x in sc.out[n0:]: s.only_u1.add(id(x))
                e(label(f"L_k1_join{k}"))
            queues=[qepi] if (s.hide and k<=12) else []
            if s.hide and k==12 and not s.xkeep:
                for i4 in range(6,12):
                    for r in range(4): qepi.append(Filler(s.accmov(sub(PARK_A(i4),r),sub(PT(i4),r))))
            if k==13:
                groups=[]
                for t in range(8):
                    for j in range(3):
                        last=mf[(2*t+1)*3+j]
                        groups.append((t,j,last,s.conv_ops(t,j)))
                n=len(groups)
                for i in range(n+2):
                    if i<n:
                        t,j,last,(m,c,p1,p2)=groups[i]
                        for x in m: qconv.append(Filler(x,[last]))
                        for x in c: qconv.append(Filler(x,[last]))
                    if 0<=i-1<n:
                        t,j,last,(m,c,p1,p2)=groups[i-1]
                        for x in p1: qconv.append(Filler(x))
                    if 0<=i-2<n:
                        t,j,last,(m,c,p1,p2)=groups[i-2]
                        for x in p2: qconv.append(Filler(x))
                        convdone[(t,j)]=p2
                queues=[qconv]
            if k<13:
                if s.xlds:
                    vw=[itW(k+1)]+([xt(k+1)] if k+1<2 else [])
                    s.step(sc,'W','W',mf,None,itW(k),itW(k+1),late=late,extra_shadow=list(xs)+xs2+([(3*0+47,wait_lgkm(('xr',(k+1)&3,2)))] if False else []),
                           extra_fixed=xf2,dmas=xd,pres=[(xp,0,11)] if xp else (),vmwait=vw,qfree=queues,qds=queues)
                else:
                    s.step(sc,'W','W',mf,None,itW(k),itW(k+1),xearly=xe,xpre=xp,late=late,extra_shadow=xs,
                           vmwait=[itW(k+1),xt(k+1)],qfree=queues,qds=queues)
                if s.hide and k==12: s.flush_all(sc,[qepi])
            else:
                s.step(sc,'W','K',mf,None,itW(k),itK(0),late=late,extra_shadow=list(xs)+xs2,extra_fixed=xf2,
                       vmwait=[itK(0)],qfree=queues,qds=queues,nxt_korder=tmaj,keep_addr=True)
        s.stamp(sc,1,True)
        mf=[]
        for f,(kt,t) in enumerate(tmaj):
            for j in range(3): mf.append(mfma(SB(0,kt,j),KF(f),QF(t,j),0 if t==0 else SB(0,kt,j)))
        def needs0(gi):
            f,j=divmod(gi,3); kt,t=tmaj[f]
            nd=list(convdone[(t,j)])
            if t==0 and kt==1: nd+=convdone[(1,j)]
            return nd
        s.step(sc,'K','K',mf,tmaj,itK(0),itK(1),late=s.item_W(itW(17)),
               vmwait=[itK(1)],qfree=[qconv],qds=[qconv],needs=needs0,nxt_korder=kmaj)
        assert not qconv
        m=[V(208+j) for j in range(3)]; tm=[V(211+j) for j in range(3)]
        e(barrier())
        if s.even:
            pre,L=s.item_K(itK(3))
            for x in s.flat(pre): e(x)
            for m_,d_ in L[:2]: e(m_); e(d_)
        else: s.emit_item(sc,s.item_K(itK(3)))
        mv=[]
        if s.hide and s.xkeep:
            e(salu("s_cmp_eq_u32",None,sU,1)); e(branch("s_cbranch_scc0 L_k1_nomv"))
            n0=len(sc.out)
            for i4 in range(0,12):
                for r in range(4): e(s.accmov(sub(PARK_A(i4),r),sub(PT(i4),r)))
            for x in sc.out[n0:]: s.only_u1.add(id(x))
            e(label("L_k1_nomv"))
            for i4 in range(16,24):
                for r in range(4): mv.append(accrd(sub(PARK_A(i4),r),sub(PT(i4),r)))
        elif s.hide:
            for i4 in range(0,6):
                for r in range(4): mv.append(s.accmov(sub(PARK_A(i4),r),sub(PT(i4),r)))
            for i4 in range(16,24):
                for r in range(4): mv.append(accrd(sub(PARK_A(i4),r),sub(PT(i4),r)))
        else:
            for i4 in range(16,24):
                for r in range(4): mv.append(accrd(sub(PARK_A(i4),r),sub(PARK_T(i4),r)))
        for j in range(3):
            a=SB(0,0,j); e(valu("v_max3_f32",m[j],sub(a,0),sub(a,1),sub(a,2)))
        for j in range(3):
            a=SB(0,0,j); b=SB(0,1,j); e(valu("v_max3_f32",m[j],m[j],sub(a,3),sub(b,0)))
        for j in range(3):
            b=SB(0,1,j); e(valu("v_max3_f32",m[j],m[j],sub(b,1),sub(b,2)))
        for j in range(3):
            b=SB(0,1,j); e(valu("v_max_f32",m[j],m[j],sub(b,3)))
        for x in s.allreduce("v_max_f32",m,tm): e(x)
        for j in range(3):
            for r in range(4): e(valu("v_sub_f32",sub(CI(j),r),0,m[j]))
        for j in range(3): e(valu("v_mov_b32",vL[j],0))
        if s.lscale:
            for j in range(3): e(valu("v_mul_f32",tm[j],sC,m[j]))
            for j in range(3):
                for kt in range(2):
                    for r in range(4):
                        x=sub(SB(0,kt,j),r)
                        e(Ins(f"v_fma_f32 {rt(x)}, {rt(x)}, {rt(sC)}, -{rt(tm[j])}","valu",rd=rs(x,sC,tm[j]),wr=rs(x)))
        else:
            for j in range(3):
                for kt in range(2):
                    for r in range(4): e(valu("v_sub_f32",sub(SB(0,kt,j),r),sub(SB(0,kt,j),r),m[j]))
        s.stamp(sc,2,True)
        def half(sc,buf,first=False,extraq=None):
            nb=1-buf
            iK=lambda d:(lambda en:('K',16*en['u']+en['i']+d))
            iV=lambda d:(lambda en:('V',16*en['u']+en['i']+d))
            qe,qc,pd=s.sm_exp(buf)
            qa=s.sm_add2(buf,qe)
            mf=[]
            for f,(kt,t) in enumerate(kmaj):
                for j in range(3): mf.append(mfma(SB(nb,kt,j),KF(f),QF(t,j),CI(j) if t==0 else SB(nb,kt,j)))
            xq=[extraq] if extraq is not None else []
            if s.even:
                preV,LV=s.item_V(iV(2)); _,LKprev=s.item_K(iK(3)); preK,LK=s.item_K(iK(4))
                s.step(sc,'K','V',mf,kmaj,iK(1),iV(0),vmwait=[iV(0)],qfree=[qe,qc]+xq+[qa],qds=[qc]+xq+[qa],
                       dmas=[(5,LKprev[2]),(17,LKprev[3]),(29,LV[0]),(41,LV[1])],pres=[(preV,18,27)])
            else:
                s.step(sc,'K','V',mf,kmaj,iK(1),iV(0),vmwait=[iV(0)],qfree=[qe,qc]+xq,qds=[qc]+xq)
            qm=(s.sm_mul(nb) if s.lscale else [])+s.sm_max(nb)
            mf=[mfma(OA(T,j),VF(T),PF(j),0 if first else OA(T,j)) for T in range(16) for j in range(3)]
            def needs(gi):
                nd=list(pd[gi]) if gi<3 else []
                if gi==0 and extraq is not None: nd+=[f.ins for f in extraq]
                return nd
            if s.even:
                s.step(sc,'V','K',mf,None,iV(0),iK(2),vmwait=[iK(2)],qfree=[qe,qc,qm,qa]+xq,qds=[qc,qm,qa]+xq,needs=needs,nxt_korder=kmaj,
                       dmas=[(5,LV[2]),(17,LV[3]),(29,LK[0]),(41,LK[1])],pres=[(preK,18,27)])
            else:
                s.step(sc,'V','K',mf,None,iV(0),iK(2),early=s.item_V(iV(2)),late=s.item_K(iK(4)),
                       vmwait=[iK(2)],qfree=[qe,qc,qm,qa]+xq,qds=[qc,qm,qa]+xq,needs=needs,nxt_korder=kmaj)
            s.flush_all(sc,[qe,qc,qa,qm])
            return nb
        nb=half(sc,0,first=True,extraq=[Filler(x) for x in mv])
        e(branch(f"s_cbranch_vccnz L_k1_rareF")); e(label("L_k1_retF"))
        e(salu("s_mov_b32",sCNT,7))
        wblk=sc.out
        sc=Sched(); sc.emit(label("L_k1_loop"))
        half(sc,1); sc.emit(branch("s_cbranch_vccnz L_k1_rare0")); sc.emit(label("L_k1_ret0"))
        hB=sc.out
        sc=Sched()
        half(sc,0); sc.emit(branch("s_cbranch_vccnz L_k1_rare1")); sc.emit(label("L_k1_ret1"))
        sc.emit(salu("s_sub_u32",sCNT,sCNT,1)); sc.emit(salu("s_cmp_lg_u32",None,sCNT,0)); sc.emit(branch("s_cbranch_scc1 L_k1_loop"))
        hA=sc.out
        sc=Sched(); e=sc.emit
        s.stamp(sc,3,True)
        iV=lambda d:(lambda en:('V',16*en['u']+15+d))
        e(wait_vm(iV(0))); e(barrier())
        if s.even:
            _,L=s.item_K(lambda en:('K',16*en['u']+18))
            for m_,d_ in L[2:]: e(m_); e(d_)
        if s.hide and not s.xkeep:
            e(salu("s_cmp_eq_u32",None,sU,0)); e(branch("s_cbranch_scc0 L_k1_nox"))
            n0=len(sc.out)
            for x in s.flat(s.xpre()): e(x)
            for x in s.xloads(0,lambda k:(lambda en:('x',en['u']+1,k))): e(x)
            for x in sc.out[n0:]: s.only_u0.add(id(x))
            e(label("L_k1_nox"))
        for x in s.adv_rd('V'): e(x)
        for x in s.addr_ops('V'): e(x)
        for f in range(3):
            for x in s.rdV(f,iV(0),"Vn"): e(x)
        qe,qc,pd=s.sm_exp(1)
        for j in range(3):
            for _ in range(8): e(qe.pop(0).ins)
            for _ in range(4): e(qc.pop(0).ins)
        e(wait_lgkm(("Vn",0,0),("Vn",0,1)))
        qa=s.sm_add(1)
        mf=[mfma(OA(T,j),VF(T),PF(j),OA(T,j)) for T in range(16) for j in range(3)]
        s.step(sc,'V',None,mf,None,iV(0),None,early=s.item_V(iV(2)),nobarrier=True,qfree=[qa],qds=[qa])
        s.flush_all(sc,[qa])
        s.stamp(sc,4,True)
        tm=[V(208+j) for j in range(3)]
        def opfirst():
            if s.deep:
                for p in range(4): e(valu("v_add_u32",vWo[p],p*28672,V(22)))
                e(salu("s_mov_b32",sWw,s.oring+1-16384))
                e(barrier())
                for q in range(4): s.emit_item(sc,s.item_O(('P',q),q*114688,sNgC))
        if s.hide:
            for x in s.allreduce("v_add_f32",vL,tm): e(x)
            e(salu("s_cmp_eq_u32",None,sU,1)); e(branch("s_cbranch_scc1 L_k1_epi1"))
            epi=sc.out
            sc=Sched(); e=sc.emit
            for j in range(3): e(trans("v_rcp_f32",RI0[j],vL[j]))
            s.stamp(sc,5,True)
            e(salu("s_mov_b32",sU,1))
            if s.xkeep:
                for x in s.flat(s.xpre()): e(x)
                e(wait_vm(('W',14)))
            else: e(wait_vm(('W',14),('x',1,0)))
            e(barrier()); e(branch("s_branch L_k1_unit"))
            park=sc.out
            sc=Sched(); e=sc.emit
            e(label("L_k1_epi1"))
            opfirst()
            RI=[V(220+j) for j in range(3)]
            for j in range(3): e(trans("v_rcp_f32",RI[j],vL[j]))
            gi=0
            for t in range(8):
                for j in range(3):
                    base=160+8*(gi%6)
                    for x in s.drain_group(t,j,[V(base+r) for r in range(8)],RI[j],QF(t,j)): e(x)
                    gi+=1
            s.stamp(sc,5,True)
            epi1=sc.out
            sc=Sched(); e=sc.emit
        else:
            if s.deep:
                e(salu("s_cmp_eq_u32",None,sU,1)); e(branch("s_cbranch_scc0 L_k1_nop0"))
                n0=len(sc.out)
                opfirst()
                for x in sc.out[n0:]: s.only_u1.add(id(x))
                e(label("L_k1_nop0"))
            for x in s.allreduce("v_add_f32",vL,tm): e(x)
            RI=[V(220+2*j,2) for j in range(3)]
            for j in range(3): e(trans("v_rcp_f32",sub(RI[j],0),vL[j]))
            for j in range(3): e(valu("v_mov_b32",sub(RI[j],1),sub(RI[j],0)))
            gi=0
            for t in range(8):
                for j in range(3):
                    base=160+8*(gi%6); T8=[V(base+r) for r in range(8)]
                    for r in range(4): e(accrd(T8[r],sub(OA(2*t,j),r)))
                    for r in range(4): e(accrd(T8[4+r],sub(OA(2*t+1,j),r)))
                    for r in range(4): e(valu("v_pk_mul_f32",V(base+2*r,2),V(base+2*r,2),RI[j]))
                    for r in range(4): e(valu("v_cvt_pk_bf16_f32",sub(QF(t,j),r),T8[2*r],T8[2*r+1]))
                    gi+=1
                if t==1:
                    for x in s.flat(s.xpre()): e(x)
                    for x in s.xloads(0,lambda k:(lambda en:('x',en['u']+1,k))): e(x)
            s.stamp(sc,5,True)
            e(salu("s_cmp_eq_u32",None,sU,1)); e(branch("s_cbranch_scc1 L_k1_op"))
            epi=sc.out
            epi1=[]
            sc=Sched(); e=sc.emit
            for i4 in range(24):
                t,j=divmod(i4,3)
                for r in range(4): e(accwr(sub(PARK_T(i4),r),sub(QF(t,j),r)))
            e(salu("s_mov_b32",sU,1)); e(wait_vm(('W',14),('x',1,0))); e(barrier()); e(branch("s_branch L_k1_unit"))
        if not s.hide: park=sc.out
        sc=Sched(); e=sc.emit
        e(label("L_k1_op"))
        last=(s.oring+1-16384)
        if not s.deep:
            for p in range(4): e(valu("v_add_u32",vWo[p],p*28672,V(22)))
            e(salu("s_mov_b32",sWw,last))
        e(salu("s_mov_b32",sWr,last))
        def advN(dst,src): return [salu("s_add_u32",dst,src,128),salu("s_cmp_eq_u32",None,dst,896),salu("s_cselect_b32",dst,0,dst)]
        for x in advN(sNgN,sNgC): e(x)
        if not s.deep:
            e(wait_fixed(vm=0)); e(barrier())
            for q in range(3): s.emit_item(sc,s.item_O(('P',q),q*114688,sNgC))
        else:
            e(barrier())
            for q in range(4,7): s.emit_item(sc,s.item_O(('P',q),(q&3)*114688,sNgN))
        if s.deep:
            for x in advN(sNgNN,sNgN): e(x)
        itP=lambda d:(lambda en:('P',4*en['g']+d))
        e(wait_vm(('P',0))); e(barrier())
        for x in s.adv_rd('O'): e(x)
        for x in s.addr_ops('O'): e(x)
        ksmaj=list(range(16))
        Tmaj=[ks*4+T for T in range(4) for ks in range(4)]
        for f in range(3):
            for x in s.rdV(f,('P',0),"On"): e(x)
        e(wait_lgkm(("On",0,0),("On",0,1)))
        e(salu("s_mov_b32",sCNT,7)); e(salu("s_mov_b32",sPs,"0x40000000")); e(salu("s_mov_b32",sPs2,"0x40000000"))
        s.stamp(sc,13)
        oppro=sc.out
        def Bop(kq,ks,j):
            hh=kq>>1; t=4*(kq&1)+ks
            return PARK_A(t*3+j) if hh==0 else QF(t,j)
        sc=Sched(); e=sc.emit
        e(label("L_k1_oploop"))
        def cv(h,j):
            a=OPA(2*h,j); b=OPA(2*h+1,j); d=OPK(h,j)
            return [valu("v_cvt_pk_bf16_f32",sub(d,0),sub(a,0),sub(a,1)),valu("v_cvt_pk_bf16_f32",sub(d,1),sub(a,2),sub(a,3)),
                    valu("v_cvt_pk_bf16_f32",sub(d,2),sub(b,0),sub(b,1)),valu("v_cvt_pk_bf16_f32",sub(d,3),sub(b,2),sub(b,3))]
        def stores(h): return [vstore(OPK(h,j),vPst,sP,(sPs if j<2 else sPs2),((j*2048)%4096)+h*1024,tag='p',mod=s.stmod) for j in range(3)]
        carry_cv=[]
        for j in range(3): carry_cv+=cv(1,j)[2:]
        carry_st=stores(1)
        for kq in range(4):
            fo = Tmaj if kq==3 else ksmaj
            nfo = Tmaj if kq==2 else ksmaj
            mf=[]
            for f in range(16):
                ks,T=divmod(fo[f],4)
                firstk = (kq==0 and ks==0)
                for j in range(3): mf.append(mfma(OPA(T,j),VF(f),Bop(kq,ks,j),0 if firstk else OPA(T,j)))
            kq2=(kq+s.olook)&3
            if s.deep: ngr = sNgN if kq==0 else sNgNN
            else: ngr = sNgC if kq==0 else sNgN
            late=s.item_O(itP(kq+s.olook),kq2*114688,ngr)
            q=[]; xs=[]; xe=[]; nd=None; XG=(5,14,23)
            if kq==0:
                q=[Filler(x) for x in carry_cv]
                def nd(gi,q0=list(carry_cv)):
                    return q0 if gi==9 else ()
                xe=carry_st; XG=(11,17,23) if not s.latest else (38,44,44)
            if kq==1:
                xs=[(12,salu("s_cmp_eq_u32",None,sCNT,2 if s.deep else 1)),(12,salu("s_cselect_b32",sub(sWo,2),0,sub(sWo,2))),
                    (13,salu("s_mul_i32",sPs,sNgC,48)),(15,salu("s_add_u32",sPs2,sPs,4096))]
            if kq==3:
                c0=[]
                for j in range(3): c0+=[Filler(x,[mf[(7*3)+j]]) for x in cv(0,j)]
                c2=[]
                for j in range(3): c2+=[Filler(x,[mf[(11*3)+j]]) for x in cv(1,j)[:2]]
                q=c0+c2
                xe=stores(0); XG=(38,41,44)
                def nd(gi,c=[f.ins for f in c0]):
                    return c if gi==38 else ()
                if s.deep:
                    adv=advN(sNgNN,sNgNN)
                    xs=[(42,salu("s_mov_b32",sNgC,sNgN)),(42,salu("s_mov_b32",sNgN,sNgNN)),(43,adv[0]),(45,adv[1]),(45,adv[2])]
                else:
                    adv=advN(sNgN,sNgN)
                    xs=[(42,salu("s_mov_b32",sNgC,sNgN)),(43,adv[0]),(45,adv[1]),(45,adv[2])]
            s.step(sc,'O','O',mf,None,itP(kq),itP(kq+1),late=late,extra_shadow=xs,xearly=xe,XG=XG,needs=nd,
                   vmwait=[itP(kq+1)],qfree=[q],qds=[q],forder=fo,nxt_forder=nfo,LG=(29,32,35,47) if kq==3 else (29,35,41,47))
            s.flush_all(sc,[q])
        e(salu("s_sub_u32",sCNT,sCNT,1)); e(salu("s_cmp_lg_u32",None,sCNT,0)); e(branch("s_cbranch_scc1 L_k1_oploop"))
        for x in [y for j in range(3) for y in cv(1,j)[2:]]: e(x)
        for x in stores(1): e(x)
        s.stamp(sc,14)
        if s.fuse:
            if s.prof:
                for x in s.dump_code(): e(x)
            s.reduce_tail(sc)
        e(branch("s_branch L_k1_fin" if (s.prof and not s.fuse) else "s_branch L_k1_end"))
        oploop=sc.out
        sc=Sched(); s.rare(sc,1,"L_k1_rareF","L_k1_retF"); s.rare(sc,0,"L_k1_rare0","L_k1_ret0"); s.rare(sc,1,"L_k1_rare1","L_k1_ret1"); rare=sc.out
        endb=[]
        if s.prof:
            endb=[label("L_k1_fin"),raw("v_mov_b32 v3, v1","valu"),raw("v_mov_b32 v4, v15","valu"),wait_fixed(vm=0),raw("s_memtime s[98:99]"),raw("s_memrealtime s[100:101]"),raw("s_waitcnt lgkmcnt(0)"),
                  raw("s_mov_b32 s4, s98"),raw("s_mov_b32 s5, s100"),
                  raw("s_add_u32 s8, s96, 0x8000000"),raw("s_addc_u32 s9, s97, 0"),raw("s_and_b32 s9, s9, 0xffff"),raw("s_mov_b32 s10, 0x100000"),raw("s_mov_b32 s11, 0x20000"),
                  raw("s_lshl_b32 s3, s2, 10"),raw("s_lshl_b32 s38, s24, 8"),raw("s_add_u32 s3, s3, s38"),raw("v_mov_b32 v1, s3","valu")]
            regs=list(range(66,96))+[4,5]
            for i,r in enumerate(regs):
                endb+=[raw(f"v_mov_b32 v2, s{r}","valu"),raw(f"buffer_store_dword v2, v1, s[8:11], 0 offen offset:{4*i}","valu"),raw("s_nop 1")]
            if s.fine:
                endb+=[raw("v_mbcnt_lo_u32_b32 v2, -1, 0","valu"),raw("v_mbcnt_hi_u32_b32 v2, -1, v2","valu"),raw("v_lshlrev_b32 v2, 2, v2","valu"),raw("s_lshl_b32 s3, s2, 11"),raw("s_lshl_b32 s38, s24, 9"),raw("s_add_u32 s3, s3, s38"),
                       raw("s_add_u32 s3, s3, 0x40000"),raw("v_add_u32 v2, s3, v2","valu"),raw("buffer_store_dword v3, v2, s[8:11], 0 offen","valu"),
                       raw("buffer_store_dword v4, v2, s[8:11], 0 offen offset:256","valu")]
            endb+=[raw("s_waitcnt vmcnt(0)")]
            if s.dbgprof:
                endb+=[raw("s_load_dwordx2 s[12:13], s[0:1], 88"),raw("s_waitcnt lgkmcnt(0)"),raw("s_and_b32 s13, s13, 0xffff"),raw("s_mov_b32 s14, 256"),raw("s_mov_b32 s15, 0x20000"),
                       raw("s_not_b32 s38, s91"),raw("v_mov_b32 v2, s38","valu"),raw("v_mov_b32 v3, 0","valu"),raw("v_mov_b32 v4, s5","valu"),raw("v_mov_b32 v5, 4","valu"),
                       raw("s_mov_b64 exec, 1"),
                       raw("buffer_atomic_umax v2, v3, s[12:15], 0 offen sc1","valu"),raw("buffer_atomic_umax v4, v5, s[12:15], 0 offen sc1","valu"),
                       raw("s_cmp_eq_u32 s2, 0"),branch("s_cbranch_scc0 L_k1_dbgskip"),raw("s_cmp_eq_u32 s24, 0"),branch("s_cbranch_scc0 L_k1_dbgskip")]
                rts=[67,69,71,73,75,77,79,81,83,85,87,89,93,95]
                for i,r in enumerate(rts):
                    endb+=[raw(f"s_sub_u32 s38, s{r}, s91"),raw("v_mov_b32 v2, s38","valu"),raw(f"v_mov_b32 v3, {8+4*i}","valu"),raw("buffer_store_dword v2, v3, s[12:15], 0 offen","valu"),raw("s_nop 1")]
                endb+=[label("L_k1_dbgskip"),raw("s_waitcnt vmcnt(0)"),raw("s_mov_b64 exec, -1")]
        endb+=[label("L_k1_end"),wait_fixed(vm=0),raw("s_endpgm","branch")]
        trace=[(x,{'u':0}) for x in pro]
        for u in range(2):
            trace+=[(x,{'u':u,'i':0}) for x in wblk if not ((u!=0 and id(x) in s.only_u0) or (u!=1 and id(x) in s.only_u1))]
            for it in range(7):
                trace+=[(x,{'u':u,'i':2*it+1}) for x in hB]
                trace+=[(x,{'u':u,'i':2*it+2}) for x in hA]
            trace+=[(x,{'u':u}) for x in epi if not ((u!=0 and id(x) in s.only_u0) or (u!=1 and id(x) in s.only_u1))]
            if u==0: trace+=[(x,{'u':u}) for x in park]
        trace+=[(x,{'u':1}) for x in epi1]
        trace+=[(x,{'u':1}) for x in oppro]
        for g in range(7): trace+=[(x,{'g':g}) for x in oploop]
        resolve_waits(trace)
        errs=check(trace)
        s.trace=trace
        code=pro+wblk+hB+hA+epi+park+epi1+oppro+oploop+rare+endb
        return code,errs

if __name__=="__main__":
    k=K1F(); code,errs=k.build()
    print(len(code),"instructions;",len(errs),"errors")
    for x in errs[:40]: print(x)
```

```python
from ir import *
from sched import *
import k1f
from k1f import *
from k1f import XBASE, XKEEP, XF, PARK_A, OPA, OPK, sNgNN, sXw, sXl, vXr, vXrl, sDum, sC, sCinv, PW
from k1 import KD_K1

sG=S(60); sWn=S(45)

class K1G(K1F):
    def __init__(s, mix=True, **kw):
        kw.setdefault("stmod"," sc1"); kw.setdefault("touch",False); kw.setdefault("prokv",())
        kw.setdefault("kvpos",{9:['K0'],11:['K1'],12:['V0','K2'],13:['V1']})
        super().__init__(**kw); s.mix=mix; s.cond={}
    def only(s, sc, n0, pred):
        for x in sc.out[n0:]: s.cond[id(x)]=pred
    def prologue(s, sc):
        super().prologue(sc)
        e=sc.emit
        if s.mix: e(raw("s_lshr_b32 s60, s2, 5")); e(raw("s_and_b32 s60, s60, 1"))
        else: e(raw("s_mov_b32 s60, 0"))
        e(salu("s_mov_b32",sWn,0))
    def build(s):
        XBASE[0]=192; XKEEP[0]=True; s._fl=[]
        sc=Sched(); s.prologue_g(sc)
        if s.fine: sc.emit(raw('s_mov_b32 s3, 0')); sc.emit(raw('v_mov_b32 v1, 0','valu')); sc.emit(raw('v_mov_b32 v15, 0','valu'))
        sc.emit(wait_vm(('W',0),('x',0,0))); sc.emit(barrier())
        pro=sc.out
        itW=lambda k:(lambda en:('W',14*en['w']+k))
        itK=lambda n:(lambda en:('K',16*en['u']+n))
        itKa=lambda n:(lambda en:None if en.get('noA') else ('K',16*en['u']+n))
        xt=lambda k:(lambda en:('x',en['w'],k))
        kmaj=[(kt,t) for kt in range(2) for t in range(8)]
        tmaj=[(kt,t) for t in range(8) for kt in range(2)]
        RI0=[V(56+2*j,1) for j in range(3)]
        def PT(i4):
            t,j=divmod(i4,3); return PARK_A(i4) if 12<=i4<16 else OA(2*t,j)
        def PQ(i4):
            t,j=divmod(i4,3); return OA(2*t+1,j)
        sc=Sched(); e=sc.emit
        e(label("L_k1_unit"))
        s.stamp(sc,0,True)
        e(salu("s_andn2_b32",sT0,sWn,sG)); e(salu("s_cmp_eq_u32",None,sT0,1)); e(salu("s_cselect_b32",sXl,0,32768)); e(salu("s_add_u32",sXl,sXl,V_BASE))
        e(salu("s_lshl_b32",sT0,sWAVE,12)); e(salu("s_add_u32",sXl,sXl,sT0)); e(valu("v_add_u32",vXr,sXl,vXrl))
        for x in s.adv_rd('W'): e(x)
        for x in s.addr_ops('W'): e(x)
        for f in range(3):
            for x in s.rdV(f,itW(0),"Wn"): e(x)
        e(wait_lgkm(("Wn",0,0),("Wn",0,1)))
        qconv=[]; convdone={}; qepi=[]
        for n,i4 in enumerate([6,7,8,9,10,11,12,13,14,15,0,1,2,3,4,5]+list(range(16,24))):
            t,j=divmod(i4,3); base=24+8*(n&1)
            qepi+=[Filler(x) for x in s.drain_group(t,j,[V(base+r) for r in range(8)],RI0[j],PT(i4))]
        xslot=lambda en:('V',(16*en['u']*(1 if en['w']==1 and en['G']==0 else 0)+2)%3)
        xitem=lambda p:(lambda en:('X',14*en['w']+p))
        for k in range(14):
            mf=[mfma(QA(T,j),VF(T),XF(k,j),0 if k==0 else QA(T,j)) for T in range(16) for j in range(3)]
            xp=[]; xd=[]; xs2=[]; xf2=[]
            if k<=11:
                L,_=s.item_X(k+2,xitem,xslot); xd=list(zip((14,17,20),L))
                if k%2==0: xp=s.xpre()+[salu("s_add_u32",sXw[1],sXk,14336),salu("s_add_u32",sXw[2],sXk,28672)]
            if 1<=k<=12:
                _,R=s.item_X(k+1,xitem,xslot)
                xs2=[(1,wait_vm(xitem(k+1))),(12,wait_lgkm(('xr',(k+1)&3,0),('xr',(k+1)&3,1),('xr',(k+1)&3,2)))]
                xf2=list(zip((2,5,8),R))
            late=s.item_W(itW(k+3)) if k>=1 else None
            xs=[]
            if k==11:
                xs=[(0,salu("s_xor_b32",sWu,sWu,512)),(15,salu("s_cmp_eq_u32",None,sWn,1)),(15,salu("s_cselect_b32",sub(sW,2),0,sub(sW,2)))]
            if k in s.kvpos:
                its=[s.item_K(('K',int(nm[1]))) if nm[0]=='K' else s.item_V(('V',int(nm[1]))) for nm in s.kvpos[k]]
                e(salu("s_cmp_eq_u32",None,sWn,sG)); e(branch(f"s_cbranch_scc0 L_k1_skip{k}"))
                n0=len(sc.out)
                for it in its: s.emit_item(sc,it)
                e(branch(f"s_branch L_k1_join{k}"))
                s.only(sc,n0,lambda en:en['w']==en['G'])
                e(label(f"L_k1_skip{k}"))
                n0=len(sc.out)
                for q in range(4*len(its)): e(touch(V(0),vKa,sDum,0))
                s.only(sc,n0,lambda en:en['w']!=en['G'])
                e(label(f"L_k1_join{k}"))
            queues=[qepi] if k<=12 else []
            if k==13:
                groups=[]
                for t in range(8):
                    for j in range(3): groups.append((t,j,mf[(2*t+1)*3+j],s.conv_ops(t,j)))
                n=len(groups)
                for i in range(n+2):
                    if i<n:
                        t,j,last,(m,c,p1,p2)=groups[i]
                        for x in c: qconv.append(Filler(x,[last]))
                    if 0<=i-1<n:
                        for x in groups[i-1][3][2]: qconv.append(Filler(x))
                    if 0<=i-2<n:
                        t,j,last,(m,c,p1,p2)=groups[i-2]
                        for x in p2: qconv.append(Filler(x))
                        convdone[(t,j)]=p2
                queues=[qconv]
            if k<13:
                vw=[itW(k+1)]+([xt(k+1)] if k+1<2 else [])
                s.step(sc,'W','W',mf,None,itW(k),itW(k+1),late=late,extra_shadow=list(xs)+xs2,extra_fixed=xf2,dmas=xd,
                       pres=[(xp,0,11)] if xp else (),vmwait=vw,qfree=queues,qds=queues)
                if k==12: s.flush_all(sc,[qepi])
            else:
                s.step(sc,'W','K',mf,None,itW(k),itKa(0),late=late,extra_shadow=list(xs)+xs2,extra_fixed=xf2,
                       vmwait=[itK(0)],qfree=queues,qds=queues,nxt_korder=tmaj,keep_addr=True)
        rest=[clone(f.ins) for f in qconv]
        s.stamp(sc,1,True)
        if s.mix: e(salu("s_cmp_gt_u32",None,sG,sWn)); e(branch("s_cbranch_scc1 L_k1_noatt"))
        wblk=sc.out
        sc2=Sched(); sc2.done=set(sc.done); sc2.out=[]; sc=sc2; e=sc.emit
        e(nop(0))
        mf=[]
        for f,(kt,t) in enumerate(tmaj):
            for j in range(3): mf.append(mfma(SB(0,kt,j),KF(f),QF(t,j),0 if t==0 else SB(0,kt,j)))
        def needs0(gi):
            f,j=divmod(gi,3); kt,t=tmaj[f]
            nd=list(convdone[(t,j)])
            if t==0 and kt==1: nd+=convdone[(1,j)]
            return nd
        s.step(sc,'K','K',mf,tmaj,itK(0),itK(1),late=s.item_W(itW(17)),vmwait=[itK(1)],qfree=[qconv],qds=[qconv],needs=needs0,nxt_korder=kmaj)
        assert not qconv
        qk0c=sc.out
        sc=Sched(); e=sc.emit
        e(label("L_k1_max"))
        m=[V(208+j) for j in range(3)]; tm=[V(211+j) for j in range(3)]
        e(barrier())
        pre,L=s.item_K(itK(3))
        for x in s.flat(pre): e(x)
        for m_,d_ in L[:2]: e(m_); e(d_)
        e(salu("s_lshl_b32",sT0,sG,1)); e(salu("s_add_u32",sT0,sT0,sU)); e(salu("s_cmp_eq_u32",None,sT0,1)); e(branch("s_cbranch_scc0 L_k1_nomva"))
        n0=len(sc.out)
        for i4 in range(0,12):
            for r in range(4): e(s.accmov(sub(PARK_A(i4),r),sub(PT(i4),r)))
        for i4 in range(16,24):
            for r in range(4): e(accrd(sub(PARK_A(i4),r),sub(PT(i4),r)))
        s.only(sc,n0,lambda en:en['G']==0 and en['u']==1)
        e(label("L_k1_nomva"))
        if s.mix:
            e(salu("s_cmp_eq_u32",None,sT0,2)); e(branch("s_cbranch_scc0 L_k1_nomvb"))
            n0=len(sc.out)
            for i4 in range(0,16):
                for r in range(4): e(s.accmov(sub(PARK_A(i4),r),sub(PQ(i4),r)))
            for i4 in range(16,24):
                for r in range(4): e(accrd(sub(PARK_A(i4),r),sub(PQ(i4),r)))
            s.only(sc,n0,lambda en:en['G']==1 and en['u']==0)
            e(label("L_k1_nomvb"))
        for j in range(3):
            a=SB(0,0,j); e(valu("v_max3_f32",m[j],sub(a,0),sub(a,1),sub(a,2)))
        for j in range(3):
            a=SB(0,0,j); b=SB(0,1,j); e(valu("v_max3_f32",m[j],m[j],sub(a,3),sub(b,0)))
        for j in range(3):
            b=SB(0,1,j); e(valu("v_max3_f32",m[j],m[j],sub(b,1),sub(b,2)))
        for j in range(3):
            b=SB(0,1,j); e(valu("v_max_f32",m[j],m[j],sub(b,3)))
        for x in s.allreduce("v_max_f32",m,tm): e(x)
        for j in range(3):
            for r in range(4): e(valu("v_sub_f32",sub(CI(j),r),0,m[j]))
        for j in range(3): e(valu("v_mov_b32",vL[j],0))
        for j in range(3): e(valu("v_mul_f32",tm[j],sC,m[j]))
        for j in range(3):
            for kt in range(2):
                for r in range(4):
                    x=sub(SB(0,kt,j),r)
                    e(Ins(f"v_fma_f32 {rt(x)}, {rt(x)}, {rt(sC)}, -{rt(tm[j])}","valu",rd=rs(x,sC,tm[j]),wr=rs(x)))
        s.stamp(sc,2,True)
        def half(sc,buf,first=False):
            nb=1-buf
            iK=lambda d:(lambda en:('K',16*en['u']+en['i']+d))
            iV=lambda d:(lambda en:('V',16*en['u']+en['i']+d))
            qe,qc,pd=s.sm_exp(buf); qa=s.sm_add2(buf,qe)
            mf=[]
            for f,(kt,t) in enumerate(kmaj):
                for j in range(3): mf.append(mfma(SB(nb,kt,j),KF(f),QF(t,j),CI(j) if t==0 else SB(nb,kt,j)))
            preV,LV=s.item_V(iV(2)); _,LKprev=s.item_K(iK(3)); preK,LK=s.item_K(iK(4))
            s.step(sc,'K','V',mf,kmaj,iK(1),iV(0),vmwait=[iV(0)],qfree=[qe,qc,qa],qds=[qc,qa],
                   dmas=[(5,LKprev[2]),(17,LKprev[3]),(29,LV[0]),(41,LV[1])],pres=[(preV,18,27)])
            qm=s.sm_mul(nb)+s.sm_max(nb)
            mf=[mfma(OA(T,j),VF(T),PF(j),0 if first else OA(T,j)) for T in range(16) for j in range(3)]
            s.step(sc,'V','K',mf,None,iV(0),iK(2),vmwait=[iK(2)],qfree=[qe,qc,qm,qa],qds=[qc,qm,qa],needs=lambda gi:(list(pd[gi]) if gi<3 else []),nxt_korder=kmaj,
                   dmas=[(5,LV[2]),(17,LV[3]),(29,LK[0]),(41,LK[1])],pres=[(preK,18,27)])
            s.flush_all(sc,[qe,qc,qa,qm])
        half(sc,0,first=True)
        e(branch("s_cbranch_vccnz L_k1_rareF")); e(label("L_k1_retF"))
        e(salu("s_mov_b32",sCNT,7))
        mblk=sc.out
        sc=Sched(); sc.emit(label("L_k1_loop"))
        half(sc,1); sc.emit(branch("s_cbranch_vccnz L_k1_rare0")); sc.emit(label("L_k1_ret0"))
        hB=sc.out
        sc=Sched()
        half(sc,0); sc.emit(branch("s_cbranch_vccnz L_k1_rare1")); sc.emit(label("L_k1_ret1"))
        sc.emit(salu("s_sub_u32",sCNT,sCNT,1)); sc.emit(salu("s_cmp_lg_u32",None,sCNT,0)); sc.emit(branch("s_cbranch_scc1 L_k1_loop"))
        hA=sc.out
        sc=Sched(); e=sc.emit
        s.stamp(sc,3,True)
        iV=lambda d:(lambda en:('V',16*en['u']+15+d))
        e(wait_vm(iV(0))); e(barrier())
        _,L=s.item_K(lambda en:('K',16*en['u']+18))
        for m_,d_ in L[2:]: e(m_); e(d_)
        for x in s.adv_rd('V'): e(x)
        for x in s.addr_ops('V'): e(x)
        for f in range(3):
            for x in s.rdV(f,iV(0),"Vn"): e(x)
        qe,qc,pd=s.sm_exp(1)
        for j in range(3):
            for _ in range(8): e(qe.pop(0).ins)
            for _ in range(4): e(qc.pop(0).ins)
        e(wait_lgkm(("Vn",0,0),("Vn",0,1)))
        qa=s.sm_add(1)
        mf=[mfma(OA(T,j),VF(T),PF(j),OA(T,j)) for T in range(16) for j in range(3)]
        s.step(sc,'V',None,mf,None,iV(0),None,early=s.item_V(iV(2)),nobarrier=True,qfree=[qa],qds=[qa])
        s.flush_all(sc,[qa])
        s.stamp(sc,4,True)
        tm=[V(208+j) for j in range(3)]
        for x in s.allreduce("v_add_f32",vL,tm): e(x)
        e(salu("s_cmp_eq_u32",None,sU,1)); e(branch("s_cbranch_scc1 L_k1_epi1"))
        if s.mix: e(salu("s_cmp_eq_u32",None,sG,1)); e(branch("s_cbranch_scc1 L_k1_swap"))
        tail=sc.out
        sc=Sched(); e=sc.emit
        for j in range(3): e(trans("v_rcp_f32",RI0[j],vL[j]))
        s.stamp(sc,5,True)
        e(salu("s_mov_b32",sU,1)); e(salu("s_mov_b32",sWn,1))
        for x in s.flat(s.xpre()): e(x)
        e(wait_vm(('W',14))); e(barrier()); e(branch("s_branch L_k1_unit"))
        park=sc.out
        noatt=[]; swap=[]; qk0n=[]
        if s.mix:
            sc=Sched(); e=sc.emit
            e(label("L_k1_noatt")); e(nop(1))
            for x in rest: e(x)
            e(barrier())
            s.emit_item(sc,s.item_W(('W',17)))
            for i4 in range(24):
                t,j=divmod(i4,3)
                for r in range(4): e(accwr(sub(PQ(i4),r),sub(QF(t,j),r)))
            e(salu("s_mov_b32",sWn,1))
            for x in s.flat(s.xpre()): e(x)
            e(wait_vm(('W',14))); e(barrier()); e(branch("s_branch L_k1_unit"))
            noatt=sc.out
            sc=Sched(); e=sc.emit
            e(label("L_k1_swap"))
            RI=[V(220+j) for j in range(3)]
            for j in range(3): e(trans("v_rcp_f32",RI[j],vL[j]))
            for i4 in range(24):
                t,j=divmod(i4,3); p=PARK_A(i4)
                for r in range(4):
                    e(accrd(sub(QF(t,j),r),sub(p,r)) if p[0]=='a' else valu("v_mov_b32",sub(QF(t,j),r),sub(p,r)))
            gi=0
            for t in range(8):
                for j in range(3):
                    base=160+8*(gi%6)
                    for x in s.drain_group(t,j,[V(base+r) for r in range(8)],RI[j],PARK_A(t*3+j)): e(x)
                    gi+=1
            s.stamp(sc,5,True)
            e(salu("s_mov_b32",sU,1))
            mf=[]
            for f,(kt,t) in enumerate(kmaj):
                for j in range(3): mf.append(mfma(SB(0,kt,j),KF(f),QF(t,j),0 if t==0 else SB(0,kt,j)))
            s.step(sc,'K','K',mf,kmaj,lambda en:('K',16),lambda en:('K',17),vmwait=[('K',17)],nxt_korder=kmaj)
            e(branch("s_branch L_k1_max"))
            swap=sc.out
        sc=Sched(); e=sc.emit
        e(label("L_k1_epi1"))
        for p in range(4): e(valu("v_add_u32",vWo[p],p*28672,V(22)))
        e(salu("s_mov_b32",sWw,s.oring+1-16384))
        e(barrier())
        for q in range(4): s.emit_item(sc,s.item_O(('P',q),q*114688,sNgC))
        RI=[V(220+j) for j in range(3)]
        for j in range(3): e(trans("v_rcp_f32",RI[j],vL[j]))
        gi=0
        for t in range(8):
            for j in range(3):
                base=160+8*(gi%6)
                for x in s.drain_group(t,j,[V(base+r) for r in range(8)],RI[j],QF(t,j)): e(x)
                gi+=1
        s.stamp(sc,5,True)
        last=(s.oring+1-16384)
        e(salu("s_mov_b32",sWr,last))
        def advN(dst,src): return [salu("s_add_u32",dst,src,128),salu("s_cmp_eq_u32",None,dst,896),salu("s_cselect_b32",dst,0,dst)]
        for x in advN(sNgN,sNgC): e(x)
        e(barrier())
        for q in range(4,7): s.emit_item(sc,s.item_O(('P',q),(q&3)*114688,sNgN))
        for x in advN(sNgNN,sNgN): e(x)
        itP=lambda d:(lambda en:('P',4*en['g']+d))
        e(wait_vm(('P',0))); e(barrier())
        for x in s.adv_rd('O'): e(x)
        for x in s.addr_ops('O'): e(x)
        ksmaj=list(range(16)); Tmaj=[ks*4+T for T in range(4) for ks in range(4)]
        for f in range(3):
            for x in s.rdV(f,('P',0),"On"): e(x)
        e(wait_lgkm(("On",0,0),("On",0,1)))
        e(salu("s_mov_b32",sCNT,7)); e(salu("s_mov_b32",sPs,"0x40000000")); e(salu("s_mov_b32",sPs2,"0x40000000"))
        s.stamp(sc,13)
        oppro=sc.out
        def Bop(kq,ks,j):
            hh=kq>>1; t=4*(kq&1)+ks
            return PARK_A(t*3+j) if hh==0 else QF(t,j)
        sc=Sched(); e=sc.emit
        e(label("L_k1_oploop"))
        def cv(h,j):
            a=OPA(2*h,j); b=OPA(2*h+1,j); d=OPK(h,j)
            return [valu("v_cvt_pk_bf16_f32",sub(d,0),sub(a,0),sub(a,1)),valu("v_cvt_pk_bf16_f32",sub(d,1),sub(a,2),sub(a,3)),
                    valu("v_cvt_pk_bf16_f32",sub(d,2),sub(b,0),sub(b,1)),valu("v_cvt_pk_bf16_f32",sub(d,3),sub(b,2),sub(b,3))]
        def stores(h): return [vstore(OPK(h,j),vPst,sP,(sPs if j<2 else sPs2),((j*2048)%4096)+h*1024,tag='p',mod=s.stmod) for j in range(3)]
        carry_cv=[]
        for j in range(3): carry_cv+=cv(1,j)[2:]
        carry_st=stores(1)
        for kq in range(4):
            fo = Tmaj if kq==3 else ksmaj
            nfo = Tmaj if kq==2 else ksmaj
            mf=[]
            for f in range(16):
                ks,T=divmod(fo[f],4)
                for j in range(3): mf.append(mfma(OPA(T,j),VF(f),Bop(kq,ks,j),0 if (kq==0 and ks==0) else OPA(T,j)))
            late=s.item_O(itP(kq+7),((kq+7)&3)*114688,sNgN if kq==0 else sNgNN)
            q=[]; xs=[]; xe=[]; nd=None; XG=(5,14,23)
            if kq==0:
                q=[Filler(x) for x in carry_cv]
                def nd(gi,q0=list(carry_cv)): return q0 if gi==9 else ()
                xe=carry_st; XG=(11,17,23)
            if kq==1:
                xs=[(12,salu("s_cmp_eq_u32",None,sCNT,2)),(12,salu("s_cselect_b32",sub(sWo,2),0,sub(sWo,2))),
                    (13,salu("s_mul_i32",sPs,sNgC,48)),(15,salu("s_add_u32",sPs2,sPs,4096))]
            if kq==3:
                c0=[]
                for j in range(3): c0+=[Filler(x,[mf[(7*3)+j]]) for x in cv(0,j)]
                c2=[]
                for j in range(3): c2+=[Filler(x,[mf[(11*3)+j]]) for x in cv(1,j)[:2]]
                q=c0+c2; xe=stores(0); XG=(38,41,44)
                def nd(gi,c=[f.ins for f in c0]): return c if gi==38 else ()
                adv=advN(sNgNN,sNgNN)
                xs=[(42,salu("s_mov_b32",sNgC,sNgN)),(42,salu("s_mov_b32",sNgN,sNgNN)),(43,adv[0]),(45,adv[1]),(45,adv[2])]
            s.step(sc,'O','O',mf,None,itP(kq),itP(kq+1),late=late,extra_shadow=xs,xearly=xe,XG=XG,needs=nd,
                   vmwait=[itP(kq+1)],qfree=[q],qds=[q],forder=fo,nxt_forder=nfo,LG=(29,32,35,47) if kq==3 else (29,35,41,47))
            s.flush_all(sc,[q])
        e(salu("s_sub_u32",sCNT,sCNT,1)); e(salu("s_cmp_lg_u32",None,sCNT,0)); e(branch("s_cbranch_scc1 L_k1_oploop"))
        for x in [y for j in range(3) for y in cv(1,j)[2:]]: e(x)
        for x in stores(1): e(x)
        s.stamp(sc,14)
        e(branch("s_branch L_k1_fin" if s.prof else "s_branch L_k1_end"))
        oploop=sc.out
        sc=Sched(); s.rare(sc,1,"L_k1_rareF","L_k1_retF"); s.rare(sc,0,"L_k1_rare0","L_k1_ret0"); s.rare(sc,1,"L_k1_rare1","L_k1_ret1"); rare=sc.out
        endb=s.end_block()
        def add(tr,blk,**en):
            tr+=[(x,en) for x in blk if s.cond.get(id(x),lambda e_:True)(en)]
        def att(tr,G,u,w):
            add(tr,mblk,G=G,u=u,w=w,i=0)
            for it in range(7):
                add(tr,hB,G=G,u=u,w=w,i=2*it+1); add(tr,hA,G=G,u=u,w=w,i=2*it+2)
            add(tr,tail,G=G,u=u,w=w)
        def fin(tr,G):
            add(tr,oppro,G=G,u=1,w=1)
            for g in range(7): add(tr,oploop,G=G,g=g)
        t0=[]; add(t0,pro,G=0,u=0,w=0)
        add(t0,wblk,G=0,u=0,w=0); add(t0,qk0c,G=0,u=0,w=0); att(t0,0,0,0); add(t0,park,G=0,u=0,w=0)
        add(t0,wblk,G=0,u=1,w=1); add(t0,qk0c,G=0,u=1,w=1); att(t0,0,1,1); fin(t0,0)
        traces=[t0]
        if s.mix:
            t1=[]; add(t1,pro,G=1,u=0,w=0)
            add(t1,wblk,G=1,u=0,w=0,noA=True); add(t1,noatt,G=1,u=0,w=0)
            add(t1,wblk,G=1,u=0,w=1); add(t1,qk0c,G=1,u=0,w=1); att(t1,1,0,1); add(t1,swap,G=1,u=0,w=1)
            att(t1,1,1,1); fin(t1,1)
            traces.append(t1)
        resolve_waits_multi(traces)
        errs=[]
        for t in traces: errs+=check(t)
        code=pro+wblk+qk0c+mblk+hB+hA+tail+park+noatt+swap+oppro+oploop+rare+endb
        return code,errs
    def prologue_g(s, sc):
        n0=len(sc.out)
        K1F.prologue(s, sc)
        for idx,x in enumerate(sc.out):
            if x.text=="s_mov_b32 s36, 0":
                if s.mix: sc.out[idx:idx+1]=[raw("s_lshr_b32 s60, s2, 5"),raw("s_and_b32 s60, s60, 1"),raw("s_lshl_b32 s36, s60, 9")]
                else: sc.out[idx:idx+1]=[raw("s_mov_b32 s60, 0"),x]
                break
        else: raise AssertionError("sWu init not found")
        sc.emit(salu("s_mov_b32",sWn,0))
    def end_block(s):
        endb=[]
        if s.prof:
            endb=[label("L_k1_fin"),raw("v_mov_b32 v3, v1","valu"),raw("v_mov_b32 v4, v15","valu"),wait_fixed(vm=0),raw("s_memtime s[98:99]"),raw("s_memrealtime s[100:101]"),raw("s_waitcnt lgkmcnt(0)"),
                  raw("s_mov_b32 s4, s98"),raw("s_mov_b32 s5, s100"),
                  raw("s_add_u32 s8, s96, 0x8000000"),raw("s_addc_u32 s9, s97, 0"),raw("s_and_b32 s9, s9, 0xffff"),raw("s_mov_b32 s10, 0x100000"),raw("s_mov_b32 s11, 0x20000"),
                  raw("s_lshl_b32 s3, s2, 10"),raw("s_lshl_b32 s38, s24, 8"),raw("s_add_u32 s3, s3, s38"),raw("v_mov_b32 v1, s3","valu")]
            for i,r in enumerate(list(range(66,96))+[4,5]):
                endb+=[raw(f"v_mov_b32 v2, s{r}","valu"),raw(f"buffer_store_dword v2, v1, s[8:11], 0 offen offset:{4*i}","valu"),raw("s_nop 1")]
            endb+=[raw("s_waitcnt vmcnt(0)")]
        endb+=[label("L_k1_end"),wait_fixed(vm=0),raw("s_endpgm","branch")]
        return endb

if __name__=="__main__":
    for mix in (False,True):
        k=K1G(mix=mix); code,errs=k.build()
        print("mix",mix,len(code),"instructions;",len(errs),"errors")
        for x in errs[:30]: print(x)
```

```python
import sys
from emit import make
from k1 import KD_K1
from k1g import K1G
from k3 import K3, KD_K3
out=sys.argv[1]
kw1=eval("dict("+(sys.argv[2] if len(sys.argv)>2 else "")+")")
kw3=eval("dict("+(sys.argv[3] if len(sys.argv)>3 else "ldmod=''")+")")
only=sys.argv[4] if len(sys.argv)>4 else "13"
ks=[];ls=[]
if "1" in only:
    k=K1G(**kw1); code,errs=k.build(); assert not errs, errs[:10]
    ks.append(("attn_kernel",code,KD_K1)); ls.append(("attn_kernel",256,256,163840))
if "3" in only:
    k=K3(**kw3); code,errs=k.build(); assert not errs, errs[:10]
    ks.append(("reduce_kernel",code,KD_K3)); ls.append(("reduce_kernel",224,256,0))
open(out,"w").write(make(ks,ls))
```

```python
from ir import *
from sched import *
import k1
from k1 import (K1, f32bits, vTID, vT, vKl, vVl, vKa, vVa, vKg, vVg, vWg, vMX, vTMP, vL, KF, VF, QA, QF, SB, PF, CI, OA,
                sK, sV, sW, sX, sWAVE, sU, sKs, sVs, sWs, sKw, sVw, sWw, sKr, sVr, sWr, sCNT, sT0, sT1, sC2, sTH, sWvK, sWvV,
                W_BASE, K_BASE, V_BASE, LDS_END, SCALE, THRESH)

vXg=[V(12),V(19),V(20)]; vPst=V(13); vXd=V(21); vXr=V(14); vXrl=V(23)
vWo=[V(24+p) for p in range(4)]
XBASE=[0]
XKEEP=[False]
def XF(s,j):
    st = (s if s<2 else 2+(s&1)) if XKEEP[0] else (s&3)
    return A(XBASE[0]+(st*3+j)*4,4)
def PARK_A(i4):
    if i4<16: return A(192+4*i4,4)
    if i4<22: return V(232+4*(i4-16),4)
    return V(56+4*(i4-22),4)
def PARK_T(i4):
    return A(192+4*i4,4) if i4<16 else A(48+4*(i4-16),4)
def OPA(T,j): return V(160+(T*3+j)*4,4)
def OPK(h,j): return V(208+(h*3+j)*4,4)
sP=S(20,4)
sWo=S(56,4)
sWk=S(35); sWu=S(36); sXk=S(40); sNgC=S(41); sNgN=S(45); sWoS=S(54); sPs=S(55); sPs2=S(60); sWvO=[S(62+p) for p in range(4)]
sRho=S(61); sDum=S(92,4); sNgNN=S(53); sC=S(42); sCinv=S(43); sXl=S(39,1); sXw=[S(40),S(54),S(55)]
PW=172032

class K1F(K1):
    def __init__(s, ntkv=True, stmod=" nt", prof=False, wmod="", xmod="", womod="", rot=True, fine=False, touch=True, defer=True, kvpos=None, prokv=('K0','K1'), even=True, fuse=False, rdmod=' sc1', outmod='', rel=False, latest=False, deep=True, dbgprof=False, pad=0, align=None, lscale=True, hide=True, xlds=True, xkeep=True, exp_delay=0, swapmap=False):
        super().__init__(ntkv=ntkv, stmod=stmod, prof=False, wmod=wmod, xmod=xmod)
        s.prof=prof; s.womod=womod; s.rot=rot; s.fine=fine; s.touch=touch; s.defer=defer; s.only_u0=set(); s.only_u1=set(); s.kvpos=kvpos or {12:['V0','K2'],13:['V1']}; s.prokv=prokv; s.even=even; s.fuse=fuse; s.rdmod=rdmod; s.outmod=outmod
        s.rel=rel; s.latest=latest; s.deep=deep; s.dbgprof=dbgprof; s.pad=pad; s.lscale=lscale; s.hide=hide; s.xlds=xlds; s.exp_delay=exp_delay; s.swapmap=swapmap; s.xkeep=xkeep and xlds and hide; s.align=align; s.oring=0x1ffff if deep else 0xffff; s.onsl=8 if deep else 4; s.olook=7 if deep else 3
        if fuse and not rel: s.stmod=' sc1'
    def stamp(s, sc, idx, dyn=False):
        if not s.prof: return
        sc.emit(raw("s_memtime s[98:99]")); sc.emit(raw("s_memrealtime s[100:101]"))
        sc.emit(wait_fixed(lgkm=0))
        a=66+2*idx
        if not dyn:
            sc.emit(raw(f"s_mov_b32 s{a}, s98")); sc.emit(raw(f"s_mov_b32 s{a+1}, s100"))
        else:
            b=66+2*(idx+6)
            sc.emit(raw("s_cmp_eq_u32 s25, 0"))
            sc.emit(raw(f"s_cselect_b32 s{a}, s98, s{a}")); sc.emit(raw(f"s_cselect_b32 s{a+1}, s100, s{a+1}"))
            sc.emit(raw(f"s_cselect_b32 s{b}, s{b}, s98")); sc.emit(raw(f"s_cselect_b32 s{b+1}, s{b+1}, s100"))
    def item_W(s, item):
        pre=[salu("s_add_u32",sWk,sWk,262144), [salu("s_add_u32",sWw,sWw,16384),salu("s_and_b32",sWw,sWw,0xffff)],
             [salu("s_cmp_eq_u32",None,sWk,14*262144),salu("s_cselect_b32",sWk,0,sWk)], salu("s_add_u32",sWs,sWk,sWu)]
        pre=[pre[0],pre[2],pre[1],pre[3]]
        L=[(salu("s_add_u32","m0",sWw,sWvV[p]), dma(vWg,sW,sWs,p*128,item,lambda e,it=item:('W',ev(it,e)[1]%4),s.wmod)) for p in range(4)]
        return pre,L
    def item_K(s, item):
        pre=[salu("s_add_u32",sKs,sKs,16384), salu("s_add_u32",sKw,sKw,16384),
             [salu("s_cmp_eq_u32",None,sKw,V_BASE), salu("s_cselect_b32",sKw,K_BASE,sKw)]]
        L=[(salu("s_add_u32","m0",sKw,sWvK[p]), dma(vKg[p>>1],sK,sKs,(p&1)*256,item,lambda e,it=item:('K',ev(it,e)[1]%3),s.kvmod)) for p in range(4)]
        return pre,L
    def item_V(s, item):
        pre=[salu("s_add_u32",sVs,sVs,16384), salu("s_add_u32",sVw,sVw,16384),
             [salu("s_cmp_eq_u32",None,sVw,LDS_END), salu("s_cselect_b32",sVw,V_BASE,sVw)]]
        L=[(salu("s_add_u32","m0",sVw,sWvV[p]), dma(vVg,sV,sVs,p*128,item,lambda e,it=item:('V',ev(it,e)[1]%3),s.kvmod)) for p in range(4)]
        return pre,L
    def item_O(s, item, const, ng):
        pre=[salu("s_add_u32",sWoS,ng,const), [salu("s_add_u32",sWw,sWw,16384), salu("s_and_b32",sWw,sWw,s.oring)]]
        def slot(e,it=item):
            q=ev(it,e)[1]%s.onsl
            return ('W',q) if q<4 else (('K',q-4) if q<7 else ('V',0))
        L=[(salu("s_add_u32","m0",sWw,sWvO[p]), dma(vWo[p],sWo,sWoS,0,item,slot,s.womod)) for p in range(4)]
        return pre,L
    def adv_rd(s, typ):
        if typ=='O': return [salu("s_add_u32",sWr,sWr,16384),salu("s_and_b32",sWr,sWr,s.oring)]
        return super().adv_rd(typ)
    def addr_ops(s, typ):
        return super().addr_ops('W' if typ=='O' else typ)
    def xpre(s):
        return [salu("s_add_u32",sXk,sXk,128),[salu("s_cmp_eq_u32",None,sXk,896),salu("s_cselect_b32",sXk,0,sXk)]]
    def xloads(s, pos, tagfn):
        return [vload(XF(pos+d,j),vXg[j],sX,sXk,d*64,tag=tagfn(pos+d),mod=s.xmod) for j in range(3) for d in range(2)]
    def item_X(s, pos, tagfn, slotfn):
        item=tagfn(pos)
        L=[(salu("s_add_u32","m0",sXl,j*1024), dma(vXd,sX,sXw[j],(pos&1)*64,item,slotfn,s.xmod)) for j in range(3)]
        L=[(salu("s_add_u32","m0",sXl,j*1024+64-(pos&1)*64), dma(vXd,sX,sXw[j],(pos&1)*64,item,slotfn,s.xmod)) for j in range(3)]
        R=[dsread("ds_read_b128",XF(pos,j),vXr,j*1024,tag=('xr',pos&3,j),item=item) for j in range(3)]
        return L,R
    @staticmethod
    def flat(L):
        out=[]
        for x in L:
            if isinstance(x,list): out+=x
            else: out.append(x)
        return out
    def emit_item(s, sc, item_pair):
        pre,L=item_pair
        for x in s.flat(pre): sc.emit(x)
        for m,d in L: sc.emit(m); sc.emit(d)

    def step(s, sc, cur, nxt, mf, korder, cur_item, nxt_item, early=None, late=None, xearly=(), xpre=(),
             extra_shadow=(), extra_fixed=(), needs=None, vmwait=(), qfree=None, qds=None, nxt_korder=None,
             nobarrier=False, keep_addr=False, forder=None, nxt_forder=None,
             EG=(5,11,17,23), LG=(29,35,41,47), XG=(5,14,23), BG=24, dmas=(), pres=(), xwait=None):
        if s.fine:
            sc.emit(raw("s_memrealtime s[98:99]" if s.fine=="rt" else "s_memtime s[98:99]")); sc.emit(wait_fixed(lgkm=0))
            sc.emit(raw("s_and_b32 m0, s3, 63","salu",wr=M0)); sc.emit(raw("s_cmp_lt_u32 s3, 64"))
            sc.emit(raw("s_cselect_b32 s100, 0, 1")); sc.emit(raw("s_add_u32 s3, s3, 1")); sc.emit(raw("s_cmp_eq_u32 s100, 0"))
            lab=f"L_fine{len(s._fl)}"; s._fl.append(lab)
            sc.emit(branch(f"s_cbranch_scc0 {lab}_b"))
            sc.emit(raw("v_writelane_b32 v1, s98, m0","valu")); sc.emit(branch(f"s_branch {lab}_e"))
            sc.emit(label(f"{lab}_b")); sc.emit(raw("v_writelane_b32 v15, s98, m0","valu")); sc.emit(label(f"{lab}_e"))
        shadow=[[] for _ in range(48)]; fixed=[[] for _ in range(48)]
        tagc=cur+"c"; tagn=(nxt or "")+"n"; prevtag=cur+"n"
        def frag_reads(typ,f,order,item,tag,fo):
            if typ=='K':
                kt,t=order[f]; return s.rdK(f,kt,t,item,tag)
            T=fo[f] if fo else f
            r=VF(f); off=(T>>2)*1024+((T>>1)&1)*512
            return [dsread("ds_read_b64_tr_b16",sub(r,0,2),vVa[T&1],off,tag=(tag,f,0),item=item),
                    dsread("ds_read_b64_tr_b16",sub(r,2,2),vVa[T&1],off+8192,tag=(tag,f,1),item=item)]
        def tags(typ,f,tag): return [(tag,f)] if typ=='K' else [(tag,f,0),(tag,f,1)]
        for f in range(3,16):
            for q,x in enumerate(frag_reads(cur,f,korder,cur_item,tagc,forder)): fixed[3*(f-3)+q].append(x)
        for f in range(1,16):
            tg = tags(cur,f,tagc) if f>=3 else tags(cur,f,prevtag)
            shadow[3*f-1].append(wait_lgkm(*tg))
        reserved=set()
        if nxt:
            if not keep_addr:
                adv=s.adv_rd(nxt)
                ao=s.addr_ops(nxt)
                if cur=='K' and nxt!='K':
                    shadow[27].append(adv[0]); shadow[30].extend(adv[1:])
                    fixed[33].append(ao[0]); fixed[36].append(ao[1])
                else:
                    shadow[30].append(adv[0]); shadow[33].extend(adv[1:])
                    if nxt=='K': fixed[37].append(ao[0])
                    else: fixed[36].append(ao[0]); fixed[37].append(ao[1])
            for f in range(3):
                for q,x in enumerate(frag_reads(nxt,f,nxt_korder,nxt_item,tagn,nxt_forder)): fixed[39+3*f+q].append(x)
            shadow[47].append(wait_lgkm(*(tags(nxt,0,tagn)+([xwait] if xwait else []))))
        if vmwait: shadow[BG].append(wait_vm(*vmwait))
        if not nobarrier: shadow[BG+1].append(barrier())
        for it,G in ((early,EG),(late,LG)):
            if not it: continue
            for (m,d),g in zip(it[1],G):
                shadow[g-1].append(m); fixed[g].append(d); reserved.add(g-1)
        for g,(m,d) in dmas:
            shadow[g-1].append(m); fixed[g].append(d)
        for x,g in zip(xearly,XG): fixed[g].append(x)
        for gi,x in extra_shadow: shadow[gi].append(x)
        for gi,x in extra_fixed: fixed[gi].append(x)
        def place(groups, gp, lim):
            for G in groups:
                G = G if isinstance(G,list) else [G]
                while gp<48 and (shadow[gp] or gp%3==2): gp+=1
                assert gp<=lim,(gp,lim,groups)
                shadow[gp].extend(G); gp+=1
            return gp
        gp=0
        if early: gp=place(early[0], 0, EG[0]-2)
        if xpre: gp=place(list(xpre), 0, XG[0]-1)
        for groups,lo,hi in pres: place(groups, lo, hi)
        if late: gp=place(late[0], gp, LG[0]-2)
        for gi in range(48):
            nd = needs(gi) if needs else ()
            if nd: s.flush_needed(sc, nd, (qfree or [])+(qds or []))
            sc.gap(mf[gi], shadow[gi], fixed[gi], fill=False)
            used=max(0,len(shadow[gi])-1)+sum(COST.get(x.kind,1) for x in fixed[gi])
            slots=2-used
            hasds=any(x.kind=="ds" for x in fixed[gi])
            if slots>0: s.fillq(sc, slots, qds if hasds else qfree)

    def prologue(s, sc):
        e=sc.emit
        e(raw("s_cmp_ge_u32 s2, 256")); e(branch("s_cbranch_scc1 L_k1_end"))
        if s.exp_delay:
            e(raw("s_and_b32 s68, s2, 8")); e(raw("s_cmp_eq_u32 s68, 8")); e(branch("s_cbranch_scc0 L_k1_nodelay"))
            e(raw("s_memrealtime s[68:69]")); e(raw("s_waitcnt lgkmcnt(0)","waitraw"))
            e(label("L_k1_dl")); e(raw("s_memrealtime s[70:71]")); e(raw("s_waitcnt lgkmcnt(0)","waitraw"))
            e(raw("s_sub_u32 s72, s70, s68")); e(raw(f"s_cmp_lt_u32 s72, {s.exp_delay}")); e(branch("s_cbranch_scc1 L_k1_dl"))
            e(label("L_k1_nodelay"))
        e(raw("s_load_dwordx16 s[68:83], s[0:1], 0"))
        e(raw("s_load_dwordx4 s[84:87], s[0:1], 64"))
        e(raw("s_load_dwordx2 s[88:89], s[0:1], 96"))
        if s.prof:
            e(raw("s_memtime s[98:99]")); e(raw("s_memrealtime s[100:101]"))
        if s.swapmap:
            for t in ["s_and_b32 s90, s2, 7","s_and_b32 s91, s90, 1","s_lshl_b32 s91, s91, 1","s_lshr_b32 s92, s90, 1","s_and_b32 s92, s92, 1","s_or_b32 s91, s91, s92","s_and_b32 s90, s90, 4","s_or_b32 s90, s90, s91"]: e(raw(t))
        for t in [("s_and_b32 s90, s2, 7" if not s.swapmap else "s_nop 0"),"s_lshr_b32 s91, s2, 3","s_lshr_b32 s92, s90, 2",
                  "s_lshr_b32 s93, s90, 1","s_and_b32 s93, s93, 1","s_lshl_b32 s93, s93, 3","s_lshr_b32 s94, s91, 2","s_add_u32 s93, s93, s94",
                  "s_and_b32 s95, s90, 1","s_lshl_b32 s95, s95, 3","s_and_b32 s96, s91, 3","s_lshl_b32 s97, s96, 1","s_add_u32 s95, s95, s97"]:
            e(raw(t))
        if s.rot:
            for t in ["s_lshl_b32 s61, s96, 1","s_add_u32 s61, s61, s94","s_cmp_ge_u32 s61, 7","s_cselect_b32 s97, 7, 0","s_sub_u32 s61, s61, s97",
                      "s_cmp_ge_u32 s61, 7","s_cselect_b32 s97, 7, 0","s_sub_u32 s61, s61, s97"]: e(raw(t))
        else: e(raw("s_mov_b32 s61, 0"))
        e(valu("v_lshrrev_b32",vT,6,vTID))
        L=V(56); I=V(57); G=V(58); t0=V(59); t1=V(60); t2=V(61); KB=V(62); RR=V(63)
        e(valu("v_and_b32",L,63,vTID))
        e(valu("v_readfirstlane_b32",sWAVE,vT))
        e(valu("v_and_b32",I,15,L)); e(valu("v_lshrrev_b32",G,4,L))
        e(valu("v_bfe_u32",KB,L,4,1)); e(valu("v_bfe_u32",RR,L,2,2))
        e(valu("v_bfe_u32",t0,L,1,1)); e(valu("v_xor_b32",t0,t0,KB)); e(valu("v_lshlrev_b32",t0,5,t0))
        e(valu("v_lshrrev_b32",t1,5,L)); e(valu("v_lshl_add_u32",t0,t1,6,t0))
        e(valu("v_and_b32",t1,1,L)); e(valu("v_lshl_add_u32",t2,t1,4,t0))
        e(salu("s_and_b32",sT0,sWAVE,1)); e(salu("s_lshl_b32",sT0,sT0,4)); e(salu("s_lshr_b32",sT1,sWAVE,1)); e(salu("s_lshl_b32",sT1,sT1,2)); e(salu("s_add_u32",sT0,sT0,sT1))
        e(valu("v_lshl_add_u32",t0,KB,3,RR)); e(valu("v_add_u32",t0,sT0,t0)); e(valu("v_lshl_add_u32",vWg,t0,13,t2))
        e(salu("s_mul_i32",sT0,sWAVE,48)); e(valu("v_add_u32",t0,sT0,I)); e(salu("s_movk_i32",sT1,896))
        e(valu("v_mul_lo_u32",t0,t0,sT1)); e(valu("v_lshl_add_u32",vXg[0],G,4,t0))
        e(valu("v_add_u32",vXg[1],14336,vXg[0])); e(valu("v_add_u32",vXg[2],28672,vXg[0]))
        e(salu("s_lshl_b32",sT0,sWAVE,12))
        for p in range(4):
            e(salu("s_add_u32",sWvK[p],sT0,p*1024-(p&1)*256)); e(salu("s_add_u32",sWvV[p],sT0,p*896)); e(salu("s_add_u32",sWvO[p],sT0,p*1024))
        e(salu("s_mov_b32",sU,0)); e(salu("s_mov_b32",sKs,"0xffffc000")); e(salu("s_mov_b32",sVs,"0xffffc000"))
        e(salu("s_mov_b32",sKw,K_BASE+32768)); e(salu("s_mov_b32",sVw,V_BASE+32768)); e(salu("s_mov_b32",sWw,49152))
        e(salu("s_mov_b32",sKr,K_BASE)); e(salu("s_mov_b32",sVr,V_BASE+32768)); e(salu("s_mov_b32",sWr,49152))
        e(salu("s_lshl_b32",sWk,sRho,1)); e(salu("s_add_u32",sWk,sWk,13)); e(salu("s_cmp_ge_u32",None,sWk,14)); e(salu("s_cselect_b32",sT0,14,0)); e(salu("s_sub_u32",sWk,sWk,sT0)); e(salu("s_lshl_b32",sWk,sWk,18))
        e(salu("s_add_u32",sXk,sRho,6)); e(salu("s_cmp_ge_u32",None,sXk,7)); e(salu("s_cselect_b32",sT0,7,0)); e(salu("s_sub_u32",sXk,sXk,sT0)); e(salu("s_lshl_b32",sXk,sXk,7))
        e(salu("s_mov_b32",sWu,0))
        e(raw("s_waitcnt lgkmcnt(0)","waitraw"))
        e(raw("s_cmp_eq_u32 s92, 0"))
        for d,b in [(68,78),(69,79),(70,80),(71,81),(72,82),(73,83),(74,84),(75,85),(76,86),(77,87)]:
            e(raw(f"s_cselect_b32 s{d}, s{d}, s{b}"))
        for t in [
            "s_lshl_b32 s97, s95, 9",
            "s_add_u32 s12, s74, s97","s_addc_u32 s13, s75, 0","s_and_b32 s13, s13, 0xffff","s_sub_u32 s14, 3670016, s97","s_mov_b32 s15, 0x20000",
            "s_mul_i32 s97, s93, 172032",
            "s_add_u32 s16, s68, s97","s_addc_u32 s17, s69, 0","s_and_b32 s17, s17, 0xffff","s_mov_b32 s18, 172032","s_mov_b32 s19, 0x20000",
            ]: e(raw(t))
        if s.touch:
            e(raw("s_mul_i32 s97, s96, 48")); e(salu("s_mul_i32",sT0,sWAVE,12)); e(raw("s_add_u32 s97, s97, s38")); e(raw("s_mul_i32 s97, s97, 896"))
            e(valu("v_lshlrev_b32",t0,7,L)); e(valu("v_add_u32",t0,S(97),t0))
            e(touch(V(64),t0,sX,0))
            e(valu("v_add_u32",t1,8192,t0)); e(Ins("v_cmp_gt_u32 vcc, 20, v56","valu",rd=rs(L),wr=VCC)); e(valu("v_mov_b32",V(65),"0x7fffffff")); e(nop(0))
            e(Ins(f"v_cndmask_b32 {rt(t1)}, v65, {rt(t1)}, vcc","valu",rd=rs(t1,V(65))|VCC,wr=rs(t1)))
            e(touch(V(64),t1,sX,0))
        if s.touch is True:
            e(raw("s_mul_i32 s97, s94, 56")); e(salu("s_mul_i32",sT0,sWAVE,14)); e(raw("s_add_u32 s97, s97, s38"))
            e(valu("v_lshrrev_b32",t0,2,L)); e(valu("v_add_u32",t0,S(97),t0)); e(valu("v_lshlrev_b32",t0,13,t0))
            e(valu("v_and_b32",t1,3,L)); e(valu("v_lshl_add_u32",t0,t1,7,t0))
            e(Ins("v_cmp_gt_u32 vcc, 56, v56","valu",rd=rs(L),wr=VCC)); e(nop(1))
            e(Ins(f"v_cndmask_b32 {rt(t0)}, v65, {rt(t0)}, vcc","valu",rd=rs(t0,V(65))|VCC,wr=rs(t0)))
            e(touch(V(64),t0,sW,0))
        def kvsetup():
            for t in [
                "s_lshl_b32 s97, s93, 4","s_add_u32 s97, s97, s95","s_lshl_b32 s97, s97, 18",
                "s_add_u32 s4, s70, s97","s_addc_u32 s5, s71, 0","s_and_b32 s5, s5, 0xffff","s_mov_b32 s6, 524288","s_mov_b32 s7, 0x20000",
                "s_add_u32 s8, s72, s97","s_addc_u32 s9, s73, 0","s_and_b32 s9, s9, 0xffff","s_mov_b32 s10, 524288","s_mov_b32 s11, 0x20000",
                ]: e(raw(t))
            e(valu("v_lshl_add_u32",t0,KB,2,RR)); e(valu("v_lshl_add_u32",t0,t0,9,t2)); e(salu("s_lshl_b32",sT0,sWAVE,12)); e(valu("v_add_u32",vVg,sT0,t0))
            for q in range(2):
                e(salu("s_and_b32",sT0,sWAVE,1)); e(salu("s_lshl_b32",sT0,sT0,1)); e(salu("s_add_u32",sT0,sT0,q))
                e(salu("s_sub_u32",sT1,4,sT0)); e(salu("s_and_b32",sT1,sT1,3))
                e(valu("v_and_b32",t0,3,L)); e(valu("v_xor_b32",t0,sT1,t0)); e(valu("v_lshlrev_b32",t0,4,t0))
                e(valu("v_lshl_add_u32",t0,G,6,t0))
                e(salu("s_lshl_b32",sT0,sT0,2)); e(salu("s_lshr_b32",sT1,sWAVE,1)); e(salu("s_lshl_b32",sT1,sT1,4)); e(salu("s_add_u32",sT0,sT0,sT1))
                e(valu("v_add_u32",t1,sT0,RR)); e(valu("v_lshl_add_u32",vKg[q],t1,9,t0))
        if s.prokv or not s.defer: kvsetup()
        if s.defer:
            for nm in s.prokv:
                s.emit_item(sc, s.item_K(('K',int(nm[1]))) if nm[0]=='K' else s.item_V(('V',int(nm[1]))))
        s.emit_item(sc,s.item_W(('W',0)))
        for x in s.flat(s.xpre()): e(x)
        for x in s.xloads(0,lambda k:('x',0,k)): e(x)
        s.emit_item(sc,s.item_W(('W',1)))
        for t in [
            "s_mul_i32 s97, s95, 229376",
            "s_add_u32 s56, s76, s97","s_addc_u32 s57, s77, 0","s_and_b32 s57, s57, 0xffff","s_mov_b32 s58, 458752","s_mov_b32 s59, 0x20000",
            "s_lshl_b32 s97, s92, 4","s_add_u32 s97, s97, s93","s_lshl_b32 s97, s97, 3","s_lshr_b32 s90, s95, 1","s_add_u32 s97, s97, s90",
            f"s_mul_i32 s97, s97, {PW}",
            "s_add_u32 s20, s88, s97","s_addc_u32 s21, s89, 0","s_and_b32 s21, s21, 0xffff",f"s_mov_b32 s22, {PW}","s_mov_b32 s23, 0x20000",
            ]: e(raw(t))
        s.emit_item(sc,s.item_W(('W',2)))
        s.emit_item(sc,s.item_W(('W',3)))
        if s.defer and not s.prokv: kvsetup()
        if not s.defer:
            for n in range(3): s.emit_item(sc,s.item_K(('K',n)))
            for n in range(2): s.emit_item(sc,s.item_V(('V',n)))
        e(valu("v_lshrrev_b32",t0,2,I)); e(valu("v_sub_u32",t1,4,t0)); e(valu("v_and_b32",t1,3,t1)); e(valu("v_xor_b32",t1,t1,G))
        e(valu("v_lshlrev_b32",t1,4,t1)); e(valu("v_lshl_add_u32",t1,t0,11,t1)); e(valu("v_and_b32",t0,3,I)); e(valu("v_lshl_add_u32",vKl,t0,6,t1))
        e(valu("v_lshrrev_b32",t0,1,G)); e(valu("v_lshlrev_b32",t0,12,t0)); e(valu("v_lshl_add_u32",t0,KB,8,t0))
        e(valu("v_lshl_add_u32",t0,RR,6,t0)); e(valu("v_and_b32",t1,3,L)); e(valu("v_lshl_add_u32",t0,t1,3,t0))
        e(valu("v_lshl_add_u32",vVl[0],KB,5,t0))
        e(valu("v_xor_b32",t1,1,KB)); e(valu("v_lshl_add_u32",vVl[1],t1,5,t0))
        e(valu("v_add_u32",vKa,K_BASE,vKl))
        if s.xlds:
            e(valu("v_lshrrev_b32",t0,4,L)); e(valu("v_sub_u32",t0,4,t0)); e(valu("v_and_b32",t0,3,t0)); e(valu("v_and_b32",t1,3,L)); e(valu("v_xor_b32",t0,t0,t1))
            e(valu("v_lshlrev_b32",t0,4,t0)); e(valu("v_lshrrev_b32",t1,2,L)); e(salu("s_mul_i32",sT0,sWAVE,48)); e(valu("v_add_u32",t1,sT0,t1))
            e(salu("s_movk_i32",S(97),896)); e(valu("v_mul_lo_u32",t1,t1,S(97))); e(valu("v_add_u32",vXd,t0,t1))
            e(valu("v_lshrrev_b32",t0,2,I)); e(valu("v_sub_u32",t0,4,t0)); e(valu("v_and_b32",t0,3,t0)); e(valu("v_xor_b32",t0,t0,G))
            e(valu("v_lshlrev_b32",t0,4,t0)); e(valu("v_lshl_add_u32",t0,I,6,t0)); e(valu("v_add_u32",vXrl,64,t0))
        e(salu("s_mul_i32",sT0,sWAVE,43008)); e(valu("v_lshlrev_b32",t0,4,L)); e(valu("v_add_u32",vPst,sT0,t0))
        e(salu("s_lshr_b32",sT0,sWAVE,1)); e(salu("s_lshl_b32",sT0,sT0,4)); e(salu("s_and_b32",sT1,sWAVE,1)); e(salu("s_lshl_b32",sT1,sT1,3)); e(salu("s_add_u32",sT0,sT0,sT1))
        e(valu("v_lshl_add_u32",t0,KB,2,RR)); e(valu("v_add_u32",t0,sT0,t0)); e(salu("s_movk_i32",sT1,896)); e(valu("v_mul_lo_u32",t0,t0,sT1)); e(valu("v_add_u32",V(22),t0,t2))
        e(salu("s_mov_b32",sub(sC2,0),hex(f32bits(SCALE)))); e(salu("s_mov_b32",sub(sC2,1),hex(f32bits(1.0/SCALE if s.lscale else SCALE))))
        e(salu("s_mov_b32",sTH,hex(f32bits(THRESH))))
        e(salu("s_lshl_b32",sNgC,sRho,7))
        e(salu("s_mov_b32",sub(sDum,0),sub(sX,0))); e(salu("s_mov_b32",sub(sDum,1),sub(sX,1))); e(salu("s_mov_b32",sub(sDum,2),0)); e(salu("s_mov_b32",sub(sDum,3),"0x20000"))
        if s.prof:
            e(raw("s_mov_b32 s96, s88")); e(raw("s_mov_b32 s97, s89")); e(raw("s_mov_b32 s90, s98")); e(raw("s_mov_b32 s91, s100"))

    def conv_ops(s, t, j):
        m,c,p1,p2=super().conv_ops(t,j)
        return ([] if s.lscale else m),c,p1,p2
    def sm_add2(s, buf, qe):
        ex={list(f.ins.wr)[0]:f.ins for f in qe}
        q=[]
        for j in range(3):
            for kt in range(2):
                for r in range(4):
                    x=sub(SB(buf,kt,j),r); q.append(Filler(valu("v_add_f32",vL[j],vL[j],x),[ex[('v',x[1])]]))
        out=[]
        for i in range(8):
            for j in range(3): out.append(q[j*8+i])
        return q if False else [q[i] for i in range(24)]
    def sm_mul(s, buf):
        return [Filler(valu("v_mul_f32",sub(SB(buf,kt,j),r),sC,sub(SB(buf,kt,j),r))) for kt in range(2) for j in range(3) for r in range(4)]
    def rare(s, sc, buf, name, ret):
        e=sc.emit
        e(label(name)); e(nop(7)); e(nop(3))
        P0=208
        m=[V(P0+j) for j in range(3)]; tm=[V(P0+3+j) for j in range(3)]; al=[V(P0+6+j) for j in range(3)]
        for j in range(3):
            a=SB(buf,0,j); b=SB(buf,1,j)
            e(valu("v_max3_f32",m[j],sub(a,0),sub(a,1),sub(a,2)))
            e(valu("v_max3_f32",m[j],m[j],sub(a,3),sub(b,0)))
            e(valu("v_max3_f32",m[j],m[j],sub(b,1),sub(b,2)))
            e(valu("v_max_f32",m[j],m[j],sub(b,3)))
        for x in s.allreduce("v_max_f32",m,tm): e(x)
        for j in range(3): e(valu("v_max_f32",m[j],0,m[j]))
        for j in range(3):
            for kt in range(2):
                for r in range(4): e(valu("v_sub_f32",sub(SB(buf,kt,j),r),sub(SB(buf,kt,j),r),m[j]))
            if s.lscale:
                for r in range(4): e(Ins(f"v_fma_f32 {rt(sub(CI(j),r))}, -{rt(m[j])}, {rt(sCinv)}, {rt(sub(CI(j),r))}","valu",rd=rs(m[j],sCinv,sub(CI(j),r)),wr=rs(sub(CI(j),r))))
            else:
                for r in range(4): e(valu("v_sub_f32",sub(CI(j),r),sub(CI(j),r),m[j]))
            e(Ins(f"v_exp_f32_e64 {rt(al[j])}, -{rt(m[j])}","trans",rd=rs(m[j]),wr=rs(al[j])))
        for j in range(3): e(valu("v_mul_f32",vL[j],vL[j],al[j]))
        for T in range(16):
            for j in range(3):
                t=[V(P0+r) for r in range(4)] if False else [V(P0+0),V(P0+1),V(P0+2),V(P0+3)]
                t=[V(P0+9),V(P0+10),V(P0+11),vTMP]
                for r in range(4): e(accrd(t[r],sub(OA(T,j),r)))
                for r in range(4): e(valu("v_mul_f32",t[r],t[r],al[j]))
                for r in range(4): e(accwr(sub(OA(T,j),r),t[r]))
        e(nop(3))
        e(branch(f"s_branch {ret}"))

    def rstamp(s, sc, r):
        if not s.prof: return
        sc.emit(raw("s_memrealtime s[98:99]")); sc.emit(raw("s_waitcnt lgkmcnt(0)")); sc.emit(raw(f"s_mov_b32 s{r}, s98"))
    def dump_code(s):
        L=[raw("s_add_u32 s56, s96, 0x8000000"),raw("s_addc_u32 s57, s97, 0"),raw("s_and_b32 s57, s57, 0xffff"),raw("s_mov_b32 s58, 0x100000"),raw("s_mov_b32 s59, 0x20000"),
           raw("s_lshl_b32 s3, s2, 10"),raw("s_lshl_b32 s38, s24, 8"),raw("s_add_u32 s3, s3, s38"),raw("v_mov_b32 v1, s3","valu")]
        for i,r in enumerate(range(66,96)):
            L+=[raw(f"v_mov_b32 v2, s{r}","valu"),raw(f"buffer_store_dword v2, v1, s[56:59], 0 offen offset:{4*i}","valu"),raw("s_nop 1")]
        return L
    def reduce_tail(s, sc):
        e=sc.emit
        sDbg=S(4,4); sGP=S(8,4); sOut=S(12,4)
        e(raw("s_load_dwordx4 s[68:71], s[0:1], 80"))
        e(raw("s_load_dwordx2 s[72:73], s[0:1], 96"))
        for t in ["s_and_b32 s74, s2, 7","s_lshr_b32 s75, s2, 3","s_lshr_b32 s76, s74, 2",
                  "s_lshr_b32 s77, s74, 1","s_and_b32 s77, s77, 1","s_lshl_b32 s77, s77, 3","s_lshr_b32 s78, s75, 2","s_add_u32 s77, s77, s78",
                  "s_and_b32 s79, s74, 1","s_lshl_b32 s79, s79, 2","s_and_b32 s80, s75, 3","s_add_u32 s79, s79, s80",
                  "s_lshl_b32 s81, s76, 4","s_add_u32 s81, s81, s77"]:
            e(raw(t))
        e(wait_fixed(vm=0,lgkm=0))
        s.rstamp(sc,60)
        for t in ["s_mov_b32 s4, s70","s_and_b32 s5, s71, 0xffff","s_mov_b32 s6, 256","s_mov_b32 s7, 0x20000",
                  f"s_mul_i32 s82, s81, {8*PW}",
                  "s_add_u32 s8, s72, s82","s_addc_u32 s9, s73, 0","s_and_b32 s9, s9, 0xffff",f"s_mov_b32 s10, {8*PW}","s_mov_b32 s11, 0x20000",
                  "s_mov_b32 s12, s68","s_and_b32 s13, s69, 0xffff","s_mov_b32 s14, 5505024","s_mov_b32 s15, 0x20000"]:
            e(raw(t))
        e(barrier())
        e(salu("s_cmp_eq_u32",None,sWAVE,0)); e(branch("s_cbranch_scc0 L_k1_rwait"))
        e(raw("s_lshl_b32 s82, s81, 2")); e(valu("v_mov_b32",V(2),S(82))); e(valu("v_mov_b32",V(3),1))
        if s.rel:
            e(raw("buffer_wbl2 sc1","vmemraw")); e(raw("s_waitcnt vmcnt(0)"))
        e(raw("s_mov_b64 exec, 1"))
        e(raw("buffer_atomic_add v3, v2, s[4:7], 0 offen sc1","vmemraw"))
        e(raw("s_waitcnt vmcnt(0)"))
        e(raw("s_mov_b32 s83, 0x40000"))
        e(label("L_k1_poll"))
        e(raw("buffer_load_dword v4, v2, s[4:7], 0 offen sc1","vmemraw"))
        e(raw("s_waitcnt vmcnt(0)"))
        e(raw("v_readfirstlane_b32 s84, v4","valu"))
        e(raw("s_sub_u32 s83, s83, 1"))
        e(raw("s_cmp_eq_u32 s83, 0")); e(branch("s_cbranch_scc1 L_k1_pollend"))
        e(raw("s_cmp_lt_u32 s84, 8")); e(branch("s_cbranch_scc1 L_k1_poll"))
        e(label("L_k1_pollend"))
        e(raw("s_mov_b64 exec, -1"))
        if s.rel:
            e(raw("buffer_inv sc1","vmemraw")); e(raw("s_waitcnt vmcnt(0)"))
        e(label("L_k1_rwait"))
        e(barrier())
        s.rstamp(sc,61)
        vL_=V(2); vI=V(3); vG=V(4); vA=V(5); vO=V(6); t0=V(7)
        e(raw("v_mbcnt_lo_u32_b32 v2, -1, 0","valu")); e(raw("v_mbcnt_hi_u32_b32 v2, -1, v2","valu")); e(valu("v_and_b32",vI,15,vL_)); e(valu("v_lshrrev_b32",vG,4,vL_))
        e(valu("v_lshlrev_b32",vA,4,vL_))
        e(raw("s_mul_i32 s85, s79, 21")); e(salu("s_add_u32",S(86),S(85),sWAVE)); e(raw("s_add_u32 s85, s85, 21"))
        for hp in range(1,8): e(salu("s_mov_b32",S(26+hp),hp*PW))
        def buf(i,hp): return V(64+(i*8+hp)*4,4)
        uo=[S(40+i) for i in range(6)]
        for i in range(6):
            e(salu("s_add_u32",S(87),S(86),4*i)); e(salu("s_lshl_b32",uo[i],S(87),10))
            e(salu("s_cmp_lt_u32",None,S(87),S(85))); e(salu("s_cselect_b32",uo[i],uo[i],"0x40000000"))
        va=[V(8+i) for i in range(6)]
        for i in range(6): e(valu("v_add_u32",va[i],uo[i],vA))
        def ld(i):
            for hp in range(8): e(vload(buf(i,hp),va[i],sGP,0 if hp==0 else S(26+hp),0,tag=('r',i,hp),mod=s.rdmod))
        ld(0); ld(1)
        e(raw("s_mul_i32 s88, s77, 192")); e(raw("s_mul_i32 s89, s76, 896"))
        e(valu("v_mov_b32",t0,1792)) if False else None
        e(salu("s_movk_i32",S(90),1792)); e(valu("v_mul_lo_u32",vO,vI,S(90))); e(valu("v_lshl_add_u32",vO,vG,4,vO))
        oo=[S(46+i) for i in range(6)]
        for i in range(6):
            e(salu("s_add_u32",S(87),S(86),4*i))
            e(raw("s_mul_i32 s91, s87, 1561")); e(raw("s_lshr_b32 s91, s91, 16"))
            e(raw("s_mul_i32 s92, s91, 42")); e(raw("s_sub_u32 s92, s87, s92"))
            e(raw("s_mul_i32 s93, s92, 43")); e(raw("s_lshr_b32 s93, s93, 8"))
            e(raw("s_mul_i32 s94, s93, 6")); e(raw("s_sub_u32 s94, s92, s94"))
            e(raw("s_lshr_b32 s95, s94, 1")); e(raw("s_and_b32 s94, s94, 1"))
            e(raw("s_mul_i32 s91, s91, 48")); e(raw("s_lshl_b32 s95, s95, 4")); e(raw("s_add_u32 s91, s91, s95")); e(raw("s_add_u32 s91, s91, s88"))
            e(raw("s_mul_i32 s91, s91, 1792")); e(raw("s_lshl_b32 s93, s93, 7")); e(raw("s_lshl_b32 s94, s94, 6"))
            e(raw("s_add_u32 s91, s91, s93")); e(raw("s_add_u32 s91, s91, s94")); e(salu("s_add_u32",oo[i],S(91),S(89)))
            e(salu("s_cmp_lt_u32",None,S(87),S(85))); e(salu("s_cselect_b32",oo[i],oo[i],"0x40000000"))
        e(salu("s_mov_b32",S(52),"0xffff0000"))
        s.rstamp(sc,62)
        acc=[V(16+i) for i in range(8)]; tl=[V(24+i) for i in range(8)]
        for i in range(6):
            if i+2<6: ld(i+2)
            for hp in range(8):
                e(wait_vm(('r',i,hp)))
                b=buf(i,hp); dst = acc if hp==0 else tl
                for r in range(4):
                    e(valu("v_lshlrev_b32",dst[2*r],16,sub(b,r))); e(valu("v_and_b32",dst[2*r+1],S(52),sub(b,r)))
                if hp:
                    for r in range(8): e(valu("v_add_f32",acc[r],acc[r],tl[r]))
            X=V(32+4*(i&1),4)
            for r in range(4): e(valu("v_cvt_pk_bf16_f32",sub(X,r),acc[2*r],acc[2*r+1]))
            e(perm("v_permlane32_swap_b32",sub(X,0),sub(X,2))); e(perm("v_permlane32_swap_b32",sub(X,1),sub(X,3)))
            e(perm("v_permlane16_swap_b32",sub(X,0),sub(X,2))); e(perm("v_permlane16_swap_b32",sub(X,1),sub(X,3)))
            e(vstore(X,vO,sOut,oo[i],0,tag='o',mod=s.outmod))
        if s.prof:
            s.rstamp(sc,63); e(wait_fixed(vm=0)); s.rstamp(sc,64)
            for i,r in enumerate((60,61,62,63,64)):
                e(raw(f"v_mov_b32 v2, s{r}","valu")); e(raw(f"buffer_store_dword v2, v1, s[56:59], 0 offen offset:{128+4*i}","valu")); e(raw("s_nop 1"))

    def accmov(s,d,a): return Ins(f"v_accvgpr_mov_b32 {rt(d)}, {rt(a)}","valu",rd=rs(a),wr=rs(d))
    def drain_group(s,t,j,T8,RI,dst):
        L=[]
        base=T8[0][1]
        for r in range(4): L.append(accrd(T8[r],sub(OA(2*t,j),r)))
        for r in range(4): L.append(accrd(T8[4+r],sub(OA(2*t+1,j),r)))
        for r in range(8): L.append(valu("v_mul_f32",T8[r],T8[r],sub(RI,0)))
        if dst[0]=='v':
            for r in range(4): L.append(valu("v_cvt_pk_bf16_f32",sub(dst,r),T8[2*r],T8[2*r+1]))
        else:
            for r in range(4): L.append(valu("v_cvt_pk_bf16_f32",T8[r],T8[2*r],T8[2*r+1]))
            for r in range(4): L.append(accwr(sub(dst,r),T8[r]))
        return L
    def build(s):
        XBASE[0]=192 if s.hide else 0
        XKEEP[0]=s.xkeep
        s._fl=[]
        sc=Sched(); s.prologue(sc)
        if s.fine: sc.emit(raw('s_mov_b32 s3, 0')); sc.emit(raw('v_mov_b32 v1, 0','valu')); sc.emit(raw('v_mov_b32 v15, 0','valu'))
        sc.emit(wait_vm(('W',0),('x',0,0))); sc.emit(barrier())
        pro=sc.out
        sc=Sched(); e=sc.emit
        if s.align: e(raw(f".p2align {s.align}","label"))
        for q in range(s.pad): e(nop(0))
        e(label("L_k1_unit"))
        itW=lambda k:(lambda en:('W',14*en['u']+k))
        itK=lambda n:(lambda en:('K',16*en['u']+n))
        xt=lambda k:(lambda en:('x',en['u'],k))
        s.stamp(sc,0,True)
        if s.xlds:
            e(salu("s_cmp_eq_u32",None,sU,0)); e(salu("s_cselect_b32",sXl,32768,0)); e(salu("s_add_u32",sXl,sXl,V_BASE))
            e(salu("s_lshl_b32",sT0,sWAVE,12)); e(salu("s_add_u32",sXl,sXl,sT0)); e(valu("v_add_u32",vXr,sXl,vXrl))
        for x in s.adv_rd('W'): e(x)
        for x in s.addr_ops('W'): e(x)
        for f in range(3):
            for x in s.rdV(f,itW(0),"Wn"): e(x)
        e(wait_lgkm(("Wn",0,0),("Wn",0,1)))
        kmaj=[(kt,t) for kt in range(2) for t in range(8)]
        tmaj=[(kt,t) for t in range(8) for kt in range(2)]
        qconv=[]; convdone={}
        qepi=[]
        RI0=[V(56+2*j,1) for j in range(3)]
        def PT(i4):
            t,j=divmod(i4,3)
            return PARK_A(i4) if 12<=i4<16 else OA(2*t,j)
        if s.hide:
            for n,i4 in enumerate([6,7,8,9,10,11,12,13,14,15,0,1,2,3,4,5]+list(range(16,24))):
                t,j=divmod(i4,3); base=24+8*(n&1)
                qepi+=[Filler(x) for x in s.drain_group(t,j,[V(base+r) for r in range(8)],RI0[j],PT(i4))]
        for k in range(14):
            mf=[mfma(QA(T,j),VF(T),XF(k,j),0 if k==0 else QA(T,j)) for T in range(16) for j in range(3)]
            xe=[]; xp=[]; xd=[]; xs2=[]; xf2=[]
            if not s.xlds:
                if k%2==0 and k<=10:
                    xl=s.xloads(k+2,xt); xe=xl[0::2]; xp=s.xpre(); xrest=xl[1::2]
                elif k%2==1 and k<=11:
                    xe=xrest
            else:
                xslot=lambda en:('V',(16*en['u']+2)%3)
                xitem=lambda p:(lambda en:('X',14*en['u']+p))
                if k<=11:
                    L,_=s.item_X(k+2,xitem,xslot)
                    xd=list(zip((14,17,20),L))
                    if k%2==0:
                        xp=s.xpre()+[salu("s_add_u32",sXw[1],sXk,14336),salu("s_add_u32",sXw[2],sXk,28672)]
                if 1<=k<=12:
                    _,R=s.item_X(k+1,xitem,xslot)
                    xs2=[(1,wait_vm(xitem(k+1))),(12,wait_lgkm(('xr',(k+1)&3,0),('xr',(k+1)&3,1),('xr',(k+1)&3,2)))]
                    xf2=list(zip((2,5,8),R))
            late=s.item_W(itW(k+3)) if k>=1 else None
            xs=[]
            if k==11:
                xs=[(0,salu("s_add_u32",sWu,sWu,512)),
                    (15,salu("s_cmp_eq_u32",None,sU,1)),(15,salu("s_cselect_b32",sub(sW,2),0,sub(sW,2)))]
            if s.defer and k in s.kvpos:
                its=[]
                for nm in s.kvpos[k]:
                    its.append(s.item_K(('K',int(nm[1]))) if nm[0]=='K' else s.item_V(('V',int(nm[1]))))
                e(salu("s_cmp_eq_u32",None,sU,0)); e(branch(f"s_cbranch_scc0 L_k1_skip{k}"))
                n0=len(sc.out)
                for it in its: s.emit_item(sc,it)
                e(branch(f"s_branch L_k1_join{k}"))
                for x in sc.out[n0:]: s.only_u0.add(id(x))
                e(label(f"L_k1_skip{k}"))
                n0=len(sc.out)
                for q in range(4*len(its)): e(touch(V(0),vKa,sDum,0))
                for x in sc.out[n0:]: s.only_u1.add(id(x))
                e(label(f"L_k1_join{k}"))
            queues=[qepi] if (s.hide and k<=12) else []
            if s.hide and k==12 and not s.xkeep:
                for i4 in range(6,12):
                    for r in range(4): qepi.append(Filler(s.accmov(sub(PARK_A(i4),r),sub(PT(i4),r))))
            if k==13:
                groups=[]
                for t in range(8):
                    for j in range(3):
                        last=mf[(2*t+1)*3+j]
                        groups.append((t,j,last,s.conv_ops(t,j)))
                n=len(groups)
                for i in range(n+2):
                    if i<n:
                        t,j,last,(m,c,p1,p2)=groups[i]
                        for x in m: qconv.append(Filler(x,[last]))
                        for x in c: qconv.append(Filler(x,[last]))
                    if 0<=i-1<n:
                        t,j,last,(m,c,p1,p2)=groups[i-1]
                        for x in p1: qconv.append(Filler(x))
                    if 0<=i-2<n:
                        t,j,last,(m,c,p1,p2)=groups[i-2]
                        for x in p2: qconv.append(Filler(x))
                        convdone[(t,j)]=p2
                queues=[qconv]
            if k<13:
                if s.xlds:
                    vw=[itW(k+1)]+([xt(k+1)] if k+1<2 else [])
                    s.step(sc,'W','W',mf,None,itW(k),itW(k+1),late=late,extra_shadow=list(xs)+xs2+([(3*0+47,wait_lgkm(('xr',(k+1)&3,2)))] if False else []),
                           extra_fixed=xf2,dmas=xd,pres=[(xp,0,11)] if xp else (),vmwait=vw,qfree=queues,qds=queues)
                else:
                    s.step(sc,'W','W',mf,None,itW(k),itW(k+1),xearly=xe,xpre=xp,late=late,extra_shadow=xs,
                           vmwait=[itW(k+1),xt(k+1)],qfree=queues,qds=queues)
                if s.hide and k==12: s.flush_all(sc,[qepi])
            else:
                s.step(sc,'W','K',mf,None,itW(k),itK(0),late=late,extra_shadow=list(xs)+xs2,extra_fixed=xf2,
                       vmwait=[itK(0)],qfree=queues,qds=queues,nxt_korder=tmaj,keep_addr=True)
        s.stamp(sc,1,True)
        mf=[]
        for f,(kt,t) in enumerate(tmaj):
            for j in range(3): mf.append(mfma(SB(0,kt,j),KF(f),QF(t,j),0 if t==0 else SB(0,kt,j)))
        def needs0(gi):
            f,j=divmod(gi,3); kt,t=tmaj[f]
            nd=list(convdone[(t,j)])
            if t==0 and kt==1: nd+=convdone[(1,j)]
            return nd
        s.step(sc,'K','K',mf,tmaj,itK(0),itK(1),late=s.item_W(itW(17)),
               vmwait=[itK(1)],qfree=[qconv],qds=[qconv],needs=needs0,nxt_korder=kmaj)
        assert not qconv
        m=[V(208+j) for j in range(3)]; tm=[V(211+j) for j in range(3)]
        e(barrier())
        if s.even:
            pre,L=s.item_K(itK(3))
            for x in s.flat(pre): e(x)
            for m_,d_ in L[:2]: e(m_); e(d_)
        else: s.emit_item(sc,s.item_K(itK(3)))
        mv=[]
        if s.hide and s.xkeep:
            e(salu("s_cmp_eq_u32",None,sU,1)); e(branch("s_cbranch_scc0 L_k1_nomv"))
            n0=len(sc.out)
            for i4 in range(0,12):
                for r in range(4): e(s.accmov(sub(PARK_A(i4),r),sub(PT(i4),r)))
            for x in sc.out[n0:]: s.only_u1.add(id(x))
            e(label("L_k1_nomv"))
            for i4 in range(16,24):
                for r in range(4): mv.append(accrd(sub(PARK_A(i4),r),sub(PT(i4),r)))
        elif s.hide:
            for i4 in range(0,6):
                for r in range(4): mv.append(s.accmov(sub(PARK_A(i4),r),sub(PT(i4),r)))
            for i4 in range(16,24):
                for r in range(4): mv.append(accrd(sub(PARK_A(i4),r),sub(PT(i4),r)))
        else:
            for i4 in range(16,24):
                for r in range(4): mv.append(accrd(sub(PARK_A(i4),r),sub(PARK_T(i4),r)))
        for j in range(3):
            a=SB(0,0,j); e(valu("v_max3_f32",m[j],sub(a,0),sub(a,1),sub(a,2)))
        for j in range(3):
            a=SB(0,0,j); b=SB(0,1,j); e(valu("v_max3_f32",m[j],m[j],sub(a,3),sub(b,0)))
        for j in range(3):
            b=SB(0,1,j); e(valu("v_max3_f32",m[j],m[j],sub(b,1),sub(b,2)))
        for j in range(3):
            b=SB(0,1,j); e(valu("v_max_f32",m[j],m[j],sub(b,3)))
        for x in s.allreduce("v_max_f32",m,tm): e(x)
        for j in range(3):
            for r in range(4): e(valu("v_sub_f32",sub(CI(j),r),0,m[j]))
        for j in range(3): e(valu("v_mov_b32",vL[j],0))
        if s.lscale:
            for j in range(3): e(valu("v_mul_f32",tm[j],sC,m[j]))
            for j in range(3):
                for kt in range(2):
                    for r in range(4):
                        x=sub(SB(0,kt,j),r)
                        e(Ins(f"v_fma_f32 {rt(x)}, {rt(x)}, {rt(sC)}, -{rt(tm[j])}","valu",rd=rs(x,sC,tm[j]),wr=rs(x)))
        else:
            for j in range(3):
                for kt in range(2):
                    for r in range(4): e(valu("v_sub_f32",sub(SB(0,kt,j),r),sub(SB(0,kt,j),r),m[j]))
        s.stamp(sc,2,True)
        def half(sc,buf,first=False,extraq=None):
            nb=1-buf
            iK=lambda d:(lambda en:('K',16*en['u']+en['i']+d))
            iV=lambda d:(lambda en:('V',16*en['u']+en['i']+d))
            qe,qc,pd=s.sm_exp(buf)
            qa=s.sm_add2(buf,qe)
            mf=[]
            for f,(kt,t) in enumerate(kmaj):
                for j in range(3): mf.append(mfma(SB(nb,kt,j),KF(f),QF(t,j),CI(j) if t==0 else SB(nb,kt,j)))
            xq=[extraq] if extraq is not None else []
            if s.even:
                preV,LV=s.item_V(iV(2)); _,LKprev=s.item_K(iK(3)); preK,LK=s.item_K(iK(4))
                s.step(sc,'K','V',mf,kmaj,iK(1),iV(0),vmwait=[iV(0)],qfree=[qe,qc]+xq+[qa],qds=[qc]+xq+[qa],
                       dmas=[(5,LKprev[2]),(17,LKprev[3]),(29,LV[0]),(41,LV[1])],pres=[(preV,18,27)])
            else:
                s.step(sc,'K','V',mf,kmaj,iK(1),iV(0),vmwait=[iV(0)],qfree=[qe,qc]+xq,qds=[qc]+xq)
            qm=(s.sm_mul(nb) if s.lscale else [])+s.sm_max(nb)
            mf=[mfma(OA(T,j),VF(T),PF(j),0 if first else OA(T,j)) for T in range(16) for j in range(3)]
            def needs(gi):
                nd=list(pd[gi]) if gi<3 else []
                if gi==0 and extraq is not None: nd+=[f.ins for f in extraq]
                return nd
            if s.even:
                s.step(sc,'V','K',mf,None,iV(0),iK(2),vmwait=[iK(2)],qfree=[qe,qc,qm,qa]+xq,qds=[qc,qm,qa]+xq,needs=needs,nxt_korder=kmaj,
                       dmas=[(5,LV[2]),(17,LV[3]),(29,LK[0]),(41,LK[1])],pres=[(preK,18,27)])
            else:
                s.step(sc,'V','K',mf,None,iV(0),iK(2),early=s.item_V(iV(2)),late=s.item_K(iK(4)),
                       vmwait=[iK(2)],qfree=[qe,qc,qm,qa]+xq,qds=[qc,qm,qa]+xq,needs=needs,nxt_korder=kmaj)
            s.flush_all(sc,[qe,qc,qa,qm])
            return nb
        nb=half(sc,0,first=True,extraq=[Filler(x) for x in mv])
        e(branch(f"s_cbranch_vccnz L_k1_rareF")); e(label("L_k1_retF"))
        e(salu("s_mov_b32",sCNT,7))
        wblk=sc.out
        sc=Sched(); sc.emit(label("L_k1_loop"))
        half(sc,1); sc.emit(branch("s_cbranch_vccnz L_k1_rare0")); sc.emit(label("L_k1_ret0"))
        hB=sc.out
        sc=Sched()
        half(sc,0); sc.emit(branch("s_cbranch_vccnz L_k1_rare1")); sc.emit(label("L_k1_ret1"))
        sc.emit(salu("s_sub_u32",sCNT,sCNT,1)); sc.emit(salu("s_cmp_lg_u32",None,sCNT,0)); sc.emit(branch("s_cbranch_scc1 L_k1_loop"))
        hA=sc.out
        sc=Sched(); e=sc.emit
        s.stamp(sc,3,True)
        iV=lambda d:(lambda en:('V',16*en['u']+15+d))
        e(wait_vm(iV(0))); e(barrier())
        if s.even:
            _,L=s.item_K(lambda en:('K',16*en['u']+18))
            for m_,d_ in L[2:]: e(m_); e(d_)
        if s.hide and not s.xkeep:
            e(salu("s_cmp_eq_u32",None,sU,0)); e(branch("s_cbranch_scc0 L_k1_nox"))
            n0=len(sc.out)
            for x in s.flat(s.xpre()): e(x)
            for x in s.xloads(0,lambda k:(lambda en:('x',en['u']+1,k))): e(x)
            for x in sc.out[n0:]: s.only_u0.add(id(x))
            e(label("L_k1_nox"))
        for x in s.adv_rd('V'): e(x)
        for x in s.addr_ops('V'): e(x)
        for f in range(3):
            for x in s.rdV(f,iV(0),"Vn"): e(x)
        qe,qc,pd=s.sm_exp(1)
        for j in range(3):
            for _ in range(8): e(qe.pop(0).ins)
            for _ in range(4): e(qc.pop(0).ins)
        e(wait_lgkm(("Vn",0,0),("Vn",0,1)))
        qa=s.sm_add(1)
        mf=[mfma(OA(T,j),VF(T),PF(j),OA(T,j)) for T in range(16) for j in range(3)]
        s.step(sc,'V',None,mf,None,iV(0),None,early=s.item_V(iV(2)),nobarrier=True,qfree=[qa],qds=[qa])
        s.flush_all(sc,[qa])
        s.stamp(sc,4,True)
        tm=[V(208+j) for j in range(3)]
        def opfirst():
            if s.deep:
                for p in range(4): e(valu("v_add_u32",vWo[p],p*28672,V(22)))
                e(salu("s_mov_b32",sWw,s.oring+1-16384))
                e(barrier())
                for q in range(4): s.emit_item(sc,s.item_O(('P',q),q*114688,sNgC))
        if s.hide:
            for x in s.allreduce("v_add_f32",vL,tm): e(x)
            e(salu("s_cmp_eq_u32",None,sU,1)); e(branch("s_cbranch_scc1 L_k1_epi1"))
            epi=sc.out
            sc=Sched(); e=sc.emit
            for j in range(3): e(trans("v_rcp_f32",RI0[j],vL[j]))
            s.stamp(sc,5,True)
            e(salu("s_mov_b32",sU,1))
            if s.xkeep:
                for x in s.flat(s.xpre()): e(x)
                e(wait_vm(('W',14)))
            else: e(wait_vm(('W',14),('x',1,0)))
            e(barrier()); e(branch("s_branch L_k1_unit"))
            park=sc.out
            sc=Sched(); e=sc.emit
            e(label("L_k1_epi1"))
            opfirst()
            RI=[V(220+j) for j in range(3)]
            for j in range(3): e(trans("v_rcp_f32",RI[j],vL[j]))
            gi=0
            for t in range(8):
                for j in range(3):
                    base=160+8*(gi%6)
                    for x in s.drain_group(t,j,[V(base+r) for r in range(8)],RI[j],QF(t,j)): e(x)
                    gi+=1
            s.stamp(sc,5,True)
            epi1=sc.out
            sc=Sched(); e=sc.emit
        else:
            if s.deep:
                e(salu("s_cmp_eq_u32",None,sU,1)); e(branch("s_cbranch_scc0 L_k1_nop0"))
                n0=len(sc.out)
                opfirst()
                for x in sc.out[n0:]: s.only_u1.add(id(x))
                e(label("L_k1_nop0"))
            for x in s.allreduce("v_add_f32",vL,tm): e(x)
            RI=[V(220+2*j,2) for j in range(3)]
            for j in range(3): e(trans("v_rcp_f32",sub(RI[j],0),vL[j]))
            for j in range(3): e(valu("v_mov_b32",sub(RI[j],1),sub(RI[j],0)))
            gi=0
            for t in range(8):
                for j in range(3):
                    base=160+8*(gi%6); T8=[V(base+r) for r in range(8)]
                    for r in range(4): e(accrd(T8[r],sub(OA(2*t,j),r)))
                    for r in range(4): e(accrd(T8[4+r],sub(OA(2*t+1,j),r)))
                    for r in range(4): e(valu("v_pk_mul_f32",V(base+2*r,2),V(base+2*r,2),RI[j]))
                    for r in range(4): e(valu("v_cvt_pk_bf16_f32",sub(QF(t,j),r),T8[2*r],T8[2*r+1]))
                    gi+=1
                if t==1:
                    for x in s.flat(s.xpre()): e(x)
                    for x in s.xloads(0,lambda k:(lambda en:('x',en['u']+1,k))): e(x)
            s.stamp(sc,5,True)
            e(salu("s_cmp_eq_u32",None,sU,1)); e(branch("s_cbranch_scc1 L_k1_op"))
            epi=sc.out
            epi1=[]
            sc=Sched(); e=sc.emit
            for i4 in range(24):
                t,j=divmod(i4,3)
                for r in range(4): e(accwr(sub(PARK_T(i4),r),sub(QF(t,j),r)))
            e(salu("s_mov_b32",sU,1)); e(wait_vm(('W',14),('x',1,0))); e(barrier()); e(branch("s_branch L_k1_unit"))
        if not s.hide: park=sc.out
        sc=Sched(); e=sc.emit
        e(label("L_k1_op"))
        last=(s.oring+1-16384)
        if not s.deep:
            for p in range(4): e(valu("v_add_u32",vWo[p],p*28672,V(22)))
            e(salu("s_mov_b32",sWw,last))
        e(salu("s_mov_b32",sWr,last))
        def advN(dst,src): return [salu("s_add_u32",dst,src,128),salu("s_cmp_eq_u32",None,dst,896),salu("s_cselect_b32",dst,0,dst)]
        for x in advN(sNgN,sNgC): e(x)
        if not s.deep:
            e(wait_fixed(vm=0)); e(barrier())
            for q in range(3): s.emit_item(sc,s.item_O(('P',q),q*114688,sNgC))
        else:
            e(barrier())
            for q in range(4,7): s.emit_item(sc,s.item_O(('P',q),(q&3)*114688,sNgN))
        if s.deep:
            for x in advN(sNgNN,sNgN): e(x)
        itP=lambda d:(lambda en:('P',4*en['g']+d))
        e(wait_vm(('P',0))); e(barrier())
        for x in s.adv_rd('O'): e(x)
        for x in s.addr_ops('O'): e(x)
        ksmaj=list(range(16))
        Tmaj=[ks*4+T for T in range(4) for ks in range(4)]
        for f in range(3):
            for x in s.rdV(f,('P',0),"On"): e(x)
        e(wait_lgkm(("On",0,0),("On",0,1)))
        e(salu("s_mov_b32",sCNT,7)); e(salu("s_mov_b32",sPs,"0x40000000")); e(salu("s_mov_b32",sPs2,"0x40000000"))
        s.stamp(sc,13)
        oppro=sc.out
        def Bop(kq,ks,j):
            hh=kq>>1; t=4*(kq&1)+ks
            return PARK_A(t*3+j) if hh==0 else QF(t,j)
        sc=Sched(); e=sc.emit
        e(label("L_k1_oploop"))
        def cv(h,j):
            a=OPA(2*h,j); b=OPA(2*h+1,j); d=OPK(h,j)
            return [valu("v_cvt_pk_bf16_f32",sub(d,0),sub(a,0),sub(a,1)),valu("v_cvt_pk_bf16_f32",sub(d,1),sub(a,2),sub(a,3)),
                    valu("v_cvt_pk_bf16_f32",sub(d,2),sub(b,0),sub(b,1)),valu("v_cvt_pk_bf16_f32",sub(d,3),sub(b,2),sub(b,3))]
        def stores(h): return [vstore(OPK(h,j),vPst,sP,(sPs if j<2 else sPs2),((j*2048)%4096)+h*1024,tag='p',mod=s.stmod) for j in range(3)]
        carry_cv=[]
        for j in range(3): carry_cv+=cv(1,j)[2:]
        carry_st=stores(1)
        for kq in range(4):
            fo = Tmaj if kq==3 else ksmaj
            nfo = Tmaj if kq==2 else ksmaj
            mf=[]
            for f in range(16):
                ks,T=divmod(fo[f],4)
                firstk = (kq==0 and ks==0)
                for j in range(3): mf.append(mfma(OPA(T,j),VF(f),Bop(kq,ks,j),0 if firstk else OPA(T,j)))
            kq2=(kq+s.olook)&3
            if s.deep: ngr = sNgN if kq==0 else sNgNN
            else: ngr = sNgC if kq==0 else sNgN
            late=s.item_O(itP(kq+s.olook),kq2*114688,ngr)
            q=[]; xs=[]; xe=[]; nd=None; XG=(5,14,23)
            if kq==0:
                q=[Filler(x) for x in carry_cv]
                def nd(gi,q0=list(carry_cv)):
                    return q0 if gi==9 else ()
                xe=carry_st; XG=(11,17,23) if not s.latest else (38,44,44)
            if kq==1:
                xs=[(12,salu("s_cmp_eq_u32",None,sCNT,2 if s.deep else 1)),(12,salu("s_cselect_b32",sub(sWo,2),0,sub(sWo,2))),
                    (13,salu("s_mul_i32",sPs,sNgC,48)),(15,salu("s_add_u32",sPs2,sPs,4096))]
            if kq==3:
                c0=[]
                for j in range(3): c0+=[Filler(x,[mf[(7*3)+j]]) for x in cv(0,j)]
                c2=[]
                for j in range(3): c2+=[Filler(x,[mf[(11*3)+j]]) for x in cv(1,j)[:2]]
                q=c0+c2
                xe=stores(0); XG=(38,41,44)
                def nd(gi,c=[f.ins for f in c0]):
                    return c if gi==38 else ()
                if s.deep:
                    adv=advN(sNgNN,sNgNN)
                    xs=[(42,salu("s_mov_b32",sNgC,sNgN)),(42,salu("s_mov_b32",sNgN,sNgNN)),(43,adv[0]),(45,adv[1]),(45,adv[2])]
                else:
                    adv=advN(sNgN,sNgN)
                    xs=[(42,salu("s_mov_b32",sNgC,sNgN)),(43,adv[0]),(45,adv[1]),(45,adv[2])]
            s.step(sc,'O','O',mf,None,itP(kq),itP(kq+1),late=late,extra_shadow=xs,xearly=xe,XG=XG,needs=nd,
                   vmwait=[itP(kq+1)],qfree=[q],qds=[q],forder=fo,nxt_forder=nfo,LG=(29,32,35,47) if kq==3 else (29,35,41,47))
            s.flush_all(sc,[q])
        e(salu("s_sub_u32",sCNT,sCNT,1)); e(salu("s_cmp_lg_u32",None,sCNT,0)); e(branch("s_cbranch_scc1 L_k1_oploop"))
        for x in [y for j in range(3) for y in cv(1,j)[2:]]: e(x)
        for x in stores(1): e(x)
        s.stamp(sc,14)
        if s.fuse:
            if s.prof:
                for x in s.dump_code(): e(x)
            s.reduce_tail(sc)
        e(branch("s_branch L_k1_fin" if (s.prof and not s.fuse) else "s_branch L_k1_end"))
        oploop=sc.out
        sc=Sched(); s.rare(sc,1,"L_k1_rareF","L_k1_retF"); s.rare(sc,0,"L_k1_rare0","L_k1_ret0"); s.rare(sc,1,"L_k1_rare1","L_k1_ret1"); rare=sc.out
        endb=[]
        if s.prof:
            endb=[label("L_k1_fin"),raw("v_mov_b32 v3, v1","valu"),raw("v_mov_b32 v4, v15","valu"),wait_fixed(vm=0),raw("s_memtime s[98:99]"),raw("s_memrealtime s[100:101]"),raw("s_waitcnt lgkmcnt(0)"),
                  raw("s_mov_b32 s4, s98"),raw("s_mov_b32 s5, s100"),
                  raw("s_add_u32 s8, s96, 0x8000000"),raw("s_addc_u32 s9, s97, 0"),raw("s_and_b32 s9, s9, 0xffff"),raw("s_mov_b32 s10, 0x100000"),raw("s_mov_b32 s11, 0x20000"),
                  raw("s_lshl_b32 s3, s2, 10"),raw("s_lshl_b32 s38, s24, 8"),raw("s_add_u32 s3, s3, s38"),raw("v_mov_b32 v1, s3","valu")]
            regs=list(range(66,96))+[4,5]
            for i,r in enumerate(regs):
                endb+=[raw(f"v_mov_b32 v2, s{r}","valu"),raw(f"buffer_store_dword v2, v1, s[8:11], 0 offen offset:{4*i}","valu"),raw("s_nop 1")]
            if s.fine:
                endb+=[raw("v_mbcnt_lo_u32_b32 v2, -1, 0","valu"),raw("v_mbcnt_hi_u32_b32 v2, -1, v2","valu"),raw("v_lshlrev_b32 v2, 2, v2","valu"),raw("s_lshl_b32 s3, s2, 11"),raw("s_lshl_b32 s38, s24, 9"),raw("s_add_u32 s3, s3, s38"),
                       raw("s_add_u32 s3, s3, 0x40000"),raw("v_add_u32 v2, s3, v2","valu"),raw("buffer_store_dword v3, v2, s[8:11], 0 offen","valu"),
                       raw("buffer_store_dword v4, v2, s[8:11], 0 offen offset:256","valu")]
            endb+=[raw("s_waitcnt vmcnt(0)")]
            if s.dbgprof:
                endb+=[raw("s_load_dwordx2 s[12:13], s[0:1], 88"),raw("s_waitcnt lgkmcnt(0)"),raw("s_and_b32 s13, s13, 0xffff"),raw("s_mov_b32 s14, 256"),raw("s_mov_b32 s15, 0x20000"),
                       raw("s_not_b32 s38, s91"),raw("v_mov_b32 v2, s38","valu"),raw("v_mov_b32 v3, 0","valu"),raw("v_mov_b32 v4, s5","valu"),raw("v_mov_b32 v5, 4","valu"),
                       raw("s_mov_b64 exec, 1"),
                       raw("buffer_atomic_umax v2, v3, s[12:15], 0 offen sc1","valu"),raw("buffer_atomic_umax v4, v5, s[12:15], 0 offen sc1","valu"),
                       raw("s_cmp_eq_u32 s2, 0"),branch("s_cbranch_scc0 L_k1_dbgskip"),raw("s_cmp_eq_u32 s24, 0"),branch("s_cbranch_scc0 L_k1_dbgskip")]
                rts=[67,69,71,73,75,77,79,81,83,85,87,89,93,95]
                for i,r in enumerate(rts):
                    endb+=[raw(f"s_sub_u32 s38, s{r}, s91"),raw("v_mov_b32 v2, s38","valu"),raw(f"v_mov_b32 v3, {8+4*i}","valu"),raw("buffer_store_dword v2, v3, s[12:15], 0 offen","valu"),raw("s_nop 1")]
                endb+=[label("L_k1_dbgskip"),raw("s_waitcnt vmcnt(0)"),raw("s_mov_b64 exec, -1")]
        endb+=[label("L_k1_end"),wait_fixed(vm=0),raw("s_endpgm","branch")]
        trace=[(x,{'u':0}) for x in pro]
        for u in range(2):
            trace+=[(x,{'u':u,'i':0}) for x in wblk if not ((u!=0 and id(x) in s.only_u0) or (u!=1 and id(x) in s.only_u1))]
            for it in range(7):
                trace+=[(x,{'u':u,'i':2*it+1}) for x in hB]
                trace+=[(x,{'u':u,'i':2*it+2}) for x in hA]
            trace+=[(x,{'u':u}) for x in epi if not ((u!=0 and id(x) in s.only_u0) or (u!=1 and id(x) in s.only_u1))]
            if u==0: trace+=[(x,{'u':u}) for x in park]
        trace+=[(x,{'u':1}) for x in epi1]
        trace+=[(x,{'u':1}) for x in oppro]
        for g in range(7): trace+=[(x,{'g':g}) for x in oploop]
        resolve_waits(trace)
        errs=check(trace)
        s.trace=trace
        code=pro+wblk+hB+hA+epi+park+epi1+oppro+oploop+rare+endb
        return code,errs

if __name__=="__main__":
    k=K1F(); code,errs=k.build()
    print(len(code),"instructions;",len(errs),"errors")
    for x in errs[:40]: print(x)
```

```python
from ir import *
from sched import *
import k1f
from k1f import *
from k1f import XBASE, XKEEP, XF, PARK_A, OPA, OPK, sNgNN, sXw, sXl, vXr, vXrl, sDum, sC, sCinv, PW
from k1 import KD_K1

sG=S(60); sWn=S(45); sInc=S(61); sCx=S(38); sCy=S(54); sWp=[S(28),S(98),S(99),S(100)]; sPd=S(101)

class K1G(K1F):
    def __init__(s, mix=False, kvmod=None, spread=True, early_op=True, gbit=5, ginv=False, **kw):
        kw.setdefault("stmod"," sc1"); kw.setdefault("touch",False); kw.setdefault("prokv",())
        kw.setdefault("kvpos",{9:['K0'],11:['K1'],12:['V0','K2'],13:['V1']})
        super().__init__(**kw); s.mix=mix; s.cond={}; s.spread=spread; s.early_op=early_op; s.gbit=gbit; s.ginv=ginv
        if kvmod is not None: s.kvmod=kvmod
    def only(s, sc, n0, pred):
        for x in sc.out[n0:]: s.cond[id(x)]=pred
    def prologue(s, sc):
        super().prologue(sc)
        e=sc.emit
        if s.mix: e(raw("s_lshr_b32 s60, s2, 5")); e(raw("s_and_b32 s60, s60, 1"))
        else: e(raw("s_mov_b32 s60, 0"))
        e(salu("s_mov_b32",sWn,0))
    def cond_item(s, typ, n):
        first=lambda en:en['w']==en['G']
        item=lambda en:(typ,n) if first(en) else None
        if typ=='K': st,wr,base,end,wv,srd,ring=sKs,sKw,K_BASE,V_BASE,sWvK,sK,'K'
        else: st,wr,base,end,wv,srd,ring=sVs,sVw,V_BASE,LDS_END,sWvV,sV,'V'
        cx = sCx if typ=='K' else sCy
        pre=[[salu("s_add_u32",st,st,sInc), salu("s_add_u32",wr,wr,sInc)],
             [salu("s_cmp_eq_u32",None,wr,end),salu("s_cselect_b32",wr,base,wr)],
             [salu("s_cmp_eq_u32",None,sWn,sG),salu("s_cselect_b32",cx,wr,"0x28000")]]
        L=[]
        for p in range(4):
            if typ=='K': d=dma(vKg[p>>1],sK,sKs,(p&1)*256,item,(lambda e,n=n:('K',n%3)),s.kvmod)
            else: d=dma(vVg,sV,sVs,p*128,item,(lambda e,n=n:('V',n%3)),s.kvmod)
            L.append((salu("s_add_u32","m0",cx,wv[p]),d))
        return pre,L
    def item_Wx(s, q):
        item=lambda en:(('W',14*en['w']+14+q) if en['w']==0 else ('P',q))
        slot=lambda en:('W',(14*en['w']+14+q)%4)
        pre=[salu("s_add_u32",sWk,sWk,262144),[salu("s_cmp_eq_u32",None,sWk,14*262144),salu("s_cselect_b32",sWk,0,sWk)],
             [salu("s_add_u32",sWw,sWw,16384),salu("s_and_b32",sWw,sWw,0xffff)],
             [salu("s_add_u32",sWp[0],sWk,sWu),salu("s_add_u32",sWp[1],sNgC,q*114688)],
             [salu("s_cmp_eq_u32",None,sWn,1),salu("s_cselect_b32",sWp[0],sWp[1],sWp[0]),salu("s_cselect_b32",sPd,28544,0)],
             [salu("s_add_u32",sWp[1],sWp[0],sPd),salu("s_add_u32",sWp[2],sWp[1],sPd)],
             salu("s_add_u32",sWp[3],sWp[2],sPd)]
        L=[(salu("s_add_u32","m0",sWw,sWvV[p]), dma(vWg,sW,sWp[p],p*128,item,slot,s.wmod)) for p in range(4)]
        return pre,L
    def build(s):
        XBASE[0]=192; XKEEP[0]=True; s._fl=[]
        sc=Sched(); s.prologue_g(sc)
        if s.fine: sc.emit(raw('s_mov_b32 s3, 0')); sc.emit(raw('v_mov_b32 v1, 0','valu')); sc.emit(raw('v_mov_b32 v15, 0','valu'))
        sc.emit(wait_vm(('W',0),('x',0,0))); sc.emit(barrier())
        pro=sc.out
        itW=lambda k:(lambda en:('W',14*en['w']+k))
        itK=lambda n:(lambda en:('K',16*en['u']+n))
        itKa=lambda n:(lambda en:None if en.get('noA') else ('K',16*en['u']+n))
        xt=lambda k:(lambda en:('x',en['w'],k))
        kmaj=[(kt,t) for kt in range(2) for t in range(8)]
        tmaj=[(kt,t) for t in range(8) for kt in range(2)]
        RI0=[V(56+2*j,1) for j in range(3)]
        def PT(i4):
            t,j=divmod(i4,3); return PARK_A(i4) if 12<=i4<16 else OA(2*t,j)
        def PQ(i4):
            t,j=divmod(i4,3); return OA(2*t+1,j)
        sc=Sched(); e=sc.emit
        e(label("L_k1_unit"))
        s.stamp(sc,0,True)
        e(salu("s_andn2_b32",sT0,sWn,sG)); e(salu("s_cmp_eq_u32",None,sT0,1)); e(salu("s_cselect_b32",sXl,0,32768)); e(salu("s_add_u32",sXl,sXl,V_BASE))
        e(salu("s_lshl_b32",sT0,sWAVE,12)); e(salu("s_add_u32",sXl,sXl,sT0)); e(valu("v_add_u32",vXr,sXl,vXrl))
        for x in s.adv_rd('W'): e(x)
        for x in s.addr_ops('W'): e(x)
        for f in range(3):
            for x in s.rdV(f,itW(0),"Wn"): e(x)
        e(wait_lgkm(("Wn",0,0),("Wn",0,1)))
        qconv=[]; convdone={}; qepi=[]
        for n,i4 in enumerate([6,7,8,9,10,11,12,13,14,15,0,1,2,3,4,5]+list(range(16,24))):
            t,j=divmod(i4,3); base=24+8*(n&1)
            qepi+=[Filler(x) for x in s.drain_group(t,j,[V(base+r) for r in range(8)],RI0[j],PT(i4))]
        xslot=lambda en:('V',(16*en['u']*(1 if en['w']==1 and en['G']==0 else 0)+2)%3)
        xitem=lambda p:(lambda en:('X',14*en['w']+p))
        for k in range(14):
            mf=[mfma(QA(T,j),VF(T),XF(k,j),0 if k==0 else QA(T,j)) for T in range(16) for j in range(3)]
            xp=[]; xd=[]; xs2=[]; xf2=[]
            if k<=11:
                L,_=s.item_X(k+2,xitem,xslot); xd=list(zip((14,17,20),L))
                if k%2==0: xp=s.xpre()+[salu("s_add_u32",sXw[1],sXk,14336),salu("s_add_u32",sXw[2],sXk,28672)]
            if 1<=k<=12:
                _,R=s.item_X(k+1,xitem,xslot)
                xs2=[(1,wait_vm(xitem(k+1))),(12,wait_lgkm(('xr',(k+1)&3,0),('xr',(k+1)&3,1),('xr',(k+1)&3,2)))]
                xf2=list(zip((2,5,8),R))
            late=s.item_W(itW(k+3)) if k>=1 else None
            xs=[]; xfx=[]
            if k==11:
                xs=[(0,salu("s_xor_b32",sWu,sWu,512)),(15,salu("s_cmp_eq_u32",None,sWn,1)),(15,salu("s_cselect_b32",sub(sW,2),0,sub(sW,2)))]
            if s.early_op and k>=11:
                pre_,L_=s.item_Wx(k-11); late=([],L_); head_=s.flat(pre_)
                if k==11:
                    xs=[(0,salu("s_xor_b32",sWu,sWu,512)),(15,salu("s_cmp_eq_u32",None,sWn,1))]+[(15,salu("s_cselect_b32",sub(sW,r),sub(sWo,r),sub(sW,r))) for r in range(3)]
                    xs+=[(21,raw("s_cmp_eq_u32 s45, 1")),(21,raw("s_cselect_b64 vcc, -1, 0","salu",wr=VCC))]
                    xfx=[(23,Ins("v_cndmask_b32 v11, v11, v22, vcc","valu",rd=rs(V(11),V(22))|VCC,wr=rs(V(11))))]
            if s.early_op and k>=11:
                if k==11: e(salu("s_xor_b32",sWu,sWu,512)); xs=[x for x in xs if x[0]!=0]
                for x in head_: e(x)
            cd=[]; cp=[]
            if s.spread:
                tab={11:[('K',0,(26,32,38,44),(4,24))],12:[('K',1,(11,14,17,20),(0,9)),('V',0,(26,32,38,44),(6,24))],13:[('K',2,(8,14,20,23),(0,6))]}
                for typ,n,gaps,(lo,hi) in tab.get(k,[]):
                    pre,L=s.cond_item(typ,n); cd+=list(zip(gaps,L)); cp.append((pre,lo,hi))
                if k==11:
                    xs=xs+[(3,salu("s_cmp_eq_u32",None,sWn,sG)),(3,salu("s_cselect_b32",sub(sK,2),524288,0)),(3,salu("s_cselect_b32",sub(sV,2),524288,0)),(3,salu("s_cselect_b32",sInc,16384,0))]
            if k in s.kvpos and not s.spread:
                its=[s.item_K(('K',int(nm[1]))) if nm[0]=='K' else s.item_V(('V',int(nm[1]))) for nm in s.kvpos[k]]
                e(salu("s_cmp_eq_u32",None,sWn,sG)); e(branch(f"s_cbranch_scc0 L_k1_skip{k}"))
                n0=len(sc.out)
                for it in its: s.emit_item(sc,it)
                e(branch(f"s_branch L_k1_join{k}"))
                s.only(sc,n0,lambda en:en['w']==en['G'])
                e(label(f"L_k1_skip{k}"))
                n0=len(sc.out)
                for q in range(4*len(its)): e(touch(V(0),vKa,sDum,0))
                s.only(sc,n0,lambda en:en['w']!=en['G'])
                e(label(f"L_k1_join{k}"))
            queues=[qepi] if k<=12 else []
            if k==13:
                groups=[]
                for t in range(8):
                    for j in range(3): groups.append((t,j,mf[(2*t+1)*3+j],s.conv_ops(t,j)))
                n=len(groups)
                for i in range(n+2):
                    if i<n:
                        t,j,last,(m,c,p1,p2)=groups[i]
                        for x in c: qconv.append(Filler(x,[last]))
                    if 0<=i-1<n:
                        for x in groups[i-1][3][2]: qconv.append(Filler(x))
                    if 0<=i-2<n:
                        t,j,last,(m,c,p1,p2)=groups[i-2]
                        for x in p2: qconv.append(Filler(x))
                        convdone[(t,j)]=p2
                queues=[qconv]
            if k<13:
                vw=[itW(k+1)]+([xt(k+1)] if k+1<2 else [])
                s.step(sc,'W','W',mf,None,itW(k),itW(k+1),late=late,extra_shadow=list(xs)+xs2,extra_fixed=xf2+xfx,dmas=xd+cd,
                       pres=([(xp,0,11)] if xp else [])+cp,vmwait=vw,qfree=queues,qds=queues)
                if k==12: s.flush_all(sc,[qepi])
            else:
                s.step(sc,'W','K',mf,None,itW(k),itKa(0),late=late,extra_shadow=list(xs)+xs2,extra_fixed=xf2,dmas=cd,pres=cp,
                       vmwait=[itK(0)],qfree=queues,qds=queues,nxt_korder=tmaj,keep_addr=True)
        rest=[clone(f.ins) for f in qconv]
        s.stamp(sc,1,True)
        if s.mix: e(salu("s_cmp_gt_u32",None,sG,sWn)); e(branch("s_cbranch_scc1 L_k1_noatt"))
        wblk=sc.out
        sc2=Sched(); sc2.done=set(sc.done); sc2.out=[]; sc=sc2; e=sc.emit
        e(nop(0))
        mf=[]
        for f,(kt,t) in enumerate(tmaj):
            for j in range(3): mf.append(mfma(SB(0,kt,j),KF(f),QF(t,j),0 if t==0 else SB(0,kt,j)))
        def needs0(gi):
            f,j=divmod(gi,3); kt,t=tmaj[f]
            nd=list(convdone[(t,j)])
            if t==0 and kt==1: nd+=convdone[(1,j)]
            return nd
        cd=[]; cp=[]
        if s.spread:
            pre,L=s.cond_item('V',1); cd=list(zip((8,14,20,23),L)); cp=[(pre,0,6)]
        if s.early_op:
            pre_,L_=s.item_Wx(3)
            for x in s.flat(pre_): e(x)
            lt=([],L_)
        else: lt=s.item_W(itW(17))
        s.step(sc,'K','K',mf,tmaj,itK(0),itK(1),late=lt,vmwait=[itK(1)],qfree=[qconv],qds=[qconv],needs=needs0,nxt_korder=kmaj,dmas=cd,pres=cp)
        assert not qconv
        qk0c=sc.out
        sc=Sched(); e=sc.emit
        e(label("L_k1_max"))
        m=[V(208+j) for j in range(3)]; tm=[V(211+j) for j in range(3)]
        e(barrier())
        if s.spread: e(salu("s_mov_b32",sub(sK,2),524288)); e(salu("s_mov_b32",sub(sV,2),524288))
        pre,L=s.item_K(itK(3))
        for x in s.flat(pre): e(x)
        for m_,d_ in L[:2]: e(m_); e(d_)
        e(salu("s_lshl_b32",sT0,sG,1)); e(salu("s_add_u32",sT0,sT0,sU)); e(salu("s_cmp_eq_u32",None,sT0,1)); e(branch("s_cbranch_scc0 L_k1_nomva"))
        n0=len(sc.out)
        for i4 in range(0,12):
            for r in range(4): e(s.accmov(sub(PARK_A(i4),r),sub(PT(i4),r)))
        for i4 in range(16,24):
            for r in range(4): e(accrd(sub(PARK_A(i4),r),sub(PT(i4),r)))
        s.only(sc,n0,lambda en:en['G']==0 and en['u']==1)
        e(label("L_k1_nomva"))
        if s.mix:
            e(salu("s_cmp_eq_u32",None,sT0,2)); e(branch("s_cbranch_scc0 L_k1_nomvb"))
            n0=len(sc.out)
            for i4 in range(0,16):
                for r in range(4): e(s.accmov(sub(PARK_A(i4),r),sub(PQ(i4),r)))
            for i4 in range(16,24):
                for r in range(4): e(accrd(sub(PARK_A(i4),r),sub(PQ(i4),r)))
            s.only(sc,n0,lambda en:en['G']==1 and en['u']==0)
            e(label("L_k1_nomvb"))
        for j in range(3):
            a=SB(0,0,j); e(valu("v_max3_f32",m[j],sub(a,0),sub(a,1),sub(a,2)))
        for j in range(3):
            a=SB(0,0,j); b=SB(0,1,j); e(valu("v_max3_f32",m[j],m[j],sub(a,3),sub(b,0)))
        for j in range(3):
            b=SB(0,1,j); e(valu("v_max3_f32",m[j],m[j],sub(b,1),sub(b,2)))
        for j in range(3):
            b=SB(0,1,j); e(valu("v_max_f32",m[j],m[j],sub(b,3)))
        for x in s.allreduce("v_max_f32",m,tm): e(x)
        for j in range(3):
            for r in range(4): e(valu("v_sub_f32",sub(CI(j),r),0,m[j]))
        for j in range(3): e(valu("v_mov_b32",vL[j],0))
        for j in range(3): e(valu("v_mul_f32",tm[j],sC,m[j]))
        for j in range(3):
            for kt in range(2):
                for r in range(4):
                    x=sub(SB(0,kt,j),r)
                    e(Ins(f"v_fma_f32 {rt(x)}, {rt(x)}, {rt(sC)}, -{rt(tm[j])}","valu",rd=rs(x,sC,tm[j]),wr=rs(x)))
        s.stamp(sc,2,True)
        def half(sc,buf,first=False):
            nb=1-buf
            iK=lambda d:(lambda en:('K',16*en['u']+en['i']+d))
            iV=lambda d:(lambda en:('V',16*en['u']+en['i']+d))
            qe,qc,pd=s.sm_exp(buf); qa=s.sm_add2(buf,qe)
            mf=[]
            for f,(kt,t) in enumerate(kmaj):
                for j in range(3): mf.append(mfma(SB(nb,kt,j),KF(f),QF(t,j),CI(j) if t==0 else SB(nb,kt,j)))
            preV,LV=s.item_V(iV(2)); _,LKprev=s.item_K(iK(3)); preK,LK=s.item_K(iK(4))
            s.step(sc,'K','V',mf,kmaj,iK(1),iV(0),vmwait=[iV(0)],qfree=[qe,qc,qa],qds=[qc,qa],
                   dmas=[(5,LKprev[2]),(17,LKprev[3]),(29,LV[0]),(41,LV[1])],pres=[(preV,18,27)])
            qm=s.sm_mul(nb)+s.sm_max(nb)
            mf=[mfma(OA(T,j),VF(T),PF(j),0 if first else OA(T,j)) for T in range(16) for j in range(3)]
            s.step(sc,'V','K',mf,None,iV(0),iK(2),vmwait=[iK(2)],qfree=[qe,qc,qm,qa],qds=[qc,qm,qa],needs=lambda gi:(list(pd[gi]) if gi<3 else []),nxt_korder=kmaj,
                   dmas=[(5,LV[2]),(17,LV[3]),(29,LK[0]),(41,LK[1])],pres=[(preK,18,27)])
            s.flush_all(sc,[qe,qc,qa,qm])
        half(sc,0,first=True)
        e(branch("s_cbranch_vccnz L_k1_rareF")); e(label("L_k1_retF"))
        e(salu("s_mov_b32",sCNT,7))
        mblk=sc.out
        sc=Sched(); sc.emit(label("L_k1_loop"))
        half(sc,1); sc.emit(branch("s_cbranch_vccnz L_k1_rare0")); sc.emit(label("L_k1_ret0"))
        hB=sc.out
        sc=Sched()
        half(sc,0); sc.emit(branch("s_cbranch_vccnz L_k1_rare1")); sc.emit(label("L_k1_ret1"))
        sc.emit(salu("s_sub_u32",sCNT,sCNT,1)); sc.emit(salu("s_cmp_lg_u32",None,sCNT,0)); sc.emit(branch("s_cbranch_scc1 L_k1_loop"))
        hA=sc.out
        sc=Sched(); e=sc.emit
        s.stamp(sc,3,True)
        iV=lambda d:(lambda en:('V',16*en['u']+15+d))
        e(wait_fixed(lgkm=0)); e(wait_vm(iV(0))); e(barrier())
        _,L=s.item_K(lambda en:('K',16*en['u']+18))
        for m_,d_ in L[2:]: e(m_); e(d_)
        def advN(dst,src): return [salu("s_add_u32",dst,src,128),salu("s_cmp_eq_u32",None,dst,896),salu("s_cselect_b32",dst,0,dst)]
        if s.early_op:
            e(salu("s_cmp_eq_u32",None,sU,1)); e(branch("s_cbranch_scc0 L_k1_nop4"))
            n0=len(sc.out)
            for p in range(4): e(valu("v_add_u32",vWo[p],p*28672,V(22)))
            e(salu("s_mov_b32",sWw,49152))
            for x in advN(sNgN,sNgC): e(x)
            for q in range(4,7): s.emit_item(sc,s.item_O(('P',q),(q&3)*114688,sNgN))
            s.only(sc,n0,lambda en:en['u']==1)
            e(label("L_k1_nop4"))
        for x in s.adv_rd('V'): e(x)
        for x in s.addr_ops('V'): e(x)
        for f in range(3):
            for x in s.rdV(f,iV(0),"Vn"): e(x)
        qe,qc,pd=s.sm_exp(1)
        for j in range(3):
            for _ in range(8): e(qe.pop(0).ins)
            for _ in range(4): e(qc.pop(0).ins)
        e(wait_lgkm(("Vn",0,0),("Vn",0,1)))
        qa=s.sm_add(1)
        mf=[mfma(OA(T,j),VF(T),PF(j),OA(T,j)) for T in range(16) for j in range(3)]
        s.step(sc,'V',None,mf,None,iV(0),None,early=s.item_V(iV(2)),nobarrier=True,qfree=[qa],qds=[qa])
        s.flush_all(sc,[qa])
        s.stamp(sc,4,True)
        tm=[V(208+j) for j in range(3)]
        for x in s.allreduce("v_add_f32",vL,tm): e(x)
        e(salu("s_cmp_eq_u32",None,sU,1)); e(branch("s_cbranch_scc1 L_k1_epi1"))
        if s.mix: e(salu("s_cmp_eq_u32",None,sG,1)); e(branch("s_cbranch_scc1 L_k1_swap"))
        tail=sc.out
        sc=Sched(); e=sc.emit
        for j in range(3): e(trans("v_rcp_f32",RI0[j],vL[j]))
        s.stamp(sc,5,True)
        e(salu("s_mov_b32",sU,1)); e(salu("s_mov_b32",sWn,1))
        for x in s.flat(s.xpre()): e(x)
        e(wait_vm(('W',14))); e(barrier()); e(branch("s_branch L_k1_unit"))
        park=sc.out
        noatt=[]; swap=[]; qk0n=[]
        if s.mix:
            sc=Sched(); e=sc.emit
            e(label("L_k1_noatt")); e(nop(1))
            for x in rest: e(x)
            e(barrier())
            s.emit_item(sc,s.item_Wx(3) if s.early_op else s.item_W(('W',17)))
            for i4 in range(24):
                t,j=divmod(i4,3)
                for r in range(4): e(accwr(sub(PQ(i4),r),sub(QF(t,j),r)))
            e(salu("s_mov_b32",sWn,1))
            for x in s.flat(s.xpre()): e(x)
            e(wait_vm(('W',14))); e(barrier()); e(branch("s_branch L_k1_unit"))
            noatt=sc.out
            sc=Sched(); e=sc.emit
            e(label("L_k1_swap"))
            RI=[V(220+j) for j in range(3)]
            for j in range(3): e(trans("v_rcp_f32",RI[j],vL[j]))
            for i4 in range(24):
                t,j=divmod(i4,3); p=PARK_A(i4)
                for r in range(4):
                    e(accrd(sub(QF(t,j),r),sub(p,r)) if p[0]=='a' else valu("v_mov_b32",sub(QF(t,j),r),sub(p,r)))
            gi=0
            for t in range(8):
                for j in range(3):
                    base=160+8*(gi%6)
                    for x in s.drain_group(t,j,[V(base+r) for r in range(8)],RI[j],PARK_A(t*3+j)): e(x)
                    gi+=1
            s.stamp(sc,5,True)
            e(salu("s_mov_b32",sU,1))
            mf=[]
            for f,(kt,t) in enumerate(kmaj):
                for j in range(3): mf.append(mfma(SB(0,kt,j),KF(f),QF(t,j),0 if t==0 else SB(0,kt,j)))
            s.step(sc,'K','K',mf,kmaj,lambda en:('K',16),lambda en:('K',17),vmwait=[('K',17)],nxt_korder=kmaj)
            e(branch("s_branch L_k1_max"))
            swap=sc.out
        sc=Sched(); e=sc.emit
        e(label("L_k1_epi1"))
        if not s.early_op:
            for p in range(4): e(valu("v_add_u32",vWo[p],p*28672,V(22)))
            e(salu("s_mov_b32",sWw,s.oring+1-16384))
            e(barrier())
            for q in range(4): s.emit_item(sc,s.item_O(('P',q),q*114688,sNgC))
        RI=[V(220+j) for j in range(3)]
        for j in range(3): e(trans("v_rcp_f32",RI[j],vL[j]))
        gi=0
        for t in range(8):
            for j in range(3):
                base=160+8*(gi%6)
                for x in s.drain_group(t,j,[V(base+r) for r in range(8)],RI[j],QF(t,j)): e(x)
                gi+=1
        s.stamp(sc,5,True)
        last=(s.oring+1-16384)
        e(salu("s_mov_b32",sWr,last))
        if not s.early_op:
            for x in advN(sNgN,sNgC): e(x)
            e(barrier())
            for q in range(4,7): s.emit_item(sc,s.item_O(('P',q),(q&3)*114688,sNgN))
        for x in advN(sNgNN,sNgN): e(x)
        itP=lambda d:(lambda en:('P',4*en['g']+d))
        e(wait_vm(('P',0))); e(barrier())
        for x in s.adv_rd('O'): e(x)
        for x in s.addr_ops('O'): e(x)
        ksmaj=list(range(16)); Tmaj=[ks*4+T for T in range(4) for ks in range(4)]
        for f in range(3):
            for x in s.rdV(f,('P',0),"On"): e(x)
        e(wait_lgkm(("On",0,0),("On",0,1)))
        e(salu("s_mov_b32",sCNT,7)); e(salu("s_mov_b32",sPs,"0x40000000")); e(salu("s_mov_b32",sPs2,"0x40000000"))
        s.stamp(sc,13)
        oppro=sc.out
        def Bop(kq,ks,j):
            hh=kq>>1; t=4*(kq&1)+ks
            return PARK_A(t*3+j) if hh==0 else QF(t,j)
        sc=Sched(); e=sc.emit
        e(label("L_k1_oploop"))
        def cv(h,j):
            a=OPA(2*h,j); b=OPA(2*h+1,j); d=OPK(h,j)
            return [valu("v_cvt_pk_bf16_f32",sub(d,0),sub(a,0),sub(a,1)),valu("v_cvt_pk_bf16_f32",sub(d,1),sub(a,2),sub(a,3)),
                    valu("v_cvt_pk_bf16_f32",sub(d,2),sub(b,0),sub(b,1)),valu("v_cvt_pk_bf16_f32",sub(d,3),sub(b,2),sub(b,3))]
        def stores(h): return [vstore(OPK(h,j),vPst,sP,(sPs if j<2 else sPs2),((j*2048)%4096)+h*1024,tag='p',mod=s.stmod) for j in range(3)]
        carry_cv=[]
        for j in range(3): carry_cv+=cv(1,j)[2:]
        carry_st=stores(1)
        for kq in range(4):
            fo = Tmaj if kq==3 else ksmaj
            nfo = Tmaj if kq==2 else ksmaj
            mf=[]
            for f in range(16):
                ks,T=divmod(fo[f],4)
                for j in range(3): mf.append(mfma(OPA(T,j),VF(f),Bop(kq,ks,j),0 if (kq==0 and ks==0) else OPA(T,j)))
            late=s.item_O(itP(kq+7),((kq+7)&3)*114688,sNgN if kq==0 else sNgNN)
            q=[]; xs=[]; xe=[]; nd=None; XG=(5,14,23)
            if kq==0:
                q=[Filler(x) for x in carry_cv]
                def nd(gi,q0=list(carry_cv)): return q0 if gi==9 else ()
                xe=carry_st; XG=(11,17,23)
            if kq==1:
                xs=[(12,salu("s_cmp_eq_u32",None,sCNT,2)),(12,salu("s_cselect_b32",sub(sWo,2),0,sub(sWo,2))),
                    (13,salu("s_mul_i32",sPs,sNgC,48)),(15,salu("s_add_u32",sPs2,sPs,4096))]
            if kq==3:
                c0=[]
                for j in range(3): c0+=[Filler(x,[mf[(7*3)+j]]) for x in cv(0,j)]
                c2=[]
                for j in range(3): c2+=[Filler(x,[mf[(11*3)+j]]) for x in cv(1,j)[:2]]
                q=c0+c2; xe=stores(0); XG=(38,41,44)
                def nd(gi,c=[f.ins for f in c0]): return c if gi==38 else ()
                adv=advN(sNgNN,sNgNN)
                xs=[(42,salu("s_mov_b32",sNgC,sNgN)),(42,salu("s_mov_b32",sNgN,sNgNN)),(43,adv[0]),(45,adv[1]),(45,adv[2])]
            s.step(sc,'O','O',mf,None,itP(kq),itP(kq+1),late=late,extra_shadow=xs,xearly=xe,XG=XG,needs=nd,
                   vmwait=[itP(kq+1)],qfree=[q],qds=[q],forder=fo,nxt_forder=nfo,LG=(29,32,35,47) if kq==3 else (29,35,41,47))
            s.flush_all(sc,[q])
        e(salu("s_sub_u32",sCNT,sCNT,1)); e(salu("s_cmp_lg_u32",None,sCNT,0)); e(branch("s_cbranch_scc1 L_k1_oploop"))
        for x in [y for j in range(3) for y in cv(1,j)[2:]]: e(x)
        for x in stores(1): e(x)
        s.stamp(sc,14)
        e(branch("s_branch L_k1_fin" if s.prof else "s_branch L_k1_end"))
        oploop=sc.out
        sc=Sched(); s.rare(sc,1,"L_k1_rareF","L_k1_retF"); s.rare(sc,0,"L_k1_rare0","L_k1_ret0"); s.rare(sc,1,"L_k1_rare1","L_k1_ret1"); rare=sc.out
        endb=s.end_block()
        def add(tr,blk,**en):
            tr+=[(x,en) for x in blk if s.cond.get(id(x),lambda e_:True)(en)]
        def att(tr,G,u,w):
            add(tr,mblk,G=G,u=u,w=w,i=0)
            for it in range(7):
                add(tr,hB,G=G,u=u,w=w,i=2*it+1); add(tr,hA,G=G,u=u,w=w,i=2*it+2)
            add(tr,tail,G=G,u=u,w=w)
        def fin(tr,G):
            add(tr,oppro,G=G,u=1,w=1)
            for g in range(7): add(tr,oploop,G=G,g=g)
        t0=[]; add(t0,pro,G=0,u=0,w=0)
        add(t0,wblk,G=0,u=0,w=0); add(t0,qk0c,G=0,u=0,w=0); att(t0,0,0,0); add(t0,park,G=0,u=0,w=0)
        add(t0,wblk,G=0,u=1,w=1); add(t0,qk0c,G=0,u=1,w=1); att(t0,0,1,1); fin(t0,0)
        traces=[t0]
        if s.mix:
            t1=[]; add(t1,pro,G=1,u=0,w=0)
            add(t1,wblk,G=1,u=0,w=0,noA=True); add(t1,noatt,G=1,u=0,w=0)
            add(t1,wblk,G=1,u=0,w=1); add(t1,qk0c,G=1,u=0,w=1); att(t1,1,0,1); add(t1,swap,G=1,u=0,w=1)
            att(t1,1,1,1); fin(t1,1)
            traces.append(t1)
        resolve_waits_multi(traces)
        errs=[]
        for t in traces: errs+=check(t)
        code=pro+wblk+qk0c+mblk+hB+hA+tail+park+noatt+swap+oppro+oploop+rare+endb
        return code,errs
    def prologue_g(s, sc):
        n0=len(sc.out)
        K1F.prologue(s, sc)
        for idx,x in enumerate(sc.out):
            if x.text=="s_mov_b32 s36, 0":
                if s.mix: sc.out[idx:idx+1]=[raw(f"s_lshr_b32 s60, s2, {s.gbit}"),raw("s_and_b32 s60, s60, 1")]+([raw("s_xor_b32 s60, s60, 1")] if s.ginv else [])+[raw("s_lshl_b32 s36, s60, 9")]
                else: sc.out[idx:idx+1]=[raw("s_mov_b32 s60, 0"),x]
                break
        else: raise AssertionError("sWu init not found")
        sc.emit(salu("s_mov_b32",sWn,0))
    def end_block(s):
        endb=[]
        if s.prof:
            endb=[label("L_k1_fin"),raw("v_mov_b32 v3, v1","valu"),raw("v_mov_b32 v4, v15","valu"),wait_fixed(vm=0),raw("s_memtime s[98:99]"),raw("s_memrealtime s[100:101]"),raw("s_waitcnt lgkmcnt(0)"),
                  raw("s_mov_b32 s4, s98"),raw("s_mov_b32 s5, s100"),
                  raw("s_add_u32 s8, s96, 0x8000000"),raw("s_addc_u32 s9, s97, 0"),raw("s_and_b32 s9, s9, 0xffff"),raw("s_mov_b32 s10, 0x100000"),raw("s_mov_b32 s11, 0x20000"),
                  raw("s_lshl_b32 s3, s2, 10"),raw("s_lshl_b32 s38, s24, 8"),raw("s_add_u32 s3, s3, s38"),raw("v_mov_b32 v1, s3","valu")]
            for i,r in enumerate(list(range(66,96))+[4,5]):
                endb+=[raw(f"v_mov_b32 v2, s{r}","valu"),raw(f"buffer_store_dword v2, v1, s[8:11], 0 offen offset:{4*i}","valu"),raw("s_nop 1")]
            if s.fine:
                endb+=[raw("v_mbcnt_lo_u32_b32 v2, -1, 0","valu"),raw("v_mbcnt_hi_u32_b32 v2, -1, v2","valu"),raw("v_lshlrev_b32 v2, 2, v2","valu"),raw("s_lshl_b32 s3, s2, 11"),raw("s_lshl_b32 s38, s24, 9"),raw("s_add_u32 s3, s3, s38"),
                       raw("s_add_u32 s3, s3, 0x40000"),raw("v_add_u32 v2, s3, v2","valu"),raw("buffer_store_dword v3, v2, s[8:11], 0 offen","valu"),
                       raw("buffer_store_dword v4, v2, s[8:11], 0 offen offset:256","valu")]
            endb+=[raw("s_waitcnt vmcnt(0)")]
        endb+=[label("L_k1_end"),wait_fixed(vm=0),raw("s_endpgm","branch")]
        return endb

if __name__=="__main__":
    for mix in (False,True):
        k=K1G(mix=mix); code,errs=k.build()
        print("mix",mix,len(code),"instructions;",len(errs),"errors")
        for x in errs[:30]: print(x)
```

```python
from ir import *
from sched import *
import k1
from k1 import (K1, f32bits, vTID, vT, vKl, vVl, vKa, vVa, vKg, vVg, vWg, vMX, vTMP, vL, KF, VF, QA, QF, SB, PF, CI, OA,
                sK, sV, sW, sX, sWAVE, sU, sKs, sVs, sWs, sKw, sVw, sWw, sKr, sVr, sWr, sCNT, sT0, sT1, sC2, sTH, sWvK, sWvV,
                W_BASE, K_BASE, V_BASE, LDS_END, SCALE, THRESH)

vXg=[V(12),V(19),V(20)]; vPst=V(13); vXd=V(21); vXr=V(14); vXrl=V(23)
vWo=[V(24+p) for p in range(4)]
XBASE=[0]
XKEEP=[False]
def XF(s,j):
    st = (s if s<2 else 2+(s&1)) if XKEEP[0] else (s&3)
    return A(XBASE[0]+(st*3+j)*4,4)
def PARK_A(i4):
    if i4<16: return A(192+4*i4,4)
    if i4<22: return V(232+4*(i4-16),4)
    return V(56+4*(i4-22),4)
def PARK_T(i4):
    return A(192+4*i4,4) if i4<16 else A(48+4*(i4-16),4)
def OPA(T,j): return V(160+(T*3+j)*4,4)
def OPK(h,j): return V(208+(h*3+j)*4,4)
sP=S(20,4)
sWo=S(56,4)
sWk=S(35); sWu=S(36); sXk=S(40); sNgC=S(41); sNgN=S(45); sWoS=S(54); sPs=S(55); sPs2=S(60); sWvO=[S(62+p) for p in range(4)]
sRho=S(61); sDum=S(92,4); sNgNN=S(53); sC=S(42); sCinv=S(43); sXl=S(39,1); sXw=[S(40),S(54),S(55)]
PW=172032

class K1F(K1):
    def __init__(s, ntkv=True, stmod=" nt", prof=False, wmod="", xmod="", womod="", rot=True, fine=False, touch=True, defer=True, kvpos=None, prokv=('K0','K1'), even=True, fuse=False, rdmod=' sc1', outmod='', rel=False, latest=False, deep=True, dbgprof=False, pad=0, align=None, lscale=True, hide=True, xlds=True, xkeep=True, exp_delay=0, swapmap=False, xgrp=False):
        super().__init__(ntkv=ntkv, stmod=stmod, prof=False, wmod=wmod, xmod=xmod)
        s.prof=prof; s.womod=womod; s.rot=rot; s.fine=fine; s.touch=touch; s.defer=defer; s.only_u0=set(); s.only_u1=set(); s.kvpos=kvpos or {12:['V0','K2'],13:['V1']}; s.prokv=prokv; s.even=even; s.fuse=fuse; s.rdmod=rdmod; s.outmod=outmod
        s.rel=rel; s.latest=latest; s.deep=deep; s.dbgprof=dbgprof; s.pad=pad; s.lscale=lscale; s.hide=hide; s.xlds=xlds; s.exp_delay=exp_delay; s.swapmap=swapmap; s.xgrp=xgrp; s.xkeep=xkeep and xlds and hide; s.align=align; s.oring=0x1ffff if deep else 0xffff; s.onsl=8 if deep else 4; s.olook=7 if deep else 3
        if fuse and not rel: s.stmod=' sc1'
    def stamp(s, sc, idx, dyn=False):
        if not s.prof: return
        sc.emit(raw("s_memtime s[98:99]")); sc.emit(raw("s_memrealtime s[100:101]"))
        sc.emit(wait_fixed(lgkm=0))
        a=66+2*idx
        if not dyn:
            sc.emit(raw(f"s_mov_b32 s{a}, s98")); sc.emit(raw(f"s_mov_b32 s{a+1}, s100"))
        else:
            b=66+2*(idx+6)
            sc.emit(raw("s_cmp_eq_u32 s25, 0"))
            sc.emit(raw(f"s_cselect_b32 s{a}, s98, s{a}")); sc.emit(raw(f"s_cselect_b32 s{a+1}, s100, s{a+1}"))
            sc.emit(raw(f"s_cselect_b32 s{b}, s{b}, s98")); sc.emit(raw(f"s_cselect_b32 s{b+1}, s{b+1}, s100"))
    def item_W(s, item):
        pre=[salu("s_add_u32",sWk,sWk,262144), [salu("s_add_u32",sWw,sWw,16384),salu("s_and_b32",sWw,sWw,0xffff)],
             [salu("s_cmp_eq_u32",None,sWk,14*262144),salu("s_cselect_b32",sWk,0,sWk)], salu("s_add_u32",sWs,sWk,sWu)]
        pre=[pre[0],pre[2],pre[1],pre[3]]
        L=[(salu("s_add_u32","m0",sWw,sWvV[p]), dma(vWg,sW,sWs,p*128,item,lambda e,it=item:('W',ev(it,e)[1]%4),s.wmod)) for p in range(4)]
        return pre,L
    def item_K(s, item):
        pre=[salu("s_add_u32",sKs,sKs,16384), salu("s_add_u32",sKw,sKw,16384),
             [salu("s_cmp_eq_u32",None,sKw,V_BASE), salu("s_cselect_b32",sKw,K_BASE,sKw)]]
        L=[(salu("s_add_u32","m0",sKw,sWvK[p]), dma(vKg[p>>1],sK,sKs,(p&1)*256,item,lambda e,it=item:('K',ev(it,e)[1]%3),s.kvmod)) for p in range(4)]
        return pre,L
    def item_V(s, item):
        pre=[salu("s_add_u32",sVs,sVs,16384), salu("s_add_u32",sVw,sVw,16384),
             [salu("s_cmp_eq_u32",None,sVw,LDS_END), salu("s_cselect_b32",sVw,V_BASE,sVw)]]
        L=[(salu("s_add_u32","m0",sVw,sWvV[p]), dma(vVg,sV,sVs,p*128,item,lambda e,it=item:('V',ev(it,e)[1]%3),s.kvmod)) for p in range(4)]
        return pre,L
    def item_O(s, item, const, ng):
        pre=[salu("s_add_u32",sWoS,ng,const), [salu("s_add_u32",sWw,sWw,16384), salu("s_and_b32",sWw,sWw,s.oring)]]
        def slot(e,it=item):
            q=ev(it,e)[1]%s.onsl
            return ('W',q) if q<4 else (('K',q-4) if q<7 else ('V',0))
        L=[(salu("s_add_u32","m0",sWw,sWvO[p]), dma(vWo[p],sWo,sWoS,0,item,slot,s.womod)) for p in range(4)]
        return pre,L
    def adv_rd(s, typ):
        if typ=='O': return [salu("s_add_u32",sWr,sWr,16384),salu("s_and_b32",sWr,sWr,s.oring)]
        return super().adv_rd(typ)
    def addr_ops(s, typ):
        return super().addr_ops('W' if typ=='O' else typ)
    def xpre(s):
        return [salu("s_add_u32",sXk,sXk,128),[salu("s_cmp_eq_u32",None,sXk,896),salu("s_cselect_b32",sXk,0,sXk)]]
    def xloads(s, pos, tagfn):
        return [vload(XF(pos+d,j),vXg[j],sX,sXk,d*64,tag=tagfn(pos+d),mod=s.xmod) for j in range(3) for d in range(2)]
    def item_X(s, pos, tagfn, slotfn):
        item=tagfn(pos)
        L=[(salu("s_add_u32","m0",sXl,j*1024), dma(vXd,sX,sXw[j],(pos&1)*64,item,slotfn,s.xmod)) for j in range(3)]
        L=[(salu("s_add_u32","m0",sXl,j*1024+64-(pos&1)*64), dma(vXd,sX,sXw[j],(pos&1)*64,item,slotfn,s.xmod)) for j in range(3)]
        R=[dsread("ds_read_b128",XF(pos,j),vXr,j*1024,tag=('xr',pos&3,j),item=item) for j in range(3)]
        return L,R
    @staticmethod
    def flat(L):
        out=[]
        for x in L:
            if isinstance(x,list): out+=x
            else: out.append(x)
        return out
    def emit_item(s, sc, item_pair):
        pre,L=item_pair
        for x in s.flat(pre): sc.emit(x)
        for m,d in L: sc.emit(m); sc.emit(d)

    def step(s, sc, cur, nxt, mf, korder, cur_item, nxt_item, early=None, late=None, xearly=(), xpre=(),
             extra_shadow=(), extra_fixed=(), needs=None, vmwait=(), qfree=None, qds=None, nxt_korder=None,
             nobarrier=False, keep_addr=False, forder=None, nxt_forder=None,
             EG=(5,11,17,23), LG=(29,35,41,47), XG=(5,14,23), BG=24, dmas=(), pres=(), xwait=None):
        if s.fine:
            sc.emit(raw("s_memrealtime s[98:99]" if s.fine=="rt" else "s_memtime s[98:99]")); sc.emit(wait_fixed(lgkm=0))
            sc.emit(raw("s_and_b32 m0, s3, 63","salu",wr=M0)); sc.emit(raw("s_cmp_lt_u32 s3, 64"))
            sc.emit(raw("s_cselect_b32 s100, 0, 1")); sc.emit(raw("s_add_u32 s3, s3, 1")); sc.emit(raw("s_cmp_eq_u32 s100, 0"))
            lab=f"L_fine{len(s._fl)}"; s._fl.append(lab)
            sc.emit(branch(f"s_cbranch_scc0 {lab}_b"))
            sc.emit(raw("v_writelane_b32 v1, s98, m0","valu")); sc.emit(branch(f"s_branch {lab}_e"))
            sc.emit(label(f"{lab}_b")); sc.emit(raw("v_writelane_b32 v15, s98, m0","valu")); sc.emit(label(f"{lab}_e"))
        shadow=[[] for _ in range(48)]; fixed=[[] for _ in range(48)]
        tagc=cur+"c"; tagn=(nxt or "")+"n"; prevtag=cur+"n"
        def frag_reads(typ,f,order,item,tag,fo):
            if typ=='K':
                kt,t=order[f]; return s.rdK(f,kt,t,item,tag)
            T=fo[f] if fo else f
            r=VF(f); off=(T>>2)*1024+((T>>1)&1)*512
            return [dsread("ds_read_b64_tr_b16",sub(r,0,2),vVa[T&1],off,tag=(tag,f,0),item=item),
                    dsread("ds_read_b64_tr_b16",sub(r,2,2),vVa[T&1],off+8192,tag=(tag,f,1),item=item)]
        def tags(typ,f,tag): return [(tag,f)] if typ=='K' else [(tag,f,0),(tag,f,1)]
        for f in range(3,16):
            for q,x in enumerate(frag_reads(cur,f,korder,cur_item,tagc,forder)): fixed[3*(f-3)+q].append(x)
        for f in range(1,16):
            tg = tags(cur,f,tagc) if f>=3 else tags(cur,f,prevtag)
            shadow[3*f-1].append(wait_lgkm(*tg))
        reserved=set()
        if nxt:
            if not keep_addr:
                adv=s.adv_rd(nxt)
                ao=s.addr_ops(nxt)
                if cur=='K' and nxt!='K':
                    shadow[27].append(adv[0]); shadow[30].extend(adv[1:])
                    fixed[33].append(ao[0]); fixed[36].append(ao[1])
                else:
                    shadow[30].append(adv[0]); shadow[33].extend(adv[1:])
                    if nxt=='K': fixed[37].append(ao[0])
                    else: fixed[36].append(ao[0]); fixed[37].append(ao[1])
            for f in range(3):
                for q,x in enumerate(frag_reads(nxt,f,nxt_korder,nxt_item,tagn,nxt_forder)): fixed[39+3*f+q].append(x)
            shadow[47].append(wait_lgkm(*(tags(nxt,0,tagn)+([xwait] if xwait else []))))
        if vmwait: shadow[BG].append(wait_vm(*vmwait))
        if not nobarrier: shadow[BG+1].append(barrier())
        for it,G in ((early,EG),(late,LG)):
            if not it: continue
            for (m,d),g in zip(it[1],G):
                shadow[g-1].append(m); fixed[g].append(d); reserved.add(g-1)
        for g,(m,d) in dmas:
            shadow[g-1].append(m); fixed[g].append(d)
        for x,g in zip(xearly,XG): fixed[g].append(x)
        for gi,x in extra_shadow: shadow[gi].append(x)
        for gi,x in extra_fixed: fixed[gi].append(x)
        def place(groups, gp, lim):
            for G in groups:
                G = G if isinstance(G,list) else [G]
                while gp<48 and (shadow[gp] or gp%3==2): gp+=1
                assert gp<=lim,(gp,lim,groups)
                shadow[gp].extend(G); gp+=1
            return gp
        gp=0
        if early: gp=place(early[0], 0, EG[0]-2)
        if xpre: gp=place(list(xpre), 0, XG[0]-1)
        for groups,lo,hi in pres: place(groups, lo, hi)
        if late: gp=place(late[0], gp, LG[0]-2)
        for gi in range(48):
            nd = needs(gi) if needs else ()
            if nd: s.flush_needed(sc, nd, (qfree or [])+(qds or []))
            sc.gap(mf[gi], shadow[gi], fixed[gi], fill=False)
            used=max(0,len(shadow[gi])-1)+sum(COST.get(x.kind,1) for x in fixed[gi])
            slots=2-used
            hasds=any(x.kind=="ds" for x in fixed[gi])
            if slots>0: s.fillq(sc, slots, qds if hasds else qfree)

    def prologue(s, sc):
        e=sc.emit
        e(raw("s_cmp_ge_u32 s2, 256")); e(branch("s_cbranch_scc1 L_k1_end"))
        if s.exp_delay:
            e(raw("s_and_b32 s68, s2, 8")); e(raw("s_cmp_eq_u32 s68, 8")); e(branch("s_cbranch_scc0 L_k1_nodelay"))
            e(raw("s_memrealtime s[68:69]")); e(raw("s_waitcnt lgkmcnt(0)","waitraw"))
            e(label("L_k1_dl")); e(raw("s_memrealtime s[70:71]")); e(raw("s_waitcnt lgkmcnt(0)","waitraw"))
            e(raw("s_sub_u32 s72, s70, s68")); e(raw(f"s_cmp_lt_u32 s72, {s.exp_delay}")); e(branch("s_cbranch_scc1 L_k1_dl"))
            e(label("L_k1_nodelay"))
        e(raw("s_load_dwordx16 s[68:83], s[0:1], 0"))
        e(raw("s_load_dwordx4 s[84:87], s[0:1], 64"))
        e(raw("s_load_dwordx2 s[88:89], s[0:1], 96"))
        if s.prof:
            e(raw("s_memtime s[98:99]")); e(raw("s_memrealtime s[100:101]"))
        if s.swapmap:
            for t in ["s_and_b32 s90, s2, 7","s_and_b32 s91, s90, 1","s_lshl_b32 s91, s91, 1","s_lshr_b32 s92, s90, 1","s_and_b32 s92, s92, 1","s_or_b32 s91, s91, s92","s_and_b32 s90, s90, 4","s_or_b32 s90, s90, s91"]: e(raw(t))
        if s.xgrp:
            for t in ["s_and_b32 s90, s2, 7","s_lshr_b32 s91, s2, 3","s_lshr_b32 s92, s90, 2",
                      "s_and_b32 s93, s90, 3","s_lshl_b32 s93, s93, 2","s_lshr_b32 s94, s91, 3","s_add_u32 s93, s93, s94",
                      "s_and_b32 s96, s91, 7","s_lshl_b32 s95, s96, 1",
                      "s_lshl_b32 s61, s94, 1","s_add_u32 s61, s61, s96","s_cmp_ge_u32 s61, 7","s_cselect_b32 s97, 7, 0","s_sub_u32 s61, s61, s97",
                      "s_cmp_ge_u32 s61, 7","s_cselect_b32 s97, 7, 0","s_sub_u32 s61, s61, s97"]: e(raw(t))
        else:
          for t in [("s_and_b32 s90, s2, 7" if not s.swapmap else "s_nop 0"),"s_lshr_b32 s91, s2, 3","s_lshr_b32 s92, s90, 2",
                  "s_lshr_b32 s93, s90, 1","s_and_b32 s93, s93, 1","s_lshl_b32 s93, s93, 3","s_lshr_b32 s94, s91, 2","s_add_u32 s93, s93, s94",
                  "s_and_b32 s95, s90, 1","s_lshl_b32 s95, s95, 3","s_and_b32 s96, s91, 3","s_lshl_b32 s97, s96, 1","s_add_u32 s95, s95, s97"]:
            e(raw(t))
          if s.rot:
            for t in ["s_lshl_b32 s61, s96, 1","s_add_u32 s61, s61, s94","s_cmp_ge_u32 s61, 7","s_cselect_b32 s97, 7, 0","s_sub_u32 s61, s61, s97",
                      "s_cmp_ge_u32 s61, 7","s_cselect_b32 s97, 7, 0","s_sub_u32 s61, s61, s97"]: e(raw(t))
          else: e(raw("s_mov_b32 s61, 0"))
        e(valu("v_lshrrev_b32",vT,6,vTID))
        L=V(56); I=V(57); G=V(58); t0=V(59); t1=V(60); t2=V(61); KB=V(62); RR=V(63)
        e(valu("v_and_b32",L,63,vTID))
        e(valu("v_readfirstlane_b32",sWAVE,vT))
        e(valu("v_and_b32",I,15,L)); e(valu("v_lshrrev_b32",G,4,L))
        e(valu("v_bfe_u32",KB,L,4,1)); e(valu("v_bfe_u32",RR,L,2,2))
        e(valu("v_bfe_u32",t0,L,1,1)); e(valu("v_xor_b32",t0,t0,KB)); e(valu("v_lshlrev_b32",t0,5,t0))
        e(valu("v_lshrrev_b32",t1,5,L)); e(valu("v_lshl_add_u32",t0,t1,6,t0))
        e(valu("v_and_b32",t1,1,L)); e(valu("v_lshl_add_u32",t2,t1,4,t0))
        e(salu("s_and_b32",sT0,sWAVE,1)); e(salu("s_lshl_b32",sT0,sT0,4)); e(salu("s_lshr_b32",sT1,sWAVE,1)); e(salu("s_lshl_b32",sT1,sT1,2)); e(salu("s_add_u32",sT0,sT0,sT1))
        e(valu("v_lshl_add_u32",t0,KB,3,RR)); e(valu("v_add_u32",t0,sT0,t0)); e(valu("v_lshl_add_u32",vWg,t0,13,t2))
        e(salu("s_mul_i32",sT0,sWAVE,48)); e(valu("v_add_u32",t0,sT0,I)); e(salu("s_movk_i32",sT1,896))
        e(valu("v_mul_lo_u32",t0,t0,sT1)); e(valu("v_lshl_add_u32",vXg[0],G,4,t0))
        e(valu("v_add_u32",vXg[1],14336,vXg[0])); e(valu("v_add_u32",vXg[2],28672,vXg[0]))
        e(salu("s_lshl_b32",sT0,sWAVE,12))
        for p in range(4):
            e(salu("s_add_u32",sWvK[p],sT0,p*1024-(p&1)*256)); e(salu("s_add_u32",sWvV[p],sT0,p*896)); e(salu("s_add_u32",sWvO[p],sT0,p*1024))
        e(salu("s_mov_b32",sU,0)); e(salu("s_mov_b32",sKs,"0xffffc000")); e(salu("s_mov_b32",sVs,"0xffffc000"))
        e(salu("s_mov_b32",sKw,K_BASE+32768)); e(salu("s_mov_b32",sVw,V_BASE+32768)); e(salu("s_mov_b32",sWw,49152))
        e(salu("s_mov_b32",sKr,K_BASE)); e(salu("s_mov_b32",sVr,V_BASE+32768)); e(salu("s_mov_b32",sWr,49152))
        e(salu("s_lshl_b32",sWk,sRho,1)); e(salu("s_add_u32",sWk,sWk,13)); e(salu("s_cmp_ge_u32",None,sWk,14)); e(salu("s_cselect_b32",sT0,14,0)); e(salu("s_sub_u32",sWk,sWk,sT0)); e(salu("s_lshl_b32",sWk,sWk,18))
        e(salu("s_add_u32",sXk,sRho,6)); e(salu("s_cmp_ge_u32",None,sXk,7)); e(salu("s_cselect_b32",sT0,7,0)); e(salu("s_sub_u32",sXk,sXk,sT0)); e(salu("s_lshl_b32",sXk,sXk,7))
        e(salu("s_mov_b32",sWu,0))
        e(raw("s_waitcnt lgkmcnt(0)","waitraw"))
        e(raw("s_cmp_eq_u32 s92, 0"))
        for d,b in [(68,78),(69,79),(70,80),(71,81),(72,82),(73,83),(74,84),(75,85),(76,86),(77,87)]:
            e(raw(f"s_cselect_b32 s{d}, s{d}, s{b}"))
        for t in [
            "s_lshl_b32 s97, s95, 9",
            "s_add_u32 s12, s74, s97","s_addc_u32 s13, s75, 0","s_and_b32 s13, s13, 0xffff","s_sub_u32 s14, 3670016, s97","s_mov_b32 s15, 0x20000",
            "s_mul_i32 s97, s93, 172032",
            "s_add_u32 s16, s68, s97","s_addc_u32 s17, s69, 0","s_and_b32 s17, s17, 0xffff","s_mov_b32 s18, 172032","s_mov_b32 s19, 0x20000",
            ]: e(raw(t))
        if s.touch:
            e(raw("s_mul_i32 s97, s96, 48")); e(salu("s_mul_i32",sT0,sWAVE,12)); e(raw("s_add_u32 s97, s97, s38")); e(raw("s_mul_i32 s97, s97, 896"))
            e(valu("v_lshlrev_b32",t0,7,L)); e(valu("v_add_u32",t0,S(97),t0))
            e(touch(V(64),t0,sX,0))
            e(valu("v_add_u32",t1,8192,t0)); e(Ins("v_cmp_gt_u32 vcc, 20, v56","valu",rd=rs(L),wr=VCC)); e(valu("v_mov_b32",V(65),"0x7fffffff")); e(nop(0))
            e(Ins(f"v_cndmask_b32 {rt(t1)}, v65, {rt(t1)}, vcc","valu",rd=rs(t1,V(65))|VCC,wr=rs(t1)))
            e(touch(V(64),t1,sX,0))
        if s.touch is True:
            e(raw("s_mul_i32 s97, s94, 56")); e(salu("s_mul_i32",sT0,sWAVE,14)); e(raw("s_add_u32 s97, s97, s38"))
            e(valu("v_lshrrev_b32",t0,2,L)); e(valu("v_add_u32",t0,S(97),t0)); e(valu("v_lshlrev_b32",t0,13,t0))
            e(valu("v_and_b32",t1,3,L)); e(valu("v_lshl_add_u32",t0,t1,7,t0))
            e(Ins("v_cmp_gt_u32 vcc, 56, v56","valu",rd=rs(L),wr=VCC)); e(nop(1))
            e(Ins(f"v_cndmask_b32 {rt(t0)}, v65, {rt(t0)}, vcc","valu",rd=rs(t0,V(65))|VCC,wr=rs(t0)))
            e(touch(V(64),t0,sW,0))
        def kvsetup():
            for t in [
                "s_lshl_b32 s97, s93, 4","s_add_u32 s97, s97, s95","s_lshl_b32 s97, s97, 18",
                "s_add_u32 s4, s70, s97","s_addc_u32 s5, s71, 0","s_and_b32 s5, s5, 0xffff","s_mov_b32 s6, 524288","s_mov_b32 s7, 0x20000",
                "s_add_u32 s8, s72, s97","s_addc_u32 s9, s73, 0","s_and_b32 s9, s9, 0xffff","s_mov_b32 s10, 524288","s_mov_b32 s11, 0x20000",
                ]: e(raw(t))
            e(valu("v_lshl_add_u32",t0,KB,2,RR)); e(valu("v_lshl_add_u32",t0,t0,9,t2)); e(salu("s_lshl_b32",sT0,sWAVE,12)); e(valu("v_add_u32",vVg,sT0,t0))
            for q in range(2):
                e(salu("s_and_b32",sT0,sWAVE,1)); e(salu("s_lshl_b32",sT0,sT0,1)); e(salu("s_add_u32",sT0,sT0,q))
                e(salu("s_sub_u32",sT1,4,sT0)); e(salu("s_and_b32",sT1,sT1,3))
                e(valu("v_and_b32",t0,3,L)); e(valu("v_xor_b32",t0,sT1,t0)); e(valu("v_lshlrev_b32",t0,4,t0))
                e(valu("v_lshl_add_u32",t0,G,6,t0))
                e(salu("s_lshl_b32",sT0,sT0,2)); e(salu("s_lshr_b32",sT1,sWAVE,1)); e(salu("s_lshl_b32",sT1,sT1,4)); e(salu("s_add_u32",sT0,sT0,sT1))
                e(valu("v_add_u32",t1,sT0,RR)); e(valu("v_lshl_add_u32",vKg[q],t1,9,t0))
        if s.prokv or not s.defer: kvsetup()
        if s.defer:
            for nm in s.prokv:
                s.emit_item(sc, s.item_K(('K',int(nm[1]))) if nm[0]=='K' else s.item_V(('V',int(nm[1]))))
        s.emit_item(sc,s.item_W(('W',0)))
        for x in s.flat(s.xpre()): e(x)
        for x in s.xloads(0,lambda k:('x',0,k)): e(x)
        s.emit_item(sc,s.item_W(('W',1)))
        for t in [
            "s_mul_i32 s97, s95, 229376",
            "s_add_u32 s56, s76, s97","s_addc_u32 s57, s77, 0","s_and_b32 s57, s57, 0xffff","s_mov_b32 s58, 458752","s_mov_b32 s59, 0x20000",
            "s_lshl_b32 s97, s92, 4","s_add_u32 s97, s97, s93","s_lshl_b32 s97, s97, 3","s_lshr_b32 s90, s95, 1","s_add_u32 s97, s97, s90",
            f"s_mul_i32 s97, s97, {PW}",
            "s_add_u32 s20, s88, s97","s_addc_u32 s21, s89, 0","s_and_b32 s21, s21, 0xffff",f"s_mov_b32 s22, {PW}","s_mov_b32 s23, 0x20000",
            ]: e(raw(t))
        s.emit_item(sc,s.item_W(('W',2)))
        s.emit_item(sc,s.item_W(('W',3)))
        if s.defer and not s.prokv: kvsetup()
        if not s.defer:
            for n in range(3): s.emit_item(sc,s.item_K(('K',n)))
            for n in range(2): s.emit_item(sc,s.item_V(('V',n)))
        e(valu("v_lshrrev_b32",t0,2,I)); e(valu("v_sub_u32",t1,4,t0)); e(valu("v_and_b32",t1,3,t1)); e(valu("v_xor_b32",t1,t1,G))
        e(valu("v_lshlrev_b32",t1,4,t1)); e(valu("v_lshl_add_u32",t1,t0,11,t1)); e(valu("v_and_b32",t0,3,I)); e(valu("v_lshl_add_u32",vKl,t0,6,t1))
        e(valu("v_lshrrev_b32",t0,1,G)); e(valu("v_lshlrev_b32",t0,12,t0)); e(valu("v_lshl_add_u32",t0,KB,8,t0))
        e(valu("v_lshl_add_u32",t0,RR,6,t0)); e(valu("v_and_b32",t1,3,L)); e(valu("v_lshl_add_u32",t0,t1,3,t0))
        e(valu("v_lshl_add_u32",vVl[0],KB,5,t0))
        e(valu("v_xor_b32",t1,1,KB)); e(valu("v_lshl_add_u32",vVl[1],t1,5,t0))
        e(valu("v_add_u32",vKa,K_BASE,vKl))
        if s.xlds:
            e(valu("v_lshrrev_b32",t0,4,L)); e(valu("v_sub_u32",t0,4,t0)); e(valu("v_and_b32",t0,3,t0)); e(valu("v_and_b32",t1,3,L)); e(valu("v_xor_b32",t0,t0,t1))
            e(valu("v_lshlrev_b32",t0,4,t0)); e(valu("v_lshrrev_b32",t1,2,L)); e(salu("s_mul_i32",sT0,sWAVE,48)); e(valu("v_add_u32",t1,sT0,t1))
            e(salu("s_movk_i32",S(97),896)); e(valu("v_mul_lo_u32",t1,t1,S(97))); e(valu("v_add_u32",vXd,t0,t1))
            e(valu("v_lshrrev_b32",t0,2,I)); e(valu("v_sub_u32",t0,4,t0)); e(valu("v_and_b32",t0,3,t0)); e(valu("v_xor_b32",t0,t0,G))
            e(valu("v_lshlrev_b32",t0,4,t0)); e(valu("v_lshl_add_u32",t0,I,6,t0)); e(valu("v_add_u32",vXrl,64,t0))
        e(salu("s_mul_i32",sT0,sWAVE,43008)); e(valu("v_lshlrev_b32",t0,4,L)); e(valu("v_add_u32",vPst,sT0,t0))
        e(salu("s_lshr_b32",sT0,sWAVE,1)); e(salu("s_lshl_b32",sT0,sT0,4)); e(salu("s_and_b32",sT1,sWAVE,1)); e(salu("s_lshl_b32",sT1,sT1,3)); e(salu("s_add_u32",sT0,sT0,sT1))
        e(valu("v_lshl_add_u32",t0,KB,2,RR)); e(valu("v_add_u32",t0,sT0,t0)); e(salu("s_movk_i32",sT1,896)); e(valu("v_mul_lo_u32",t0,t0,sT1)); e(valu("v_add_u32",V(22),t0,t2))
        e(salu("s_mov_b32",sub(sC2,0),hex(f32bits(SCALE)))); e(salu("s_mov_b32",sub(sC2,1),hex(f32bits(1.0/SCALE if s.lscale else SCALE))))
        e(salu("s_mov_b32",sTH,hex(f32bits(THRESH))))
        e(salu("s_lshl_b32",sNgC,sRho,7))
        e(salu("s_mov_b32",sub(sDum,0),sub(sX,0))); e(salu("s_mov_b32",sub(sDum,1),sub(sX,1))); e(salu("s_mov_b32",sub(sDum,2),0)); e(salu("s_mov_b32",sub(sDum,3),"0x20000"))
        if s.prof:
            e(raw("s_mov_b32 s96, s88")); e(raw("s_mov_b32 s97, s89")); e(raw("s_mov_b32 s90, s98")); e(raw("s_mov_b32 s91, s100"))

    def conv_ops(s, t, j):
        m,c,p1,p2=super().conv_ops(t,j)
        return ([] if s.lscale else m),c,p1,p2
    def sm_add2(s, buf, qe):
        ex={list(f.ins.wr)[0]:f.ins for f in qe}
        q=[]
        for j in range(3):
            for kt in range(2):
                for r in range(4):
                    x=sub(SB(buf,kt,j),r); q.append(Filler(valu("v_add_f32",vL[j],vL[j],x),[ex[('v',x[1])]]))
        out=[]
        for i in range(8):
            for j in range(3): out.append(q[j*8+i])
        return q if False else [q[i] for i in range(24)]
    def sm_mul(s, buf):
        return [Filler(valu("v_mul_f32",sub(SB(buf,kt,j),r),sC,sub(SB(buf,kt,j),r))) for kt in range(2) for j in range(3) for r in range(4)]
    def rare(s, sc, buf, name, ret):
        e=sc.emit
        e(label(name)); e(nop(7)); e(nop(3))
        P0=208
        m=[V(P0+j) for j in range(3)]; tm=[V(P0+3+j) for j in range(3)]; al=[V(P0+6+j) for j in range(3)]
        for j in range(3):
            a=SB(buf,0,j); b=SB(buf,1,j)
            e(valu("v_max3_f32",m[j],sub(a,0),sub(a,1),sub(a,2)))
            e(valu("v_max3_f32",m[j],m[j],sub(a,3),sub(b,0)))
            e(valu("v_max3_f32",m[j],m[j],sub(b,1),sub(b,2)))
            e(valu("v_max_f32",m[j],m[j],sub(b,3)))
        for x in s.allreduce("v_max_f32",m,tm): e(x)
        for j in range(3): e(valu("v_max_f32",m[j],0,m[j]))
        for j in range(3):
            for kt in range(2):
                for r in range(4): e(valu("v_sub_f32",sub(SB(buf,kt,j),r),sub(SB(buf,kt,j),r),m[j]))
            if s.lscale:
                for r in range(4): e(Ins(f"v_fma_f32 {rt(sub(CI(j),r))}, -{rt(m[j])}, {rt(sCinv)}, {rt(sub(CI(j),r))}","valu",rd=rs(m[j],sCinv,sub(CI(j),r)),wr=rs(sub(CI(j),r))))
            else:
                for r in range(4): e(valu("v_sub_f32",sub(CI(j),r),sub(CI(j),r),m[j]))
            e(Ins(f"v_exp_f32_e64 {rt(al[j])}, -{rt(m[j])}","trans",rd=rs(m[j]),wr=rs(al[j])))
        for j in range(3): e(valu("v_mul_f32",vL[j],vL[j],al[j]))
        for T in range(16):
            for j in range(3):
                t=[V(P0+r) for r in range(4)] if False else [V(P0+0),V(P0+1),V(P0+2),V(P0+3)]
                t=[V(P0+9),V(P0+10),V(P0+11),vTMP]
                for r in range(4): e(accrd(t[r],sub(OA(T,j),r)))
                for r in range(4): e(valu("v_mul_f32",t[r],t[r],al[j]))
                for r in range(4): e(accwr(sub(OA(T,j),r),t[r]))
        e(nop(3))
        e(branch(f"s_branch {ret}"))

    def rstamp(s, sc, r):
        if not s.prof: return
        sc.emit(raw("s_memrealtime s[98:99]")); sc.emit(raw("s_waitcnt lgkmcnt(0)")); sc.emit(raw(f"s_mov_b32 s{r}, s98"))
    def dump_code(s):
        L=[raw("s_add_u32 s56, s96, 0x8000000"),raw("s_addc_u32 s57, s97, 0"),raw("s_and_b32 s57, s57, 0xffff"),raw("s_mov_b32 s58, 0x100000"),raw("s_mov_b32 s59, 0x20000"),
           raw("s_lshl_b32 s3, s2, 10"),raw("s_lshl_b32 s38, s24, 8"),raw("s_add_u32 s3, s3, s38"),raw("v_mov_b32 v1, s3","valu")]
        for i,r in enumerate(range(66,96)):
            L+=[raw(f"v_mov_b32 v2, s{r}","valu"),raw(f"buffer_store_dword v2, v1, s[56:59], 0 offen offset:{4*i}","valu"),raw("s_nop 1")]
        return L
    def reduce_tail(s, sc):
        e=sc.emit
        sDbg=S(4,4); sGP=S(8,4); sOut=S(12,4)
        e(raw("s_load_dwordx4 s[68:71], s[0:1], 80"))
        e(raw("s_load_dwordx2 s[72:73], s[0:1], 96"))
        for t in ["s_and_b32 s74, s2, 7","s_lshr_b32 s75, s2, 3","s_lshr_b32 s76, s74, 2",
                  "s_lshr_b32 s77, s74, 1","s_and_b32 s77, s77, 1","s_lshl_b32 s77, s77, 3","s_lshr_b32 s78, s75, 2","s_add_u32 s77, s77, s78",
                  "s_and_b32 s79, s74, 1","s_lshl_b32 s79, s79, 2","s_and_b32 s80, s75, 3","s_add_u32 s79, s79, s80",
                  "s_lshl_b32 s81, s76, 4","s_add_u32 s81, s81, s77"]:
            e(raw(t))
        e(wait_fixed(vm=0,lgkm=0))
        s.rstamp(sc,60)
        for t in ["s_mov_b32 s4, s70","s_and_b32 s5, s71, 0xffff","s_mov_b32 s6, 256","s_mov_b32 s7, 0x20000",
                  f"s_mul_i32 s82, s81, {8*PW}",
                  "s_add_u32 s8, s72, s82","s_addc_u32 s9, s73, 0","s_and_b32 s9, s9, 0xffff",f"s_mov_b32 s10, {8*PW}","s_mov_b32 s11, 0x20000",
                  "s_mov_b32 s12, s68","s_and_b32 s13, s69, 0xffff","s_mov_b32 s14, 5505024","s_mov_b32 s15, 0x20000"]:
            e(raw(t))
        e(barrier())
        e(salu("s_cmp_eq_u32",None,sWAVE,0)); e(branch("s_cbranch_scc0 L_k1_rwait"))
        e(raw("s_lshl_b32 s82, s81, 2")); e(valu("v_mov_b32",V(2),S(82))); e(valu("v_mov_b32",V(3),1))
        if s.rel:
            e(raw("buffer_wbl2 sc1","vmemraw")); e(raw("s_waitcnt vmcnt(0)"))
        e(raw("s_mov_b64 exec, 1"))
        e(raw("buffer_atomic_add v3, v2, s[4:7], 0 offen sc1","vmemraw"))
        e(raw("s_waitcnt vmcnt(0)"))
        e(raw("s_mov_b32 s83, 0x40000"))
        e(label("L_k1_poll"))
        e(raw("buffer_load_dword v4, v2, s[4:7], 0 offen sc1","vmemraw"))
        e(raw("s_waitcnt vmcnt(0)"))
        e(raw("v_readfirstlane_b32 s84, v4","valu"))
        e(raw("s_sub_u32 s83, s83, 1"))
        e(raw("s_cmp_eq_u32 s83, 0")); e(branch("s_cbranch_scc1 L_k1_pollend"))
        e(raw("s_cmp_lt_u32 s84, 8")); e(branch("s_cbranch_scc1 L_k1_poll"))
        e(label("L_k1_pollend"))
        e(raw("s_mov_b64 exec, -1"))
        if s.rel:
            e(raw("buffer_inv sc1","vmemraw")); e(raw("s_waitcnt vmcnt(0)"))
        e(label("L_k1_rwait"))
        e(barrier())
        s.rstamp(sc,61)
        vL_=V(2); vI=V(3); vG=V(4); vA=V(5); vO=V(6); t0=V(7)
        e(raw("v_mbcnt_lo_u32_b32 v2, -1, 0","valu")); e(raw("v_mbcnt_hi_u32_b32 v2, -1, v2","valu")); e(valu("v_and_b32",vI,15,vL_)); e(valu("v_lshrrev_b32",vG,4,vL_))
        e(valu("v_lshlrev_b32",vA,4,vL_))
        e(raw("s_mul_i32 s85, s79, 21")); e(salu("s_add_u32",S(86),S(85),sWAVE)); e(raw("s_add_u32 s85, s85, 21"))
        for hp in range(1,8): e(salu("s_mov_b32",S(26+hp),hp*PW))
        def buf(i,hp): return V(64+(i*8+hp)*4,4)
        uo=[S(40+i) for i in range(6)]
        for i in range(6):
            e(salu("s_add_u32",S(87),S(86),4*i)); e(salu("s_lshl_b32",uo[i],S(87),10))
            e(salu("s_cmp_lt_u32",None,S(87),S(85))); e(salu("s_cselect_b32",uo[i],uo[i],"0x40000000"))
        va=[V(8+i) for i in range(6)]
        for i in range(6): e(valu("v_add_u32",va[i],uo[i],vA))
        def ld(i):
            for hp in range(8): e(vload(buf(i,hp),va[i],sGP,0 if hp==0 else S(26+hp),0,tag=('r',i,hp),mod=s.rdmod))
        ld(0); ld(1)
        e(raw("s_mul_i32 s88, s77, 192")); e(raw("s_mul_i32 s89, s76, 896"))
        e(valu("v_mov_b32",t0,1792)) if False else None
        e(salu("s_movk_i32",S(90),1792)); e(valu("v_mul_lo_u32",vO,vI,S(90))); e(valu("v_lshl_add_u32",vO,vG,4,vO))
        oo=[S(46+i) for i in range(6)]
        for i in range(6):
            e(salu("s_add_u32",S(87),S(86),4*i))
            e(raw("s_mul_i32 s91, s87, 1561")); e(raw("s_lshr_b32 s91, s91, 16"))
            e(raw("s_mul_i32 s92, s91, 42")); e(raw("s_sub_u32 s92, s87, s92"))
            e(raw("s_mul_i32 s93, s92, 43")); e(raw("s_lshr_b32 s93, s93, 8"))
            e(raw("s_mul_i32 s94, s93, 6")); e(raw("s_sub_u32 s94, s92, s94"))
            e(raw("s_lshr_b32 s95, s94, 1")); e(raw("s_and_b32 s94, s94, 1"))
            e(raw("s_mul_i32 s91, s91, 48")); e(raw("s_lshl_b32 s95, s95, 4")); e(raw("s_add_u32 s91, s91, s95")); e(raw("s_add_u32 s91, s91, s88"))
            e(raw("s_mul_i32 s91, s91, 1792")); e(raw("s_lshl_b32 s93, s93, 7")); e(raw("s_lshl_b32 s94, s94, 6"))
            e(raw("s_add_u32 s91, s91, s93")); e(raw("s_add_u32 s91, s91, s94")); e(salu("s_add_u32",oo[i],S(91),S(89)))
            e(salu("s_cmp_lt_u32",None,S(87),S(85))); e(salu("s_cselect_b32",oo[i],oo[i],"0x40000000"))
        e(salu("s_mov_b32",S(52),"0xffff0000"))
        s.rstamp(sc,62)
        acc=[V(16+i) for i in range(8)]; tl=[V(24+i) for i in range(8)]
        for i in range(6):
            if i+2<6: ld(i+2)
            for hp in range(8):
                e(wait_vm(('r',i,hp)))
                b=buf(i,hp); dst = acc if hp==0 else tl
                for r in range(4):
                    e(valu("v_lshlrev_b32",dst[2*r],16,sub(b,r))); e(valu("v_and_b32",dst[2*r+1],S(52),sub(b,r)))
                if hp:
                    for r in range(8): e(valu("v_add_f32",acc[r],acc[r],tl[r]))
            X=V(32+4*(i&1),4)
            for r in range(4): e(valu("v_cvt_pk_bf16_f32",sub(X,r),acc[2*r],acc[2*r+1]))
            e(perm("v_permlane32_swap_b32",sub(X,0),sub(X,2))); e(perm("v_permlane32_swap_b32",sub(X,1),sub(X,3)))
            e(perm("v_permlane16_swap_b32",sub(X,0),sub(X,2))); e(perm("v_permlane16_swap_b32",sub(X,1),sub(X,3)))
            e(vstore(X,vO,sOut,oo[i],0,tag='o',mod=s.outmod))
        if s.prof:
            s.rstamp(sc,63); e(wait_fixed(vm=0)); s.rstamp(sc,64)
            for i,r in enumerate((60,61,62,63,64)):
                e(raw(f"v_mov_b32 v2, s{r}","valu")); e(raw(f"buffer_store_dword v2, v1, s[56:59], 0 offen offset:{128+4*i}","valu")); e(raw("s_nop 1"))

    def accmov(s,d,a): return Ins(f"v_accvgpr_mov_b32 {rt(d)}, {rt(a)}","valu",rd=rs(a),wr=rs(d))
    def drain_group(s,t,j,T8,RI,dst):
        L=[]
        base=T8[0][1]
        for r in range(4): L.append(accrd(T8[r],sub(OA(2*t,j),r)))
        for r in range(4): L.append(accrd(T8[4+r],sub(OA(2*t+1,j),r)))
        for r in range(8): L.append(valu("v_mul_f32",T8[r],T8[r],sub(RI,0)))
        if dst[0]=='v':
            for r in range(4): L.append(valu("v_cvt_pk_bf16_f32",sub(dst,r),T8[2*r],T8[2*r+1]))
        else:
            for r in range(4): L.append(valu("v_cvt_pk_bf16_f32",T8[r],T8[2*r],T8[2*r+1]))
            for r in range(4): L.append(accwr(sub(dst,r),T8[r]))
        return L
    def build(s):
        XBASE[0]=192 if s.hide else 0
        XKEEP[0]=s.xkeep
        s._fl=[]
        sc=Sched(); s.prologue(sc)
        if s.fine: sc.emit(raw('s_mov_b32 s3, 0')); sc.emit(raw('v_mov_b32 v1, 0','valu')); sc.emit(raw('v_mov_b32 v15, 0','valu'))
        sc.emit(wait_vm(('W',0),('x',0,0))); sc.emit(barrier())
        pro=sc.out
        sc=Sched(); e=sc.emit
        if s.align: e(raw(f".p2align {s.align}","label"))
        for q in range(s.pad): e(nop(0))
        e(label("L_k1_unit"))
        itW=lambda k:(lambda en:('W',14*en['u']+k))
        itK=lambda n:(lambda en:('K',16*en['u']+n))
        xt=lambda k:(lambda en:('x',en['u'],k))
        s.stamp(sc,0,True)
        if s.xlds:
            e(salu("s_cmp_eq_u32",None,sU,0)); e(salu("s_cselect_b32",sXl,32768,0)); e(salu("s_add_u32",sXl,sXl,V_BASE))
            e(salu("s_lshl_b32",sT0,sWAVE,12)); e(salu("s_add_u32",sXl,sXl,sT0)); e(valu("v_add_u32",vXr,sXl,vXrl))
        for x in s.adv_rd('W'): e(x)
        for x in s.addr_ops('W'): e(x)
        for f in range(3):
            for x in s.rdV(f,itW(0),"Wn"): e(x)
        e(wait_lgkm(("Wn",0,0),("Wn",0,1)))
        kmaj=[(kt,t) for kt in range(2) for t in range(8)]
        tmaj=[(kt,t) for t in range(8) for kt in range(2)]
        qconv=[]; convdone={}
        qepi=[]
        RI0=[V(56+2*j,1) for j in range(3)]
        def PT(i4):
            t,j=divmod(i4,3)
            return PARK_A(i4) if 12<=i4<16 else OA(2*t,j)
        if s.hide:
            for n,i4 in enumerate([6,7,8,9,10,11,12,13,14,15,0,1,2,3,4,5]+list(range(16,24))):
                t,j=divmod(i4,3); base=24+8*(n&1)
                qepi+=[Filler(x) for x in s.drain_group(t,j,[V(base+r) for r in range(8)],RI0[j],PT(i4))]
        for k in range(14):
            mf=[mfma(QA(T,j),VF(T),XF(k,j),0 if k==0 else QA(T,j)) for T in range(16) for j in range(3)]
            xe=[]; xp=[]; xd=[]; xs2=[]; xf2=[]
            if not s.xlds:
                if k%2==0 and k<=10:
                    xl=s.xloads(k+2,xt); xe=xl[0::2]; xp=s.xpre(); xrest=xl[1::2]
                elif k%2==1 and k<=11:
                    xe=xrest
            else:
                xslot=lambda en:('V',(16*en['u']+2)%3)
                xitem=lambda p:(lambda en:('X',14*en['u']+p))
                if k<=11:
                    L,_=s.item_X(k+2,xitem,xslot)
                    xd=list(zip((14,17,20),L))
                    if k%2==0:
                        xp=s.xpre()+[salu("s_add_u32",sXw[1],sXk,14336),salu("s_add_u32",sXw[2],sXk,28672)]
                if 1<=k<=12:
                    _,R=s.item_X(k+1,xitem,xslot)
                    xs2=[(1,wait_vm(xitem(k+1))),(12,wait_lgkm(('xr',(k+1)&3,0),('xr',(k+1)&3,1),('xr',(k+1)&3,2)))]
                    xf2=list(zip((2,5,8),R))
            late=s.item_W(itW(k+3)) if k>=1 else None
            xs=[]
            if k==11:
                xs=[(0,salu("s_add_u32",sWu,sWu,512)),
                    (15,salu("s_cmp_eq_u32",None,sU,1)),(15,salu("s_cselect_b32",sub(sW,2),0,sub(sW,2)))]
            if s.defer and k in s.kvpos:
                its=[]
                for nm in s.kvpos[k]:
                    its.append(s.item_K(('K',int(nm[1]))) if nm[0]=='K' else s.item_V(('V',int(nm[1]))))
                e(salu("s_cmp_eq_u32",None,sU,0)); e(branch(f"s_cbranch_scc0 L_k1_skip{k}"))
                n0=len(sc.out)
                for it in its: s.emit_item(sc,it)
                e(branch(f"s_branch L_k1_join{k}"))
                for x in sc.out[n0:]: s.only_u0.add(id(x))
                e(label(f"L_k1_skip{k}"))
                n0=len(sc.out)
                for q in range(4*len(its)): e(touch(V(0),vKa,sDum,0))
                for x in sc.out[n0:]: s.only_u1.add(id(x))
                e(label(f"L_k1_join{k}"))
            queues=[qepi] if (s.hide and k<=12) else []
            if s.hide and k==12 and not s.xkeep:
                for i4 in range(6,12):
                    for r in range(4): qepi.append(Filler(s.accmov(sub(PARK_A(i4),r),sub(PT(i4),r))))
            if k==13:
                groups=[]
                for t in range(8):
                    for j in range(3):
                        last=mf[(2*t+1)*3+j]
                        groups.append((t,j,last,s.conv_ops(t,j)))
                n=len(groups)
                for i in range(n+2):
                    if i<n:
                        t,j,last,(m,c,p1,p2)=groups[i]
                        for x in m: qconv.append(Filler(x,[last]))
                        for x in c: qconv.append(Filler(x,[last]))
                    if 0<=i-1<n:
                        t,j,last,(m,c,p1,p2)=groups[i-1]
                        for x in p1: qconv.append(Filler(x))
                    if 0<=i-2<n:
                        t,j,last,(m,c,p1,p2)=groups[i-2]
                        for x in p2: qconv.append(Filler(x))
                        convdone[(t,j)]=p2
                queues=[qconv]
            if k<13:
                if s.xlds:
                    vw=[itW(k+1)]+([xt(k+1)] if k+1<2 else [])
                    s.step(sc,'W','W',mf,None,itW(k),itW(k+1),late=late,extra_shadow=list(xs)+xs2+([(3*0+47,wait_lgkm(('xr',(k+1)&3,2)))] if False else []),
                           extra_fixed=xf2,dmas=xd,pres=[(xp,0,11)] if xp else (),vmwait=vw,qfree=queues,qds=queues)
                else:
                    s.step(sc,'W','W',mf,None,itW(k),itW(k+1),xearly=xe,xpre=xp,late=late,extra_shadow=xs,
                           vmwait=[itW(k+1),xt(k+1)],qfree=queues,qds=queues)
                if s.hide and k==12: s.flush_all(sc,[qepi])
            else:
                s.step(sc,'W','K',mf,None,itW(k),itK(0),late=late,extra_shadow=list(xs)+xs2,extra_fixed=xf2,
                       vmwait=[itK(0)],qfree=queues,qds=queues,nxt_korder=tmaj,keep_addr=True)
        s.stamp(sc,1,True)
        mf=[]
        for f,(kt,t) in enumerate(tmaj):
            for j in range(3): mf.append(mfma(SB(0,kt,j),KF(f),QF(t,j),0 if t==0 else SB(0,kt,j)))
        def needs0(gi):
            f,j=divmod(gi,3); kt,t=tmaj[f]
            nd=list(convdone[(t,j)])
            if t==0 and kt==1: nd+=convdone[(1,j)]
            return nd
        s.step(sc,'K','K',mf,tmaj,itK(0),itK(1),late=s.item_W(itW(17)),
               vmwait=[itK(1)],qfree=[qconv],qds=[qconv],needs=needs0,nxt_korder=kmaj)
        assert not qconv
        m=[V(208+j) for j in range(3)]; tm=[V(211+j) for j in range(3)]
        e(barrier())
        if s.even:
            pre,L=s.item_K(itK(3))
            for x in s.flat(pre): e(x)
            for m_,d_ in L[:2]: e(m_); e(d_)
        else: s.emit_item(sc,s.item_K(itK(3)))
        mv=[]
        if s.hide and s.xkeep:
            e(salu("s_cmp_eq_u32",None,sU,1)); e(branch("s_cbranch_scc0 L_k1_nomv"))
            n0=len(sc.out)
            for i4 in range(0,12):
                for r in range(4): e(s.accmov(sub(PARK_A(i4),r),sub(PT(i4),r)))
            for x in sc.out[n0:]: s.only_u1.add(id(x))
            e(label("L_k1_nomv"))
            for i4 in range(16,24):
                for r in range(4): mv.append(accrd(sub(PARK_A(i4),r),sub(PT(i4),r)))
        elif s.hide:
            for i4 in range(0,6):
                for r in range(4): mv.append(s.accmov(sub(PARK_A(i4),r),sub(PT(i4),r)))
            for i4 in range(16,24):
                for r in range(4): mv.append(accrd(sub(PARK_A(i4),r),sub(PT(i4),r)))
        else:
            for i4 in range(16,24):
                for r in range(4): mv.append(accrd(sub(PARK_A(i4),r),sub(PARK_T(i4),r)))
        for j in range(3):
            a=SB(0,0,j); e(valu("v_max3_f32",m[j],sub(a,0),sub(a,1),sub(a,2)))
        for j in range(3):
            a=SB(0,0,j); b=SB(0,1,j); e(valu("v_max3_f32",m[j],m[j],sub(a,3),sub(b,0)))
        for j in range(3):
            b=SB(0,1,j); e(valu("v_max3_f32",m[j],m[j],sub(b,1),sub(b,2)))
        for j in range(3):
            b=SB(0,1,j); e(valu("v_max_f32",m[j],m[j],sub(b,3)))
        for x in s.allreduce("v_max_f32",m,tm): e(x)
        for j in range(3):
            for r in range(4): e(valu("v_sub_f32",sub(CI(j),r),0,m[j]))
        for j in range(3): e(valu("v_mov_b32",vL[j],0))
        if s.lscale:
            for j in range(3): e(valu("v_mul_f32",tm[j],sC,m[j]))
            for j in range(3):
                for kt in range(2):
                    for r in range(4):
                        x=sub(SB(0,kt,j),r)
                        e(Ins(f"v_fma_f32 {rt(x)}, {rt(x)}, {rt(sC)}, -{rt(tm[j])}","valu",rd=rs(x,sC,tm[j]),wr=rs(x)))
        else:
            for j in range(3):
                for kt in range(2):
                    for r in range(4): e(valu("v_sub_f32",sub(SB(0,kt,j),r),sub(SB(0,kt,j),r),m[j]))
        s.stamp(sc,2,True)
        def half(sc,buf,first=False,extraq=None):
            nb=1-buf
            iK=lambda d:(lambda en:('K',16*en['u']+en['i']+d))
            iV=lambda d:(lambda en:('V',16*en['u']+en['i']+d))
            qe,qc,pd=s.sm_exp(buf)
            qa=s.sm_add2(buf,qe)
            mf=[]
            for f,(kt,t) in enumerate(kmaj):
                for j in range(3): mf.append(mfma(SB(nb,kt,j),KF(f),QF(t,j),CI(j) if t==0 else SB(nb,kt,j)))
            xq=[extraq] if extraq is not None else []
            if s.even:
                preV,LV=s.item_V(iV(2)); _,LKprev=s.item_K(iK(3)); preK,LK=s.item_K(iK(4))
                s.step(sc,'K','V',mf,kmaj,iK(1),iV(0),vmwait=[iV(0)],qfree=[qe,qc]+xq+[qa],qds=[qc]+xq+[qa],
                       dmas=[(5,LKprev[2]),(17,LKprev[3]),(29,LV[0]),(41,LV[1])],pres=[(preV,18,27)])
            else:
                s.step(sc,'K','V',mf,kmaj,iK(1),iV(0),vmwait=[iV(0)],qfree=[qe,qc]+xq,qds=[qc]+xq)
            qm=(s.sm_mul(nb) if s.lscale else [])+s.sm_max(nb)
            mf=[mfma(OA(T,j),VF(T),PF(j),0 if first else OA(T,j)) for T in range(16) for j in range(3)]
            def needs(gi):
                nd=list(pd[gi]) if gi<3 else []
                if gi==0 and extraq is not None: nd+=[f.ins for f in extraq]
                return nd
            if s.even:
                s.step(sc,'V','K',mf,None,iV(0),iK(2),vmwait=[iK(2)],qfree=[qe,qc,qm,qa]+xq,qds=[qc,qm,qa]+xq,needs=needs,nxt_korder=kmaj,
                       dmas=[(5,LV[2]),(17,LV[3]),(29,LK[0]),(41,LK[1])],pres=[(preK,18,27)])
            else:
                s.step(sc,'V','K',mf,None,iV(0),iK(2),early=s.item_V(iV(2)),late=s.item_K(iK(4)),
                       vmwait=[iK(2)],qfree=[qe,qc,qm,qa]+xq,qds=[qc,qm,qa]+xq,needs=needs,nxt_korder=kmaj)
            s.flush_all(sc,[qe,qc,qa,qm])
            return nb
        nb=half(sc,0,first=True,extraq=[Filler(x) for x in mv])
        e(branch(f"s_cbranch_vccnz L_k1_rareF")); e(label("L_k1_retF"))
        e(salu("s_mov_b32",sCNT,7))
        wblk=sc.out
        sc=Sched(); sc.emit(label("L_k1_loop"))
        half(sc,1); sc.emit(branch("s_cbranch_vccnz L_k1_rare0")); sc.emit(label("L_k1_ret0"))
        hB=sc.out
        sc=Sched()
        half(sc,0); sc.emit(branch("s_cbranch_vccnz L_k1_rare1")); sc.emit(label("L_k1_ret1"))
        sc.emit(salu("s_sub_u32",sCNT,sCNT,1)); sc.emit(salu("s_cmp_lg_u32",None,sCNT,0)); sc.emit(branch("s_cbranch_scc1 L_k1_loop"))
        hA=sc.out
        sc=Sched(); e=sc.emit
        s.stamp(sc,3,True)
        iV=lambda d:(lambda en:('V',16*en['u']+15+d))
        e(wait_vm(iV(0))); e(barrier())
        if s.even:
            _,L=s.item_K(lambda en:('K',16*en['u']+18))
            for m_,d_ in L[2:]: e(m_); e(d_)
        if s.hide and not s.xkeep:
            e(salu("s_cmp_eq_u32",None,sU,0)); e(branch("s_cbranch_scc0 L_k1_nox"))
            n0=len(sc.out)
            for x in s.flat(s.xpre()): e(x)
            for x in s.xloads(0,lambda k:(lambda en:('x',en['u']+1,k))): e(x)
            for x in sc.out[n0:]: s.only_u0.add(id(x))
            e(label("L_k1_nox"))
        for x in s.adv_rd('V'): e(x)
        for x in s.addr_ops('V'): e(x)
        for f in range(3):
            for x in s.rdV(f,iV(0),"Vn"): e(x)
        qe,qc,pd=s.sm_exp(1)
        for j in range(3):
            for _ in range(8): e(qe.pop(0).ins)
            for _ in range(4): e(qc.pop(0).ins)
        e(wait_lgkm(("Vn",0,0),("Vn",0,1)))
        qa=s.sm_add(1)
        mf=[mfma(OA(T,j),VF(T),PF(j),OA(T,j)) for T in range(16) for j in range(3)]
        s.step(sc,'V',None,mf,None,iV(0),None,early=s.item_V(iV(2)),nobarrier=True,qfree=[qa],qds=[qa])
        s.flush_all(sc,[qa])
        s.stamp(sc,4,True)
        tm=[V(208+j) for j in range(3)]
        def opfirst():
            if s.deep:
                for p in range(4): e(valu("v_add_u32",vWo[p],p*28672,V(22)))
                e(salu("s_mov_b32",sWw,s.oring+1-16384))
                e(barrier())
                for q in range(4): s.emit_item(sc,s.item_O(('P',q),q*114688,sNgC))
        if s.hide:
            for x in s.allreduce("v_add_f32",vL,tm): e(x)
            e(salu("s_cmp_eq_u32",None,sU,1)); e(branch("s_cbranch_scc1 L_k1_epi1"))
            epi=sc.out
            sc=Sched(); e=sc.emit
            for j in range(3): e(trans("v_rcp_f32",RI0[j],vL[j]))
            s.stamp(sc,5,True)
            e(salu("s_mov_b32",sU,1))
            if s.xkeep:
                for x in s.flat(s.xpre()): e(x)
                e(wait_vm(('W',14)))
            else: e(wait_vm(('W',14),('x',1,0)))
            e(barrier()); e(branch("s_branch L_k1_unit"))
            park=sc.out
            sc=Sched(); e=sc.emit
            e(label("L_k1_epi1"))
            opfirst()
            RI=[V(220+j) for j in range(3)]
            for j in range(3): e(trans("v_rcp_f32",RI[j],vL[j]))
            gi=0
            for t in range(8):
                for j in range(3):
                    base=160+8*(gi%6)
                    for x in s.drain_group(t,j,[V(base+r) for r in range(8)],RI[j],QF(t,j)): e(x)
                    gi+=1
            s.stamp(sc,5,True)
            epi1=sc.out
            sc=Sched(); e=sc.emit
        else:
            if s.deep:
                e(salu("s_cmp_eq_u32",None,sU,1)); e(branch("s_cbranch_scc0 L_k1_nop0"))
                n0=len(sc.out)
                opfirst()
                for x in sc.out[n0:]: s.only_u1.add(id(x))
                e(label("L_k1_nop0"))
            for x in s.allreduce("v_add_f32",vL,tm): e(x)
            RI=[V(220+2*j,2) for j in range(3)]
            for j in range(3): e(trans("v_rcp_f32",sub(RI[j],0),vL[j]))
            for j in range(3): e(valu("v_mov_b32",sub(RI[j],1),sub(RI[j],0)))
            gi=0
            for t in range(8):
                for j in range(3):
                    base=160+8*(gi%6); T8=[V(base+r) for r in range(8)]
                    for r in range(4): e(accrd(T8[r],sub(OA(2*t,j),r)))
                    for r in range(4): e(accrd(T8[4+r],sub(OA(2*t+1,j),r)))
                    for r in range(4): e(valu("v_pk_mul_f32",V(base+2*r,2),V(base+2*r,2),RI[j]))
                    for r in range(4): e(valu("v_cvt_pk_bf16_f32",sub(QF(t,j),r),T8[2*r],T8[2*r+1]))
                    gi+=1
                if t==1:
                    for x in s.flat(s.xpre()): e(x)
                    for x in s.xloads(0,lambda k:(lambda en:('x',en['u']+1,k))): e(x)
            s.stamp(sc,5,True)
            e(salu("s_cmp_eq_u32",None,sU,1)); e(branch("s_cbranch_scc1 L_k1_op"))
            epi=sc.out
            epi1=[]
            sc=Sched(); e=sc.emit
            for i4 in range(24):
                t,j=divmod(i4,3)
                for r in range(4): e(accwr(sub(PARK_T(i4),r),sub(QF(t,j),r)))
            e(salu("s_mov_b32",sU,1)); e(wait_vm(('W',14),('x',1,0))); e(barrier()); e(branch("s_branch L_k1_unit"))
        if not s.hide: park=sc.out
        sc=Sched(); e=sc.emit
        e(label("L_k1_op"))
        last=(s.oring+1-16384)
        if not s.deep:
            for p in range(4): e(valu("v_add_u32",vWo[p],p*28672,V(22)))
            e(salu("s_mov_b32",sWw,last))
        e(salu("s_mov_b32",sWr,last))
        def advN(dst,src): return [salu("s_add_u32",dst,src,128),salu("s_cmp_eq_u32",None,dst,896),salu("s_cselect_b32",dst,0,dst)]
        for x in advN(sNgN,sNgC): e(x)
        if not s.deep:
            e(wait_fixed(vm=0)); e(barrier())
            for q in range(3): s.emit_item(sc,s.item_O(('P',q),q*114688,sNgC))
        else:
            e(barrier())
            for q in range(4,7): s.emit_item(sc,s.item_O(('P',q),(q&3)*114688,sNgN))
        if s.deep:
            for x in advN(sNgNN,sNgN): e(x)
        itP=lambda d:(lambda en:('P',4*en['g']+d))
        e(wait_vm(('P',0))); e(barrier())
        for x in s.adv_rd('O'): e(x)
        for x in s.addr_ops('O'): e(x)
        ksmaj=list(range(16))
        Tmaj=[ks*4+T for T in range(4) for ks in range(4)]
        for f in range(3):
            for x in s.rdV(f,('P',0),"On"): e(x)
        e(wait_lgkm(("On",0,0),("On",0,1)))
        e(salu("s_mov_b32",sCNT,7)); e(salu("s_mov_b32",sPs,"0x40000000")); e(salu("s_mov_b32",sPs2,"0x40000000"))
        s.stamp(sc,13)
        oppro=sc.out
        def Bop(kq,ks,j):
            hh=kq>>1; t=4*(kq&1)+ks
            return PARK_A(t*3+j) if hh==0 else QF(t,j)
        sc=Sched(); e=sc.emit
        e(label("L_k1_oploop"))
        def cv(h,j):
            a=OPA(2*h,j); b=OPA(2*h+1,j); d=OPK(h,j)
            return [valu("v_cvt_pk_bf16_f32",sub(d,0),sub(a,0),sub(a,1)),valu("v_cvt_pk_bf16_f32",sub(d,1),sub(a,2),sub(a,3)),
                    valu("v_cvt_pk_bf16_f32",sub(d,2),sub(b,0),sub(b,1)),valu("v_cvt_pk_bf16_f32",sub(d,3),sub(b,2),sub(b,3))]
        def stores(h): return [vstore(OPK(h,j),vPst,sP,(sPs if j<2 else sPs2),((j*2048)%4096)+h*1024,tag='p',mod=s.stmod) for j in range(3)]
        carry_cv=[]
        for j in range(3): carry_cv+=cv(1,j)[2:]
        carry_st=stores(1)
        for kq in range(4):
            fo = Tmaj if kq==3 else ksmaj
            nfo = Tmaj if kq==2 else ksmaj
            mf=[]
            for f in range(16):
                ks,T=divmod(fo[f],4)
                firstk = (kq==0 and ks==0)
                for j in range(3): mf.append(mfma(OPA(T,j),VF(f),Bop(kq,ks,j),0 if firstk else OPA(T,j)))
            kq2=(kq+s.olook)&3
            if s.deep: ngr = sNgN if kq==0 else sNgNN
            else: ngr = sNgC if kq==0 else sNgN
            late=s.item_O(itP(kq+s.olook),kq2*114688,ngr)
            q=[]; xs=[]; xe=[]; nd=None; XG=(5,14,23)
            if kq==0:
                q=[Filler(x) for x in carry_cv]
                def nd(gi,q0=list(carry_cv)):
                    return q0 if gi==9 else ()
                xe=carry_st; XG=(11,17,23) if not s.latest else (38,44,44)
            if kq==1:
                xs=[(12,salu("s_cmp_eq_u32",None,sCNT,2 if s.deep else 1)),(12,salu("s_cselect_b32",sub(sWo,2),0,sub(sWo,2))),
                    (13,salu("s_mul_i32",sPs,sNgC,48)),(15,salu("s_add_u32",sPs2,sPs,4096))]
            if kq==3:
                c0=[]
                for j in range(3): c0+=[Filler(x,[mf[(7*3)+j]]) for x in cv(0,j)]
                c2=[]
                for j in range(3): c2+=[Filler(x,[mf[(11*3)+j]]) for x in cv(1,j)[:2]]
                q=c0+c2
                xe=stores(0); XG=(38,41,44)
                def nd(gi,c=[f.ins for f in c0]):
                    return c if gi==38 else ()
                if s.deep:
                    adv=advN(sNgNN,sNgNN)
                    xs=[(42,salu("s_mov_b32",sNgC,sNgN)),(42,salu("s_mov_b32",sNgN,sNgNN)),(43,adv[0]),(45,adv[1]),(45,adv[2])]
                else:
                    adv=advN(sNgN,sNgN)
                    xs=[(42,salu("s_mov_b32",sNgC,sNgN)),(43,adv[0]),(45,adv[1]),(45,adv[2])]
            s.step(sc,'O','O',mf,None,itP(kq),itP(kq+1),late=late,extra_shadow=xs,xearly=xe,XG=XG,needs=nd,
                   vmwait=[itP(kq+1)],qfree=[q],qds=[q],forder=fo,nxt_forder=nfo,LG=(29,32,35,47) if kq==3 else (29,35,41,47))
            s.flush_all(sc,[q])
        e(salu("s_sub_u32",sCNT,sCNT,1)); e(salu("s_cmp_lg_u32",None,sCNT,0)); e(branch("s_cbranch_scc1 L_k1_oploop"))
        for x in [y for j in range(3) for y in cv(1,j)[2:]]: e(x)
        for x in stores(1): e(x)
        s.stamp(sc,14)
        if s.fuse:
            if s.prof:
                for x in s.dump_code(): e(x)
            s.reduce_tail(sc)
        e(branch("s_branch L_k1_fin" if (s.prof and not s.fuse) else "s_branch L_k1_end"))
        oploop=sc.out
        sc=Sched(); s.rare(sc,1,"L_k1_rareF","L_k1_retF"); s.rare(sc,0,"L_k1_rare0","L_k1_ret0"); s.rare(sc,1,"L_k1_rare1","L_k1_ret1"); rare=sc.out
        endb=[]
        if s.prof:
            endb=[label("L_k1_fin"),raw("v_mov_b32 v3, v1","valu"),raw("v_mov_b32 v4, v15","valu"),wait_fixed(vm=0),raw("s_memtime s[98:99]"),raw("s_memrealtime s[100:101]"),raw("s_waitcnt lgkmcnt(0)"),
                  raw("s_mov_b32 s4, s98"),raw("s_mov_b32 s5, s100"),
                  raw("s_add_u32 s8, s96, 0x8000000"),raw("s_addc_u32 s9, s97, 0"),raw("s_and_b32 s9, s9, 0xffff"),raw("s_mov_b32 s10, 0x100000"),raw("s_mov_b32 s11, 0x20000"),
                  raw("s_lshl_b32 s3, s2, 10"),raw("s_lshl_b32 s38, s24, 8"),raw("s_add_u32 s3, s3, s38"),raw("v_mov_b32 v1, s3","valu")]
            regs=list(range(66,96))+[4,5]
            for i,r in enumerate(regs):
                endb+=[raw(f"v_mov_b32 v2, s{r}","valu"),raw(f"buffer_store_dword v2, v1, s[8:11], 0 offen offset:{4*i}","valu"),raw("s_nop 1")]
            if s.fine:
                endb+=[raw("v_mbcnt_lo_u32_b32 v2, -1, 0","valu"),raw("v_mbcnt_hi_u32_b32 v2, -1, v2","valu"),raw("v_lshlrev_b32 v2, 2, v2","valu"),raw("s_lshl_b32 s3, s2, 11"),raw("s_lshl_b32 s38, s24, 9"),raw("s_add_u32 s3, s3, s38"),
                       raw("s_add_u32 s3, s3, 0x40000"),raw("v_add_u32 v2, s3, v2","valu"),raw("buffer_store_dword v3, v2, s[8:11], 0 offen","valu"),
                       raw("buffer_store_dword v4, v2, s[8:11], 0 offen offset:256","valu")]
            endb+=[raw("s_waitcnt vmcnt(0)")]
            if s.dbgprof:
                endb+=[raw("s_load_dwordx2 s[12:13], s[0:1], 88"),raw("s_waitcnt lgkmcnt(0)"),raw("s_and_b32 s13, s13, 0xffff"),raw("s_mov_b32 s14, 256"),raw("s_mov_b32 s15, 0x20000"),
                       raw("s_not_b32 s38, s91"),raw("v_mov_b32 v2, s38","valu"),raw("v_mov_b32 v3, 0","valu"),raw("v_mov_b32 v4, s5","valu"),raw("v_mov_b32 v5, 4","valu"),
                       raw("s_mov_b64 exec, 1"),
                       raw("buffer_atomic_umax v2, v3, s[12:15], 0 offen sc1","valu"),raw("buffer_atomic_umax v4, v5, s[12:15], 0 offen sc1","valu"),
                       raw("s_cmp_eq_u32 s2, 0"),branch("s_cbranch_scc0 L_k1_dbgskip"),raw("s_cmp_eq_u32 s24, 0"),branch("s_cbranch_scc0 L_k1_dbgskip")]
                rts=[67,69,71,73,75,77,79,81,83,85,87,89,93,95]
                for i,r in enumerate(rts):
                    endb+=[raw(f"s_sub_u32 s38, s{r}, s91"),raw("v_mov_b32 v2, s38","valu"),raw(f"v_mov_b32 v3, {8+4*i}","valu"),raw("buffer_store_dword v2, v3, s[12:15], 0 offen","valu"),raw("s_nop 1")]
                endb+=[label("L_k1_dbgskip"),raw("s_waitcnt vmcnt(0)"),raw("s_mov_b64 exec, -1")]
        endb+=[label("L_k1_end"),wait_fixed(vm=0),raw("s_endpgm","branch")]
        trace=[(x,{'u':0}) for x in pro]
        for u in range(2):
            trace+=[(x,{'u':u,'i':0}) for x in wblk if not ((u!=0 and id(x) in s.only_u0) or (u!=1 and id(x) in s.only_u1))]
            for it in range(7):
                trace+=[(x,{'u':u,'i':2*it+1}) for x in hB]
                trace+=[(x,{'u':u,'i':2*it+2}) for x in hA]
            trace+=[(x,{'u':u}) for x in epi if not ((u!=0 and id(x) in s.only_u0) or (u!=1 and id(x) in s.only_u1))]
            if u==0: trace+=[(x,{'u':u}) for x in park]
        trace+=[(x,{'u':1}) for x in epi1]
        trace+=[(x,{'u':1}) for x in oppro]
        for g in range(7): trace+=[(x,{'g':g}) for x in oploop]
        resolve_waits(trace)
        errs=check(trace)
        s.trace=trace
        code=pro+wblk+hB+hA+epi+park+epi1+oppro+oploop+rare+endb
        return code,errs

if __name__=="__main__":
    k=K1F(); code,errs=k.build()
    print(len(code),"instructions;",len(errs),"errors")
    for x in errs[:40]: print(x)
```

```python
from ir import *
from sched import *
PW=172032
class K3:
    def __init__(s, ldmod=" nt", outmod="", dbg=False, wgsel=0, xgrp=False):
        s.xgrp=xgrp
        s.dbg=dbg; s.wgsel=wgsel
        s.ldmod=ldmod; s.outmod=outmod
    def build(s):
        sc=Sched(); e=sc.emit
        sP=S(4,4); sOut=S(8,4); sWAVE=S(24)
        e(raw("s_cmp_ge_u32 s2, 224")); e(branch("s_cbranch_scc1 L_k3_end"))
        if s.dbg: e(raw("s_memrealtime s[44:45]"))
        e(raw("s_load_dwordx2 s[12:13], s[0:1], 80")); e(raw("s_load_dwordx2 s[14:15], s[0:1], 96"))
        if s.xgrp:
            e(raw("s_lshr_b32 s18, s2, 3")); e(raw("s_mul_i32 s16, s18, 9363")); e(raw("s_lshr_b32 s16, s16, 16"))
            e(raw("s_mul_i32 s17, s16, 7")); e(raw("s_sub_u32 s17, s18, s17"))
            e(raw("s_and_b32 s18, s2, 7")); e(raw("s_lshl_b32 s18, s18, 2")); e(raw("s_add_u32 s16, s16, s18"))
        else:
            e(raw("s_mul_i32 s16, s2, 9363")); e(raw("s_lshr_b32 s16, s16, 16"))
            e(raw("s_mul_i32 s17, s16, 7")); e(raw("s_sub_u32 s17, s2, s17"))
        vL=V(2); vI=V(3); vG=V(4); vA=[V(5),V(6)]; vO=V(7); t0=V(8)
        e(valu("v_lshrrev_b32",V(1),6,V(0))); e(valu("v_and_b32",vL,63,V(0)))
        e(valu("v_readfirstlane_b32",sWAVE,V(1)))
        e(valu("v_and_b32",vI,15,vL)); e(valu("v_lshrrev_b32",vG,4,vL))
        e(raw("s_mul_i32 s18, s17, 6144")); e(salu("s_mul_i32",S(19),sWAVE,43008)); e(raw("s_add_u32 s18, s18, s19"))
        e(valu("v_lshlrev_b32",t0,4,vL)); e(valu("v_add_u32",vA[0],S(18),t0)); e(valu("v_add_u32",vA[1],4096,vA[0]))
        for hp in range(1,8): e(salu("s_mov_b32",S(32+hp),hp*PW))
        e(raw("s_waitcnt lgkmcnt(0)","waitraw"))
        e(raw(f"s_mul_i32 s20, s16, {8*PW}"))
        for t in ["s_add_u32 s4, s14, s20","s_addc_u32 s5, s15, 0","s_and_b32 s5, s5, 0xffff",f"s_mov_b32 s6, {8*PW}","s_mov_b32 s7, 0x20000",
                  "s_mov_b32 s8, s12","s_and_b32 s9, s13, 0xffff","s_mov_b32 s10, 5505024","s_mov_b32 s11, 0x20000"]: e(raw(t))
        def buf(u,hp): return V(16+(u*8+hp)*4,4)
        def ld(u):
            for hp in range(8):
                e(vload(buf(u,hp),vA[u//4],sP,0 if hp==0 else S(32+hp),(u%4)*1024,tag=(u,hp),mod=s.ldmod))
        ld(0); ld(1)
        e(raw("s_and_b32 s21, s16, 15")); e(raw("s_lshr_b32 s22, s16, 4"))
        e(raw("s_mul_i32 s21, s21, 192")); e(salu("s_mul_i32",S(23),sWAVE,48)); e(raw("s_add_u32 s21, s21, s23"))
        e(valu("v_add_u32",t0,S(21),vI)); e(salu("s_movk_i32",S(25),1792)); e(valu("v_mul_lo_u32",t0,t0,S(25)))
        e(raw("s_mul_i32 s22, s22, 896")); e(raw("s_lshl_b32 s23, s17, 7")); e(raw("s_add_u32 s22, s22, s23"))
        e(valu("v_add_u32",t0,S(22),t0)); e(valu("v_lshl_add_u32",vO,vG,4,t0))
        e(salu("s_mov_b32",S(26),"0xffff0000"))
        acc=[V(208+i) for i in range(8)]; tl=[V(216+i) for i in range(8)]
        for u in range(6):
            j,h=divmod(u,2)
            if u+2<6: ld(u+2)
            for hp in range(8):
                e(wait_vm((u,hp)))
                b=buf(u,hp)
                dst = acc if hp==0 else tl
                for r in range(4):
                    e(valu("v_lshlrev_b32",dst[2*r],16,sub(b,r))); e(valu("v_and_b32",dst[2*r+1],S(26),sub(b,r)))
                if hp:
                    for r in range(8): e(valu("v_add_f32",acc[r],acc[r],tl[r]))
            X=V(224+4*(u&1),4)
            for r in range(4): e(valu("v_cvt_pk_bf16_f32",sub(X,r),acc[2*r],acc[2*r+1]))
            e(perm("v_permlane32_swap_b32",sub(X,0),sub(X,2))); e(perm("v_permlane32_swap_b32",sub(X,1),sub(X,3)))
            e(perm("v_permlane16_swap_b32",sub(X,0),sub(X,2))); e(perm("v_permlane16_swap_b32",sub(X,1),sub(X,3)))
            e(salu("s_mov_b32",S(27),j*16*1792))
            e(vstore(X,vO,sOut,S(27),h*64,tag='o',mod=s.outmod))
        if s.dbg:
            e(wait_fixed(vm=0))
            e(raw("s_cmp_eq_u32 s2, 0")); e(branch("s_cbranch_scc0 L_k3_end")); e(raw("s_cmp_eq_u32 s24, 0")); e(branch("s_cbranch_scc0 L_k3_end"))
            e(raw("s_memrealtime s[46:47]")); e(raw("s_load_dwordx2 s[28:29], s[0:1], 88")); e(raw("s_waitcnt lgkmcnt(0)"))
            e(raw(f"s_add_u32 s4, s14, {0x8000000+s.wgsel*1024}")); e(raw("s_addc_u32 s5, s15, 0")); e(raw("s_and_b32 s5, s5, 0xffff")); e(raw("s_mov_b32 s6, 256")); e(raw("s_mov_b32 s7, 0x20000"))
            e(raw("s_mov_b32 s8, s28")); e(raw("s_and_b32 s9, s29, 0xffff")); e(raw("s_mov_b32 s10, 256")); e(raw("s_mov_b32 s11, 0x20000"))
            e(raw("v_and_b32 v2, 63, v0","valu")); e(raw("v_lshlrev_b32 v3, 3, v2","valu")); e(raw("v_add_u32 v3, 4, v3","valu"))
            e(raw("v_cmp_lt_u32 vcc, 11, v2","valu")); e(raw("v_add_u32 v4, 8, v3","valu")); e(raw("s_nop 1")); e(raw("v_cndmask_b32 v3, v3, v4, vcc","valu"))
            e(raw("buffer_load_dword v5, v3, s[4:7], 0 offen sc1","valu")); e(raw("v_mov_b32 v6, 100","valu")); e(raw("buffer_load_dword v7, v6, s[4:7], 0 offen sc1","valu"))
            e(raw("s_waitcnt vmcnt(0)"))
            e(raw("v_writelane_b32 v5, s44, 14","valu")); e(raw("v_writelane_b32 v5, s46, 15","valu")); e(raw("s_nop 1"))
            e(raw("v_sub_u32 v5, v5, v7","valu")); e(raw("v_lshlrev_b32 v3, 2, v2","valu"))
            e(raw("v_cmp_gt_u32 vcc, 16, v2","valu")); e(raw("s_and_saveexec_b64 s[30:31], vcc")); e(branch("s_cbranch_execz L_k3_end"))
            e(raw("buffer_store_dword v5, v3, s[8:11], 0 offen","valu"))
        e(label("L_k3_end")); e(wait_fixed(vm=0)); e(raw("s_endpgm","branch"))
        trace=[(x,{}) for x in sc.out]
        resolve_waits(trace); errs=check(trace)
        return sc.out,errs
KD_K3=""".amdhsa_kernel {name}
  .amdhsa_next_free_vgpr 232
  .amdhsa_next_free_sgpr 48
  .amdhsa_accum_offset 232
  .amdhsa_group_segment_fixed_size 0
  .amdhsa_kernarg_size 104
  .amdhsa_user_sgpr_count 2
  .amdhsa_user_sgpr_kernarg_segment_ptr 1
  .amdhsa_system_sgpr_workgroup_id_x 1
.end_amdhsa_kernel
"""
if __name__=="__main__":
    k=K3(); code,errs=k.build(); print(len(code),len(errs)); print(errs[:10])
```

```python
from ir import *
from sched import *
PW=172032
class K3B:
    def __init__(s, ldmod="", outmod="", look=2, dbg=False):
        s.ldmod=ldmod; s.outmod=outmod; s.look=look
    def build(s):
        sc=Sched(); e=sc.emit
        sP=S(4,4); sOut=S(8,4); sWAVE=S(24)
        e(raw("s_cmp_ge_u32 s2, 256")); e(branch("s_cbranch_scc1 L_k3_end"))
        e(raw("s_load_dwordx2 s[14:15], s[0:1], 96")); e(raw("s_load_dwordx2 s[12:13], s[0:1], 80"))
        vL=V(2); vI=V(3); vG=V(4); vA=V(5); vO=V(6)
        e(valu("v_lshrrev_b32",V(1),6,V(0))); e(valu("v_and_b32",vL,63,V(0)))
        e(valu("v_readfirstlane_b32",sWAVE,V(1)))
        e(raw("s_lshr_b32 s16, s2, 3")); e(raw("s_and_b32 s17, s2, 7"))
        e(valu("v_lshlrev_b32",vA,4,vL))
        e(raw("s_mul_i32 s18, s17, 21")); e(salu("s_add_u32",S(19),S(18),sWAVE)); e(raw("s_add_u32 s18, s18, 21"))
        uo=[S(40+i) for i in range(6)]
        for i in range(6):
            e(salu("s_add_u32",S(20),S(19),4*i)); e(salu("s_lshl_b32",uo[i],S(20),10))
            if i==5: e(salu("s_cmp_lt_u32",None,S(20),S(18))); e(salu("s_cselect_b32",uo[i],uo[i],"0x40000000"))
        va=[V(8+i) for i in range(6)]
        for i in range(6): e(valu("v_add_u32",va[i],uo[i],vA))
        for hp in range(1,8): e(salu("s_mov_b32",S(26+hp),hp*PW))
        e(raw(f"s_mul_i32 s20, s16, {8*PW}"))
        e(raw("s_waitcnt lgkmcnt(0)","waitraw"))
        for t in ["s_add_u32 s4, s14, s20","s_addc_u32 s5, s15, 0","s_and_b32 s5, s5, 0xffff",f"s_mov_b32 s6, {8*PW}","s_mov_b32 s7, 0x20000"]: e(raw(t))
        def buf(i,hp): return V(32+(i*8+hp)*4,4)
        def ld(i):
            for hp in range(8): e(vload(buf(i,hp),va[i],sP,0 if hp==0 else S(26+hp),0,tag=('r',i,hp),mod=s.ldmod))
        for i in range(s.look): ld(i)
        for t in ["s_mov_b32 s8, s12","s_and_b32 s9, s13, 0xffff","s_mov_b32 s10, 5505024","s_mov_b32 s11, 0x20000"]: e(raw(t))
        e(raw("s_and_b32 s21, s16, 15")); e(raw("s_lshr_b32 s22, s16, 4")); e(raw("s_mul_i32 s21, s21, 192")); e(raw("s_mul_i32 s22, s22, 896"))
        e(valu("v_and_b32",vI,15,vL)); e(valu("v_lshrrev_b32",vG,4,vL))
        e(salu("s_movk_i32",S(23),1792)); e(valu("v_mul_lo_u32",vO,vI,S(23))); e(valu("v_lshl_add_u32",vO,vG,4,vO))
        oo=[S(46+i) for i in range(6)]
        for i in range(6):
            e(salu("s_add_u32",S(53),S(19),4*i))
            for t in ["s_mul_i32 s54, s53, 1561","s_lshr_b32 s54, s54, 16","s_mul_i32 s55, s54, 42","s_sub_u32 s55, s53, s55",
                      "s_mul_i32 s56, s55, 43","s_lshr_b32 s56, s56, 8","s_mul_i32 s57, s56, 6","s_sub_u32 s57, s55, s57",
                      "s_lshr_b32 s58, s57, 1","s_and_b32 s57, s57, 1","s_mul_i32 s54, s54, 48","s_lshl_b32 s58, s58, 4","s_add_u32 s54, s54, s58","s_add_u32 s54, s54, s21",
                      "s_mul_i32 s54, s54, 1792","s_lshl_b32 s56, s56, 7","s_lshl_b32 s57, s57, 6","s_add_u32 s54, s54, s56","s_add_u32 s54, s54, s57"]: e(raw(t))
            e(salu("s_add_u32",oo[i],S(54),S(22)))
            if i==5: e(salu("s_cmp_lt_u32",None,S(53),S(18))); e(salu("s_cselect_b32",oo[i],oo[i],"0x40000000"))
        e(salu("s_mov_b32",S(52),"0xffff0000"))
        acc=[V(16+i) for i in range(8)]; tl=[V(24+i) for i in range(8)]
        for i in range(6):
            if i+s.look<6: ld(i+s.look)
            for hp in range(8):
                e(wait_vm(('r',i,hp)))
                b=buf(i,hp); dst = acc if hp==0 else tl
                for r in range(4):
                    e(valu("v_lshlrev_b32",dst[2*r],16,sub(b,r))); e(valu("v_and_b32",dst[2*r+1],S(52),sub(b,r)))
                if hp:
                    for r in range(8): e(valu("v_add_f32",acc[r],acc[r],tl[r]))
            X=V(224+4*(i&1),4)
            for r in range(4): e(valu("v_cvt_pk_bf16_f32",sub(X,r),acc[2*r],acc[2*r+1]))
            e(perm("v_permlane32_swap_b32",sub(X,0),sub(X,2))); e(perm("v_permlane32_swap_b32",sub(X,1),sub(X,3)))
            e(perm("v_permlane16_swap_b32",sub(X,0),sub(X,2))); e(perm("v_permlane16_swap_b32",sub(X,1),sub(X,3)))
            e(vstore(X,vO,sOut,oo[i],0,tag='o',mod=s.outmod))
        e(label("L_k3_end")); e(wait_fixed(vm=0)); e(raw("s_endpgm","branch"))
        trace=[(x,{}) for x in sc.out]
        resolve_waits(trace); errs=check(trace)
        return sc.out,errs
KD_K3B=""".amdhsa_kernel {name}
  .amdhsa_next_free_vgpr 232
  .amdhsa_next_free_sgpr 64
  .amdhsa_accum_offset 232
  .amdhsa_group_segment_fixed_size 0
  .amdhsa_kernarg_size 104
  .amdhsa_user_sgpr_count 2
  .amdhsa_user_sgpr_kernarg_segment_ptr 1
  .amdhsa_system_sgpr_workgroup_id_x 1
.end_amdhsa_kernel
"""
if __name__=="__main__":
    k=K3B(); code,errs=k.build(); print(len(code),len(errs)); print(errs[:10])
```

```python
import sys
from emit import make
from k1 import KD_K1
from k1g import K1G
from k3 import K3, KD_K3
from k3b import K3B, KD_K3B
out=sys.argv[1]
kw1=eval("dict("+(sys.argv[2] if len(sys.argv)>2 else "")+")")
kw3=eval("dict("+(sys.argv[3] if len(sys.argv)>3 else "ldmod=''")+")")
only=sys.argv[4] if len(sys.argv)>4 else "13"
ks=[];ls=[]
if "1" in only:
    k=K1G(**kw1); code,errs=k.build(); assert not errs, errs[:10]
    ks.append(("attn_kernel",code,KD_K1)); ls.append(("attn_kernel",256,256,163840))
if "4" in only:
    k=K3B(**kw3); code,errs=k.build(); assert not errs, errs[:10]
    ks.append(("reduce_kernel",code,KD_K3B)); ls.append(("reduce_kernel",256,256,0))
if "3" in only and not kw1.get("fuse"):
    k=K3(**kw3); code,errs=k.build(); assert not errs, errs[:10]
    ks.append(("reduce_kernel",code,KD_K3)); ls.append(("reduce_kernel",224,256,0))
open(out,"w").write(make(ks,ls))
```

```python
from ir import *
from sched import *
import k1
from k1 import (K1, f32bits, vTID, vT, vKl, vVl, vKa, vVa, vKg, vVg, vWg, vMX, vTMP, vL, KF, VF, QA, QF, SB, PF, CI, OA,
                sK, sV, sW, sX, sWAVE, sU, sKs, sVs, sWs, sKw, sVw, sWw, sKr, sVr, sWr, sCNT, sT0, sT1, sC2, sTH, sWvK, sWvV,
                W_BASE, K_BASE, V_BASE, LDS_END, SCALE, THRESH)

vXg=[V(12),V(19),V(20)]; vPst=V(13); vXd=V(21); vXr=V(14); vXrl=V(23)
vWo=[V(24+p) for p in range(4)]
XBASE=[0]
XKEEP=[False]
def XF(s,j):
    st = (s if s<2 else 2+(s&1)) if XKEEP[0] else (s&3)
    return A(XBASE[0]+(st*3+j)*4,4)
def PARK_A(i4):
    if i4<16: return A(192+4*i4,4)
    if i4<22: return V(232+4*(i4-16),4)
    return V(56+4*(i4-22),4)
def PARK_T(i4):
    return A(192+4*i4,4) if i4<16 else A(48+4*(i4-16),4)
def OPA(T,j): return V(160+(T*3+j)*4,4)
def OPK(h,j): return V(208+(h*3+j)*4,4)
sP=S(20,4)
sWo=S(56,4)
sWk=S(35); sWu=S(36); sXk=S(40); sNgC=S(41); sNgN=S(45); sWoS=S(54); sPs=S(55); sPs2=S(60); sWvO=[S(62+p) for p in range(4)]
sRho=S(61); sDum=S(92,4); sNgNN=S(53); sC=S(42); sCinv=S(43); sXl=S(39,1); sXw=[S(40),S(54),S(55)]
PW=172032

class K1F(K1):
    def __init__(s, ntkv=True, stmod=" nt", prof=False, wmod="", xmod="", womod="", rot=True, fine=False, touch=True, defer=True, kvpos=None, prokv=('K0','K1'), even=True, fuse=False, rdmod=' sc1', outmod='', rel=False, latest=False, deep=True, dbgprof=False, pad=0, align=None, lscale=True, hide=True, xlds=True, xkeep=True, exp_delay=0, swapmap=False, xgrp=False):
        super().__init__(ntkv=ntkv, stmod=stmod, prof=False, wmod=wmod, xmod=xmod)
        s.prof=prof; s.womod=womod; s.rot=rot; s.fine=fine; s.touch=touch; s.defer=defer; s.only_u0=set(); s.only_u1=set(); s.kvpos=kvpos or {12:['V0','K2'],13:['V1']}; s.prokv=prokv; s.even=even; s.fuse=fuse; s.rdmod=rdmod; s.outmod=outmod
        s.rel=rel; s.latest=latest; s.deep=deep; s.dbgprof=dbgprof; s.pad=pad; s.lscale=lscale; s.hide=hide; s.xlds=xlds; s.exp_delay=exp_delay; s.swapmap=swapmap; s.xgrp=xgrp; s.xkeep=xkeep and xlds and hide; s.align=align; s.oring=0x1ffff if deep else 0xffff; s.onsl=8 if deep else 4; s.olook=7 if deep else 3
        if fuse and not rel: s.stmod=' sc1'
    def stamp(s, sc, idx, dyn=False):
        if not s.prof: return
        sc.emit(raw("s_memtime s[98:99]")); sc.emit(raw("s_memrealtime s[100:101]"))
        sc.emit(wait_fixed(lgkm=0))
        a=66+2*idx
        if not dyn:
            sc.emit(raw(f"s_mov_b32 s{a}, s98")); sc.emit(raw(f"s_mov_b32 s{a+1}, s100"))
        else:
            b=66+2*(idx+6)
            sc.emit(raw("s_cmp_eq_u32 s25, 0"))
            sc.emit(raw(f"s_cselect_b32 s{a}, s98, s{a}")); sc.emit(raw(f"s_cselect_b32 s{a+1}, s100, s{a+1}"))
            sc.emit(raw(f"s_cselect_b32 s{b}, s{b}, s98")); sc.emit(raw(f"s_cselect_b32 s{b+1}, s{b+1}, s100"))
    def item_W(s, item):
        pre=[salu("s_add_u32",sWk,sWk,262144), [salu("s_add_u32",sWw,sWw,16384),salu("s_and_b32",sWw,sWw,0xffff)],
             [salu("s_cmp_eq_u32",None,sWk,14*262144),salu("s_cselect_b32",sWk,0,sWk)], salu("s_add_u32",sWs,sWk,sWu)]
        pre=[pre[0],pre[2],pre[1],pre[3]]
        L=[(salu("s_add_u32","m0",sWw,sWvV[p]), dma(vWg,sW,sWs,p*128,item,lambda e,it=item:('W',ev(it,e)[1]%4),s.wmod)) for p in range(4)]
        return pre,L
    def item_K(s, item):
        pre=[salu("s_add_u32",sKs,sKs,16384), salu("s_add_u32",sKw,sKw,16384),
             [salu("s_cmp_eq_u32",None,sKw,V_BASE), salu("s_cselect_b32",sKw,K_BASE,sKw)]]
        L=[(salu("s_add_u32","m0",sKw,sWvK[p]), dma(vKg[p>>1],sK,sKs,(p&1)*256,item,lambda e,it=item:('K',ev(it,e)[1]%3),s.kvmod)) for p in range(4)]
        return pre,L
    def item_V(s, item):
        pre=[salu("s_add_u32",sVs,sVs,16384), salu("s_add_u32",sVw,sVw,16384),
             [salu("s_cmp_eq_u32",None,sVw,LDS_END), salu("s_cselect_b32",sVw,V_BASE,sVw)]]
        L=[(salu("s_add_u32","m0",sVw,sWvV[p]), dma(vVg,sV,sVs,p*128,item,lambda e,it=item:('V',ev(it,e)[1]%3),s.kvmod)) for p in range(4)]
        return pre,L
    def item_O(s, item, const, ng):
        pre=[salu("s_add_u32",sWoS,ng,const), [salu("s_add_u32",sWw,sWw,16384), salu("s_and_b32",sWw,sWw,s.oring)]]
        def slot(e,it=item):
            q=ev(it,e)[1]%s.onsl
            return ('W',q) if q<4 else (('K',q-4) if q<7 else ('V',0))
        L=[(salu("s_add_u32","m0",sWw,sWvO[p]), dma(vWo[p],sWo,sWoS,0,item,slot,s.womod)) for p in range(4)]
        return pre,L
    def adv_rd(s, typ):
        if typ=='O': return [salu("s_add_u32",sWr,sWr,16384),salu("s_and_b32",sWr,sWr,s.oring)]
        return super().adv_rd(typ)
    def addr_ops(s, typ):
        return super().addr_ops('W' if typ=='O' else typ)
    def xpre(s):
        return [salu("s_add_u32",sXk,sXk,128),[salu("s_cmp_eq_u32",None,sXk,896),salu("s_cselect_b32",sXk,0,sXk)]]
    def xloads(s, pos, tagfn):
        return [vload(XF(pos+d,j),vXg[j],sX,sXk,d*64,tag=tagfn(pos+d),mod=s.xmod) for j in range(3) for d in range(2)]
    def item_X(s, pos, tagfn, slotfn):
        item=tagfn(pos)
        L=[(salu("s_add_u32","m0",sXl,j*1024), dma(vXd,sX,sXw[j],(pos&1)*64,item,slotfn,s.xmod)) for j in range(3)]
        L=[(salu("s_add_u32","m0",sXl,j*1024+64-(pos&1)*64), dma(vXd,sX,sXw[j],(pos&1)*64,item,slotfn,s.xmod)) for j in range(3)]
        R=[dsread("ds_read_b128",XF(pos,j),vXr,j*1024,tag=('xr',pos&3,j),item=item) for j in range(3)]
        return L,R
    @staticmethod
    def flat(L):
        out=[]
        for x in L:
            if isinstance(x,list): out+=x
            else: out.append(x)
        return out
    def emit_item(s, sc, item_pair):
        pre,L=item_pair
        for x in s.flat(pre): sc.emit(x)
        for m,d in L: sc.emit(m); sc.emit(d)

    def step(s, sc, cur, nxt, mf, korder, cur_item, nxt_item, early=None, late=None, xearly=(), xpre=(),
             extra_shadow=(), extra_fixed=(), needs=None, vmwait=(), qfree=None, qds=None, nxt_korder=None,
             nobarrier=False, keep_addr=False, forder=None, nxt_forder=None,
             EG=(5,11,17,23), LG=(29,35,41,47), XG=(5,14,23), BG=24, dmas=(), pres=(), xwait=None):
        if s.fine:
            sc.emit(raw("s_memrealtime s[98:99]" if s.fine=="rt" else "s_memtime s[98:99]")); sc.emit(wait_fixed(lgkm=0))
            sc.emit(raw("s_and_b32 m0, s3, 63","salu",wr=M0)); sc.emit(raw("s_cmp_lt_u32 s3, 64"))
            sc.emit(raw("s_cselect_b32 s100, 0, 1")); sc.emit(raw("s_add_u32 s3, s3, 1")); sc.emit(raw("s_cmp_eq_u32 s100, 0"))
            lab=f"L_fine{len(s._fl)}"; s._fl.append(lab)
            sc.emit(branch(f"s_cbranch_scc0 {lab}_b"))
            sc.emit(raw("v_writelane_b32 v1, s98, m0","valu")); sc.emit(branch(f"s_branch {lab}_e"))
            sc.emit(label(f"{lab}_b")); sc.emit(raw("v_writelane_b32 v15, s98, m0","valu")); sc.emit(label(f"{lab}_e"))
        shadow=[[] for _ in range(48)]; fixed=[[] for _ in range(48)]
        tagc=cur+"c"; tagn=(nxt or "")+"n"; prevtag=cur+"n"
        def frag_reads(typ,f,order,item,tag,fo):
            if typ=='K':
                kt,t=order[f]; return s.rdK(f,kt,t,item,tag)
            T=fo[f] if fo else f
            r=VF(f); off=(T>>2)*1024+((T>>1)&1)*512
            return [dsread("ds_read_b64_tr_b16",sub(r,0,2),vVa[T&1],off,tag=(tag,f,0),item=item),
                    dsread("ds_read_b64_tr_b16",sub(r,2,2),vVa[T&1],off+8192,tag=(tag,f,1),item=item)]
        def tags(typ,f,tag): return [(tag,f)] if typ=='K' else [(tag,f,0),(tag,f,1)]
        for f in range(3,16):
            for q,x in enumerate(frag_reads(cur,f,korder,cur_item,tagc,forder)): fixed[3*(f-3)+q].append(x)
        for f in range(1,16):
            tg = tags(cur,f,tagc) if f>=3 else tags(cur,f,prevtag)
            shadow[3*f-1].append(wait_lgkm(*tg))
        reserved=set()
        if nxt:
            if not keep_addr:
                adv=s.adv_rd(nxt)
                ao=s.addr_ops(nxt)
                if cur=='K' and nxt!='K':
                    shadow[27].append(adv[0]); shadow[30].extend(adv[1:])
                    fixed[33].append(ao[0]); fixed[36].append(ao[1])
                else:
                    shadow[30].append(adv[0]); shadow[33].extend(adv[1:])
                    if nxt=='K': fixed[37].append(ao[0])
                    else: fixed[36].append(ao[0]); fixed[37].append(ao[1])
            for f in range(3):
                for q,x in enumerate(frag_reads(nxt,f,nxt_korder,nxt_item,tagn,nxt_forder)): fixed[39+3*f+q].append(x)
            shadow[47].append(wait_lgkm(*(tags(nxt,0,tagn)+([xwait] if xwait else []))))
        if vmwait: shadow[BG].append(wait_vm(*vmwait))
        if not nobarrier: shadow[BG+1].append(barrier())
        for it,G in ((early,EG),(late,LG)):
            if not it: continue
            for (m,d),g in zip(it[1],G):
                shadow[g-1].append(m); fixed[g].append(d); reserved.add(g-1)
        for g,(m,d) in dmas:
            shadow[g-1].append(m); fixed[g].append(d)
        for x,g in zip(xearly,XG): fixed[g].append(x)
        for gi,x in extra_shadow: shadow[gi].append(x)
        for gi,x in extra_fixed: fixed[gi].append(x)
        def place(groups, gp, lim):
            for G in groups:
                G = G if isinstance(G,list) else [G]
                while gp<48 and (shadow[gp] or gp%3==2): gp+=1
                assert gp<=lim,(gp,lim,groups)
                shadow[gp].extend(G); gp+=1
            return gp
        gp=0
        if early: gp=place(early[0], 0, EG[0]-2)
        if xpre: gp=place(list(xpre), 0, XG[0]-1)
        for groups,lo,hi in pres: place(groups, lo, hi)
        if late: gp=place(late[0], gp, LG[0]-2)
        for gi in range(48):
            nd = needs(gi) if needs else ()
            if nd: s.flush_needed(sc, nd, (qfree or [])+(qds or []))
            sc.gap(mf[gi], shadow[gi], fixed[gi], fill=False)
            used=max(0,len(shadow[gi])-1)+sum(COST.get(x.kind,1) for x in fixed[gi])
            slots=2-used
            hasds=any(x.kind=="ds" for x in fixed[gi])
            if slots>0: s.fillq(sc, slots, qds if hasds else qfree)

    def prologue(s, sc):
        e=sc.emit
        e(raw("s_cmp_ge_u32 s2, 256")); e(branch("s_cbranch_scc1 L_k1_end"))
        if s.exp_delay:
            e(raw("s_and_b32 s68, s2, 8")); e(raw("s_cmp_eq_u32 s68, 8")); e(branch("s_cbranch_scc0 L_k1_nodelay"))
            e(raw("s_memrealtime s[68:69]")); e(raw("s_waitcnt lgkmcnt(0)","waitraw"))
            e(label("L_k1_dl")); e(raw("s_memrealtime s[70:71]")); e(raw("s_waitcnt lgkmcnt(0)","waitraw"))
            e(raw("s_sub_u32 s72, s70, s68")); e(raw(f"s_cmp_lt_u32 s72, {s.exp_delay}")); e(branch("s_cbranch_scc1 L_k1_dl"))
            e(label("L_k1_nodelay"))
        e(raw("s_load_dwordx16 s[68:83], s[0:1], 0"))
        e(raw("s_load_dwordx4 s[84:87], s[0:1], 64"))
        e(raw("s_load_dwordx2 s[88:89], s[0:1], 96"))
        if s.prof:
            e(raw("s_memtime s[98:99]")); e(raw("s_memrealtime s[100:101]"))
        if s.swapmap:
            for t in ["s_and_b32 s90, s2, 7","s_and_b32 s91, s90, 1","s_lshl_b32 s91, s91, 1","s_lshr_b32 s92, s90, 1","s_and_b32 s92, s92, 1","s_or_b32 s91, s91, s92","s_and_b32 s90, s90, 4","s_or_b32 s90, s90, s91"]: e(raw(t))
        if s.xgrp:
            for t in ["s_and_b32 s90, s2, 7","s_lshr_b32 s91, s2, 3","s_lshr_b32 s92, s90, 2",
                      "s_and_b32 s93, s90, 3","s_lshl_b32 s93, s93, 2","s_lshr_b32 s94, s91, 3","s_add_u32 s93, s93, s94",
                      "s_and_b32 s96, s91, 7","s_lshl_b32 s95, s96, 1",
                      "s_lshl_b32 s61, s94, 1","s_add_u32 s61, s61, s96","s_cmp_ge_u32 s61, 7","s_cselect_b32 s97, 7, 0","s_sub_u32 s61, s61, s97",
                      "s_cmp_ge_u32 s61, 7","s_cselect_b32 s97, 7, 0","s_sub_u32 s61, s61, s97"]: e(raw(t))
        else:
          for t in [("s_and_b32 s90, s2, 7" if not s.swapmap else "s_nop 0"),"s_lshr_b32 s91, s2, 3","s_lshr_b32 s92, s90, 2",
                  "s_lshr_b32 s93, s90, 1","s_and_b32 s93, s93, 1","s_lshl_b32 s93, s93, 3","s_lshr_b32 s94, s91, 2","s_add_u32 s93, s93, s94",
                  "s_and_b32 s95, s90, 1","s_lshl_b32 s95, s95, 3","s_and_b32 s96, s91, 3","s_lshl_b32 s97, s96, 1","s_add_u32 s95, s95, s97"]:
            e(raw(t))
          if s.rot:
            for t in ["s_lshl_b32 s61, s96, 1","s_add_u32 s61, s61, s94","s_cmp_ge_u32 s61, 7","s_cselect_b32 s97, 7, 0","s_sub_u32 s61, s61, s97",
                      "s_cmp_ge_u32 s61, 7","s_cselect_b32 s97, 7, 0","s_sub_u32 s61, s61, s97"]: e(raw(t))
          else: e(raw("s_mov_b32 s61, 0"))
        e(valu("v_lshrrev_b32",vT,6,vTID))
        L=V(56); I=V(57); G=V(58); t0=V(59); t1=V(60); t2=V(61); KB=V(62); RR=V(63)
        e(valu("v_and_b32",L,63,vTID))
        e(valu("v_readfirstlane_b32",sWAVE,vT))
        e(valu("v_and_b32",I,15,L)); e(valu("v_lshrrev_b32",G,4,L))
        e(valu("v_bfe_u32",KB,L,4,1)); e(valu("v_bfe_u32",RR,L,2,2))
        e(valu("v_bfe_u32",t0,L,1,1)); e(valu("v_xor_b32",t0,t0,KB)); e(valu("v_lshlrev_b32",t0,5,t0))
        e(valu("v_lshrrev_b32",t1,5,L)); e(valu("v_lshl_add_u32",t0,t1,6,t0))
        e(valu("v_and_b32",t1,1,L)); e(valu("v_lshl_add_u32",t2,t1,4,t0))
        e(salu("s_and_b32",sT0,sWAVE,1)); e(salu("s_lshl_b32",sT0,sT0,4)); e(salu("s_lshr_b32",sT1,sWAVE,1)); e(salu("s_lshl_b32",sT1,sT1,2)); e(salu("s_add_u32",sT0,sT0,sT1))
        e(valu("v_lshl_add_u32",t0,KB,3,RR)); e(valu("v_add_u32",t0,sT0,t0)); e(valu("v_lshl_add_u32",vWg,t0,13,t2))
        e(salu("s_mul_i32",sT0,sWAVE,48)); e(valu("v_add_u32",t0,sT0,I)); e(salu("s_movk_i32",sT1,896))
        e(valu("v_mul_lo_u32",t0,t0,sT1)); e(valu("v_lshl_add_u32",vXg[0],G,4,t0))
        e(valu("v_add_u32",vXg[1],14336,vXg[0])); e(valu("v_add_u32",vXg[2],28672,vXg[0]))
        e(salu("s_lshl_b32",sT0,sWAVE,12))
        for p in range(4):
            e(salu("s_add_u32",sWvK[p],sT0,p*1024-(p&1)*256)); e(salu("s_add_u32",sWvV[p],sT0,p*896)); e(salu("s_add_u32",sWvO[p],sT0,p*1024))
        e(salu("s_mov_b32",sU,0)); e(salu("s_mov_b32",sKs,"0xffffc000")); e(salu("s_mov_b32",sVs,"0xffffc000"))
        e(salu("s_mov_b32",sKw,K_BASE+32768)); e(salu("s_mov_b32",sVw,V_BASE+32768)); e(salu("s_mov_b32",sWw,49152))
        e(salu("s_mov_b32",sKr,K_BASE)); e(salu("s_mov_b32",sVr,V_BASE+32768)); e(salu("s_mov_b32",sWr,49152))
        e(salu("s_lshl_b32",sWk,sRho,1)); e(salu("s_add_u32",sWk,sWk,13)); e(salu("s_cmp_ge_u32",None,sWk,14)); e(salu("s_cselect_b32",sT0,14,0)); e(salu("s_sub_u32",sWk,sWk,sT0)); e(salu("s_lshl_b32",sWk,sWk,18))
        e(salu("s_add_u32",sXk,sRho,6)); e(salu("s_cmp_ge_u32",None,sXk,7)); e(salu("s_cselect_b32",sT0,7,0)); e(salu("s_sub_u32",sXk,sXk,sT0)); e(salu("s_lshl_b32",sXk,sXk,7))
        e(salu("s_mov_b32",sWu,0))
        e(raw("s_waitcnt lgkmcnt(0)","waitraw"))
        e(raw("s_cmp_eq_u32 s92, 0"))
        for d,b in [(68,78),(69,79),(70,80),(71,81),(72,82),(73,83),(74,84),(75,85),(76,86),(77,87)]:
            e(raw(f"s_cselect_b32 s{d}, s{d}, s{b}"))
        for t in [
            "s_lshl_b32 s97, s95, 9",
            "s_add_u32 s12, s74, s97","s_addc_u32 s13, s75, 0","s_and_b32 s13, s13, 0xffff","s_sub_u32 s14, 3670016, s97","s_mov_b32 s15, 0x20000",
            "s_mul_i32 s97, s93, 172032",
            "s_add_u32 s16, s68, s97","s_addc_u32 s17, s69, 0","s_and_b32 s17, s17, 0xffff","s_mov_b32 s18, 172032","s_mov_b32 s19, 0x20000",
            ]: e(raw(t))
        if s.touch:
            e(raw("s_mul_i32 s97, s96, 48")); e(salu("s_mul_i32",sT0,sWAVE,12)); e(raw("s_add_u32 s97, s97, s38")); e(raw("s_mul_i32 s97, s97, 896"))
            e(valu("v_lshlrev_b32",t0,7,L)); e(valu("v_add_u32",t0,S(97),t0))
            e(touch(V(64),t0,sX,0))
            e(valu("v_add_u32",t1,8192,t0)); e(Ins("v_cmp_gt_u32 vcc, 20, v56","valu",rd=rs(L),wr=VCC)); e(valu("v_mov_b32",V(65),"0x7fffffff")); e(nop(0))
            e(Ins(f"v_cndmask_b32 {rt(t1)}, v65, {rt(t1)}, vcc","valu",rd=rs(t1,V(65))|VCC,wr=rs(t1)))
            e(touch(V(64),t1,sX,0))
        if s.touch is True:
            e(raw("s_mul_i32 s97, s94, 56")); e(salu("s_mul_i32",sT0,sWAVE,14)); e(raw("s_add_u32 s97, s97, s38"))
            e(valu("v_lshrrev_b32",t0,2,L)); e(valu("v_add_u32",t0,S(97),t0)); e(valu("v_lshlrev_b32",t0,13,t0))
            e(valu("v_and_b32",t1,3,L)); e(valu("v_lshl_add_u32",t0,t1,7,t0))
            e(Ins("v_cmp_gt_u32 vcc, 56, v56","valu",rd=rs(L),wr=VCC)); e(nop(1))
            e(Ins(f"v_cndmask_b32 {rt(t0)}, v65, {rt(t0)}, vcc","valu",rd=rs(t0,V(65))|VCC,wr=rs(t0)))
            e(touch(V(64),t0,sW,0))
        def kvsetup():
            for t in [
                "s_lshl_b32 s97, s93, 4","s_add_u32 s97, s97, s95","s_lshl_b32 s97, s97, 18",
                "s_add_u32 s4, s70, s97","s_addc_u32 s5, s71, 0","s_and_b32 s5, s5, 0xffff","s_mov_b32 s6, 524288","s_mov_b32 s7, 0x20000",
                "s_add_u32 s8, s72, s97","s_addc_u32 s9, s73, 0","s_and_b32 s9, s9, 0xffff","s_mov_b32 s10, 524288","s_mov_b32 s11, 0x20000",
                ]: e(raw(t))
            e(valu("v_lshl_add_u32",t0,KB,2,RR)); e(valu("v_lshl_add_u32",t0,t0,9,t2)); e(salu("s_lshl_b32",sT0,sWAVE,12)); e(valu("v_add_u32",vVg,sT0,t0))
            for q in range(2):
                e(salu("s_and_b32",sT0,sWAVE,1)); e(salu("s_lshl_b32",sT0,sT0,1)); e(salu("s_add_u32",sT0,sT0,q))
                e(salu("s_sub_u32",sT1,4,sT0)); e(salu("s_and_b32",sT1,sT1,3))
                e(valu("v_and_b32",t0,3,L)); e(valu("v_xor_b32",t0,sT1,t0)); e(valu("v_lshlrev_b32",t0,4,t0))
                e(valu("v_lshl_add_u32",t0,G,6,t0))
                e(salu("s_lshl_b32",sT0,sT0,2)); e(salu("s_lshr_b32",sT1,sWAVE,1)); e(salu("s_lshl_b32",sT1,sT1,4)); e(salu("s_add_u32",sT0,sT0,sT1))
                e(valu("v_add_u32",t1,sT0,RR)); e(valu("v_lshl_add_u32",vKg[q],t1,9,t0))
        if s.prokv or not s.defer: kvsetup()
        if s.defer:
            for nm in s.prokv:
                s.emit_item(sc, s.item_K(('K',int(nm[1]))) if nm[0]=='K' else s.item_V(('V',int(nm[1]))))
        s.emit_item(sc,s.item_W(('W',0)))
        for x in s.flat(s.xpre()): e(x)
        for x in s.xloads(0,lambda k:('x',0,k)): e(x)
        s.emit_item(sc,s.item_W(('W',1)))
        for t in [
            "s_mul_i32 s97, s95, 229376",
            "s_add_u32 s56, s76, s97","s_addc_u32 s57, s77, 0","s_and_b32 s57, s57, 0xffff","s_mov_b32 s58, 458752","s_mov_b32 s59, 0x20000",
            "s_lshl_b32 s97, s92, 4","s_add_u32 s97, s97, s93","s_lshl_b32 s97, s97, 3","s_lshr_b32 s90, s95, 1","s_add_u32 s97, s97, s90",
            f"s_mul_i32 s97, s97, {PW}",
            "s_add_u32 s20, s88, s97","s_addc_u32 s21, s89, 0","s_and_b32 s21, s21, 0xffff",f"s_mov_b32 s22, {PW}","s_mov_b32 s23, 0x20000",
            ]: e(raw(t))
        s.emit_item(sc,s.item_W(('W',2)))
        s.emit_item(sc,s.item_W(('W',3)))
        if s.defer and not s.prokv: kvsetup()
        if not s.defer:
            for n in range(3): s.emit_item(sc,s.item_K(('K',n)))
            for n in range(2): s.emit_item(sc,s.item_V(('V',n)))
        e(valu("v_lshrrev_b32",t0,2,I)); e(valu("v_sub_u32",t1,4,t0)); e(valu("v_and_b32",t1,3,t1)); e(valu("v_xor_b32",t1,t1,G))
        e(valu("v_lshlrev_b32",t1,4,t1)); e(valu("v_lshl_add_u32",t1,t0,11,t1)); e(valu("v_and_b32",t0,3,I)); e(valu("v_lshl_add_u32",vKl,t0,6,t1))
        e(valu("v_lshrrev_b32",t0,1,G)); e(valu("v_lshlrev_b32",t0,12,t0)); e(valu("v_lshl_add_u32",t0,KB,8,t0))
        e(valu("v_lshl_add_u32",t0,RR,6,t0)); e(valu("v_and_b32",t1,3,L)); e(valu("v_lshl_add_u32",t0,t1,3,t0))
        e(valu("v_lshl_add_u32",vVl[0],KB,5,t0))
        e(valu("v_xor_b32",t1,1,KB)); e(valu("v_lshl_add_u32",vVl[1],t1,5,t0))
        e(valu("v_add_u32",vKa,K_BASE,vKl))
        if s.xlds:
            e(valu("v_lshrrev_b32",t0,4,L)); e(valu("v_sub_u32",t0,4,t0)); e(valu("v_and_b32",t0,3,t0)); e(valu("v_and_b32",t1,3,L)); e(valu("v_xor_b32",t0,t0,t1))
            e(valu("v_lshlrev_b32",t0,4,t0)); e(valu("v_lshrrev_b32",t1,2,L)); e(salu("s_mul_i32",sT0,sWAVE,48)); e(valu("v_add_u32",t1,sT0,t1))
            e(salu("s_movk_i32",S(97),896)); e(valu("v_mul_lo_u32",t1,t1,S(97))); e(valu("v_add_u32",vXd,t0,t1))
            e(valu("v_lshrrev_b32",t0,2,I)); e(valu("v_sub_u32",t0,4,t0)); e(valu("v_and_b32",t0,3,t0)); e(valu("v_xor_b32",t0,t0,G))
            e(valu("v_lshlrev_b32",t0,4,t0)); e(valu("v_lshl_add_u32",t0,I,6,t0)); e(valu("v_add_u32",vXrl,64,t0))
        e(salu("s_mul_i32",sT0,sWAVE,43008)); e(valu("v_lshlrev_b32",t0,4,L)); e(valu("v_add_u32",vPst,sT0,t0))
        e(salu("s_lshr_b32",sT0,sWAVE,1)); e(salu("s_lshl_b32",sT0,sT0,4)); e(salu("s_and_b32",sT1,sWAVE,1)); e(salu("s_lshl_b32",sT1,sT1,3)); e(salu("s_add_u32",sT0,sT0,sT1))
        e(valu("v_lshl_add_u32",t0,KB,2,RR)); e(valu("v_add_u32",t0,sT0,t0)); e(salu("s_movk_i32",sT1,896)); e(valu("v_mul_lo_u32",t0,t0,sT1)); e(valu("v_add_u32",V(22),t0,t2))
        e(salu("s_mov_b32",sub(sC2,0),hex(f32bits(SCALE)))); e(salu("s_mov_b32",sub(sC2,1),hex(f32bits(1.0/SCALE if s.lscale else SCALE))))
        e(salu("s_mov_b32",sTH,hex(f32bits(THRESH))))
        e(salu("s_lshl_b32",sNgC,sRho,7))
        e(salu("s_mov_b32",sub(sDum,0),sub(sX,0))); e(salu("s_mov_b32",sub(sDum,1),sub(sX,1))); e(salu("s_mov_b32",sub(sDum,2),0)); e(salu("s_mov_b32",sub(sDum,3),"0x20000"))
        if s.prof:
            e(raw("s_mov_b32 s96, s88")); e(raw("s_mov_b32 s97, s89")); e(raw("s_mov_b32 s90, s98")); e(raw("s_mov_b32 s91, s100"))

    def conv_ops(s, t, j):
        m,c,p1,p2=super().conv_ops(t,j)
        return ([] if s.lscale else m),c,p1,p2
    def sm_add2(s, buf, qe):
        ex={list(f.ins.wr)[0]:f.ins for f in qe}
        q=[]
        for j in range(3):
            for kt in range(2):
                for r in range(4):
                    x=sub(SB(buf,kt,j),r); q.append(Filler(valu("v_add_f32",vL[j],vL[j],x),[ex[('v',x[1])]]))
        out=[]
        for i in range(8):
            for j in range(3): out.append(q[j*8+i])
        return q if False else [q[i] for i in range(24)]
    def sm_mul(s, buf):
        return [Filler(valu("v_mul_f32",sub(SB(buf,kt,j),r),sC,sub(SB(buf,kt,j),r))) for kt in range(2) for j in range(3) for r in range(4)]
    def rare(s, sc, buf, name, ret):
        e=sc.emit
        e(label(name)); e(nop(7)); e(nop(3))
        P0=208
        m=[V(P0+j) for j in range(3)]; tm=[V(P0+3+j) for j in range(3)]; al=[V(P0+6+j) for j in range(3)]
        for j in range(3):
            a=SB(buf,0,j); b=SB(buf,1,j)
            e(valu("v_max3_f32",m[j],sub(a,0),sub(a,1),sub(a,2)))
            e(valu("v_max3_f32",m[j],m[j],sub(a,3),sub(b,0)))
            e(valu("v_max3_f32",m[j],m[j],sub(b,1),sub(b,2)))
            e(valu("v_max_f32",m[j],m[j],sub(b,3)))
        for x in s.allreduce("v_max_f32",m,tm): e(x)
        for j in range(3): e(valu("v_max_f32",m[j],0,m[j]))
        for j in range(3):
            for kt in range(2):
                for r in range(4): e(valu("v_sub_f32",sub(SB(buf,kt,j),r),sub(SB(buf,kt,j),r),m[j]))
            if s.lscale:
                for r in range(4): e(Ins(f"v_fma_f32 {rt(sub(CI(j),r))}, -{rt(m[j])}, {rt(sCinv)}, {rt(sub(CI(j),r))}","valu",rd=rs(m[j],sCinv,sub(CI(j),r)),wr=rs(sub(CI(j),r))))
            else:
                for r in range(4): e(valu("v_sub_f32",sub(CI(j),r),sub(CI(j),r),m[j]))
            e(Ins(f"v_exp_f32_e64 {rt(al[j])}, -{rt(m[j])}","trans",rd=rs(m[j]),wr=rs(al[j])))
        for j in range(3): e(valu("v_mul_f32",vL[j],vL[j],al[j]))
        for T in range(16):
            for j in range(3):
                t=[V(P0+r) for r in range(4)] if False else [V(P0+0),V(P0+1),V(P0+2),V(P0+3)]
                t=[V(P0+9),V(P0+10),V(P0+11),vTMP]
                for r in range(4): e(accrd(t[r],sub(OA(T,j),r)))
                for r in range(4): e(valu("v_mul_f32",t[r],t[r],al[j]))
                for r in range(4): e(accwr(sub(OA(T,j),r),t[r]))
        e(nop(3))
        e(branch(f"s_branch {ret}"))

    def rstamp(s, sc, r):
        if not s.prof: return
        sc.emit(raw("s_memrealtime s[98:99]")); sc.emit(raw("s_waitcnt lgkmcnt(0)")); sc.emit(raw(f"s_mov_b32 s{r}, s98"))
    def dump_code(s):
        L=[raw("s_add_u32 s56, s96, 0x8000000"),raw("s_addc_u32 s57, s97, 0"),raw("s_and_b32 s57, s57, 0xffff"),raw("s_mov_b32 s58, 0x100000"),raw("s_mov_b32 s59, 0x20000"),
           raw("s_lshl_b32 s3, s2, 10"),raw("s_lshl_b32 s38, s24, 8"),raw("s_add_u32 s3, s3, s38"),raw("v_mov_b32 v1, s3","valu")]
        for i,r in enumerate(range(66,96)):
            L+=[raw(f"v_mov_b32 v2, s{r}","valu"),raw(f"buffer_store_dword v2, v1, s[56:59], 0 offen offset:{4*i}","valu"),raw("s_nop 1")]
        return L
    def reduce_tail(s, sc):
        e=sc.emit
        sDbg=S(4,4); sGP=S(8,4); sOut=S(12,4)
        e(raw("s_load_dwordx4 s[68:71], s[0:1], 80"))
        e(raw("s_load_dwordx2 s[72:73], s[0:1], 96"))
        for t in ["s_and_b32 s74, s2, 7","s_lshr_b32 s75, s2, 3","s_lshr_b32 s76, s74, 2",
                  "s_lshr_b32 s77, s74, 1","s_and_b32 s77, s77, 1","s_lshl_b32 s77, s77, 3","s_lshr_b32 s78, s75, 2","s_add_u32 s77, s77, s78",
                  "s_and_b32 s79, s74, 1","s_lshl_b32 s79, s79, 2","s_and_b32 s80, s75, 3","s_add_u32 s79, s79, s80",
                  "s_lshl_b32 s81, s76, 4","s_add_u32 s81, s81, s77"]:
            e(raw(t))
        e(wait_fixed(vm=0,lgkm=0))
        s.rstamp(sc,60)
        for t in ["s_mov_b32 s4, s70","s_and_b32 s5, s71, 0xffff","s_mov_b32 s6, 256","s_mov_b32 s7, 0x20000",
                  f"s_mul_i32 s82, s81, {8*PW}",
                  "s_add_u32 s8, s72, s82","s_addc_u32 s9, s73, 0","s_and_b32 s9, s9, 0xffff",f"s_mov_b32 s10, {8*PW}","s_mov_b32 s11, 0x20000",
                  "s_mov_b32 s12, s68","s_and_b32 s13, s69, 0xffff","s_mov_b32 s14, 5505024","s_mov_b32 s15, 0x20000"]:
            e(raw(t))
        e(barrier())
        e(salu("s_cmp_eq_u32",None,sWAVE,0)); e(branch("s_cbranch_scc0 L_k1_rwait"))
        e(raw("s_lshl_b32 s82, s81, 2")); e(valu("v_mov_b32",V(2),S(82))); e(valu("v_mov_b32",V(3),1))
        if s.rel:
            e(raw("buffer_wbl2 sc1","vmemraw")); e(raw("s_waitcnt vmcnt(0)"))
        e(raw("s_mov_b64 exec, 1"))
        e(raw("buffer_atomic_add v3, v2, s[4:7], 0 offen sc1","vmemraw"))
        e(raw("s_waitcnt vmcnt(0)"))
        e(raw("s_mov_b32 s83, 0x40000"))
        if s.fuse=="grid":
            e(raw("s_mov_b64 exec, -1"))
            e(raw("v_mbcnt_lo_u32_b32 v2, -1, 0","valu")); e(raw("v_mbcnt_hi_u32_b32 v2, -1, v2","valu")); e(raw("v_lshlrev_b32 v2, 2, v2","valu"))
            e(raw("s_mov_b32 exec_hi, 0"))
            e(label("L_k1_poll"))
            e(raw("buffer_load_dword v4, v2, s[4:7], 0 offen sc1","vmemraw"))
            e(raw("s_waitcnt vmcnt(0)"))
            e(raw("v_cmp_gt_u32 vcc, 8, v4","valu"))
            e(raw("s_sub_u32 s83, s83, 1"))
            e(raw("s_cmp_eq_u32 s83, 0")); e(branch("s_cbranch_scc1 L_k1_pollend"))
            e(raw("s_nop 4"))
            e(raw("s_cmp_lg_u64 vcc, 0")); e(branch("s_cbranch_scc1 L_k1_poll"))
        else:
            e(label("L_k1_poll"))
            e(raw("buffer_load_dword v4, v2, s[4:7], 0 offen sc1","vmemraw"))
            e(raw("s_waitcnt vmcnt(0)"))
            e(raw("v_readfirstlane_b32 s84, v4","valu"))
            e(raw("s_sub_u32 s83, s83, 1"))
            e(raw("s_cmp_eq_u32 s83, 0")); e(branch("s_cbranch_scc1 L_k1_pollend"))
            e(raw("s_cmp_lt_u32 s84, 8")); e(branch("s_cbranch_scc1 L_k1_poll"))
        e(label("L_k1_pollend"))
        e(raw("s_mov_b64 exec, -1"))
        if s.rel:
            e(raw("buffer_inv sc1","vmemraw")); e(raw("s_waitcnt vmcnt(0)"))
        e(label("L_k1_rwait"))
        e(barrier())
        s.rstamp(sc,61)
        vL_=V(2); vI=V(3); vG=V(4); vA=V(5); vO=V(6); t0=V(7)
        e(raw("v_mbcnt_lo_u32_b32 v2, -1, 0","valu")); e(raw("v_mbcnt_hi_u32_b32 v2, -1, v2","valu")); e(valu("v_and_b32",vI,15,vL_)); e(valu("v_lshrrev_b32",vG,4,vL_))
        e(valu("v_lshlrev_b32",vA,4,vL_))
        e(raw("s_mul_i32 s85, s79, 21")); e(salu("s_add_u32",S(86),S(85),sWAVE)); e(raw("s_add_u32 s85, s85, 21"))
        for hp in range(1,8): e(salu("s_mov_b32",S(26+hp),hp*PW))
        def buf(i,hp): return V(64+(i*8+hp)*4,4)
        uo=[S(40+i) for i in range(6)]
        for i in range(6):
            e(salu("s_add_u32",S(87),S(86),4*i)); e(salu("s_lshl_b32",uo[i],S(87),10))
            e(salu("s_cmp_lt_u32",None,S(87),S(85))); e(salu("s_cselect_b32",uo[i],uo[i],"0x40000000"))
        va=[V(8+i) for i in range(6)]
        for i in range(6): e(valu("v_add_u32",va[i],uo[i],vA))
        def ld(i):
            for hp in range(8): e(vload(buf(i,hp),va[i],sGP,0 if hp==0 else S(26+hp),0,tag=('r',i,hp),mod=s.rdmod))
        ld(0); ld(1)
        e(raw("s_mul_i32 s88, s77, 192")); e(raw("s_mul_i32 s89, s76, 896"))
        e(valu("v_mov_b32",t0,1792)) if False else None
        e(salu("s_movk_i32",S(90),1792)); e(valu("v_mul_lo_u32",vO,vI,S(90))); e(valu("v_lshl_add_u32",vO,vG,4,vO))
        oo=[S(46+i) for i in range(6)]
        for i in range(6):
            e(salu("s_add_u32",S(87),S(86),4*i))
            e(raw("s_mul_i32 s91, s87, 1561")); e(raw("s_lshr_b32 s91, s91, 16"))
            e(raw("s_mul_i32 s92, s91, 42")); e(raw("s_sub_u32 s92, s87, s92"))
            e(raw("s_mul_i32 s93, s92, 43")); e(raw("s_lshr_b32 s93, s93, 8"))
            e(raw("s_mul_i32 s94, s93, 6")); e(raw("s_sub_u32 s94, s92, s94"))
            e(raw("s_lshr_b32 s95, s94, 1")); e(raw("s_and_b32 s94, s94, 1"))
            e(raw("s_mul_i32 s91, s91, 48")); e(raw("s_lshl_b32 s95, s95, 4")); e(raw("s_add_u32 s91, s91, s95")); e(raw("s_add_u32 s91, s91, s88"))
            e(raw("s_mul_i32 s91, s91, 1792")); e(raw("s_lshl_b32 s93, s93, 7")); e(raw("s_lshl_b32 s94, s94, 6"))
            e(raw("s_add_u32 s91, s91, s93")); e(raw("s_add_u32 s91, s91, s94")); e(salu("s_add_u32",oo[i],S(91),S(89)))
            e(salu("s_cmp_lt_u32",None,S(87),S(85))); e(salu("s_cselect_b32",oo[i],oo[i],"0x40000000"))
        e(salu("s_mov_b32",S(52),"0xffff0000"))
        s.rstamp(sc,62)
        acc=[V(16+i) for i in range(8)]; tl=[V(24+i) for i in range(8)]
        for i in range(6):
            if i+2<6: ld(i+2)
            for hp in range(8):
                e(wait_vm(('r',i,hp)))
                b=buf(i,hp); dst = acc if hp==0 else tl
                for r in range(4):
                    e(valu("v_lshlrev_b32",dst[2*r],16,sub(b,r))); e(valu("v_and_b32",dst[2*r+1],S(52),sub(b,r)))
                if hp:
                    for r in range(8): e(valu("v_add_f32",acc[r],acc[r],tl[r]))
            X=V(32+4*(i&1),4)
            for r in range(4): e(valu("v_cvt_pk_bf16_f32",sub(X,r),acc[2*r],acc[2*r+1]))
            e(perm("v_permlane32_swap_b32",sub(X,0),sub(X,2))); e(perm("v_permlane32_swap_b32",sub(X,1),sub(X,3)))
            e(perm("v_permlane16_swap_b32",sub(X,0),sub(X,2))); e(perm("v_permlane16_swap_b32",sub(X,1),sub(X,3)))
            e(vstore(X,vO,sOut,oo[i],0,tag='o',mod=s.outmod))
        if s.prof:
            s.rstamp(sc,63); e(wait_fixed(vm=0)); s.rstamp(sc,64)
            for i,r in enumerate((60,61,62,63,64)):
                e(raw(f"v_mov_b32 v2, s{r}","valu")); e(raw(f"buffer_store_dword v2, v1, s[56:59], 0 offen offset:{128+4*i}","valu")); e(raw("s_nop 1"))

    def accmov(s,d,a): return Ins(f"v_accvgpr_mov_b32 {rt(d)}, {rt(a)}","valu",rd=rs(a),wr=rs(d))
    def drain_group(s,t,j,T8,RI,dst):
        L=[]
        base=T8[0][1]
        for r in range(4): L.append(accrd(T8[r],sub(OA(2*t,j),r)))
        for r in range(4): L.append(accrd(T8[4+r],sub(OA(2*t+1,j),r)))
        for r in range(8): L.append(valu("v_mul_f32",T8[r],T8[r],sub(RI,0)))
        if dst[0]=='v':
            for r in range(4): L.append(valu("v_cvt_pk_bf16_f32",sub(dst,r),T8[2*r],T8[2*r+1]))
        else:
            for r in range(4): L.append(valu("v_cvt_pk_bf16_f32",T8[r],T8[2*r],T8[2*r+1]))
            for r in range(4): L.append(accwr(sub(dst,r),T8[r]))
        return L
    def build(s):
        XBASE[0]=192 if s.hide else 0
        XKEEP[0]=s.xkeep
        s._fl=[]
        sc=Sched(); s.prologue(sc)
        if s.fine: sc.emit(raw('s_mov_b32 s3, 0')); sc.emit(raw('v_mov_b32 v1, 0','valu')); sc.emit(raw('v_mov_b32 v15, 0','valu'))
        sc.emit(wait_vm(('W',0),('x',0,0))); sc.emit(barrier())
        pro=sc.out
        sc=Sched(); e=sc.emit
        if s.align: e(raw(f".p2align {s.align}","label"))
        for q in range(s.pad): e(nop(0))
        e(label("L_k1_unit"))
        itW=lambda k:(lambda en:('W',14*en['u']+k))
        itK=lambda n:(lambda en:('K',16*en['u']+n))
        xt=lambda k:(lambda en:('x',en['u'],k))
        s.stamp(sc,0,True)
        if s.xlds:
            e(salu("s_cmp_eq_u32",None,sU,0)); e(salu("s_cselect_b32",sXl,32768,0)); e(salu("s_add_u32",sXl,sXl,V_BASE))
            e(salu("s_lshl_b32",sT0,sWAVE,12)); e(salu("s_add_u32",sXl,sXl,sT0)); e(valu("v_add_u32",vXr,sXl,vXrl))
        for x in s.adv_rd('W'): e(x)
        for x in s.addr_ops('W'): e(x)
        for f in range(3):
            for x in s.rdV(f,itW(0),"Wn"): e(x)
        e(wait_lgkm(("Wn",0,0),("Wn",0,1)))
        kmaj=[(kt,t) for kt in range(2) for t in range(8)]
        tmaj=[(kt,t) for t in range(8) for kt in range(2)]
        qconv=[]; convdone={}
        qepi=[]
        RI0=[V(56+2*j,1) for j in range(3)]
        def PT(i4):
            t,j=divmod(i4,3)
            return PARK_A(i4) if 12<=i4<16 else OA(2*t,j)
        if s.hide:
            for n,i4 in enumerate([6,7,8,9,10,11,12,13,14,15,0,1,2,3,4,5]+list(range(16,24))):
                t,j=divmod(i4,3); base=24+8*(n&1)
                qepi+=[Filler(x) for x in s.drain_group(t,j,[V(base+r) for r in range(8)],RI0[j],PT(i4))]
        for k in range(14):
            mf=[mfma(QA(T,j),VF(T),XF(k,j),0 if k==0 else QA(T,j)) for T in range(16) for j in range(3)]
            xe=[]; xp=[]; xd=[]; xs2=[]; xf2=[]
            if not s.xlds:
                if k%2==0 and k<=10:
                    xl=s.xloads(k+2,xt); xe=xl[0::2]; xp=s.xpre(); xrest=xl[1::2]
                elif k%2==1 and k<=11:
                    xe=xrest
            else:
                xslot=lambda en:('V',(16*en['u']+2)%3)
                xitem=lambda p:(lambda en:('X',14*en['u']+p))
                if k<=11:
                    L,_=s.item_X(k+2,xitem,xslot)
                    xd=list(zip((14,17,20),L))
                    if k%2==0:
                        xp=s.xpre()+[salu("s_add_u32",sXw[1],sXk,14336),salu("s_add_u32",sXw[2],sXk,28672)]
                if 1<=k<=12:
                    _,R=s.item_X(k+1,xitem,xslot)
                    xs2=[(1,wait_vm(xitem(k+1))),(12,wait_lgkm(('xr',(k+1)&3,0),('xr',(k+1)&3,1),('xr',(k+1)&3,2)))]
                    xf2=list(zip((2,5,8),R))
            late=s.item_W(itW(k+3)) if k>=1 else None
            xs=[]
            if k==11:
                xs=[(0,salu("s_add_u32",sWu,sWu,512)),
                    (15,salu("s_cmp_eq_u32",None,sU,1)),(15,salu("s_cselect_b32",sub(sW,2),0,sub(sW,2)))]
            if s.defer and k in s.kvpos:
                its=[]
                for nm in s.kvpos[k]:
                    its.append(s.item_K(('K',int(nm[1]))) if nm[0]=='K' else s.item_V(('V',int(nm[1]))))
                e(salu("s_cmp_eq_u32",None,sU,0)); e(branch(f"s_cbranch_scc0 L_k1_skip{k}"))
                n0=len(sc.out)
                for it in its: s.emit_item(sc,it)
                e(branch(f"s_branch L_k1_join{k}"))
                for x in sc.out[n0:]: s.only_u0.add(id(x))
                e(label(f"L_k1_skip{k}"))
                n0=len(sc.out)
                for q in range(4*len(its)): e(touch(V(0),vKa,sDum,0))
                for x in sc.out[n0:]: s.only_u1.add(id(x))
                e(label(f"L_k1_join{k}"))
            queues=[qepi] if (s.hide and k<=12) else []
            if s.hide and k==12 and not s.xkeep:
                for i4 in range(6,12):
                    for r in range(4): qepi.append(Filler(s.accmov(sub(PARK_A(i4),r),sub(PT(i4),r))))
            if k==13:
                groups=[]
                for t in range(8):
                    for j in range(3):
                        last=mf[(2*t+1)*3+j]
                        groups.append((t,j,last,s.conv_ops(t,j)))
                n=len(groups)
                for i in range(n+2):
                    if i<n:
                        t,j,last,(m,c,p1,p2)=groups[i]
                        for x in m: qconv.append(Filler(x,[last]))
                        for x in c: qconv.append(Filler(x,[last]))
                    if 0<=i-1<n:
                        t,j,last,(m,c,p1,p2)=groups[i-1]
                        for x in p1: qconv.append(Filler(x))
                    if 0<=i-2<n:
                        t,j,last,(m,c,p1,p2)=groups[i-2]
                        for x in p2: qconv.append(Filler(x))
                        convdone[(t,j)]=p2
                queues=[qconv]
            if k<13:
                if s.xlds:
                    vw=[itW(k+1)]+([xt(k+1)] if k+1<2 else [])
                    s.step(sc,'W','W',mf,None,itW(k),itW(k+1),late=late,extra_shadow=list(xs)+xs2+([(3*0+47,wait_lgkm(('xr',(k+1)&3,2)))] if False else []),
                           extra_fixed=xf2,dmas=xd,pres=[(xp,0,11)] if xp else (),vmwait=vw,qfree=queues,qds=queues)
                else:
                    s.step(sc,'W','W',mf,None,itW(k),itW(k+1),xearly=xe,xpre=xp,late=late,extra_shadow=xs,
                           vmwait=[itW(k+1),xt(k+1)],qfree=queues,qds=queues)
                if s.hide and k==12: s.flush_all(sc,[qepi])
            else:
                s.step(sc,'W','K',mf,None,itW(k),itK(0),late=late,extra_shadow=list(xs)+xs2,extra_fixed=xf2,
                       vmwait=[itK(0)],qfree=queues,qds=queues,nxt_korder=tmaj,keep_addr=True)
        s.stamp(sc,1,True)
        mf=[]
        for f,(kt,t) in enumerate(tmaj):
            for j in range(3): mf.append(mfma(SB(0,kt,j),KF(f),QF(t,j),0 if t==0 else SB(0,kt,j)))
        def needs0(gi):
            f,j=divmod(gi,3); kt,t=tmaj[f]
            nd=list(convdone[(t,j)])
            if t==0 and kt==1: nd+=convdone[(1,j)]
            return nd
        s.step(sc,'K','K',mf,tmaj,itK(0),itK(1),late=s.item_W(itW(17)),
               vmwait=[itK(1)],qfree=[qconv],qds=[qconv],needs=needs0,nxt_korder=kmaj)
        assert not qconv
        m=[V(208+j) for j in range(3)]; tm=[V(211+j) for j in range(3)]
        e(barrier())
        if s.even:
            pre,L=s.item_K(itK(3))
            for x in s.flat(pre): e(x)
            for m_,d_ in L[:2]: e(m_); e(d_)
        else: s.emit_item(sc,s.item_K(itK(3)))
        mv=[]
        if s.hide and s.xkeep:
            e(salu("s_cmp_eq_u32",None,sU,1)); e(branch("s_cbranch_scc0 L_k1_nomv"))
            n0=len(sc.out)
            for i4 in range(0,12):
                for r in range(4): e(s.accmov(sub(PARK_A(i4),r),sub(PT(i4),r)))
            for x in sc.out[n0:]: s.only_u1.add(id(x))
            e(label("L_k1_nomv"))
            for i4 in range(16,24):
                for r in range(4): mv.append(accrd(sub(PARK_A(i4),r),sub(PT(i4),r)))
        elif s.hide:
            for i4 in range(0,6):
                for r in range(4): mv.append(s.accmov(sub(PARK_A(i4),r),sub(PT(i4),r)))
            for i4 in range(16,24):
                for r in range(4): mv.append(accrd(sub(PARK_A(i4),r),sub(PT(i4),r)))
        else:
            for i4 in range(16,24):
                for r in range(4): mv.append(accrd(sub(PARK_A(i4),r),sub(PARK_T(i4),r)))
        for j in range(3):
            a=SB(0,0,j); e(valu("v_max3_f32",m[j],sub(a,0),sub(a,1),sub(a,2)))
        for j in range(3):
            a=SB(0,0,j); b=SB(0,1,j); e(valu("v_max3_f32",m[j],m[j],sub(a,3),sub(b,0)))
        for j in range(3):
            b=SB(0,1,j); e(valu("v_max3_f32",m[j],m[j],sub(b,1),sub(b,2)))
        for j in range(3):
            b=SB(0,1,j); e(valu("v_max_f32",m[j],m[j],sub(b,3)))
        for x in s.allreduce("v_max_f32",m,tm): e(x)
        for j in range(3):
            for r in range(4): e(valu("v_sub_f32",sub(CI(j),r),0,m[j]))
        for j in range(3): e(valu("v_mov_b32",vL[j],0))
        if s.lscale:
            for j in range(3): e(valu("v_mul_f32",tm[j],sC,m[j]))
            for j in range(3):
                for kt in range(2):
                    for r in range(4):
                        x=sub(SB(0,kt,j),r)
                        e(Ins(f"v_fma_f32 {rt(x)}, {rt(x)}, {rt(sC)}, -{rt(tm[j])}","valu",rd=rs(x,sC,tm[j]),wr=rs(x)))
        else:
            for j in range(3):
                for kt in range(2):
                    for r in range(4): e(valu("v_sub_f32",sub(SB(0,kt,j),r),sub(SB(0,kt,j),r),m[j]))
        s.stamp(sc,2,True)
        def half(sc,buf,first=False,extraq=None):
            nb=1-buf
            iK=lambda d:(lambda en:('K',16*en['u']+en['i']+d))
            iV=lambda d:(lambda en:('V',16*en['u']+en['i']+d))
            qe,qc,pd=s.sm_exp(buf)
            qa=s.sm_add2(buf,qe)
            mf=[]
            for f,(kt,t) in enumerate(kmaj):
                for j in range(3): mf.append(mfma(SB(nb,kt,j),KF(f),QF(t,j),CI(j) if t==0 else SB(nb,kt,j)))
            xq=[extraq] if extraq is not None else []
            if s.even:
                preV,LV=s.item_V(iV(2)); _,LKprev=s.item_K(iK(3)); preK,LK=s.item_K(iK(4))
                s.step(sc,'K','V',mf,kmaj,iK(1),iV(0),vmwait=[iV(0)],qfree=[qe,qc]+xq+[qa],qds=[qc]+xq+[qa],
                       dmas=[(5,LKprev[2]),(17,LKprev[3]),(29,LV[0]),(41,LV[1])],pres=[(preV,18,27)])
            else:
                s.step(sc,'K','V',mf,kmaj,iK(1),iV(0),vmwait=[iV(0)],qfree=[qe,qc]+xq,qds=[qc]+xq)
            qm=(s.sm_mul(nb) if s.lscale else [])+s.sm_max(nb)
            mf=[mfma(OA(T,j),VF(T),PF(j),0 if first else OA(T,j)) for T in range(16) for j in range(3)]
            def needs(gi):
                nd=list(pd[gi]) if gi<3 else []
                if gi==0 and extraq is not None: nd+=[f.ins for f in extraq]
                return nd
            if s.even:
                s.step(sc,'V','K',mf,None,iV(0),iK(2),vmwait=[iK(2)],qfree=[qe,qc,qm,qa]+xq,qds=[qc,qm,qa]+xq,needs=needs,nxt_korder=kmaj,
                       dmas=[(5,LV[2]),(17,LV[3]),(29,LK[0]),(41,LK[1])],pres=[(preK,18,27)])
            else:
                s.step(sc,'V','K',mf,None,iV(0),iK(2),early=s.item_V(iV(2)),late=s.item_K(iK(4)),
                       vmwait=[iK(2)],qfree=[qe,qc,qm,qa]+xq,qds=[qc,qm,qa]+xq,needs=needs,nxt_korder=kmaj)
            s.flush_all(sc,[qe,qc,qa,qm])
            return nb
        nb=half(sc,0,first=True,extraq=[Filler(x) for x in mv])
        e(branch(f"s_cbranch_vccnz L_k1_rareF")); e(label("L_k1_retF"))
        e(salu("s_mov_b32",sCNT,7))
        wblk=sc.out
        sc=Sched(); sc.emit(label("L_k1_loop"))
        half(sc,1); sc.emit(branch("s_cbranch_vccnz L_k1_rare0")); sc.emit(label("L_k1_ret0"))
        hB=sc.out
        sc=Sched()
        half(sc,0); sc.emit(branch("s_cbranch_vccnz L_k1_rare1")); sc.emit(label("L_k1_ret1"))
        sc.emit(salu("s_sub_u32",sCNT,sCNT,1)); sc.emit(salu("s_cmp_lg_u32",None,sCNT,0)); sc.emit(branch("s_cbranch_scc1 L_k1_loop"))
        hA=sc.out
        sc=Sched(); e=sc.emit
        s.stamp(sc,3,True)
        iV=lambda d:(lambda en:('V',16*en['u']+15+d))
        e(wait_vm(iV(0))); e(barrier())
        if s.even:
            _,L=s.item_K(lambda en:('K',16*en['u']+18))
            for m_,d_ in L[2:]: e(m_); e(d_)
        if s.hide and not s.xkeep:
            e(salu("s_cmp_eq_u32",None,sU,0)); e(branch("s_cbranch_scc0 L_k1_nox"))
            n0=len(sc.out)
            for x in s.flat(s.xpre()): e(x)
            for x in s.xloads(0,lambda k:(lambda en:('x',en['u']+1,k))): e(x)
            for x in sc.out[n0:]: s.only_u0.add(id(x))
            e(label("L_k1_nox"))
        for x in s.adv_rd('V'): e(x)
        for x in s.addr_ops('V'): e(x)
        for f in range(3):
            for x in s.rdV(f,iV(0),"Vn"): e(x)
        qe,qc,pd=s.sm_exp(1)
        for j in range(3):
            for _ in range(8): e(qe.pop(0).ins)
            for _ in range(4): e(qc.pop(0).ins)
        e(wait_lgkm(("Vn",0,0),("Vn",0,1)))
        qa=s.sm_add(1)
        mf=[mfma(OA(T,j),VF(T),PF(j),OA(T,j)) for T in range(16) for j in range(3)]
        s.step(sc,'V',None,mf,None,iV(0),None,early=s.item_V(iV(2)),nobarrier=True,qfree=[qa],qds=[qa])
        s.flush_all(sc,[qa])
        s.stamp(sc,4,True)
        tm=[V(208+j) for j in range(3)]
        def opfirst():
            if s.deep:
                for p in range(4): e(valu("v_add_u32",vWo[p],p*28672,V(22)))
                e(salu("s_mov_b32",sWw,s.oring+1-16384))
                e(barrier())
                for q in range(4): s.emit_item(sc,s.item_O(('P',q),q*114688,sNgC))
        if s.hide:
            for x in s.allreduce("v_add_f32",vL,tm): e(x)
            e(salu("s_cmp_eq_u32",None,sU,1)); e(branch("s_cbranch_scc1 L_k1_epi1"))
            epi=sc.out
            sc=Sched(); e=sc.emit
            for j in range(3): e(trans("v_rcp_f32",RI0[j],vL[j]))
            s.stamp(sc,5,True)
            e(salu("s_mov_b32",sU,1))
            if s.xkeep:
                for x in s.flat(s.xpre()): e(x)
                e(wait_vm(('W',14)))
            else: e(wait_vm(('W',14),('x',1,0)))
            e(barrier()); e(branch("s_branch L_k1_unit"))
            park=sc.out
            sc=Sched(); e=sc.emit
            e(label("L_k1_epi1"))
            opfirst()
            RI=[V(220+j) for j in range(3)]
            for j in range(3): e(trans("v_rcp_f32",RI[j],vL[j]))
            gi=0
            for t in range(8):
                for j in range(3):
                    base=160+8*(gi%6)
                    for x in s.drain_group(t,j,[V(base+r) for r in range(8)],RI[j],QF(t,j)): e(x)
                    gi+=1
            s.stamp(sc,5,True)
            epi1=sc.out
            sc=Sched(); e=sc.emit
        else:
            if s.deep:
                e(salu("s_cmp_eq_u32",None,sU,1)); e(branch("s_cbranch_scc0 L_k1_nop0"))
                n0=len(sc.out)
                opfirst()
                for x in sc.out[n0:]: s.only_u1.add(id(x))
                e(label("L_k1_nop0"))
            for x in s.allreduce("v_add_f32",vL,tm): e(x)
            RI=[V(220+2*j,2) for j in range(3)]
            for j in range(3): e(trans("v_rcp_f32",sub(RI[j],0),vL[j]))
            for j in range(3): e(valu("v_mov_b32",sub(RI[j],1),sub(RI[j],0)))
            gi=0
            for t in range(8):
                for j in range(3):
                    base=160+8*(gi%6); T8=[V(base+r) for r in range(8)]
                    for r in range(4): e(accrd(T8[r],sub(OA(2*t,j),r)))
                    for r in range(4): e(accrd(T8[4+r],sub(OA(2*t+1,j),r)))
                    for r in range(4): e(valu("v_pk_mul_f32",V(base+2*r,2),V(base+2*r,2),RI[j]))
                    for r in range(4): e(valu("v_cvt_pk_bf16_f32",sub(QF(t,j),r),T8[2*r],T8[2*r+1]))
                    gi+=1
                if t==1:
                    for x in s.flat(s.xpre()): e(x)
                    for x in s.xloads(0,lambda k:(lambda en:('x',en['u']+1,k))): e(x)
            s.stamp(sc,5,True)
            e(salu("s_cmp_eq_u32",None,sU,1)); e(branch("s_cbranch_scc1 L_k1_op"))
            epi=sc.out
            epi1=[]
            sc=Sched(); e=sc.emit
            for i4 in range(24):
                t,j=divmod(i4,3)
                for r in range(4): e(accwr(sub(PARK_T(i4),r),sub(QF(t,j),r)))
            e(salu("s_mov_b32",sU,1)); e(wait_vm(('W',14),('x',1,0))); e(barrier()); e(branch("s_branch L_k1_unit"))
        if not s.hide: park=sc.out
        sc=Sched(); e=sc.emit
        e(label("L_k1_op"))
        last=(s.oring+1-16384)
        if not s.deep:
            for p in range(4): e(valu("v_add_u32",vWo[p],p*28672,V(22)))
            e(salu("s_mov_b32",sWw,last))
        e(salu("s_mov_b32",sWr,last))
        def advN(dst,src): return [salu("s_add_u32",dst,src,128),salu("s_cmp_eq_u32",None,dst,896),salu("s_cselect_b32",dst,0,dst)]
        for x in advN(sNgN,sNgC): e(x)
        if not s.deep:
            e(wait_fixed(vm=0)); e(barrier())
            for q in range(3): s.emit_item(sc,s.item_O(('P',q),q*114688,sNgC))
        else:
            e(barrier())
            for q in range(4,7): s.emit_item(sc,s.item_O(('P',q),(q&3)*114688,sNgN))
        if s.deep:
            for x in advN(sNgNN,sNgN): e(x)
        itP=lambda d:(lambda en:('P',4*en['g']+d))
        e(wait_vm(('P',0))); e(barrier())
        for x in s.adv_rd('O'): e(x)
        for x in s.addr_ops('O'): e(x)
        ksmaj=list(range(16))
        Tmaj=[ks*4+T for T in range(4) for ks in range(4)]
        for f in range(3):
            for x in s.rdV(f,('P',0),"On"): e(x)
        e(wait_lgkm(("On",0,0),("On",0,1)))
        e(salu("s_mov_b32",sCNT,7)); e(salu("s_mov_b32",sPs,"0x40000000")); e(salu("s_mov_b32",sPs2,"0x40000000"))
        s.stamp(sc,13)
        oppro=sc.out
        def Bop(kq,ks,j):
            hh=kq>>1; t=4*(kq&1)+ks
            return PARK_A(t*3+j) if hh==0 else QF(t,j)
        sc=Sched(); e=sc.emit
        e(label("L_k1_oploop"))
        def cv(h,j):
            a=OPA(2*h,j); b=OPA(2*h+1,j); d=OPK(h,j)
            return [valu("v_cvt_pk_bf16_f32",sub(d,0),sub(a,0),sub(a,1)),valu("v_cvt_pk_bf16_f32",sub(d,1),sub(a,2),sub(a,3)),
                    valu("v_cvt_pk_bf16_f32",sub(d,2),sub(b,0),sub(b,1)),valu("v_cvt_pk_bf16_f32",sub(d,3),sub(b,2),sub(b,3))]
        def stores(h): return [vstore(OPK(h,j),vPst,sP,(sPs if j<2 else sPs2),((j*2048)%4096)+h*1024,tag='p',mod=s.stmod) for j in range(3)]
        carry_cv=[]
        for j in range(3): carry_cv+=cv(1,j)[2:]
        carry_st=stores(1)
        for kq in range(4):
            fo = Tmaj if kq==3 else ksmaj
            nfo = Tmaj if kq==2 else ksmaj
            mf=[]
            for f in range(16):
                ks,T=divmod(fo[f],4)
                firstk = (kq==0 and ks==0)
                for j in range(3): mf.append(mfma(OPA(T,j),VF(f),Bop(kq,ks,j),0 if firstk else OPA(T,j)))
            kq2=(kq+s.olook)&3
            if s.deep: ngr = sNgN if kq==0 else sNgNN
            else: ngr = sNgC if kq==0 else sNgN
            late=s.item_O(itP(kq+s.olook),kq2*114688,ngr)
            q=[]; xs=[]; xe=[]; nd=None; XG=(5,14,23)
            if kq==0:
                q=[Filler(x) for x in carry_cv]
                def nd(gi,q0=list(carry_cv)):
                    return q0 if gi==9 else ()
                xe=carry_st; XG=(11,17,23) if not s.latest else (38,44,44)
            if kq==1:
                xs=[(12,salu("s_cmp_eq_u32",None,sCNT,2 if s.deep else 1)),(12,salu("s_cselect_b32",sub(sWo,2),0,sub(sWo,2))),
                    (13,salu("s_mul_i32",sPs,sNgC,48)),(15,salu("s_add_u32",sPs2,sPs,4096))]
            if kq==3:
                c0=[]
                for j in range(3): c0+=[Filler(x,[mf[(7*3)+j]]) for x in cv(0,j)]
                c2=[]
                for j in range(3): c2+=[Filler(x,[mf[(11*3)+j]]) for x in cv(1,j)[:2]]
                q=c0+c2
                xe=stores(0); XG=(38,41,44)
                def nd(gi,c=[f.ins for f in c0]):
                    return c if gi==38 else ()
                if s.deep:
                    adv=advN(sNgNN,sNgNN)
                    xs=[(42,salu("s_mov_b32",sNgC,sNgN)),(42,salu("s_mov_b32",sNgN,sNgNN)),(43,adv[0]),(45,adv[1]),(45,adv[2])]
                else:
                    adv=advN(sNgN,sNgN)
                    xs=[(42,salu("s_mov_b32",sNgC,sNgN)),(43,adv[0]),(45,adv[1]),(45,adv[2])]
            s.step(sc,'O','O',mf,None,itP(kq),itP(kq+1),late=late,extra_shadow=xs,xearly=xe,XG=XG,needs=nd,
                   vmwait=[itP(kq+1)],qfree=[q],qds=[q],forder=fo,nxt_forder=nfo,LG=(29,32,35,47) if kq==3 else (29,35,41,47))
            s.flush_all(sc,[q])
        e(salu("s_sub_u32",sCNT,sCNT,1)); e(salu("s_cmp_lg_u32",None,sCNT,0)); e(branch("s_cbranch_scc1 L_k1_oploop"))
        for x in [y for j in range(3) for y in cv(1,j)[2:]]: e(x)
        for x in stores(1): e(x)
        s.stamp(sc,14)
        if s.fuse:
            if s.prof:
                for x in s.dump_code(): e(x)
            s.reduce_tail(sc)
        e(branch("s_branch L_k1_fin" if (s.prof and not s.fuse) else "s_branch L_k1_end"))
        oploop=sc.out
        sc=Sched(); s.rare(sc,1,"L_k1_rareF","L_k1_retF"); s.rare(sc,0,"L_k1_rare0","L_k1_ret0"); s.rare(sc,1,"L_k1_rare1","L_k1_ret1"); rare=sc.out
        endb=[]
        if s.prof:
            endb=[label("L_k1_fin"),raw("v_mov_b32 v3, v1","valu"),raw("v_mov_b32 v4, v15","valu"),wait_fixed(vm=0),raw("s_memtime s[98:99]"),raw("s_memrealtime s[100:101]"),raw("s_waitcnt lgkmcnt(0)"),
                  raw("s_mov_b32 s4, s98"),raw("s_mov_b32 s5, s100"),
                  raw("s_add_u32 s8, s96, 0x8000000"),raw("s_addc_u32 s9, s97, 0"),raw("s_and_b32 s9, s9, 0xffff"),raw("s_mov_b32 s10, 0x100000"),raw("s_mov_b32 s11, 0x20000"),
                  raw("s_lshl_b32 s3, s2, 10"),raw("s_lshl_b32 s38, s24, 8"),raw("s_add_u32 s3, s3, s38"),raw("v_mov_b32 v1, s3","valu")]
            regs=list(range(66,96))+[4,5]
            for i,r in enumerate(regs):
                endb+=[raw(f"v_mov_b32 v2, s{r}","valu"),raw(f"buffer_store_dword v2, v1, s[8:11], 0 offen offset:{4*i}","valu"),raw("s_nop 1")]
            if s.fine:
                endb+=[raw("v_mbcnt_lo_u32_b32 v2, -1, 0","valu"),raw("v_mbcnt_hi_u32_b32 v2, -1, v2","valu"),raw("v_lshlrev_b32 v2, 2, v2","valu"),raw("s_lshl_b32 s3, s2, 11"),raw("s_lshl_b32 s38, s24, 9"),raw("s_add_u32 s3, s3, s38"),
                       raw("s_add_u32 s3, s3, 0x40000"),raw("v_add_u32 v2, s3, v2","valu"),raw("buffer_store_dword v3, v2, s[8:11], 0 offen","valu"),
                       raw("buffer_store_dword v4, v2, s[8:11], 0 offen offset:256","valu")]
            endb+=[raw("s_waitcnt vmcnt(0)")]
            if s.dbgprof:
                endb+=[raw("s_load_dwordx2 s[12:13], s[0:1], 88"),raw("s_waitcnt lgkmcnt(0)"),raw("s_and_b32 s13, s13, 0xffff"),raw("s_mov_b32 s14, 256"),raw("s_mov_b32 s15, 0x20000"),
                       raw("s_not_b32 s38, s91"),raw("v_mov_b32 v2, s38","valu"),raw("v_mov_b32 v3, 0","valu"),raw("v_mov_b32 v4, s5","valu"),raw("v_mov_b32 v5, 4","valu"),
                       raw("s_mov_b64 exec, 1"),
                       raw("buffer_atomic_umax v2, v3, s[12:15], 0 offen sc1","valu"),raw("buffer_atomic_umax v4, v5, s[12:15], 0 offen sc1","valu"),
                       raw("s_cmp_eq_u32 s2, 0"),branch("s_cbranch_scc0 L_k1_dbgskip"),raw("s_cmp_eq_u32 s24, 0"),branch("s_cbranch_scc0 L_k1_dbgskip")]
                rts=[67,69,71,73,75,77,79,81,83,85,87,89,93,95]
                for i,r in enumerate(rts):
                    endb+=[raw(f"s_sub_u32 s38, s{r}, s91"),raw("v_mov_b32 v2, s38","valu"),raw(f"v_mov_b32 v3, {8+4*i}","valu"),raw("buffer_store_dword v2, v3, s[12:15], 0 offen","valu"),raw("s_nop 1")]
                endb+=[label("L_k1_dbgskip"),raw("s_waitcnt vmcnt(0)"),raw("s_mov_b64 exec, -1")]
        endb+=[label("L_k1_end"),wait_fixed(vm=0),raw("s_endpgm","branch")]
        trace=[(x,{'u':0}) for x in pro]
        for u in range(2):
            trace+=[(x,{'u':u,'i':0}) for x in wblk if not ((u!=0 and id(x) in s.only_u0) or (u!=1 and id(x) in s.only_u1))]
            for it in range(7):
                trace+=[(x,{'u':u,'i':2*it+1}) for x in hB]
                trace+=[(x,{'u':u,'i':2*it+2}) for x in hA]
            trace+=[(x,{'u':u}) for x in epi if not ((u!=0 and id(x) in s.only_u0) or (u!=1 and id(x) in s.only_u1))]
            if u==0: trace+=[(x,{'u':u}) for x in park]
        trace+=[(x,{'u':1}) for x in epi1]
        trace+=[(x,{'u':1}) for x in oppro]
        for g in range(7): trace+=[(x,{'g':g}) for x in oploop]
        resolve_waits(trace)
        errs=check(trace)
        s.trace=trace
        code=pro+wblk+hB+hA+epi+park+epi1+oppro+oploop+rare+endb
        return code,errs

if __name__=="__main__":
    k=K1F(); code,errs=k.build()
    print(len(code),"instructions;",len(errs),"errors")
    for x in errs[:40]: print(x)
```

```python
from ir import *
from sched import *
import k1f
from k1f import *
from k1f import XBASE, XKEEP, XF, PARK_A, OPA, OPK, sNgNN, sXw, sXl, vXr, vXrl, sDum, sC, sCinv, PW
from k1 import KD_K1

sG=S(60); sWn=S(45); sInc=S(61); sCx=S(38); sCy=S(54); sWp=[S(28),S(98),S(99),S(100)]; sPd=S(101)

class K1G(K1F):
    def __init__(s, mix=False, kvmod=None, spread=True, early_op=True, gbit=5, ginv=False, **kw):
        kw.setdefault("stmod"," sc1"); kw.setdefault("touch",False); kw.setdefault("prokv",())
        kw.setdefault("kvpos",{9:['K0'],11:['K1'],12:['V0','K2'],13:['V1']})
        super().__init__(**kw); s.mix=mix; s.cond={}; s.spread=spread; s.early_op=early_op; s.gbit=gbit; s.ginv=ginv
        if kvmod is not None: s.kvmod=kvmod
    def only(s, sc, n0, pred):
        for x in sc.out[n0:]: s.cond[id(x)]=pred
    def prologue(s, sc):
        super().prologue(sc)
        e=sc.emit
        if s.mix: e(raw("s_lshr_b32 s60, s2, 5")); e(raw("s_and_b32 s60, s60, 1"))
        else: e(raw("s_mov_b32 s60, 0"))
        e(salu("s_mov_b32",sWn,0))
    def cond_item(s, typ, n):
        first=lambda en:en['w']==en['G']
        item=lambda en:(typ,n) if first(en) else None
        if typ=='K': st,wr,base,end,wv,srd,ring=sKs,sKw,K_BASE,V_BASE,sWvK,sK,'K'
        else: st,wr,base,end,wv,srd,ring=sVs,sVw,V_BASE,LDS_END,sWvV,sV,'V'
        cx = sCx if typ=='K' else sCy
        pre=[[salu("s_add_u32",st,st,sInc), salu("s_add_u32",wr,wr,sInc)],
             [salu("s_cmp_eq_u32",None,wr,end),salu("s_cselect_b32",wr,base,wr)],
             [salu("s_cmp_eq_u32",None,sWn,sG),salu("s_cselect_b32",cx,wr,"0x28000")]]
        L=[]
        for p in range(4):
            if typ=='K': d=dma(vKg[p>>1],sK,sKs,(p&1)*256,item,(lambda e,n=n:('K',n%3)),s.kvmod)
            else: d=dma(vVg,sV,sVs,p*128,item,(lambda e,n=n:('V',n%3)),s.kvmod)
            L.append((salu("s_add_u32","m0",cx,wv[p]),d))
        return pre,L
    def item_Wx(s, q):
        item=lambda en:(('W',14*en['w']+14+q) if en['w']==0 else ('P',q))
        slot=lambda en:('W',(14*en['w']+14+q)%4)
        pre=[salu("s_add_u32",sWk,sWk,262144),[salu("s_cmp_eq_u32",None,sWk,14*262144),salu("s_cselect_b32",sWk,0,sWk)],
             [salu("s_add_u32",sWw,sWw,16384),salu("s_and_b32",sWw,sWw,0xffff)],
             [salu("s_add_u32",sWp[0],sWk,sWu),salu("s_add_u32",sWp[1],sNgC,q*114688)],
             [salu("s_cmp_eq_u32",None,sWn,1),salu("s_cselect_b32",sWp[0],sWp[1],sWp[0]),salu("s_cselect_b32",sPd,28544,0)],
             [salu("s_add_u32",sWp[1],sWp[0],sPd),salu("s_add_u32",sWp[2],sWp[1],sPd)],
             salu("s_add_u32",sWp[3],sWp[2],sPd)]
        L=[(salu("s_add_u32","m0",sWw,sWvV[p]), dma(vWg,sW,sWp[p],p*128,item,slot,s.wmod)) for p in range(4)]
        return pre,L
    def build(s):
        XBASE[0]=192; XKEEP[0]=True; s._fl=[]
        sc=Sched(); s.prologue_g(sc)
        if s.fine: sc.emit(raw('s_mov_b32 s3, 0')); sc.emit(raw('v_mov_b32 v1, 0','valu')); sc.emit(raw('v_mov_b32 v15, 0','valu'))
        sc.emit(wait_vm(('W',0),('x',0,0))); sc.emit(barrier())
        pro=sc.out
        itW=lambda k:(lambda en:('W',14*en['w']+k))
        itK=lambda n:(lambda en:('K',16*en['u']+n))
        itKa=lambda n:(lambda en:None if en.get('noA') else ('K',16*en['u']+n))
        xt=lambda k:(lambda en:('x',en['w'],k))
        kmaj=[(kt,t) for kt in range(2) for t in range(8)]
        tmaj=[(kt,t) for t in range(8) for kt in range(2)]
        RI0=[V(56+2*j,1) for j in range(3)]
        def PT(i4):
            t,j=divmod(i4,3); return PARK_A(i4) if 12<=i4<16 else OA(2*t,j)
        def PQ(i4):
            t,j=divmod(i4,3); return OA(2*t+1,j)
        sc=Sched(); e=sc.emit
        e(label("L_k1_unit"))
        s.stamp(sc,0,True)
        e(salu("s_andn2_b32",sT0,sWn,sG)); e(salu("s_cmp_eq_u32",None,sT0,1)); e(salu("s_cselect_b32",sXl,0,32768)); e(salu("s_add_u32",sXl,sXl,V_BASE))
        e(salu("s_lshl_b32",sT0,sWAVE,12)); e(salu("s_add_u32",sXl,sXl,sT0)); e(valu("v_add_u32",vXr,sXl,vXrl))
        for x in s.adv_rd('W'): e(x)
        for x in s.addr_ops('W'): e(x)
        for f in range(3):
            for x in s.rdV(f,itW(0),"Wn"): e(x)
        e(wait_lgkm(("Wn",0,0),("Wn",0,1)))
        qconv=[]; convdone={}; qepi=[]
        for n,i4 in enumerate([6,7,8,9,10,11,12,13,14,15,0,1,2,3,4,5]+list(range(16,24))):
            t,j=divmod(i4,3); base=24+8*(n&1)
            qepi+=[Filler(x) for x in s.drain_group(t,j,[V(base+r) for r in range(8)],RI0[j],PT(i4))]
        xslot=lambda en:('V',(16*en['u']*(1 if en['w']==1 and en['G']==0 else 0)+2)%3)
        xitem=lambda p:(lambda en:('X',14*en['w']+p))
        for k in range(14):
            mf=[mfma(QA(T,j),VF(T),XF(k,j),0 if k==0 else QA(T,j)) for T in range(16) for j in range(3)]
            xp=[]; xd=[]; xs2=[]; xf2=[]
            if k<=11:
                L,_=s.item_X(k+2,xitem,xslot); xd=list(zip((14,17,20),L))
                if k%2==0: xp=s.xpre()+[salu("s_add_u32",sXw[1],sXk,14336),salu("s_add_u32",sXw[2],sXk,28672)]
            if 1<=k<=12:
                _,R=s.item_X(k+1,xitem,xslot)
                xs2=[(1,wait_vm(xitem(k+1))),(12,wait_lgkm(('xr',(k+1)&3,0),('xr',(k+1)&3,1),('xr',(k+1)&3,2)))]
                xf2=list(zip((2,5,8),R))
            late=s.item_W(itW(k+3)) if k>=1 else None
            xs=[]; xfx=[]
            if k==11:
                xs=[(0,salu("s_xor_b32",sWu,sWu,512)),(15,salu("s_cmp_eq_u32",None,sWn,1)),(15,salu("s_cselect_b32",sub(sW,2),0,sub(sW,2)))]
            if s.early_op and k>=11:
                pre_,L_=s.item_Wx(k-11); late=([],L_); head_=s.flat(pre_)
                if k==11:
                    xs=[(0,salu("s_xor_b32",sWu,sWu,512)),(15,salu("s_cmp_eq_u32",None,sWn,1))]+[(15,salu("s_cselect_b32",sub(sW,r),sub(sWo,r),sub(sW,r))) for r in range(3)]
                    xs+=[(21,raw("s_cmp_eq_u32 s45, 1")),(21,raw("s_cselect_b64 vcc, -1, 0","salu",wr=VCC))]
                    xfx=[(23,Ins("v_cndmask_b32 v11, v11, v22, vcc","valu",rd=rs(V(11),V(22))|VCC,wr=rs(V(11))))]
            if s.early_op and k>=11:
                if k==11: e(salu("s_xor_b32",sWu,sWu,512)); xs=[x for x in xs if x[0]!=0]
                for x in head_: e(x)
            cd=[]; cp=[]
            if s.spread:
                tab={11:[('K',0,(26,32,38,44),(4,24))],12:[('K',1,(11,14,17,20),(0,9)),('V',0,(26,32,38,44),(6,24))],13:[('K',2,(8,14,20,23),(0,6))]}
                for typ,n,gaps,(lo,hi) in tab.get(k,[]):
                    pre,L=s.cond_item(typ,n); cd+=list(zip(gaps,L)); cp.append((pre,lo,hi))
                if k==11:
                    xs=xs+[(3,salu("s_cmp_eq_u32",None,sWn,sG)),(3,salu("s_cselect_b32",sub(sK,2),524288,0)),(3,salu("s_cselect_b32",sub(sV,2),524288,0)),(3,salu("s_cselect_b32",sInc,16384,0))]
            if k in s.kvpos and not s.spread:
                its=[s.item_K(('K',int(nm[1]))) if nm[0]=='K' else s.item_V(('V',int(nm[1]))) for nm in s.kvpos[k]]
                e(salu("s_cmp_eq_u32",None,sWn,sG)); e(branch(f"s_cbranch_scc0 L_k1_skip{k}"))
                n0=len(sc.out)
                for it in its: s.emit_item(sc,it)
                e(branch(f"s_branch L_k1_join{k}"))
                s.only(sc,n0,lambda en:en['w']==en['G'])
                e(label(f"L_k1_skip{k}"))
                n0=len(sc.out)
                for q in range(4*len(its)): e(touch(V(0),vKa,sDum,0))
                s.only(sc,n0,lambda en:en['w']!=en['G'])
                e(label(f"L_k1_join{k}"))
            queues=[qepi] if k<=12 else []
            if k==13:
                groups=[]
                for t in range(8):
                    for j in range(3): groups.append((t,j,mf[(2*t+1)*3+j],s.conv_ops(t,j)))
                n=len(groups)
                for i in range(n+2):
                    if i<n:
                        t,j,last,(m,c,p1,p2)=groups[i]
                        for x in c: qconv.append(Filler(x,[last]))
                    if 0<=i-1<n:
                        for x in groups[i-1][3][2]: qconv.append(Filler(x))
                    if 0<=i-2<n:
                        t,j,last,(m,c,p1,p2)=groups[i-2]
                        for x in p2: qconv.append(Filler(x))
                        convdone[(t,j)]=p2
                queues=[qconv]
            if k<13:
                vw=[itW(k+1)]+([xt(k+1)] if k+1<2 else [])
                s.step(sc,'W','W',mf,None,itW(k),itW(k+1),late=late,extra_shadow=list(xs)+xs2,extra_fixed=xf2+xfx,dmas=xd+cd,
                       pres=([(xp,0,11)] if xp else [])+cp,vmwait=vw,qfree=queues,qds=queues)
                if k==12: s.flush_all(sc,[qepi])
            else:
                s.step(sc,'W','K',mf,None,itW(k),itKa(0),late=late,extra_shadow=list(xs)+xs2,extra_fixed=xf2,dmas=cd,pres=cp,
                       vmwait=[itK(0)],qfree=queues,qds=queues,nxt_korder=tmaj,keep_addr=True)
        rest=[clone(f.ins) for f in qconv]
        s.stamp(sc,1,True)
        if s.mix: e(salu("s_cmp_gt_u32",None,sG,sWn)); e(branch("s_cbranch_scc1 L_k1_noatt"))
        wblk=sc.out
        sc2=Sched(); sc2.done=set(sc.done); sc2.out=[]; sc=sc2; e=sc.emit
        e(nop(0))
        mf=[]
        for f,(kt,t) in enumerate(tmaj):
            for j in range(3): mf.append(mfma(SB(0,kt,j),KF(f),QF(t,j),0 if t==0 else SB(0,kt,j)))
        def needs0(gi):
            f,j=divmod(gi,3); kt,t=tmaj[f]
            nd=list(convdone[(t,j)])
            if t==0 and kt==1: nd+=convdone[(1,j)]
            return nd
        cd=[]; cp=[]
        if s.spread:
            pre,L=s.cond_item('V',1); cd=list(zip((8,14,20,23),L)); cp=[(pre,0,6)]
        if s.early_op:
            pre_,L_=s.item_Wx(3)
            for x in s.flat(pre_): e(x)
            lt=([],L_)
        else: lt=s.item_W(itW(17))
        s.step(sc,'K','K',mf,tmaj,itK(0),itK(1),late=lt,vmwait=[itK(1)],qfree=[qconv],qds=[qconv],needs=needs0,nxt_korder=kmaj,dmas=cd,pres=cp)
        assert not qconv
        qk0c=sc.out
        sc=Sched(); e=sc.emit
        e(label("L_k1_max"))
        m=[V(208+j) for j in range(3)]; tm=[V(211+j) for j in range(3)]
        e(barrier())
        if s.spread: e(salu("s_mov_b32",sub(sK,2),524288)); e(salu("s_mov_b32",sub(sV,2),524288))
        pre,L=s.item_K(itK(3))
        for x in s.flat(pre): e(x)
        for m_,d_ in L[:2]: e(m_); e(d_)
        e(salu("s_lshl_b32",sT0,sG,1)); e(salu("s_add_u32",sT0,sT0,sU)); e(salu("s_cmp_eq_u32",None,sT0,1)); e(branch("s_cbranch_scc0 L_k1_nomva"))
        n0=len(sc.out)
        for i4 in range(0,12):
            for r in range(4): e(s.accmov(sub(PARK_A(i4),r),sub(PT(i4),r)))
        for i4 in range(16,24):
            for r in range(4): e(accrd(sub(PARK_A(i4),r),sub(PT(i4),r)))
        s.only(sc,n0,lambda en:en['G']==0 and en['u']==1)
        e(label("L_k1_nomva"))
        if s.mix:
            e(salu("s_cmp_eq_u32",None,sT0,2)); e(branch("s_cbranch_scc0 L_k1_nomvb"))
            n0=len(sc.out)
            for i4 in range(0,16):
                for r in range(4): e(s.accmov(sub(PARK_A(i4),r),sub(PQ(i4),r)))
            for i4 in range(16,24):
                for r in range(4): e(accrd(sub(PARK_A(i4),r),sub(PQ(i4),r)))
            s.only(sc,n0,lambda en:en['G']==1 and en['u']==0)
            e(label("L_k1_nomvb"))
        for j in range(3):
            a=SB(0,0,j); e(valu("v_max3_f32",m[j],sub(a,0),sub(a,1),sub(a,2)))
        for j in range(3):
            a=SB(0,0,j); b=SB(0,1,j); e(valu("v_max3_f32",m[j],m[j],sub(a,3),sub(b,0)))
        for j in range(3):
            b=SB(0,1,j); e(valu("v_max3_f32",m[j],m[j],sub(b,1),sub(b,2)))
        for j in range(3):
            b=SB(0,1,j); e(valu("v_max_f32",m[j],m[j],sub(b,3)))
        for x in s.allreduce("v_max_f32",m,tm): e(x)
        for j in range(3):
            for r in range(4): e(valu("v_sub_f32",sub(CI(j),r),0,m[j]))
        for j in range(3): e(valu("v_mov_b32",vL[j],0))
        for j in range(3): e(valu("v_mul_f32",tm[j],sC,m[j]))
        for j in range(3):
            for kt in range(2):
                for r in range(4):
                    x=sub(SB(0,kt,j),r)
                    e(Ins(f"v_fma_f32 {rt(x)}, {rt(x)}, {rt(sC)}, -{rt(tm[j])}","valu",rd=rs(x,sC,tm[j]),wr=rs(x)))
        s.stamp(sc,2,True)
        def half(sc,buf,first=False):
            nb=1-buf
            iK=lambda d:(lambda en:('K',16*en['u']+en['i']+d))
            iV=lambda d:(lambda en:('V',16*en['u']+en['i']+d))
            qe,qc,pd=s.sm_exp(buf); qa=s.sm_add2(buf,qe)
            mf=[]
            for f,(kt,t) in enumerate(kmaj):
                for j in range(3): mf.append(mfma(SB(nb,kt,j),KF(f),QF(t,j),CI(j) if t==0 else SB(nb,kt,j)))
            preV,LV=s.item_V(iV(2)); _,LKprev=s.item_K(iK(3)); preK,LK=s.item_K(iK(4))
            s.step(sc,'K','V',mf,kmaj,iK(1),iV(0),vmwait=[iV(0)],qfree=[qe,qc,qa],qds=[qc,qa],
                   dmas=[(5,LKprev[2]),(17,LKprev[3]),(29,LV[0]),(41,LV[1])],pres=[(preV,18,27)])
            qm=s.sm_mul(nb)+s.sm_max(nb)
            mf=[mfma(OA(T,j),VF(T),PF(j),0 if first else OA(T,j)) for T in range(16) for j in range(3)]
            s.step(sc,'V','K',mf,None,iV(0),iK(2),vmwait=[iK(2)],qfree=[qe,qc,qm,qa],qds=[qc,qm,qa],needs=lambda gi:(list(pd[gi]) if gi<3 else []),nxt_korder=kmaj,
                   dmas=[(5,LV[2]),(17,LV[3]),(29,LK[0]),(41,LK[1])],pres=[(preK,18,27)])
            s.flush_all(sc,[qe,qc,qa,qm])
        half(sc,0,first=True)
        e(branch("s_cbranch_vccnz L_k1_rareF")); e(label("L_k1_retF"))
        e(salu("s_mov_b32",sCNT,7))
        mblk=sc.out
        sc=Sched(); sc.emit(label("L_k1_loop"))
        half(sc,1); sc.emit(branch("s_cbranch_vccnz L_k1_rare0")); sc.emit(label("L_k1_ret0"))
        hB=sc.out
        sc=Sched()
        half(sc,0); sc.emit(branch("s_cbranch_vccnz L_k1_rare1")); sc.emit(label("L_k1_ret1"))
        sc.emit(salu("s_sub_u32",sCNT,sCNT,1)); sc.emit(salu("s_cmp_lg_u32",None,sCNT,0)); sc.emit(branch("s_cbranch_scc1 L_k1_loop"))
        hA=sc.out
        sc=Sched(); e=sc.emit
        s.stamp(sc,3,True)
        iV=lambda d:(lambda en:('V',16*en['u']+15+d))
        e(wait_fixed(lgkm=0)); e(wait_vm(iV(0))); e(barrier())
        _,L=s.item_K(lambda en:('K',16*en['u']+18))
        for m_,d_ in L[2:]: e(m_); e(d_)
        def advN(dst,src): return [salu("s_add_u32",dst,src,128),salu("s_cmp_eq_u32",None,dst,896),salu("s_cselect_b32",dst,0,dst)]
        if s.early_op:
            e(salu("s_cmp_eq_u32",None,sU,1)); e(branch("s_cbranch_scc0 L_k1_nop4"))
            n0=len(sc.out)
            for p in range(4): e(valu("v_add_u32",vWo[p],p*28672,V(22)))
            e(salu("s_mov_b32",sWw,49152))
            for x in advN(sNgN,sNgC): e(x)
            for q in range(4,7): s.emit_item(sc,s.item_O(('P',q),(q&3)*114688,sNgN))
            s.only(sc,n0,lambda en:en['u']==1)
            e(label("L_k1_nop4"))
        for x in s.adv_rd('V'): e(x)
        for x in s.addr_ops('V'): e(x)
        for f in range(3):
            for x in s.rdV(f,iV(0),"Vn"): e(x)
        qe,qc,pd=s.sm_exp(1)
        for j in range(3):
            for _ in range(8): e(qe.pop(0).ins)
            for _ in range(4): e(qc.pop(0).ins)
        e(wait_lgkm(("Vn",0,0),("Vn",0,1)))
        qa=s.sm_add(1)
        mf=[mfma(OA(T,j),VF(T),PF(j),OA(T,j)) for T in range(16) for j in range(3)]
        s.step(sc,'V',None,mf,None,iV(0),None,early=s.item_V(iV(2)),nobarrier=True,qfree=[qa],qds=[qa])
        s.flush_all(sc,[qa])
        s.stamp(sc,4,True)
        tm=[V(208+j) for j in range(3)]
        for x in s.allreduce("v_add_f32",vL,tm): e(x)
        e(salu("s_cmp_eq_u32",None,sU,1)); e(branch("s_cbranch_scc1 L_k1_epi1"))
        if s.mix: e(salu("s_cmp_eq_u32",None,sG,1)); e(branch("s_cbranch_scc1 L_k1_swap"))
        tail=sc.out
        sc=Sched(); e=sc.emit
        for j in range(3): e(trans("v_rcp_f32",RI0[j],vL[j]))
        s.stamp(sc,5,True)
        e(salu("s_mov_b32",sU,1)); e(salu("s_mov_b32",sWn,1))
        for x in s.flat(s.xpre()): e(x)
        e(wait_vm(('W',14))); e(barrier()); e(branch("s_branch L_k1_unit"))
        park=sc.out
        noatt=[]; swap=[]; qk0n=[]
        if s.mix:
            sc=Sched(); e=sc.emit
            e(label("L_k1_noatt")); e(nop(1))
            for x in rest: e(x)
            e(barrier())
            s.emit_item(sc,s.item_Wx(3) if s.early_op else s.item_W(('W',17)))
            for i4 in range(24):
                t,j=divmod(i4,3)
                for r in range(4): e(accwr(sub(PQ(i4),r),sub(QF(t,j),r)))
            e(salu("s_mov_b32",sWn,1))
            for x in s.flat(s.xpre()): e(x)
            e(wait_vm(('W',14))); e(barrier()); e(branch("s_branch L_k1_unit"))
            noatt=sc.out
            sc=Sched(); e=sc.emit
            e(label("L_k1_swap"))
            RI=[V(220+j) for j in range(3)]
            for j in range(3): e(trans("v_rcp_f32",RI[j],vL[j]))
            for i4 in range(24):
                t,j=divmod(i4,3); p=PARK_A(i4)
                for r in range(4):
                    e(accrd(sub(QF(t,j),r),sub(p,r)) if p[0]=='a' else valu("v_mov_b32",sub(QF(t,j),r),sub(p,r)))
            gi=0
            for t in range(8):
                for j in range(3):
                    base=160+8*(gi%6)
                    for x in s.drain_group(t,j,[V(base+r) for r in range(8)],RI[j],PARK_A(t*3+j)): e(x)
                    gi+=1
            s.stamp(sc,5,True)
            e(salu("s_mov_b32",sU,1))
            mf=[]
            for f,(kt,t) in enumerate(kmaj):
                for j in range(3): mf.append(mfma(SB(0,kt,j),KF(f),QF(t,j),0 if t==0 else SB(0,kt,j)))
            s.step(sc,'K','K',mf,kmaj,lambda en:('K',16),lambda en:('K',17),vmwait=[('K',17)],nxt_korder=kmaj)
            e(branch("s_branch L_k1_max"))
            swap=sc.out
        sc=Sched(); e=sc.emit
        e(label("L_k1_epi1"))
        if not s.early_op:
            for p in range(4): e(valu("v_add_u32",vWo[p],p*28672,V(22)))
            e(salu("s_mov_b32",sWw,s.oring+1-16384))
            e(barrier())
            for q in range(4): s.emit_item(sc,s.item_O(('P',q),q*114688,sNgC))
        RI=[V(220+j) for j in range(3)]
        for j in range(3): e(trans("v_rcp_f32",RI[j],vL[j]))
        gi=0
        for t in range(8):
            for j in range(3):
                base=160+8*(gi%6)
                for x in s.drain_group(t,j,[V(base+r) for r in range(8)],RI[j],QF(t,j)): e(x)
                gi+=1
        s.stamp(sc,5,True)
        last=(s.oring+1-16384)
        e(salu("s_mov_b32",sWr,last))
        if not s.early_op:
            for x in advN(sNgN,sNgC): e(x)
            e(barrier())
            for q in range(4,7): s.emit_item(sc,s.item_O(('P',q),(q&3)*114688,sNgN))
        for x in advN(sNgNN,sNgN): e(x)
        itP=lambda d:(lambda en:('P',4*en['g']+d))
        e(wait_vm(('P',0))); e(barrier())
        for x in s.adv_rd('O'): e(x)
        for x in s.addr_ops('O'): e(x)
        ksmaj=list(range(16)); Tmaj=[ks*4+T for T in range(4) for ks in range(4)]
        for f in range(3):
            for x in s.rdV(f,('P',0),"On"): e(x)
        e(wait_lgkm(("On",0,0),("On",0,1)))
        e(salu("s_mov_b32",sCNT,7)); e(salu("s_mov_b32",sPs,"0x40000000")); e(salu("s_mov_b32",sPs2,"0x40000000"))
        s.stamp(sc,13)
        oppro=sc.out
        def Bop(kq,ks,j):
            hh=kq>>1; t=4*(kq&1)+ks
            return PARK_A(t*3+j) if hh==0 else QF(t,j)
        sc=Sched(); e=sc.emit
        e(label("L_k1_oploop"))
        def cv(h,j):
            a=OPA(2*h,j); b=OPA(2*h+1,j); d=OPK(h,j)
            return [valu("v_cvt_pk_bf16_f32",sub(d,0),sub(a,0),sub(a,1)),valu("v_cvt_pk_bf16_f32",sub(d,1),sub(a,2),sub(a,3)),
                    valu("v_cvt_pk_bf16_f32",sub(d,2),sub(b,0),sub(b,1)),valu("v_cvt_pk_bf16_f32",sub(d,3),sub(b,2),sub(b,3))]
        def stores(h): return [vstore(OPK(h,j),vPst,sP,(sPs if j<2 else sPs2),((j*2048)%4096)+h*1024,tag='p',mod=s.stmod) for j in range(3)]
        carry_cv=[]
        for j in range(3): carry_cv+=cv(1,j)[2:]
        carry_st=stores(1)
        for kq in range(4):
            fo = Tmaj if kq==3 else ksmaj
            nfo = Tmaj if kq==2 else ksmaj
            mf=[]
            for f in range(16):
                ks,T=divmod(fo[f],4)
                for j in range(3): mf.append(mfma(OPA(T,j),VF(f),Bop(kq,ks,j),0 if (kq==0 and ks==0) else OPA(T,j)))
            late=s.item_O(itP(kq+7),((kq+7)&3)*114688,sNgN if kq==0 else sNgNN)
            q=[]; xs=[]; xe=[]; nd=None; XG=(5,14,23)
            if kq==0:
                q=[Filler(x) for x in carry_cv]
                def nd(gi,q0=list(carry_cv)): return q0 if gi==9 else ()
                xe=carry_st; XG=(11,17,23)
            if kq==1:
                xs=[(12,salu("s_cmp_eq_u32",None,sCNT,2)),(12,salu("s_cselect_b32",sub(sWo,2),0,sub(sWo,2))),
                    (13,salu("s_mul_i32",sPs,sNgC,48)),(15,salu("s_add_u32",sPs2,sPs,4096))]
            if kq==3:
                c0=[]
                for j in range(3): c0+=[Filler(x,[mf[(7*3)+j]]) for x in cv(0,j)]
                c2=[]
                for j in range(3): c2+=[Filler(x,[mf[(11*3)+j]]) for x in cv(1,j)[:2]]
                q=c0+c2; xe=stores(0); XG=(38,41,44)
                def nd(gi,c=[f.ins for f in c0]): return c if gi==38 else ()
                adv=advN(sNgNN,sNgNN)
                xs=[(42,salu("s_mov_b32",sNgC,sNgN)),(42,salu("s_mov_b32",sNgN,sNgNN)),(43,adv[0]),(45,adv[1]),(45,adv[2])]
            s.step(sc,'O','O',mf,None,itP(kq),itP(kq+1),late=late,extra_shadow=xs,xearly=xe,XG=XG,needs=nd,
                   vmwait=[itP(kq+1)],qfree=[q],qds=[q],forder=fo,nxt_forder=nfo,LG=(29,32,35,47) if kq==3 else (29,35,41,47))
            s.flush_all(sc,[q])
        e(salu("s_sub_u32",sCNT,sCNT,1)); e(salu("s_cmp_lg_u32",None,sCNT,0)); e(branch("s_cbranch_scc1 L_k1_oploop"))
        for x in [y for j in range(3) for y in cv(1,j)[2:]]: e(x)
        for x in stores(1): e(x)
        s.stamp(sc,14)
        if s.fuse:
            if s.prof:
                for x in s.dump_code(): e(x)
            s.reduce_tail(sc)
        e(branch("s_branch L_k1_fin" if (s.prof and not s.fuse) else "s_branch L_k1_end"))
        oploop=sc.out
        sc=Sched(); s.rare(sc,1,"L_k1_rareF","L_k1_retF"); s.rare(sc,0,"L_k1_rare0","L_k1_ret0"); s.rare(sc,1,"L_k1_rare1","L_k1_ret1"); rare=sc.out
        endb=s.end_block()
        def add(tr,blk,**en):
            tr+=[(x,en) for x in blk if s.cond.get(id(x),lambda e_:True)(en)]
        def att(tr,G,u,w):
            add(tr,mblk,G=G,u=u,w=w,i=0)
            for it in range(7):
                add(tr,hB,G=G,u=u,w=w,i=2*it+1); add(tr,hA,G=G,u=u,w=w,i=2*it+2)
            add(tr,tail,G=G,u=u,w=w)
        def fin(tr,G):
            add(tr,oppro,G=G,u=1,w=1)
            for g in range(7): add(tr,oploop,G=G,g=g)
        t0=[]; add(t0,pro,G=0,u=0,w=0)
        add(t0,wblk,G=0,u=0,w=0); add(t0,qk0c,G=0,u=0,w=0); att(t0,0,0,0); add(t0,park,G=0,u=0,w=0)
        add(t0,wblk,G=0,u=1,w=1); add(t0,qk0c,G=0,u=1,w=1); att(t0,0,1,1); fin(t0,0)
        traces=[t0]
        if s.mix:
            t1=[]; add(t1,pro,G=1,u=0,w=0)
            add(t1,wblk,G=1,u=0,w=0,noA=True); add(t1,noatt,G=1,u=0,w=0)
            add(t1,wblk,G=1,u=0,w=1); add(t1,qk0c,G=1,u=0,w=1); att(t1,1,0,1); add(t1,swap,G=1,u=0,w=1)
            att(t1,1,1,1); fin(t1,1)
            traces.append(t1)
        resolve_waits_multi(traces)
        errs=[]
        for t in traces: errs+=check(t)
        code=pro+wblk+qk0c+mblk+hB+hA+tail+park+noatt+swap+oppro+oploop+rare+endb
        return code,errs
    def prologue_g(s, sc):
        n0=len(sc.out)
        K1F.prologue(s, sc)
        for idx,x in enumerate(sc.out):
            if x.text=="s_mov_b32 s36, 0":
                if s.mix: sc.out[idx:idx+1]=[raw(f"s_lshr_b32 s60, s2, {s.gbit}"),raw("s_and_b32 s60, s60, 1")]+([raw("s_xor_b32 s60, s60, 1")] if s.ginv else [])+[raw("s_lshl_b32 s36, s60, 9")]
                else: sc.out[idx:idx+1]=[raw("s_mov_b32 s60, 0"),x]
                break
        else: raise AssertionError("sWu init not found")
        sc.emit(salu("s_mov_b32",sWn,0))
    def end_block(s):
        endb=[]
        if s.prof:
            endb=[label("L_k1_fin"),raw("v_mov_b32 v3, v1","valu"),raw("v_mov_b32 v4, v15","valu"),wait_fixed(vm=0),raw("s_memtime s[98:99]"),raw("s_memrealtime s[100:101]"),raw("s_waitcnt lgkmcnt(0)"),
                  raw("s_mov_b32 s4, s98"),raw("s_mov_b32 s5, s100"),
                  raw("s_add_u32 s8, s96, 0x8000000"),raw("s_addc_u32 s9, s97, 0"),raw("s_and_b32 s9, s9, 0xffff"),raw("s_mov_b32 s10, 0x100000"),raw("s_mov_b32 s11, 0x20000"),
                  raw("s_lshl_b32 s3, s2, 10"),raw("s_lshl_b32 s38, s24, 8"),raw("s_add_u32 s3, s3, s38"),raw("v_mov_b32 v1, s3","valu")]
            for i,r in enumerate(list(range(66,96))+[4,5]):
                endb+=[raw(f"v_mov_b32 v2, s{r}","valu"),raw(f"buffer_store_dword v2, v1, s[8:11], 0 offen offset:{4*i}","valu"),raw("s_nop 1")]
            if s.fine:
                endb+=[raw("v_mbcnt_lo_u32_b32 v2, -1, 0","valu"),raw("v_mbcnt_hi_u32_b32 v2, -1, v2","valu"),raw("v_lshlrev_b32 v2, 2, v2","valu"),raw("s_lshl_b32 s3, s2, 11"),raw("s_lshl_b32 s38, s24, 9"),raw("s_add_u32 s3, s3, s38"),
                       raw("s_add_u32 s3, s3, 0x40000"),raw("v_add_u32 v2, s3, v2","valu"),raw("buffer_store_dword v3, v2, s[8:11], 0 offen","valu"),
                       raw("buffer_store_dword v4, v2, s[8:11], 0 offen offset:256","valu")]
            endb+=[raw("s_waitcnt vmcnt(0)")]
        endb+=[label("L_k1_end"),wait_fixed(vm=0),raw("s_endpgm","branch")]
        return endb

if __name__=="__main__":
    for mix in (False,True):
        k=K1G(mix=mix); code,errs=k.build()
        print("mix",mix,len(code),"instructions;",len(errs),"errors")
        for x in errs[:30]: print(x)
```

```python
from ir import *
from sched import *
import k1
from k1 import (K1, f32bits, vTID, vT, vKl, vVl, vKa, vVa, vKg, vVg, vWg, vMX, vTMP, vL, KF, VF, QA, QF, SB, PF, CI, OA,
                sK, sV, sW, sX, sWAVE, sU, sKs, sVs, sWs, sKw, sVw, sWw, sKr, sVr, sWr, sCNT, sT0, sT1, sC2, sTH, sWvK, sWvV,
                W_BASE, K_BASE, V_BASE, LDS_END, SCALE, THRESH)

vXg=[V(12),V(19),V(20)]; vPst=V(13); vXd=V(21); vXr=V(14); vXrl=V(23)
vWo=[V(24+p) for p in range(4)]
XBASE=[0]
XKEEP=[False]
def XF(s,j):
    st = (s if s<2 else 2+(s&1)) if XKEEP[0] else (s&3)
    return A(XBASE[0]+(st*3+j)*4,4)
def PARK_A(i4):
    if i4<16: return A(192+4*i4,4)
    if i4<22: return V(232+4*(i4-16),4)
    return V(56+4*(i4-22),4)
def PARK_T(i4):
    return A(192+4*i4,4) if i4<16 else A(48+4*(i4-16),4)
def OPA(T,j): return V(160+(T*3+j)*4,4)
def OPK(h,j): return V(208+(h*3+j)*4,4)
sP=S(20,4)
sWo=S(56,4)
sWk=S(35); sWu=S(36); sXk=S(40); sNgC=S(41); sNgN=S(45); sWoS=S(54); sPs=S(55); sPs2=S(60); sWvO=[S(62+p) for p in range(4)]
sRho=S(61); sDum=S(92,4); sNgNN=S(53); sC=S(42); sCinv=S(43); sXl=S(39,1); sXw=[S(40),S(54),S(55)]
PW=172032

class K1F(K1):
    def __init__(s, ntkv=True, stmod=" nt", prof=False, wmod="", xmod="", womod="", rot=True, fine=False, touch=True, defer=True, kvpos=None, prokv=('K0','K1'), even=True, fuse=False, rdmod=' sc1', outmod='', rel=False, latest=False, deep=True, dbgprof=False, pad=0, align=None, lscale=True, hide=True, xlds=True, xkeep=True, exp_delay=0, swapmap=False, xgrp=False):
        super().__init__(ntkv=ntkv, stmod=stmod, prof=False, wmod=wmod, xmod=xmod)
        s.prof=prof; s.womod=womod; s.rot=rot; s.fine=fine; s.touch=touch; s.defer=defer; s.only_u0=set(); s.only_u1=set(); s.kvpos=kvpos or {12:['V0','K2'],13:['V1']}; s.prokv=prokv; s.even=even; s.fuse=fuse; s.rdmod=rdmod; s.outmod=outmod
        s.rel=rel; s.latest=latest; s.deep=deep; s.dbgprof=dbgprof; s.pad=pad; s.lscale=lscale; s.hide=hide; s.xlds=xlds; s.exp_delay=exp_delay; s.swapmap=swapmap; s.xgrp=xgrp; s.xkeep=xkeep and xlds and hide; s.align=align; s.oring=0x1ffff if deep else 0xffff; s.onsl=8 if deep else 4; s.olook=7 if deep else 3
        if fuse and not rel: s.stmod=' sc1'
    def stamp(s, sc, idx, dyn=False):
        if not s.prof: return
        sc.emit(raw("s_memtime s[98:99]")); sc.emit(raw("s_memrealtime s[100:101]"))
        sc.emit(wait_fixed(lgkm=0))
        a=66+2*idx
        if not dyn:
            sc.emit(raw(f"s_mov_b32 s{a}, s98")); sc.emit(raw(f"s_mov_b32 s{a+1}, s100"))
        else:
            b=66+2*(idx+6)
            sc.emit(raw("s_cmp_eq_u32 s25, 0"))
            sc.emit(raw(f"s_cselect_b32 s{a}, s98, s{a}")); sc.emit(raw(f"s_cselect_b32 s{a+1}, s100, s{a+1}"))
            sc.emit(raw(f"s_cselect_b32 s{b}, s{b}, s98")); sc.emit(raw(f"s_cselect_b32 s{b+1}, s{b+1}, s100"))
    def item_W(s, item):
        pre=[salu("s_add_u32",sWk,sWk,262144), [salu("s_add_u32",sWw,sWw,16384),salu("s_and_b32",sWw,sWw,0xffff)],
             [salu("s_cmp_eq_u32",None,sWk,14*262144),salu("s_cselect_b32",sWk,0,sWk)], salu("s_add_u32",sWs,sWk,sWu)]
        pre=[pre[0],pre[2],pre[1],pre[3]]
        L=[(salu("s_add_u32","m0",sWw,sWvV[p]), dma(vWg,sW,sWs,p*128,item,lambda e,it=item:('W',ev(it,e)[1]%4),s.wmod)) for p in range(4)]
        return pre,L
    def item_K(s, item):
        pre=[salu("s_add_u32",sKs,sKs,16384), salu("s_add_u32",sKw,sKw,16384),
             [salu("s_cmp_eq_u32",None,sKw,V_BASE), salu("s_cselect_b32",sKw,K_BASE,sKw)]]
        L=[(salu("s_add_u32","m0",sKw,sWvK[p]), dma(vKg[p>>1],sK,sKs,(p&1)*256,item,lambda e,it=item:('K',ev(it,e)[1]%3),s.kvmod)) for p in range(4)]
        return pre,L
    def item_V(s, item):
        pre=[salu("s_add_u32",sVs,sVs,16384), salu("s_add_u32",sVw,sVw,16384),
             [salu("s_cmp_eq_u32",None,sVw,LDS_END), salu("s_cselect_b32",sVw,V_BASE,sVw)]]
        L=[(salu("s_add_u32","m0",sVw,sWvV[p]), dma(vVg,sV,sVs,p*128,item,lambda e,it=item:('V',ev(it,e)[1]%3),s.kvmod)) for p in range(4)]
        return pre,L
    def item_O(s, item, const, ng):
        pre=[salu("s_add_u32",sWoS,ng,const), [salu("s_add_u32",sWw,sWw,16384), salu("s_and_b32",sWw,sWw,s.oring)]]
        def slot(e,it=item):
            q=ev(it,e)[1]%s.onsl
            return ('W',q) if q<4 else (('K',q-4) if q<7 else ('V',0))
        L=[(salu("s_add_u32","m0",sWw,sWvO[p]), dma(vWo[p],sWo,sWoS,0,item,slot,s.womod)) for p in range(4)]
        return pre,L
    def adv_rd(s, typ):
        if typ=='O': return [salu("s_add_u32",sWr,sWr,16384),salu("s_and_b32",sWr,sWr,s.oring)]
        return super().adv_rd(typ)
    def addr_ops(s, typ):
        return super().addr_ops('W' if typ=='O' else typ)
    def xpre(s):
        return [salu("s_add_u32",sXk,sXk,128),[salu("s_cmp_eq_u32",None,sXk,896),salu("s_cselect_b32",sXk,0,sXk)]]
    def xloads(s, pos, tagfn):
        return [vload(XF(pos+d,j),vXg[j],sX,sXk,d*64,tag=tagfn(pos+d),mod=s.xmod) for j in range(3) for d in range(2)]
    def item_X(s, pos, tagfn, slotfn):
        item=tagfn(pos)
        L=[(salu("s_add_u32","m0",sXl,j*1024), dma(vXd,sX,sXw[j],(pos&1)*64,item,slotfn,s.xmod)) for j in range(3)]
        L=[(salu("s_add_u32","m0",sXl,j*1024+64-(pos&1)*64), dma(vXd,sX,sXw[j],(pos&1)*64,item,slotfn,s.xmod)) for j in range(3)]
        R=[dsread("ds_read_b128",XF(pos,j),vXr,j*1024,tag=('xr',pos&3,j),item=item) for j in range(3)]
        return L,R
    @staticmethod
    def flat(L):
        out=[]
        for x in L:
            if isinstance(x,list): out+=x
            else: out.append(x)
        return out
    def emit_item(s, sc, item_pair):
        pre,L=item_pair
        for x in s.flat(pre): sc.emit(x)
        for m,d in L: sc.emit(m); sc.emit(d)

    def step(s, sc, cur, nxt, mf, korder, cur_item, nxt_item, early=None, late=None, xearly=(), xpre=(),
             extra_shadow=(), extra_fixed=(), needs=None, vmwait=(), qfree=None, qds=None, nxt_korder=None,
             nobarrier=False, keep_addr=False, forder=None, nxt_forder=None,
             EG=(5,11,17,23), LG=(29,35,41,47), XG=(5,14,23), BG=24, dmas=(), pres=(), xwait=None):
        if s.fine:
            sc.emit(raw("s_memrealtime s[98:99]" if s.fine=="rt" else "s_memtime s[98:99]")); sc.emit(wait_fixed(lgkm=0))
            sc.emit(raw("s_and_b32 m0, s3, 63","salu",wr=M0)); sc.emit(raw("s_cmp_lt_u32 s3, 64"))
            sc.emit(raw("s_cselect_b32 s100, 0, 1")); sc.emit(raw("s_add_u32 s3, s3, 1")); sc.emit(raw("s_cmp_eq_u32 s100, 0"))
            lab=f"L_fine{len(s._fl)}"; s._fl.append(lab)
            sc.emit(branch(f"s_cbranch_scc0 {lab}_b"))
            sc.emit(raw("v_writelane_b32 v1, s98, m0","valu")); sc.emit(branch(f"s_branch {lab}_e"))
            sc.emit(label(f"{lab}_b")); sc.emit(raw("v_writelane_b32 v15, s98, m0","valu")); sc.emit(label(f"{lab}_e"))
        shadow=[[] for _ in range(48)]; fixed=[[] for _ in range(48)]
        tagc=cur+"c"; tagn=(nxt or "")+"n"; prevtag=cur+"n"
        def frag_reads(typ,f,order,item,tag,fo):
            if typ=='K':
                kt,t=order[f]; return s.rdK(f,kt,t,item,tag)
            T=fo[f] if fo else f
            r=VF(f); off=(T>>2)*1024+((T>>1)&1)*512
            return [dsread("ds_read_b64_tr_b16",sub(r,0,2),vVa[T&1],off,tag=(tag,f,0),item=item),
                    dsread("ds_read_b64_tr_b16",sub(r,2,2),vVa[T&1],off+8192,tag=(tag,f,1),item=item)]
        def tags(typ,f,tag): return [(tag,f)] if typ=='K' else [(tag,f,0),(tag,f,1)]
        for f in range(3,16):
            for q,x in enumerate(frag_reads(cur,f,korder,cur_item,tagc,forder)): fixed[3*(f-3)+q].append(x)
        for f in range(1,16):
            tg = tags(cur,f,tagc) if f>=3 else tags(cur,f,prevtag)
            shadow[3*f-1].append(wait_lgkm(*tg))
        reserved=set()
        if nxt:
            if not keep_addr:
                adv=s.adv_rd(nxt)
                ao=s.addr_ops(nxt)
                if cur=='K' and nxt!='K':
                    shadow[27].append(adv[0]); shadow[30].extend(adv[1:])
                    fixed[33].append(ao[0]); fixed[36].append(ao[1])
                else:
                    shadow[30].append(adv[0]); shadow[33].extend(adv[1:])
                    if nxt=='K': fixed[37].append(ao[0])
                    else: fixed[36].append(ao[0]); fixed[37].append(ao[1])
            for f in range(3):
                for q,x in enumerate(frag_reads(nxt,f,nxt_korder,nxt_item,tagn,nxt_forder)): fixed[39+3*f+q].append(x)
            shadow[47].append(wait_lgkm(*(tags(nxt,0,tagn)+([xwait] if xwait else []))))
        if vmwait: shadow[BG].append(wait_vm(*vmwait))
        if not nobarrier: shadow[BG+1].append(barrier())
        for it,G in ((early,EG),(late,LG)):
            if not it: continue
            for (m,d),g in zip(it[1],G):
                shadow[g-1].append(m); fixed[g].append(d); reserved.add(g-1)
        for g,(m,d) in dmas:
            shadow[g-1].append(m); fixed[g].append(d)
        for x,g in zip(xearly,XG): fixed[g].append(x)
        for gi,x in extra_shadow: shadow[gi].append(x)
        for gi,x in extra_fixed: fixed[gi].append(x)
        def place(groups, gp, lim):
            for G in groups:
                G = G if isinstance(G,list) else [G]
                while gp<48 and (shadow[gp] or gp%3==2): gp+=1
                assert gp<=lim,(gp,lim,groups)
                shadow[gp].extend(G); gp+=1
            return gp
        gp=0
        if early: gp=place(early[0], 0, EG[0]-2)
        if xpre: gp=place(list(xpre), 0, XG[0]-1)
        for groups,lo,hi in pres: place(groups, lo, hi)
        if late: gp=place(late[0], gp, LG[0]-2)
        for gi in range(48):
            nd = needs(gi) if needs else ()
            if nd: s.flush_needed(sc, nd, (qfree or [])+(qds or []))
            sc.gap(mf[gi], shadow[gi], fixed[gi], fill=False)
            used=max(0,len(shadow[gi])-1)+sum(COST.get(x.kind,1) for x in fixed[gi])
            slots=2-used
            hasds=any(x.kind=="ds" for x in fixed[gi])
            if slots>0: s.fillq(sc, slots, qds if hasds else qfree)

    def prologue(s, sc):
        e=sc.emit
        e(raw("s_cmp_ge_u32 s2, 256")); e(branch("s_cbranch_scc1 L_k1_end"))
        if s.exp_delay:
            e(raw("s_and_b32 s68, s2, 8")); e(raw("s_cmp_eq_u32 s68, 8")); e(branch("s_cbranch_scc0 L_k1_nodelay"))
            e(raw("s_memrealtime s[68:69]")); e(raw("s_waitcnt lgkmcnt(0)","waitraw"))
            e(label("L_k1_dl")); e(raw("s_memrealtime s[70:71]")); e(raw("s_waitcnt lgkmcnt(0)","waitraw"))
            e(raw("s_sub_u32 s72, s70, s68")); e(raw(f"s_cmp_lt_u32 s72, {s.exp_delay}")); e(branch("s_cbranch_scc1 L_k1_dl"))
            e(label("L_k1_nodelay"))
        e(raw("s_load_dwordx16 s[68:83], s[0:1], 0"))
        e(raw("s_load_dwordx4 s[84:87], s[0:1], 64"))
        e(raw("s_load_dwordx2 s[88:89], s[0:1], 96"))
        if s.prof:
            e(raw("s_memtime s[98:99]")); e(raw("s_memrealtime s[100:101]"))
        if s.swapmap:
            for t in ["s_and_b32 s90, s2, 7","s_and_b32 s91, s90, 1","s_lshl_b32 s91, s91, 1","s_lshr_b32 s92, s90, 1","s_and_b32 s92, s92, 1","s_or_b32 s91, s91, s92","s_and_b32 s90, s90, 4","s_or_b32 s90, s90, s91"]: e(raw(t))
        if s.xgrp:
            for t in ["s_and_b32 s90, s2, 7","s_lshr_b32 s91, s2, 3","s_lshr_b32 s92, s90, 2",
                      "s_and_b32 s93, s90, 3","s_lshl_b32 s93, s93, 2","s_lshr_b32 s94, s91, 3","s_add_u32 s93, s93, s94",
                      "s_and_b32 s96, s91, 7","s_lshl_b32 s95, s96, 1",
                      "s_lshl_b32 s61, s94, 1","s_add_u32 s61, s61, s96","s_cmp_ge_u32 s61, 7","s_cselect_b32 s97, 7, 0","s_sub_u32 s61, s61, s97",
                      "s_cmp_ge_u32 s61, 7","s_cselect_b32 s97, 7, 0","s_sub_u32 s61, s61, s97"]: e(raw(t))
        else:
          for t in [("s_and_b32 s90, s2, 7" if not s.swapmap else "s_nop 0"),"s_lshr_b32 s91, s2, 3","s_lshr_b32 s92, s90, 2",
                  "s_lshr_b32 s93, s90, 1","s_and_b32 s93, s93, 1","s_lshl_b32 s93, s93, 3","s_lshr_b32 s94, s91, 2","s_add_u32 s93, s93, s94",
                  "s_and_b32 s95, s90, 1","s_lshl_b32 s95, s95, 3","s_and_b32 s96, s91, 3","s_lshl_b32 s97, s96, 1","s_add_u32 s95, s95, s97"]:
            e(raw(t))
          if s.rot:
            for t in ["s_lshl_b32 s61, s96, 1","s_add_u32 s61, s61, s94","s_cmp_ge_u32 s61, 7","s_cselect_b32 s97, 7, 0","s_sub_u32 s61, s61, s97",
                      "s_cmp_ge_u32 s61, 7","s_cselect_b32 s97, 7, 0","s_sub_u32 s61, s61, s97"]: e(raw(t))
          else: e(raw("s_mov_b32 s61, 0"))
        e(valu("v_lshrrev_b32",vT,6,vTID))
        L=V(56); I=V(57); G=V(58); t0=V(59); t1=V(60); t2=V(61); KB=V(62); RR=V(63)
        e(valu("v_and_b32",L,63,vTID))
        e(valu("v_readfirstlane_b32",sWAVE,vT))
        e(valu("v_and_b32",I,15,L)); e(valu("v_lshrrev_b32",G,4,L))
        e(valu("v_bfe_u32",KB,L,4,1)); e(valu("v_bfe_u32",RR,L,2,2))
        e(valu("v_bfe_u32",t0,L,1,1)); e(valu("v_xor_b32",t0,t0,KB)); e(valu("v_lshlrev_b32",t0,5,t0))
        e(valu("v_lshrrev_b32",t1,5,L)); e(valu("v_lshl_add_u32",t0,t1,6,t0))
        e(valu("v_and_b32",t1,1,L)); e(valu("v_lshl_add_u32",t2,t1,4,t0))
        e(salu("s_and_b32",sT0,sWAVE,1)); e(salu("s_lshl_b32",sT0,sT0,4)); e(salu("s_lshr_b32",sT1,sWAVE,1)); e(salu("s_lshl_b32",sT1,sT1,2)); e(salu("s_add_u32",sT0,sT0,sT1))
        e(valu("v_lshl_add_u32",t0,KB,3,RR)); e(valu("v_add_u32",t0,sT0,t0)); e(valu("v_lshl_add_u32",vWg,t0,13,t2))
        e(salu("s_mul_i32",sT0,sWAVE,48)); e(valu("v_add_u32",t0,sT0,I)); e(salu("s_movk_i32",sT1,896))
        e(valu("v_mul_lo_u32",t0,t0,sT1)); e(valu("v_lshl_add_u32",vXg[0],G,4,t0))
        e(valu("v_add_u32",vXg[1],14336,vXg[0])); e(valu("v_add_u32",vXg[2],28672,vXg[0]))
        e(salu("s_lshl_b32",sT0,sWAVE,12))
        for p in range(4):
            e(salu("s_add_u32",sWvK[p],sT0,p*1024-(p&1)*256)); e(salu("s_add_u32",sWvV[p],sT0,p*896)); e(salu("s_add_u32",sWvO[p],sT0,p*1024))
        e(salu("s_mov_b32",sU,0)); e(salu("s_mov_b32",sKs,"0xffffc000")); e(salu("s_mov_b32",sVs,"0xffffc000"))
        e(salu("s_mov_b32",sKw,K_BASE+32768)); e(salu("s_mov_b32",sVw,V_BASE+32768)); e(salu("s_mov_b32",sWw,49152))
        e(salu("s_mov_b32",sKr,K_BASE)); e(salu("s_mov_b32",sVr,V_BASE+32768)); e(salu("s_mov_b32",sWr,49152))
        e(salu("s_lshl_b32",sWk,sRho,1)); e(salu("s_add_u32",sWk,sWk,13)); e(salu("s_cmp_ge_u32",None,sWk,14)); e(salu("s_cselect_b32",sT0,14,0)); e(salu("s_sub_u32",sWk,sWk,sT0)); e(salu("s_lshl_b32",sWk,sWk,18))
        e(salu("s_add_u32",sXk,sRho,6)); e(salu("s_cmp_ge_u32",None,sXk,7)); e(salu("s_cselect_b32",sT0,7,0)); e(salu("s_sub_u32",sXk,sXk,sT0)); e(salu("s_lshl_b32",sXk,sXk,7))
        e(salu("s_mov_b32",sWu,0))
        e(raw("s_waitcnt lgkmcnt(0)","waitraw"))
        e(raw("s_cmp_eq_u32 s92, 0"))
        for d,b in [(68,78),(69,79),(70,80),(71,81),(72,82),(73,83),(74,84),(75,85),(76,86),(77,87)]:
            e(raw(f"s_cselect_b32 s{d}, s{d}, s{b}"))
        for t in [
            "s_lshl_b32 s97, s95, 9",
            "s_add_u32 s12, s74, s97","s_addc_u32 s13, s75, 0","s_and_b32 s13, s13, 0xffff","s_sub_u32 s14, 3670016, s97","s_mov_b32 s15, 0x20000",
            "s_mul_i32 s97, s93, 172032",
            "s_add_u32 s16, s68, s97","s_addc_u32 s17, s69, 0","s_and_b32 s17, s17, 0xffff","s_mov_b32 s18, 172032","s_mov_b32 s19, 0x20000",
            ]: e(raw(t))
        if s.touch:
            e(raw("s_mul_i32 s97, s96, 48")); e(salu("s_mul_i32",sT0,sWAVE,12)); e(raw("s_add_u32 s97, s97, s38")); e(raw("s_mul_i32 s97, s97, 896"))
            e(valu("v_lshlrev_b32",t0,7,L)); e(valu("v_add_u32",t0,S(97),t0))
            e(touch(V(64),t0,sX,0))
            e(valu("v_add_u32",t1,8192,t0)); e(Ins("v_cmp_gt_u32 vcc, 20, v56","valu",rd=rs(L),wr=VCC)); e(valu("v_mov_b32",V(65),"0x7fffffff")); e(nop(0))
            e(Ins(f"v_cndmask_b32 {rt(t1)}, v65, {rt(t1)}, vcc","valu",rd=rs(t1,V(65))|VCC,wr=rs(t1)))
            e(touch(V(64),t1,sX,0))
        if s.touch is True:
            e(raw("s_mul_i32 s97, s94, 56")); e(salu("s_mul_i32",sT0,sWAVE,14)); e(raw("s_add_u32 s97, s97, s38"))
            e(valu("v_lshrrev_b32",t0,2,L)); e(valu("v_add_u32",t0,S(97),t0)); e(valu("v_lshlrev_b32",t0,13,t0))
            e(valu("v_and_b32",t1,3,L)); e(valu("v_lshl_add_u32",t0,t1,7,t0))
            e(Ins("v_cmp_gt_u32 vcc, 56, v56","valu",rd=rs(L),wr=VCC)); e(nop(1))
            e(Ins(f"v_cndmask_b32 {rt(t0)}, v65, {rt(t0)}, vcc","valu",rd=rs(t0,V(65))|VCC,wr=rs(t0)))
            e(touch(V(64),t0,sW,0))
        def kvsetup():
            for t in [
                "s_lshl_b32 s97, s93, 4","s_add_u32 s97, s97, s95","s_lshl_b32 s97, s97, 18",
                "s_add_u32 s4, s70, s97","s_addc_u32 s5, s71, 0","s_and_b32 s5, s5, 0xffff","s_mov_b32 s6, 524288","s_mov_b32 s7, 0x20000",
                "s_add_u32 s8, s72, s97","s_addc_u32 s9, s73, 0","s_and_b32 s9, s9, 0xffff","s_mov_b32 s10, 524288","s_mov_b32 s11, 0x20000",
                ]: e(raw(t))
            e(valu("v_lshl_add_u32",t0,KB,2,RR)); e(valu("v_lshl_add_u32",t0,t0,9,t2)); e(salu("s_lshl_b32",sT0,sWAVE,12)); e(valu("v_add_u32",vVg,sT0,t0))
            for q in range(2):
                e(salu("s_and_b32",sT0,sWAVE,1)); e(salu("s_lshl_b32",sT0,sT0,1)); e(salu("s_add_u32",sT0,sT0,q))
                e(salu("s_sub_u32",sT1,4,sT0)); e(salu("s_and_b32",sT1,sT1,3))
                e(valu("v_and_b32",t0,3,L)); e(valu("v_xor_b32",t0,sT1,t0)); e(valu("v_lshlrev_b32",t0,4,t0))
                e(valu("v_lshl_add_u32",t0,G,6,t0))
                e(salu("s_lshl_b32",sT0,sT0,2)); e(salu("s_lshr_b32",sT1,sWAVE,1)); e(salu("s_lshl_b32",sT1,sT1,4)); e(salu("s_add_u32",sT0,sT0,sT1))
                e(valu("v_add_u32",t1,sT0,RR)); e(valu("v_lshl_add_u32",vKg[q],t1,9,t0))
        if s.prokv or not s.defer: kvsetup()
        if s.defer:
            for nm in s.prokv:
                s.emit_item(sc, s.item_K(('K',int(nm[1]))) if nm[0]=='K' else s.item_V(('V',int(nm[1]))))
        s.emit_item(sc,s.item_W(('W',0)))
        for x in s.flat(s.xpre()): e(x)
        for x in s.xloads(0,lambda k:('x',0,k)): e(x)
        s.emit_item(sc,s.item_W(('W',1)))
        for t in [
            "s_mul_i32 s97, s95, 229376",
            "s_add_u32 s56, s76, s97","s_addc_u32 s57, s77, 0","s_and_b32 s57, s57, 0xffff","s_mov_b32 s58, 458752","s_mov_b32 s59, 0x20000",
            "s_lshl_b32 s97, s92, 4","s_add_u32 s97, s97, s93","s_lshl_b32 s97, s97, 3","s_lshr_b32 s90, s95, 1","s_add_u32 s97, s97, s90",
            f"s_mul_i32 s97, s97, {PW}",
            "s_add_u32 s20, s88, s97","s_addc_u32 s21, s89, 0","s_and_b32 s21, s21, 0xffff",f"s_mov_b32 s22, {PW}","s_mov_b32 s23, 0x20000",
            ]: e(raw(t))
        s.emit_item(sc,s.item_W(('W',2)))
        s.emit_item(sc,s.item_W(('W',3)))
        if s.defer and not s.prokv: kvsetup()
        if not s.defer:
            for n in range(3): s.emit_item(sc,s.item_K(('K',n)))
            for n in range(2): s.emit_item(sc,s.item_V(('V',n)))
        e(valu("v_lshrrev_b32",t0,2,I)); e(valu("v_sub_u32",t1,4,t0)); e(valu("v_and_b32",t1,3,t1)); e(valu("v_xor_b32",t1,t1,G))
        e(valu("v_lshlrev_b32",t1,4,t1)); e(valu("v_lshl_add_u32",t1,t0,11,t1)); e(valu("v_and_b32",t0,3,I)); e(valu("v_lshl_add_u32",vKl,t0,6,t1))
        e(valu("v_lshrrev_b32",t0,1,G)); e(valu("v_lshlrev_b32",t0,12,t0)); e(valu("v_lshl_add_u32",t0,KB,8,t0))
        e(valu("v_lshl_add_u32",t0,RR,6,t0)); e(valu("v_and_b32",t1,3,L)); e(valu("v_lshl_add_u32",t0,t1,3,t0))
        e(valu("v_lshl_add_u32",vVl[0],KB,5,t0))
        e(valu("v_xor_b32",t1,1,KB)); e(valu("v_lshl_add_u32",vVl[1],t1,5,t0))
        e(valu("v_add_u32",vKa,K_BASE,vKl))
        if s.xlds:
            e(valu("v_lshrrev_b32",t0,4,L)); e(valu("v_sub_u32",t0,4,t0)); e(valu("v_and_b32",t0,3,t0)); e(valu("v_and_b32",t1,3,L)); e(valu("v_xor_b32",t0,t0,t1))
            e(valu("v_lshlrev_b32",t0,4,t0)); e(valu("v_lshrrev_b32",t1,2,L)); e(salu("s_mul_i32",sT0,sWAVE,48)); e(valu("v_add_u32",t1,sT0,t1))
            e(salu("s_movk_i32",S(97),896)); e(valu("v_mul_lo_u32",t1,t1,S(97))); e(valu("v_add_u32",vXd,t0,t1))
            e(valu("v_lshrrev_b32",t0,2,I)); e(valu("v_sub_u32",t0,4,t0)); e(valu("v_and_b32",t0,3,t0)); e(valu("v_xor_b32",t0,t0,G))
            e(valu("v_lshlrev_b32",t0,4,t0)); e(valu("v_lshl_add_u32",t0,I,6,t0)); e(valu("v_add_u32",vXrl,64,t0))
        e(salu("s_mul_i32",sT0,sWAVE,43008)); e(valu("v_lshlrev_b32",t0,4,L)); e(valu("v_add_u32",vPst,sT0,t0))
        e(salu("s_lshr_b32",sT0,sWAVE,1)); e(salu("s_lshl_b32",sT0,sT0,4)); e(salu("s_and_b32",sT1,sWAVE,1)); e(salu("s_lshl_b32",sT1,sT1,3)); e(salu("s_add_u32",sT0,sT0,sT1))
        e(valu("v_lshl_add_u32",t0,KB,2,RR)); e(valu("v_add_u32",t0,sT0,t0)); e(salu("s_movk_i32",sT1,896)); e(valu("v_mul_lo_u32",t0,t0,sT1)); e(valu("v_add_u32",V(22),t0,t2))
        e(salu("s_mov_b32",sub(sC2,0),hex(f32bits(SCALE)))); e(salu("s_mov_b32",sub(sC2,1),hex(f32bits(1.0/SCALE if s.lscale else SCALE))))
        e(salu("s_mov_b32",sTH,hex(f32bits(THRESH))))
        e(salu("s_lshl_b32",sNgC,sRho,7))
        e(salu("s_mov_b32",sub(sDum,0),sub(sX,0))); e(salu("s_mov_b32",sub(sDum,1),sub(sX,1))); e(salu("s_mov_b32",sub(sDum,2),0)); e(salu("s_mov_b32",sub(sDum,3),"0x20000"))
        if s.prof:
            e(raw("s_mov_b32 s96, s88")); e(raw("s_mov_b32 s97, s89")); e(raw("s_mov_b32 s90, s98")); e(raw("s_mov_b32 s91, s100"))

    def conv_ops(s, t, j):
        m,c,p1,p2=super().conv_ops(t,j)
        return ([] if s.lscale else m),c,p1,p2
    def sm_add2(s, buf, qe):
        ex={list(f.ins.wr)[0]:f.ins for f in qe}
        q=[]
        for j in range(3):
            for kt in range(2):
                for r in range(4):
                    x=sub(SB(buf,kt,j),r); q.append(Filler(valu("v_add_f32",vL[j],vL[j],x),[ex[('v',x[1])]]))
        out=[]
        for i in range(8):
            for j in range(3): out.append(q[j*8+i])
        return q if False else [q[i] for i in range(24)]
    def sm_mul(s, buf):
        return [Filler(valu("v_mul_f32",sub(SB(buf,kt,j),r),sC,sub(SB(buf,kt,j),r))) for kt in range(2) for j in range(3) for r in range(4)]
    def rare(s, sc, buf, name, ret):
        e=sc.emit
        e(label(name)); e(nop(7)); e(nop(3))
        P0=208
        m=[V(P0+j) for j in range(3)]; tm=[V(P0+3+j) for j in range(3)]; al=[V(P0+6+j) for j in range(3)]
        for j in range(3):
            a=SB(buf,0,j); b=SB(buf,1,j)
            e(valu("v_max3_f32",m[j],sub(a,0),sub(a,1),sub(a,2)))
            e(valu("v_max3_f32",m[j],m[j],sub(a,3),sub(b,0)))
            e(valu("v_max3_f32",m[j],m[j],sub(b,1),sub(b,2)))
            e(valu("v_max_f32",m[j],m[j],sub(b,3)))
        for x in s.allreduce("v_max_f32",m,tm): e(x)
        for j in range(3): e(valu("v_max_f32",m[j],0,m[j]))
        for j in range(3):
            for kt in range(2):
                for r in range(4): e(valu("v_sub_f32",sub(SB(buf,kt,j),r),sub(SB(buf,kt,j),r),m[j]))
            if s.lscale:
                for r in range(4): e(Ins(f"v_fma_f32 {rt(sub(CI(j),r))}, -{rt(m[j])}, {rt(sCinv)}, {rt(sub(CI(j),r))}","valu",rd=rs(m[j],sCinv,sub(CI(j),r)),wr=rs(sub(CI(j),r))))
            else:
                for r in range(4): e(valu("v_sub_f32",sub(CI(j),r),sub(CI(j),r),m[j]))
            e(Ins(f"v_exp_f32_e64 {rt(al[j])}, -{rt(m[j])}","trans",rd=rs(m[j]),wr=rs(al[j])))
        for j in range(3): e(valu("v_mul_f32",vL[j],vL[j],al[j]))
        for T in range(16):
            for j in range(3):
                t=[V(P0+r) for r in range(4)] if False else [V(P0+0),V(P0+1),V(P0+2),V(P0+3)]
                t=[V(P0+9),V(P0+10),V(P0+11),vTMP]
                for r in range(4): e(accrd(t[r],sub(OA(T,j),r)))
                for r in range(4): e(valu("v_mul_f32",t[r],t[r],al[j]))
                for r in range(4): e(accwr(sub(OA(T,j),r),t[r]))
        e(nop(3))
        e(branch(f"s_branch {ret}"))

    def rstamp(s, sc, r):
        if not s.prof: return
        sc.emit(raw("s_memrealtime s[98:99]")); sc.emit(raw("s_waitcnt lgkmcnt(0)")); sc.emit(raw(f"s_mov_b32 s{r}, s98"))
    def dump_code(s):
        L=[raw("s_add_u32 s56, s96, 0x8000000"),raw("s_addc_u32 s57, s97, 0"),raw("s_and_b32 s57, s57, 0xffff"),raw("s_mov_b32 s58, 0x100000"),raw("s_mov_b32 s59, 0x20000"),
           raw("s_lshl_b32 s3, s2, 10"),raw("s_lshl_b32 s38, s24, 8"),raw("s_add_u32 s3, s3, s38"),raw("v_mov_b32 v1, s3","valu")]
        for i,r in enumerate(range(66,96)):
            L+=[raw(f"v_mov_b32 v2, s{r}","valu"),raw(f"buffer_store_dword v2, v1, s[56:59], 0 offen offset:{4*i}","valu"),raw("s_nop 1")]
        return L
    def reduce_tail(s, sc):
        e=sc.emit
        sDbg=S(4,4); sGP=S(8,4); sOut=S(12,4)
        e(raw("s_load_dwordx4 s[68:71], s[0:1], 80"))
        e(raw("s_load_dwordx2 s[72:73], s[0:1], 96"))
        for t in ["s_and_b32 s74, s2, 7","s_lshr_b32 s75, s2, 3","s_lshr_b32 s76, s74, 2",
                  "s_lshr_b32 s77, s74, 1","s_and_b32 s77, s77, 1","s_lshl_b32 s77, s77, 3","s_lshr_b32 s78, s75, 2","s_add_u32 s77, s77, s78",
                  "s_and_b32 s79, s74, 1","s_lshl_b32 s79, s79, 2","s_and_b32 s80, s75, 3","s_add_u32 s79, s79, s80",
                  "s_lshl_b32 s81, s76, 4","s_add_u32 s81, s81, s77"]:
            e(raw(t))
        e(wait_fixed(vm=0,lgkm=0))
        s.rstamp(sc,60)
        for t in ["s_mov_b32 s4, s70","s_and_b32 s5, s71, 0xffff","s_mov_b32 s6, 256","s_mov_b32 s7, 0x20000",
                  f"s_mul_i32 s82, s81, {8*PW}",
                  "s_add_u32 s8, s72, s82","s_addc_u32 s9, s73, 0","s_and_b32 s9, s9, 0xffff",f"s_mov_b32 s10, {8*PW}","s_mov_b32 s11, 0x20000",
                  "s_mov_b32 s12, s68","s_and_b32 s13, s69, 0xffff","s_mov_b32 s14, 5505024","s_mov_b32 s15, 0x20000"]:
            e(raw(t))
        e(barrier())
        e(salu("s_cmp_eq_u32",None,sWAVE,0)); e(branch("s_cbranch_scc0 L_k1_rwait"))
        e(raw("s_lshl_b32 s82, s81, 2")); e(valu("v_mov_b32",V(2),S(82))); e(valu("v_mov_b32",V(3),1))
        if s.rel:
            e(raw("buffer_wbl2 sc1","vmemraw")); e(raw("s_waitcnt vmcnt(0)"))
        e(raw("s_mov_b64 exec, 1"))
        e(raw("buffer_atomic_add v3, v2, s[4:7], 0 offen sc1","vmemraw"))
        e(raw("s_waitcnt vmcnt(0)"))
        e(raw("s_mov_b32 s83, 0x40000"))
        if s.fuse=="grid":
            e(raw("s_mov_b64 exec, -1"))
            e(raw("v_mbcnt_lo_u32_b32 v2, -1, 0","valu")); e(raw("v_mbcnt_hi_u32_b32 v2, -1, v2","valu")); e(raw("v_lshlrev_b32 v2, 2, v2","valu"))
            e(raw("s_mov_b32 exec_hi, 0"))
            e(label("L_k1_poll"))
            e(raw("buffer_load_dword v4, v2, s[4:7], 0 offen sc1","vmemraw"))
            e(raw("s_waitcnt vmcnt(0)"))
            e(raw("v_cmp_gt_u32 vcc, 8, v4","valu"))
            e(raw("s_sub_u32 s83, s83, 1"))
            e(raw("s_cmp_eq_u32 s83, 0")); e(branch("s_cbranch_scc1 L_k1_pollend"))
            e(raw("s_nop 4"))
            e(raw("s_cmp_lg_u64 vcc, 0")); e(branch("s_cbranch_scc1 L_k1_poll"))
        else:
            e(label("L_k1_poll"))
            e(raw("buffer_load_dword v4, v2, s[4:7], 0 offen sc1","vmemraw"))
            e(raw("s_waitcnt vmcnt(0)"))
            e(raw("v_readfirstlane_b32 s84, v4","valu"))
            e(raw("s_sub_u32 s83, s83, 1"))
            e(raw("s_cmp_eq_u32 s83, 0")); e(branch("s_cbranch_scc1 L_k1_pollend"))
            e(raw("s_cmp_lt_u32 s84, 8")); e(branch("s_cbranch_scc1 L_k1_poll"))
        e(label("L_k1_pollend"))
        e(raw("s_mov_b64 exec, -1"))
        if s.rel:
            e(raw("buffer_inv sc1","vmemraw")); e(raw("s_waitcnt vmcnt(0)"))
        e(label("L_k1_rwait"))
        e(barrier())
        s.rstamp(sc,61)
        vL_=V(2); vI=V(3); vG=V(4); vA=V(5); vO=V(6); t0=V(7)
        e(raw("v_mbcnt_lo_u32_b32 v2, -1, 0","valu")); e(raw("v_mbcnt_hi_u32_b32 v2, -1, v2","valu")); e(valu("v_and_b32",vI,15,vL_)); e(valu("v_lshrrev_b32",vG,4,vL_))
        e(valu("v_lshlrev_b32",vA,4,vL_))
        e(raw("s_mul_i32 s85, s79, 21")); e(salu("s_add_u32",S(86),S(85),sWAVE)); e(raw("s_add_u32 s85, s85, 21"))
        for hp in range(1,8): e(salu("s_mov_b32",S(26+hp),hp*PW))
        def buf(i,hp): return V(64+(i*8+hp)*4,4)
        uo=[S(40+i) for i in range(6)]
        for i in range(6):
            e(salu("s_add_u32",S(87),S(86),4*i)); e(salu("s_lshl_b32",uo[i],S(87),10))
            e(salu("s_cmp_lt_u32",None,S(87),S(85))); e(salu("s_cselect_b32",uo[i],uo[i],"0x40000000"))
        va=[V(8+i) for i in range(6)]
        for i in range(6): e(valu("v_add_u32",va[i],uo[i],vA))
        def ld(i):
            for hp in range(8): e(vload(buf(i,hp),va[i],sGP,0 if hp==0 else S(26+hp),0,tag=('r',i,hp),mod=s.rdmod))
        ld(0); ld(1)
        e(raw("s_mul_i32 s88, s77, 192")); e(raw("s_mul_i32 s89, s76, 896"))
        e(valu("v_mov_b32",t0,1792)) if False else None
        e(salu("s_movk_i32",S(90),1792)); e(valu("v_mul_lo_u32",vO,vI,S(90))); e(valu("v_lshl_add_u32",vO,vG,4,vO))
        oo=[S(46+i) for i in range(6)]
        for i in range(6):
            e(salu("s_add_u32",S(87),S(86),4*i))
            e(raw("s_mul_i32 s91, s87, 1561")); e(raw("s_lshr_b32 s91, s91, 16"))
            e(raw("s_mul_i32 s92, s91, 42")); e(raw("s_sub_u32 s92, s87, s92"))
            e(raw("s_mul_i32 s93, s92, 43")); e(raw("s_lshr_b32 s93, s93, 8"))
            e(raw("s_mul_i32 s94, s93, 6")); e(raw("s_sub_u32 s94, s92, s94"))
            e(raw("s_lshr_b32 s95, s94, 1")); e(raw("s_and_b32 s94, s94, 1"))
            e(raw("s_mul_i32 s91, s91, 48")); e(raw("s_lshl_b32 s95, s95, 4")); e(raw("s_add_u32 s91, s91, s95")); e(raw("s_add_u32 s91, s91, s88"))
            e(raw("s_mul_i32 s91, s91, 1792")); e(raw("s_lshl_b32 s93, s93, 7")); e(raw("s_lshl_b32 s94, s94, 6"))
            e(raw("s_add_u32 s91, s91, s93")); e(raw("s_add_u32 s91, s91, s94")); e(salu("s_add_u32",oo[i],S(91),S(89)))
            e(salu("s_cmp_lt_u32",None,S(87),S(85))); e(salu("s_cselect_b32",oo[i],oo[i],"0x40000000"))
        e(salu("s_mov_b32",S(52),"0xffff0000"))
        s.rstamp(sc,62)
        acc=[V(16+i) for i in range(8)]; tl=[V(24+i) for i in range(8)]
        for i in range(6):
            if i+2<6: ld(i+2)
            for hp in range(8):
                e(wait_vm(('r',i,hp)))
                b=buf(i,hp); dst = acc if hp==0 else tl
                for r in range(4):
                    e(valu("v_lshlrev_b32",dst[2*r],16,sub(b,r))); e(valu("v_and_b32",dst[2*r+1],S(52),sub(b,r)))
                if hp:
                    for r in range(8): e(valu("v_add_f32",acc[r],acc[r],tl[r]))
            X=V(32+4*(i&1),4)
            for r in range(4): e(valu("v_cvt_pk_bf16_f32",sub(X,r),acc[2*r],acc[2*r+1]))
            e(perm("v_permlane32_swap_b32",sub(X,0),sub(X,2))); e(perm("v_permlane32_swap_b32",sub(X,1),sub(X,3)))
            e(perm("v_permlane16_swap_b32",sub(X,0),sub(X,2))); e(perm("v_permlane16_swap_b32",sub(X,1),sub(X,3)))
            e(vstore(X,vO,sOut,oo[i],0,tag='o',mod=s.outmod))
        if s.prof:
            s.rstamp(sc,63); e(wait_fixed(vm=0)); s.rstamp(sc,64)
            for i,r in enumerate((60,61,62,63,64)):
                e(raw(f"v_mov_b32 v2, s{r}","valu")); e(raw(f"buffer_store_dword v2, v1, s[56:59], 0 offen offset:{128+4*i}","valu")); e(raw("s_nop 1"))

    def accmov(s,d,a): return Ins(f"v_accvgpr_mov_b32 {rt(d)}, {rt(a)}","valu",rd=rs(a),wr=rs(d))
    def drain_group(s,t,j,T8,RI,dst,pk=False):
        L=[]
        base=T8[0][1]
        for r in range(4): L.append(accrd(T8[r],sub(OA(2*t,j),r)))
        for r in range(4): L.append(accrd(T8[4+r],sub(OA(2*t+1,j),r)))
        if pk:
            for r in range(4): L.append(valu("v_pk_mul_f32",V(base+2*r,2),V(base+2*r,2),RI))
        else:
            for r in range(8): L.append(valu("v_mul_f32",T8[r],T8[r],sub(RI,0)))
        if dst[0]=='v':
            for r in range(4): L.append(valu("v_cvt_pk_bf16_f32",sub(dst,r),T8[2*r],T8[2*r+1]))
        else:
            for r in range(4): L.append(valu("v_cvt_pk_bf16_f32",T8[r],T8[2*r],T8[2*r+1]))
            for r in range(4): L.append(accwr(sub(dst,r),T8[r]))
        return L
    def build(s):
        XBASE[0]=192 if s.hide else 0
        XKEEP[0]=s.xkeep
        s._fl=[]
        sc=Sched(); s.prologue(sc)
        if s.fine: sc.emit(raw('s_mov_b32 s3, 0')); sc.emit(raw('v_mov_b32 v1, 0','valu')); sc.emit(raw('v_mov_b32 v15, 0','valu'))
        sc.emit(wait_vm(('W',0),('x',0,0))); sc.emit(barrier())
        pro=sc.out
        sc=Sched(); e=sc.emit
        if s.align: e(raw(f".p2align {s.align}","label"))
        for q in range(s.pad): e(nop(0))
        e(label("L_k1_unit"))
        itW=lambda k:(lambda en:('W',14*en['u']+k))
        itK=lambda n:(lambda en:('K',16*en['u']+n))
        xt=lambda k:(lambda en:('x',en['u'],k))
        s.stamp(sc,0,True)
        if s.xlds:
            e(salu("s_cmp_eq_u32",None,sU,0)); e(salu("s_cselect_b32",sXl,32768,0)); e(salu("s_add_u32",sXl,sXl,V_BASE))
            e(salu("s_lshl_b32",sT0,sWAVE,12)); e(salu("s_add_u32",sXl,sXl,sT0)); e(valu("v_add_u32",vXr,sXl,vXrl))
        for x in s.adv_rd('W'): e(x)
        for x in s.addr_ops('W'): e(x)
        for f in range(3):
            for x in s.rdV(f,itW(0),"Wn"): e(x)
        e(wait_lgkm(("Wn",0,0),("Wn",0,1)))
        kmaj=[(kt,t) for kt in range(2) for t in range(8)]
        tmaj=[(kt,t) for t in range(8) for kt in range(2)]
        qconv=[]; convdone={}
        qepi=[]
        RI0=[V(56+2*j,1) for j in range(3)]
        def PT(i4):
            t,j=divmod(i4,3)
            return PARK_A(i4) if 12<=i4<16 else OA(2*t,j)
        if s.hide:
            for n,i4 in enumerate([6,7,8,9,10,11,12,13,14,15,0,1,2,3,4,5]+list(range(16,24))):
                t,j=divmod(i4,3); base=24+8*(n&1)
                qepi+=[Filler(x) for x in s.drain_group(t,j,[V(base+r) for r in range(8)],RI0[j],PT(i4))]
        for k in range(14):
            mf=[mfma(QA(T,j),VF(T),XF(k,j),0 if k==0 else QA(T,j)) for T in range(16) for j in range(3)]
            xe=[]; xp=[]; xd=[]; xs2=[]; xf2=[]
            if not s.xlds:
                if k%2==0 and k<=10:
                    xl=s.xloads(k+2,xt); xe=xl[0::2]; xp=s.xpre(); xrest=xl[1::2]
                elif k%2==1 and k<=11:
                    xe=xrest
            else:
                xslot=lambda en:('V',(16*en['u']+2)%3)
                xitem=lambda p:(lambda en:('X',14*en['u']+p))
                if k<=11:
                    L,_=s.item_X(k+2,xitem,xslot)
                    xd=list(zip((14,17,20),L))
                    if k%2==0:
                        xp=s.xpre()+[salu("s_add_u32",sXw[1],sXk,14336),salu("s_add_u32",sXw[2],sXk,28672)]
                if 1<=k<=12:
                    _,R=s.item_X(k+1,xitem,xslot)
                    xs2=[(1,wait_vm(xitem(k+1))),(12,wait_lgkm(('xr',(k+1)&3,0),('xr',(k+1)&3,1),('xr',(k+1)&3,2)))]
                    xf2=list(zip((2,5,8),R))
            late=s.item_W(itW(k+3)) if k>=1 else None
            xs=[]
            if k==11:
                xs=[(0,salu("s_add_u32",sWu,sWu,512)),
                    (15,salu("s_cmp_eq_u32",None,sU,1)),(15,salu("s_cselect_b32",sub(sW,2),0,sub(sW,2)))]
            if s.defer and k in s.kvpos:
                its=[]
                for nm in s.kvpos[k]:
                    its.append(s.item_K(('K',int(nm[1]))) if nm[0]=='K' else s.item_V(('V',int(nm[1]))))
                e(salu("s_cmp_eq_u32",None,sU,0)); e(branch(f"s_cbranch_scc0 L_k1_skip{k}"))
                n0=len(sc.out)
                for it in its: s.emit_item(sc,it)
                e(branch(f"s_branch L_k1_join{k}"))
                for x in sc.out[n0:]: s.only_u0.add(id(x))
                e(label(f"L_k1_skip{k}"))
                n0=len(sc.out)
                for q in range(4*len(its)): e(touch(V(0),vKa,sDum,0))
                for x in sc.out[n0:]: s.only_u1.add(id(x))
                e(label(f"L_k1_join{k}"))
            queues=[qepi] if (s.hide and k<=12) else []
            if s.hide and k==12 and not s.xkeep:
                for i4 in range(6,12):
                    for r in range(4): qepi.append(Filler(s.accmov(sub(PARK_A(i4),r),sub(PT(i4),r))))
            if k==13:
                groups=[]
                for t in range(8):
                    for j in range(3):
                        last=mf[(2*t+1)*3+j]
                        groups.append((t,j,last,s.conv_ops(t,j)))
                n=len(groups)
                for i in range(n+2):
                    if i<n:
                        t,j,last,(m,c,p1,p2)=groups[i]
                        for x in m: qconv.append(Filler(x,[last]))
                        for x in c: qconv.append(Filler(x,[last]))
                    if 0<=i-1<n:
                        t,j,last,(m,c,p1,p2)=groups[i-1]
                        for x in p1: qconv.append(Filler(x))
                    if 0<=i-2<n:
                        t,j,last,(m,c,p1,p2)=groups[i-2]
                        for x in p2: qconv.append(Filler(x))
                        convdone[(t,j)]=p2
                queues=[qconv]
            if k<13:
                if s.xlds:
                    vw=[itW(k+1)]+([xt(k+1)] if k+1<2 else [])
                    s.step(sc,'W','W',mf,None,itW(k),itW(k+1),late=late,extra_shadow=list(xs)+xs2+([(3*0+47,wait_lgkm(('xr',(k+1)&3,2)))] if False else []),
                           extra_fixed=xf2,dmas=xd,pres=[(xp,0,11)] if xp else (),vmwait=vw,qfree=queues,qds=queues)
                else:
                    s.step(sc,'W','W',mf,None,itW(k),itW(k+1),xearly=xe,xpre=xp,late=late,extra_shadow=xs,
                           vmwait=[itW(k+1),xt(k+1)],qfree=queues,qds=queues)
                if s.hide and k==12: s.flush_all(sc,[qepi])
            else:
                s.step(sc,'W','K',mf,None,itW(k),itK(0),late=late,extra_shadow=list(xs)+xs2,extra_fixed=xf2,
                       vmwait=[itK(0)],qfree=queues,qds=queues,nxt_korder=tmaj,keep_addr=True)
        s.stamp(sc,1,True)
        mf=[]
        for f,(kt,t) in enumerate(tmaj):
            for j in range(3): mf.append(mfma(SB(0,kt,j),KF(f),QF(t,j),0 if t==0 else SB(0,kt,j)))
        def needs0(gi):
            f,j=divmod(gi,3); kt,t=tmaj[f]
            nd=list(convdone[(t,j)])
            if t==0 and kt==1: nd+=convdone[(1,j)]
            return nd
        s.step(sc,'K','K',mf,tmaj,itK(0),itK(1),late=s.item_W(itW(17)),
               vmwait=[itK(1)],qfree=[qconv],qds=[qconv],needs=needs0,nxt_korder=kmaj)
        assert not qconv
        m=[V(208+j) for j in range(3)]; tm=[V(211+j) for j in range(3)]
        e(barrier())
        if s.even:
            pre,L=s.item_K(itK(3))
            for x in s.flat(pre): e(x)
            for m_,d_ in L[:2]: e(m_); e(d_)
        else: s.emit_item(sc,s.item_K(itK(3)))
        mv=[]
        if s.hide and s.xkeep:
            e(salu("s_cmp_eq_u32",None,sU,1)); e(branch("s_cbranch_scc0 L_k1_nomv"))
            n0=len(sc.out)
            for i4 in range(0,12):
                for r in range(4): e(s.accmov(sub(PARK_A(i4),r),sub(PT(i4),r)))
            for x in sc.out[n0:]: s.only_u1.add(id(x))
            e(label("L_k1_nomv"))
            for i4 in range(16,24):
                for r in range(4): mv.append(accrd(sub(PARK_A(i4),r),sub(PT(i4),r)))
        elif s.hide:
            for i4 in range(0,6):
                for r in range(4): mv.append(s.accmov(sub(PARK_A(i4),r),sub(PT(i4),r)))
            for i4 in range(16,24):
                for r in range(4): mv.append(accrd(sub(PARK_A(i4),r),sub(PT(i4),r)))
        else:
            for i4 in range(16,24):
                for r in range(4): mv.append(accrd(sub(PARK_A(i4),r),sub(PARK_T(i4),r)))
        for j in range(3):
            a=SB(0,0,j); e(valu("v_max3_f32",m[j],sub(a,0),sub(a,1),sub(a,2)))
        for j in range(3):
            a=SB(0,0,j); b=SB(0,1,j); e(valu("v_max3_f32",m[j],m[j],sub(a,3),sub(b,0)))
        for j in range(3):
            b=SB(0,1,j); e(valu("v_max3_f32",m[j],m[j],sub(b,1),sub(b,2)))
        for j in range(3):
            b=SB(0,1,j); e(valu("v_max_f32",m[j],m[j],sub(b,3)))
        for x in s.allreduce("v_max_f32",m,tm): e(x)
        for j in range(3):
            for r in range(4): e(valu("v_sub_f32",sub(CI(j),r),0,m[j]))
        for j in range(3): e(valu("v_mov_b32",vL[j],0))
        if s.lscale:
            for j in range(3): e(valu("v_mul_f32",tm[j],sC,m[j]))
            for j in range(3):
                for kt in range(2):
                    for r in range(4):
                        x=sub(SB(0,kt,j),r)
                        e(Ins(f"v_fma_f32 {rt(x)}, {rt(x)}, {rt(sC)}, -{rt(tm[j])}","valu",rd=rs(x,sC,tm[j]),wr=rs(x)))
        else:
            for j in range(3):
                for kt in range(2):
                    for r in range(4): e(valu("v_sub_f32",sub(SB(0,kt,j),r),sub(SB(0,kt,j),r),m[j]))
        s.stamp(sc,2,True)
        def half(sc,buf,first=False,extraq=None):
            nb=1-buf
            iK=lambda d:(lambda en:('K',16*en['u']+en['i']+d))
            iV=lambda d:(lambda en:('V',16*en['u']+en['i']+d))
            qe,qc,pd=s.sm_exp(buf)
            qa=s.sm_add2(buf,qe)
            mf=[]
            for f,(kt,t) in enumerate(kmaj):
                for j in range(3): mf.append(mfma(SB(nb,kt,j),KF(f),QF(t,j),CI(j) if t==0 else SB(nb,kt,j)))
            xq=[extraq] if extraq is not None else []
            if s.even:
                preV,LV=s.item_V(iV(2)); _,LKprev=s.item_K(iK(3)); preK,LK=s.item_K(iK(4))
                s.step(sc,'K','V',mf,kmaj,iK(1),iV(0),vmwait=[iV(0)],qfree=[qe,qc]+xq+[qa],qds=[qc]+xq+[qa],
                       dmas=[(5,LKprev[2]),(17,LKprev[3]),(29,LV[0]),(41,LV[1])],pres=[(preV,18,27)])
            else:
                s.step(sc,'K','V',mf,kmaj,iK(1),iV(0),vmwait=[iV(0)],qfree=[qe,qc]+xq,qds=[qc]+xq)
            qm=(s.sm_mul(nb) if s.lscale else [])+s.sm_max(nb)
            mf=[mfma(OA(T,j),VF(T),PF(j),0 if first else OA(T,j)) for T in range(16) for j in range(3)]
            def needs(gi):
                nd=list(pd[gi]) if gi<3 else []
                if gi==0 and extraq is not None: nd+=[f.ins for f in extraq]
                return nd
            if s.even:
                s.step(sc,'V','K',mf,None,iV(0),iK(2),vmwait=[iK(2)],qfree=[qe,qc,qm,qa]+xq,qds=[qc,qm,qa]+xq,needs=needs,nxt_korder=kmaj,
                       dmas=[(5,LV[2]),(17,LV[3]),(29,LK[0]),(41,LK[1])],pres=[(preK,18,27)])
            else:
                s.step(sc,'V','K',mf,None,iV(0),iK(2),early=s.item_V(iV(2)),late=s.item_K(iK(4)),
                       vmwait=[iK(2)],qfree=[qe,qc,qm,qa]+xq,qds=[qc,qm,qa]+xq,needs=needs,nxt_korder=kmaj)
            s.flush_all(sc,[qe,qc,qa,qm])
            return nb
        nb=half(sc,0,first=True,extraq=[Filler(x) for x in mv])
        e(branch(f"s_cbranch_vccnz L_k1_rareF")); e(label("L_k1_retF"))
        e(salu("s_mov_b32",sCNT,7))
        wblk=sc.out
        sc=Sched(); sc.emit(label("L_k1_loop"))
        half(sc,1); sc.emit(branch("s_cbranch_vccnz L_k1_rare0")); sc.emit(label("L_k1_ret0"))
        hB=sc.out
        sc=Sched()
        half(sc,0); sc.emit(branch("s_cbranch_vccnz L_k1_rare1")); sc.emit(label("L_k1_ret1"))
        sc.emit(salu("s_sub_u32",sCNT,sCNT,1)); sc.emit(salu("s_cmp_lg_u32",None,sCNT,0)); sc.emit(branch("s_cbranch_scc1 L_k1_loop"))
        hA=sc.out
        sc=Sched(); e=sc.emit
        s.stamp(sc,3,True)
        iV=lambda d:(lambda en:('V',16*en['u']+15+d))
        e(wait_vm(iV(0))); e(barrier())
        if s.even:
            _,L=s.item_K(lambda en:('K',16*en['u']+18))
            for m_,d_ in L[2:]: e(m_); e(d_)
        if s.hide and not s.xkeep:
            e(salu("s_cmp_eq_u32",None,sU,0)); e(branch("s_cbranch_scc0 L_k1_nox"))
            n0=len(sc.out)
            for x in s.flat(s.xpre()): e(x)
            for x in s.xloads(0,lambda k:(lambda en:('x',en['u']+1,k))): e(x)
            for x in sc.out[n0:]: s.only_u0.add(id(x))
            e(label("L_k1_nox"))
        for x in s.adv_rd('V'): e(x)
        for x in s.addr_ops('V'): e(x)
        for f in range(3):
            for x in s.rdV(f,iV(0),"Vn"): e(x)
        qe,qc,pd=s.sm_exp(1)
        for j in range(3):
            for _ in range(8): e(qe.pop(0).ins)
            for _ in range(4): e(qc.pop(0).ins)
        e(wait_lgkm(("Vn",0,0),("Vn",0,1)))
        qa=s.sm_add(1)
        mf=[mfma(OA(T,j),VF(T),PF(j),OA(T,j)) for T in range(16) for j in range(3)]
        s.step(sc,'V',None,mf,None,iV(0),None,early=s.item_V(iV(2)),nobarrier=True,qfree=[qa],qds=[qa])
        s.flush_all(sc,[qa])
        s.stamp(sc,4,True)
        tm=[V(208+j) for j in range(3)]
        def opfirst():
            if s.deep:
                for p in range(4): e(valu("v_add_u32",vWo[p],p*28672,V(22)))
                e(salu("s_mov_b32",sWw,s.oring+1-16384))
                e(barrier())
                for q in range(4): s.emit_item(sc,s.item_O(('P',q),q*114688,sNgC))
        if s.hide:
            for x in s.allreduce("v_add_f32",vL,tm): e(x)
            e(salu("s_cmp_eq_u32",None,sU,1)); e(branch("s_cbranch_scc1 L_k1_epi1"))
            epi=sc.out
            sc=Sched(); e=sc.emit
            for j in range(3): e(trans("v_rcp_f32",RI0[j],vL[j]))
            s.stamp(sc,5,True)
            e(salu("s_mov_b32",sU,1))
            if s.xkeep:
                for x in s.flat(s.xpre()): e(x)
                e(wait_vm(('W',14)))
            else: e(wait_vm(('W',14),('x',1,0)))
            e(barrier()); e(branch("s_branch L_k1_unit"))
            park=sc.out
            sc=Sched(); e=sc.emit
            e(label("L_k1_epi1"))
            opfirst()
            RI=[V(220+j) for j in range(3)]
            for j in range(3): e(trans("v_rcp_f32",RI[j],vL[j]))
            gi=0
            for t in range(8):
                for j in range(3):
                    base=160+8*(gi%6)
                    for x in s.drain_group(t,j,[V(base+r) for r in range(8)],RI[j],QF(t,j)): e(x)
                    gi+=1
            s.stamp(sc,5,True)
            epi1=sc.out
            sc=Sched(); e=sc.emit
        else:
            if s.deep:
                e(salu("s_cmp_eq_u32",None,sU,1)); e(branch("s_cbranch_scc0 L_k1_nop0"))
                n0=len(sc.out)
                opfirst()
                for x in sc.out[n0:]: s.only_u1.add(id(x))
                e(label("L_k1_nop0"))
            for x in s.allreduce("v_add_f32",vL,tm): e(x)
            RI=[V(220+2*j,2) for j in range(3)]
            for j in range(3): e(trans("v_rcp_f32",sub(RI[j],0),vL[j]))
            for j in range(3): e(valu("v_mov_b32",sub(RI[j],1),sub(RI[j],0)))
            gi=0
            for t in range(8):
                for j in range(3):
                    base=160+8*(gi%6); T8=[V(base+r) for r in range(8)]
                    for r in range(4): e(accrd(T8[r],sub(OA(2*t,j),r)))
                    for r in range(4): e(accrd(T8[4+r],sub(OA(2*t+1,j),r)))
                    for r in range(4): e(valu("v_pk_mul_f32",V(base+2*r,2),V(base+2*r,2),RI[j]))
                    for r in range(4): e(valu("v_cvt_pk_bf16_f32",sub(QF(t,j),r),T8[2*r],T8[2*r+1]))
                    gi+=1
                if t==1:
                    for x in s.flat(s.xpre()): e(x)
                    for x in s.xloads(0,lambda k:(lambda en:('x',en['u']+1,k))): e(x)
            s.stamp(sc,5,True)
            e(salu("s_cmp_eq_u32",None,sU,1)); e(branch("s_cbranch_scc1 L_k1_op"))
            epi=sc.out
            epi1=[]
            sc=Sched(); e=sc.emit
            for i4 in range(24):
                t,j=divmod(i4,3)
                for r in range(4): e(accwr(sub(PARK_T(i4),r),sub(QF(t,j),r)))
            e(salu("s_mov_b32",sU,1)); e(wait_vm(('W',14),('x',1,0))); e(barrier()); e(branch("s_branch L_k1_unit"))
        if not s.hide: park=sc.out
        sc=Sched(); e=sc.emit
        e(label("L_k1_op"))
        last=(s.oring+1-16384)
        if not s.deep:
            for p in range(4): e(valu("v_add_u32",vWo[p],p*28672,V(22)))
            e(salu("s_mov_b32",sWw,last))
        e(salu("s_mov_b32",sWr,last))
        def advN(dst,src): return [salu("s_add_u32",dst,src,128),salu("s_cmp_eq_u32",None,dst,896),salu("s_cselect_b32",dst,0,dst)]
        for x in advN(sNgN,sNgC): e(x)
        if not s.deep:
            e(wait_fixed(vm=0)); e(barrier())
            for q in range(3): s.emit_item(sc,s.item_O(('P',q),q*114688,sNgC))
        else:
            e(barrier())
            for q in range(4,7): s.emit_item(sc,s.item_O(('P',q),(q&3)*114688,sNgN))
        if s.deep:
            for x in advN(sNgNN,sNgN): e(x)
        itP=lambda d:(lambda en:('P',4*en['g']+d))
        e(wait_vm(('P',0))); e(barrier())
        for x in s.adv_rd('O'): e(x)
        for x in s.addr_ops('O'): e(x)
        ksmaj=list(range(16))
        Tmaj=[ks*4+T for T in range(4) for ks in range(4)]
        for f in range(3):
            for x in s.rdV(f,('P',0),"On"): e(x)
        e(wait_lgkm(("On",0,0),("On",0,1)))
        e(salu("s_mov_b32",sCNT,7)); e(salu("s_mov_b32",sPs,"0x40000000")); e(salu("s_mov_b32",sPs2,"0x40000000"))
        s.stamp(sc,13)
        oppro=sc.out
        def Bop(kq,ks,j):
            hh=kq>>1; t=4*(kq&1)+ks
            return PARK_A(t*3+j) if hh==0 else QF(t,j)
        sc=Sched(); e=sc.emit
        e(label("L_k1_oploop"))
        def cv(h,j):
            a=OPA(2*h,j); b=OPA(2*h+1,j); d=OPK(h,j)
            return [valu("v_cvt_pk_bf16_f32",sub(d,0),sub(a,0),sub(a,1)),valu("v_cvt_pk_bf16_f32",sub(d,1),sub(a,2),sub(a,3)),
                    valu("v_cvt_pk_bf16_f32",sub(d,2),sub(b,0),sub(b,1)),valu("v_cvt_pk_bf16_f32",sub(d,3),sub(b,2),sub(b,3))]
        def stores(h): return [vstore(OPK(h,j),vPst,sP,(sPs if j<2 else sPs2),((j*2048)%4096)+h*1024,tag='p',mod=s.stmod) for j in range(3)]
        carry_cv=[]
        for j in range(3): carry_cv+=cv(1,j)[2:]
        carry_st=stores(1)
        for kq in range(4):
            fo = Tmaj if kq==3 else ksmaj
            nfo = Tmaj if kq==2 else ksmaj
            mf=[]
            for f in range(16):
                ks,T=divmod(fo[f],4)
                firstk = (kq==0 and ks==0)
                for j in range(3): mf.append(mfma(OPA(T,j),VF(f),Bop(kq,ks,j),0 if firstk else OPA(T,j)))
            kq2=(kq+s.olook)&3
            if s.deep: ngr = sNgN if kq==0 else sNgNN
            else: ngr = sNgC if kq==0 else sNgN
            late=s.item_O(itP(kq+s.olook),kq2*114688,ngr)
            q=[]; xs=[]; xe=[]; nd=None; XG=(5,14,23)
            if kq==0:
                q=[Filler(x) for x in carry_cv]
                def nd(gi,q0=list(carry_cv)):
                    return q0 if gi==9 else ()
                xe=carry_st; XG=(11,17,23) if not s.latest else (38,44,44)
            if kq==1:
                xs=[(12,salu("s_cmp_eq_u32",None,sCNT,2 if s.deep else 1)),(12,salu("s_cselect_b32",sub(sWo,2),0,sub(sWo,2))),
                    (13,salu("s_mul_i32",sPs,sNgC,48)),(15,salu("s_add_u32",sPs2,sPs,4096))]
            if kq==3:
                c0=[]
                for j in range(3): c0+=[Filler(x,[mf[(7*3)+j]]) for x in cv(0,j)]
                c2=[]
                for j in range(3): c2+=[Filler(x,[mf[(11*3)+j]]) for x in cv(1,j)[:2]]
                q=c0+c2
                xe=stores(0); XG=(38,41,44)
                def nd(gi,c=[f.ins for f in c0]):
                    return c if gi==38 else ()
                if s.deep:
                    adv=advN(sNgNN,sNgNN)
                    xs=[(42,salu("s_mov_b32",sNgC,sNgN)),(42,salu("s_mov_b32",sNgN,sNgNN)),(43,adv[0]),(45,adv[1]),(45,adv[2])]
                else:
                    adv=advN(sNgN,sNgN)
                    xs=[(42,salu("s_mov_b32",sNgC,sNgN)),(43,adv[0]),(45,adv[1]),(45,adv[2])]
            s.step(sc,'O','O',mf,None,itP(kq),itP(kq+1),late=late,extra_shadow=xs,xearly=xe,XG=XG,needs=nd,
                   vmwait=[itP(kq+1)],qfree=[q],qds=[q],forder=fo,nxt_forder=nfo,LG=(29,32,35,47) if kq==3 else (29,35,41,47))
            s.flush_all(sc,[q])
        e(salu("s_sub_u32",sCNT,sCNT,1)); e(salu("s_cmp_lg_u32",None,sCNT,0)); e(branch("s_cbranch_scc1 L_k1_oploop"))
        for x in [y for j in range(3) for y in cv(1,j)[2:]]: e(x)
        for x in stores(1): e(x)
        s.stamp(sc,14)
        if s.fuse:
            if s.prof:
                for x in s.dump_code(): e(x)
            s.reduce_tail(sc)
        e(branch("s_branch L_k1_fin" if (s.prof and not s.fuse) else "s_branch L_k1_end"))
        oploop=sc.out
        sc=Sched(); s.rare(sc,1,"L_k1_rareF","L_k1_retF"); s.rare(sc,0,"L_k1_rare0","L_k1_ret0"); s.rare(sc,1,"L_k1_rare1","L_k1_ret1"); rare=sc.out
        endb=[]
        if s.prof:
            endb=[label("L_k1_fin"),raw("v_mov_b32 v3, v1","valu"),raw("v_mov_b32 v4, v15","valu"),wait_fixed(vm=0),raw("s_memtime s[98:99]"),raw("s_memrealtime s[100:101]"),raw("s_waitcnt lgkmcnt(0)"),
                  raw("s_mov_b32 s4, s98"),raw("s_mov_b32 s5, s100"),
                  raw("s_add_u32 s8, s96, 0x8000000"),raw("s_addc_u32 s9, s97, 0"),raw("s_and_b32 s9, s9, 0xffff"),raw("s_mov_b32 s10, 0x100000"),raw("s_mov_b32 s11, 0x20000"),
                  raw("s_lshl_b32 s3, s2, 10"),raw("s_lshl_b32 s38, s24, 8"),raw("s_add_u32 s3, s3, s38"),raw("v_mov_b32 v1, s3","valu")]
            regs=list(range(66,96))+[4,5]
            for i,r in enumerate(regs):
                endb+=[raw(f"v_mov_b32 v2, s{r}","valu"),raw(f"buffer_store_dword v2, v1, s[8:11], 0 offen offset:{4*i}","valu"),raw("s_nop 1")]
            if s.fine:
                endb+=[raw("v_mbcnt_lo_u32_b32 v2, -1, 0","valu"),raw("v_mbcnt_hi_u32_b32 v2, -1, v2","valu"),raw("v_lshlrev_b32 v2, 2, v2","valu"),raw("s_lshl_b32 s3, s2, 11"),raw("s_lshl_b32 s38, s24, 9"),raw("s_add_u32 s3, s3, s38"),
                       raw("s_add_u32 s3, s3, 0x40000"),raw("v_add_u32 v2, s3, v2","valu"),raw("buffer_store_dword v3, v2, s[8:11], 0 offen","valu"),
                       raw("buffer_store_dword v4, v2, s[8:11], 0 offen offset:256","valu")]
            endb+=[raw("s_waitcnt vmcnt(0)")]
            if s.dbgprof:
                endb+=[raw("s_load_dwordx2 s[12:13], s[0:1], 88"),raw("s_waitcnt lgkmcnt(0)"),raw("s_and_b32 s13, s13, 0xffff"),raw("s_mov_b32 s14, 256"),raw("s_mov_b32 s15, 0x20000"),
                       raw("s_not_b32 s38, s91"),raw("v_mov_b32 v2, s38","valu"),raw("v_mov_b32 v3, 0","valu"),raw("v_mov_b32 v4, s5","valu"),raw("v_mov_b32 v5, 4","valu"),
                       raw("s_mov_b64 exec, 1"),
                       raw("buffer_atomic_umax v2, v3, s[12:15], 0 offen sc1","valu"),raw("buffer_atomic_umax v4, v5, s[12:15], 0 offen sc1","valu"),
                       raw("s_cmp_eq_u32 s2, 0"),branch("s_cbranch_scc0 L_k1_dbgskip"),raw("s_cmp_eq_u32 s24, 0"),branch("s_cbranch_scc0 L_k1_dbgskip")]
                rts=[67,69,71,73,75,77,79,81,83,85,87,89,93,95]
                for i,r in enumerate(rts):
                    endb+=[raw(f"s_sub_u32 s38, s{r}, s91"),raw("v_mov_b32 v2, s38","valu"),raw(f"v_mov_b32 v3, {8+4*i}","valu"),raw("buffer_store_dword v2, v3, s[12:15], 0 offen","valu"),raw("s_nop 1")]
                endb+=[label("L_k1_dbgskip"),raw("s_waitcnt vmcnt(0)"),raw("s_mov_b64 exec, -1")]
        endb+=[label("L_k1_end"),wait_fixed(vm=0),raw("s_endpgm","branch")]
        trace=[(x,{'u':0}) for x in pro]
        for u in range(2):
            trace+=[(x,{'u':u,'i':0}) for x in wblk if not ((u!=0 and id(x) in s.only_u0) or (u!=1 and id(x) in s.only_u1))]
            for it in range(7):
                trace+=[(x,{'u':u,'i':2*it+1}) for x in hB]
                trace+=[(x,{'u':u,'i':2*it+2}) for x in hA]
            trace+=[(x,{'u':u}) for x in epi if not ((u!=0 and id(x) in s.only_u0) or (u!=1 and id(x) in s.only_u1))]
            if u==0: trace+=[(x,{'u':u}) for x in park]
        trace+=[(x,{'u':1}) for x in epi1]
        trace+=[(x,{'u':1}) for x in oppro]
        for g in range(7): trace+=[(x,{'g':g}) for x in oploop]
        resolve_waits(trace)
        errs=check(trace)
        s.trace=trace
        code=pro+wblk+hB+hA+epi+park+epi1+oppro+oploop+rare+endb
        return code,errs

if __name__=="__main__":
    k=K1F(); code,errs=k.build()
    print(len(code),"instructions;",len(errs),"errors")
    for x in errs[:40]: print(x)
```

```python
from ir import *
from sched import *
import k1f
from k1f import *
from k1f import XBASE, XKEEP, XF, PARK_A, OPA, OPK, sNgNN, sXw, sXl, vXr, vXrl, sDum, sC, sCinv, PW
from k1 import KD_K1

sG=S(60); sWn=S(45); sInc=S(61); sCx=S(38); sCy=S(54); sWp=[S(28),S(98),S(99),S(100)]; sPd=S(101)

class K1G(K1F):
    def __init__(s, mix=False, kvmod=None, spread=True, early_op=True, gbit=5, ginv=False, tlbw=False, pkepi=True, **kw):
        kw.setdefault("stmod"," sc1"); kw.setdefault("touch",False); kw.setdefault("prokv",())
        kw.setdefault("kvpos",{9:['K0'],11:['K1'],12:['V0','K2'],13:['V1']})
        super().__init__(**kw); s.mix=mix; s.cond={}; s.spread=spread; s.early_op=early_op; s.gbit=gbit; s.tlbw=tlbw; s.pkepi=pkepi; s.ginv=ginv
        if kvmod is not None: s.kvmod=kvmod
    def only(s, sc, n0, pred):
        for x in sc.out[n0:]: s.cond[id(x)]=pred
    def prologue(s, sc):
        super().prologue(sc)
        e=sc.emit
        if s.mix: e(raw("s_lshr_b32 s60, s2, 5")); e(raw("s_and_b32 s60, s60, 1"))
        else: e(raw("s_mov_b32 s60, 0"))
        e(salu("s_mov_b32",sWn,0))
    def cond_item(s, typ, n):
        first=lambda en:en['w']==en['G']
        item=lambda en:(typ,n) if first(en) else None
        if typ=='K': st,wr,base,end,wv,srd,ring=sKs,sKw,K_BASE,V_BASE,sWvK,sK,'K'
        else: st,wr,base,end,wv,srd,ring=sVs,sVw,V_BASE,LDS_END,sWvV,sV,'V'
        cx = sCx if typ=='K' else sCy
        pre=[[salu("s_add_u32",st,st,sInc), salu("s_add_u32",wr,wr,sInc)],
             [salu("s_cmp_eq_u32",None,wr,end),salu("s_cselect_b32",wr,base,wr)],
             [salu("s_cmp_eq_u32",None,sWn,sG),salu("s_cselect_b32",cx,wr,"0x28000")]]
        L=[]
        for p in range(4):
            if typ=='K': d=dma(vKg[p>>1],sK,sKs,(p&1)*256,item,(lambda e,n=n:('K',n%3)),s.kvmod)
            else: d=dma(vVg,sV,sVs,p*128,item,(lambda e,n=n:('V',n%3)),s.kvmod)
            L.append((salu("s_add_u32","m0",cx,wv[p]),d))
        return pre,L
    def item_Wx(s, q):
        item=lambda en:(('W',14*en['w']+14+q) if en['w']==0 else ('P',q))
        slot=lambda en:('W',(14*en['w']+14+q)%4)
        pre=[salu("s_add_u32",sWk,sWk,262144),[salu("s_cmp_eq_u32",None,sWk,14*262144),salu("s_cselect_b32",sWk,0,sWk)],
             [salu("s_add_u32",sWw,sWw,16384),salu("s_and_b32",sWw,sWw,0xffff)],
             [salu("s_add_u32",sWp[0],sWk,sWu),salu("s_add_u32",sWp[1],sNgC,q*114688)],
             [salu("s_cmp_eq_u32",None,sWn,1),salu("s_cselect_b32",sWp[0],sWp[1],sWp[0]),salu("s_cselect_b32",sPd,28544,0)],
             [salu("s_add_u32",sWp[1],sWp[0],sPd),salu("s_add_u32",sWp[2],sWp[1],sPd)],
             salu("s_add_u32",sWp[3],sWp[2],sPd)]
        L=[(salu("s_add_u32","m0",sWw,sWvV[p]), dma(vWg,sW,sWp[p],p*128,item,slot,s.wmod)) for p in range(4)]
        return pre,L
    def build(s):
        XBASE[0]=192; XKEEP[0]=True; s._fl=[]
        sc=Sched(); s.prologue_g(sc)
        if s.fine: sc.emit(raw('s_mov_b32 s3, 0')); sc.emit(raw('v_mov_b32 v1, 0','valu')); sc.emit(raw('v_mov_b32 v15, 0','valu'))
        sc.emit(wait_vm(('W',0),('x',0,0))); sc.emit(barrier())
        pro=sc.out
        itW=lambda k:(lambda en:('W',14*en['w']+k))
        itK=lambda n:(lambda en:('K',16*en['u']+n))
        itKa=lambda n:(lambda en:None if en.get('noA') else ('K',16*en['u']+n))
        xt=lambda k:(lambda en:('x',en['w'],k))
        kmaj=[(kt,t) for kt in range(2) for t in range(8)]
        tmaj=[(kt,t) for t in range(8) for kt in range(2)]
        RI0=[V(56+2*j,1) for j in range(3)]
        def PT(i4):
            t,j=divmod(i4,3); return PARK_A(i4) if 12<=i4<16 else OA(2*t,j)
        def PQ(i4):
            t,j=divmod(i4,3); return OA(2*t+1,j)
        sc=Sched(); e=sc.emit
        e(label("L_k1_unit"))
        s.stamp(sc,0,True)
        e(salu("s_andn2_b32",sT0,sWn,sG)); e(salu("s_cmp_eq_u32",None,sT0,1)); e(salu("s_cselect_b32",sXl,0,32768)); e(salu("s_add_u32",sXl,sXl,V_BASE))
        e(salu("s_lshl_b32",sT0,sWAVE,12)); e(salu("s_add_u32",sXl,sXl,sT0)); e(valu("v_add_u32",vXr,sXl,vXrl))
        for x in s.adv_rd('W'): e(x)
        for x in s.addr_ops('W'): e(x)
        for f in range(3):
            for x in s.rdV(f,itW(0),"Wn"): e(x)
        e(wait_lgkm(("Wn",0,0),("Wn",0,1)))
        qconv=[]; convdone={}; qepi=[]
        for n,i4 in enumerate([6,7,8,9,10,11,12,13,14,15,0,1,2,3,4,5]+list(range(16,24))):
            t,j=divmod(i4,3); base=24+8*(n&1)
            qepi+=[Filler(x) for x in s.drain_group(t,j,[V(base+r) for r in range(8)],RI0[j],PT(i4))]
        xslot=lambda en:('V',(16*en['u']*(1 if en['w']==1 and en['G']==0 else 0)+2)%3)
        xitem=lambda p:(lambda en:('X',14*en['w']+p))
        for k in range(14):
            mf=[mfma(QA(T,j),VF(T),XF(k,j),0 if k==0 else QA(T,j)) for T in range(16) for j in range(3)]
            xp=[]; xd=[]; xs2=[]; xf2=[]
            if k<=11:
                L,_=s.item_X(k+2,xitem,xslot); xd=list(zip((14,17,20),L))
                if k%2==0: xp=s.xpre()+[salu("s_add_u32",sXw[1],sXk,14336),salu("s_add_u32",sXw[2],sXk,28672)]
            if 1<=k<=12:
                _,R=s.item_X(k+1,xitem,xslot)
                xs2=[(1,wait_vm(xitem(k+1))),(12,wait_lgkm(('xr',(k+1)&3,0),('xr',(k+1)&3,1),('xr',(k+1)&3,2)))]
                xf2=list(zip((2,5,8),R))
            late=s.item_W(itW(k+3)) if k>=1 else None
            xs=[]; xfx=[]
            if k==11:
                xs=[(0,salu("s_xor_b32",sWu,sWu,512)),(15,salu("s_cmp_eq_u32",None,sWn,1)),(15,salu("s_cselect_b32",sub(sW,2),0,sub(sW,2)))]
            if s.early_op and k>=11:
                pre_,L_=s.item_Wx(k-11); late=([],L_); head_=s.flat(pre_)
                if k==11:
                    xs=[(0,salu("s_xor_b32",sWu,sWu,512)),(15,salu("s_cmp_eq_u32",None,sWn,1))]+[(15,salu("s_cselect_b32",sub(sW,r),sub(sWo,r),sub(sW,r))) for r in range(3)]
                    xs+=[(21,raw("s_cmp_eq_u32 s45, 1")),(21,raw("s_cselect_b64 vcc, -1, 0","salu",wr=VCC))]
                    xfx=[(23,Ins("v_cndmask_b32 v11, v11, v22, vcc","valu",rd=rs(V(11),V(22))|VCC,wr=rs(V(11))))]
            if s.early_op and k>=11:
                if k==11: e(salu("s_xor_b32",sWu,sWu,512)); xs=[x for x in xs if x[0]!=0]
                for x in head_: e(x)
            cd=[]; cp=[]
            if s.spread:
                tab={11:[('K',0,(26,32,38,44),(4,24))],12:[('K',1,(11,14,17,20),(0,9)),('V',0,(26,32,38,44),(6,24))],13:[('K',2,(8,14,20,23),(0,6))]}
                for typ,n,gaps,(lo,hi) in tab.get(k,[]):
                    pre,L=s.cond_item(typ,n); cd+=list(zip(gaps,L)); cp.append((pre,lo,hi))
                if k==11:
                    xs=xs+[(3,salu("s_cmp_eq_u32",None,sWn,sG)),(3,salu("s_cselect_b32",sub(sK,2),524288,0)),(3,salu("s_cselect_b32",sub(sV,2),524288,0)),(3,salu("s_cselect_b32",sInc,16384,0))]
            if k in s.kvpos and not s.spread:
                its=[s.item_K(('K',int(nm[1]))) if nm[0]=='K' else s.item_V(('V',int(nm[1]))) for nm in s.kvpos[k]]
                e(salu("s_cmp_eq_u32",None,sWn,sG)); e(branch(f"s_cbranch_scc0 L_k1_skip{k}"))
                n0=len(sc.out)
                for it in its: s.emit_item(sc,it)
                e(branch(f"s_branch L_k1_join{k}"))
                s.only(sc,n0,lambda en:en['w']==en['G'])
                e(label(f"L_k1_skip{k}"))
                n0=len(sc.out)
                for q in range(4*len(its)): e(touch(V(0),vKa,sDum,0))
                s.only(sc,n0,lambda en:en['w']!=en['G'])
                e(label(f"L_k1_join{k}"))
            queues=[qepi] if k<=12 else []
            if k==13:
                groups=[]
                for t in range(8):
                    for j in range(3): groups.append((t,j,mf[(2*t+1)*3+j],s.conv_ops(t,j)))
                n=len(groups)
                for i in range(n+2):
                    if i<n:
                        t,j,last,(m,c,p1,p2)=groups[i]
                        for x in c: qconv.append(Filler(x,[last]))
                    if 0<=i-1<n:
                        for x in groups[i-1][3][2]: qconv.append(Filler(x))
                    if 0<=i-2<n:
                        t,j,last,(m,c,p1,p2)=groups[i-2]
                        for x in p2: qconv.append(Filler(x))
                        convdone[(t,j)]=p2
                queues=[qconv]
            if k<13:
                vw=[itW(k+1)]+([xt(k+1)] if k+1<2 else [])
                s.step(sc,'W','W',mf,None,itW(k),itW(k+1),late=late,extra_shadow=list(xs)+xs2,extra_fixed=xf2+xfx,dmas=xd+cd,
                       pres=([(xp,0,11)] if xp else [])+cp,vmwait=vw,qfree=queues,qds=queues)
                if k==12: s.flush_all(sc,[qepi])
            else:
                s.step(sc,'W','K',mf,None,itW(k),itKa(0),late=late,extra_shadow=list(xs)+xs2,extra_fixed=xf2,dmas=cd,pres=cp,
                       vmwait=[itK(0)],qfree=queues,qds=queues,nxt_korder=tmaj,keep_addr=True)
        rest=[clone(f.ins) for f in qconv]
        s.stamp(sc,1,True)
        if s.mix: e(salu("s_cmp_gt_u32",None,sG,sWn)); e(branch("s_cbranch_scc1 L_k1_noatt"))
        wblk=sc.out
        sc2=Sched(); sc2.done=set(sc.done); sc2.out=[]; sc=sc2; e=sc.emit
        e(nop(0))
        mf=[]
        for f,(kt,t) in enumerate(tmaj):
            for j in range(3): mf.append(mfma(SB(0,kt,j),KF(f),QF(t,j),0 if t==0 else SB(0,kt,j)))
        def needs0(gi):
            f,j=divmod(gi,3); kt,t=tmaj[f]
            nd=list(convdone[(t,j)])
            if t==0 and kt==1: nd+=convdone[(1,j)]
            return nd
        cd=[]; cp=[]
        if s.spread:
            pre,L=s.cond_item('V',1); cd=list(zip((8,14,20,23),L)); cp=[(pre,0,6)]
        if s.early_op:
            pre_,L_=s.item_Wx(3)
            for x in s.flat(pre_): e(x)
            lt=([],L_)
        else: lt=s.item_W(itW(17))
        s.step(sc,'K','K',mf,tmaj,itK(0),itK(1),late=lt,vmwait=[itK(1)],qfree=[qconv],qds=[qconv],needs=needs0,nxt_korder=kmaj,dmas=cd,pres=cp)
        assert not qconv
        qk0c=sc.out
        sc=Sched(); e=sc.emit
        e(label("L_k1_max"))
        m=[V(208+j) for j in range(3)]; tm=[V(211+j) for j in range(3)]
        e(barrier())
        if s.spread: e(salu("s_mov_b32",sub(sK,2),524288)); e(salu("s_mov_b32",sub(sV,2),524288))
        pre,L=s.item_K(itK(3))
        for x in s.flat(pre): e(x)
        for m_,d_ in L[:2]: e(m_); e(d_)
        e(salu("s_lshl_b32",sT0,sG,1)); e(salu("s_add_u32",sT0,sT0,sU)); e(salu("s_cmp_eq_u32",None,sT0,1)); e(branch("s_cbranch_scc0 L_k1_nomva"))
        n0=len(sc.out)
        for i4 in range(0,12):
            for r in range(4): e(s.accmov(sub(PARK_A(i4),r),sub(PT(i4),r)))
        for i4 in range(16,24):
            for r in range(4): e(accrd(sub(PARK_A(i4),r),sub(PT(i4),r)))
        s.only(sc,n0,lambda en:en['G']==0 and en['u']==1)
        e(label("L_k1_nomva"))
        if s.mix:
            e(salu("s_cmp_eq_u32",None,sT0,2)); e(branch("s_cbranch_scc0 L_k1_nomvb"))
            n0=len(sc.out)
            for i4 in range(0,16):
                for r in range(4): e(s.accmov(sub(PARK_A(i4),r),sub(PQ(i4),r)))
            for i4 in range(16,24):
                for r in range(4): e(accrd(sub(PARK_A(i4),r),sub(PQ(i4),r)))
            s.only(sc,n0,lambda en:en['G']==1 and en['u']==0)
            e(label("L_k1_nomvb"))
        for j in range(3):
            a=SB(0,0,j); e(valu("v_max3_f32",m[j],sub(a,0),sub(a,1),sub(a,2)))
        for j in range(3):
            a=SB(0,0,j); b=SB(0,1,j); e(valu("v_max3_f32",m[j],m[j],sub(a,3),sub(b,0)))
        for j in range(3):
            b=SB(0,1,j); e(valu("v_max3_f32",m[j],m[j],sub(b,1),sub(b,2)))
        for j in range(3):
            b=SB(0,1,j); e(valu("v_max_f32",m[j],m[j],sub(b,3)))
        for x in s.allreduce("v_max_f32",m,tm): e(x)
        for j in range(3):
            for r in range(4): e(valu("v_sub_f32",sub(CI(j),r),0,m[j]))
        for j in range(3): e(valu("v_mov_b32",vL[j],0))
        for j in range(3): e(valu("v_mul_f32",tm[j],sC,m[j]))
        for j in range(3):
            for kt in range(2):
                for r in range(4):
                    x=sub(SB(0,kt,j),r)
                    e(Ins(f"v_fma_f32 {rt(x)}, {rt(x)}, {rt(sC)}, -{rt(tm[j])}","valu",rd=rs(x,sC,tm[j]),wr=rs(x)))
        s.stamp(sc,2,True)
        def half(sc,buf,first=False):
            nb=1-buf
            iK=lambda d:(lambda en:('K',16*en['u']+en['i']+d))
            iV=lambda d:(lambda en:('V',16*en['u']+en['i']+d))
            qe,qc,pd=s.sm_exp(buf); qa=s.sm_add2(buf,qe)
            mf=[]
            for f,(kt,t) in enumerate(kmaj):
                for j in range(3): mf.append(mfma(SB(nb,kt,j),KF(f),QF(t,j),CI(j) if t==0 else SB(nb,kt,j)))
            preV,LV=s.item_V(iV(2)); _,LKprev=s.item_K(iK(3)); preK,LK=s.item_K(iK(4))
            s.step(sc,'K','V',mf,kmaj,iK(1),iV(0),vmwait=[iV(0)],qfree=[qe,qc,qa],qds=[qc,qa],
                   dmas=[(5,LKprev[2]),(17,LKprev[3]),(29,LV[0]),(41,LV[1])],pres=[(preV,18,27)])
            qm=s.sm_mul(nb)+s.sm_max(nb)
            mf=[mfma(OA(T,j),VF(T),PF(j),0 if first else OA(T,j)) for T in range(16) for j in range(3)]
            s.step(sc,'V','K',mf,None,iV(0),iK(2),vmwait=[iK(2)],qfree=[qe,qc,qm,qa],qds=[qc,qm,qa],needs=lambda gi:(list(pd[gi]) if gi<3 else []),nxt_korder=kmaj,
                   dmas=[(5,LV[2]),(17,LV[3]),(29,LK[0]),(41,LK[1])],pres=[(preK,18,27)])
            s.flush_all(sc,[qe,qc,qa,qm])
        half(sc,0,first=True)
        e(branch("s_cbranch_vccnz L_k1_rareF")); e(label("L_k1_retF"))
        e(salu("s_mov_b32",sCNT,7))
        mblk=sc.out
        sc=Sched(); sc.emit(label("L_k1_loop"))
        half(sc,1); sc.emit(branch("s_cbranch_vccnz L_k1_rare0")); sc.emit(label("L_k1_ret0"))
        hB=sc.out
        sc=Sched()
        half(sc,0); sc.emit(branch("s_cbranch_vccnz L_k1_rare1")); sc.emit(label("L_k1_ret1"))
        sc.emit(salu("s_sub_u32",sCNT,sCNT,1)); sc.emit(salu("s_cmp_lg_u32",None,sCNT,0)); sc.emit(branch("s_cbranch_scc1 L_k1_loop"))
        hA=sc.out
        sc=Sched(); e=sc.emit
        s.stamp(sc,3,True)
        iV=lambda d:(lambda en:('V',16*en['u']+15+d))
        e(wait_fixed(lgkm=0)); e(wait_vm(iV(0))); e(barrier())
        _,L=s.item_K(lambda en:('K',16*en['u']+18))
        for m_,d_ in L[2:]: e(m_); e(d_)
        def advN(dst,src): return [salu("s_add_u32",dst,src,128),salu("s_cmp_eq_u32",None,dst,896),salu("s_cselect_b32",dst,0,dst)]
        if s.early_op:
            e(salu("s_cmp_eq_u32",None,sU,1)); e(branch("s_cbranch_scc0 L_k1_nop4"))
            n0=len(sc.out)
            for p in range(4): e(valu("v_add_u32",vWo[p],p*28672,V(22)))
            e(salu("s_mov_b32",sWw,49152))
            for x in advN(sNgN,sNgC): e(x)
            for q in range(4,7): s.emit_item(sc,s.item_O(('P',q),(q&3)*114688,sNgN))
            s.only(sc,n0,lambda en:en['u']==1)
            e(label("L_k1_nop4"))
        for x in s.adv_rd('V'): e(x)
        for x in s.addr_ops('V'): e(x)
        for f in range(3):
            for x in s.rdV(f,iV(0),"Vn"): e(x)
        qe,qc,pd=s.sm_exp(1)
        for j in range(3):
            for _ in range(8): e(qe.pop(0).ins)
            for _ in range(4): e(qc.pop(0).ins)
        e(wait_lgkm(("Vn",0,0),("Vn",0,1)))
        qa=s.sm_add(1)
        mf=[mfma(OA(T,j),VF(T),PF(j),OA(T,j)) for T in range(16) for j in range(3)]
        s.step(sc,'V',None,mf,None,iV(0),None,early=s.item_V(iV(2)),nobarrier=True,qfree=[qa],qds=[qa])
        s.flush_all(sc,[qa])
        s.stamp(sc,4,True)
        tm=[V(208+j) for j in range(3)]
        for x in s.allreduce("v_add_f32",vL,tm): e(x)
        e(salu("s_cmp_eq_u32",None,sU,1)); e(branch("s_cbranch_scc1 L_k1_epi1"))
        if s.mix: e(salu("s_cmp_eq_u32",None,sG,1)); e(branch("s_cbranch_scc1 L_k1_swap"))
        tail=sc.out
        sc=Sched(); e=sc.emit
        for j in range(3): e(trans("v_rcp_f32",RI0[j],vL[j]))
        s.stamp(sc,5,True)
        e(salu("s_mov_b32",sU,1)); e(salu("s_mov_b32",sWn,1))
        for x in s.flat(s.xpre()): e(x)
        e(wait_vm(('W',14))); e(barrier()); e(branch("s_branch L_k1_unit"))
        park=sc.out
        noatt=[]; swap=[]; qk0n=[]
        if s.mix:
            sc=Sched(); e=sc.emit
            e(label("L_k1_noatt")); e(nop(1))
            for x in rest: e(x)
            e(barrier())
            s.emit_item(sc,s.item_Wx(3) if s.early_op else s.item_W(('W',17)))
            for i4 in range(24):
                t,j=divmod(i4,3)
                for r in range(4): e(accwr(sub(PQ(i4),r),sub(QF(t,j),r)))
            e(salu("s_mov_b32",sWn,1))
            for x in s.flat(s.xpre()): e(x)
            e(wait_vm(('W',14))); e(barrier()); e(branch("s_branch L_k1_unit"))
            noatt=sc.out
            sc=Sched(); e=sc.emit
            e(label("L_k1_swap"))
            RI=[V(220+j) for j in range(3)]
            for j in range(3): e(trans("v_rcp_f32",RI[j],vL[j]))
            for i4 in range(24):
                t,j=divmod(i4,3); p=PARK_A(i4)
                for r in range(4):
                    e(accrd(sub(QF(t,j),r),sub(p,r)) if p[0]=='a' else valu("v_mov_b32",sub(QF(t,j),r),sub(p,r)))
            gi=0
            for t in range(8):
                for j in range(3):
                    base=160+8*(gi%6)
                    for x in s.drain_group(t,j,[V(base+r) for r in range(8)],RI[j],PARK_A(t*3+j)): e(x)
                    gi+=1
            s.stamp(sc,5,True)
            e(salu("s_mov_b32",sU,1))
            mf=[]
            for f,(kt,t) in enumerate(kmaj):
                for j in range(3): mf.append(mfma(SB(0,kt,j),KF(f),QF(t,j),0 if t==0 else SB(0,kt,j)))
            s.step(sc,'K','K',mf,kmaj,lambda en:('K',16),lambda en:('K',17),vmwait=[('K',17)],nxt_korder=kmaj)
            e(branch("s_branch L_k1_max"))
            swap=sc.out
        sc=Sched(); e=sc.emit
        e(label("L_k1_epi1"))
        if not s.early_op:
            for p in range(4): e(valu("v_add_u32",vWo[p],p*28672,V(22)))
            e(salu("s_mov_b32",sWw,s.oring+1-16384))
            e(barrier())
            for q in range(4): s.emit_item(sc,s.item_O(('P',q),q*114688,sNgC))
        RI=[V(220+2*j,2 if s.pkepi else 1) for j in range(3)]
        for j in range(3): e(trans("v_rcp_f32",sub(RI[j],0),vL[j]))
        if s.pkepi:
            for j in range(3): e(valu("v_mov_b32",sub(RI[j],1),sub(RI[j],0)))
        gi=0
        for t in range(8):
            for j in range(3):
                base=160+8*(gi%6)
                for x in s.drain_group(t,j,[V(base+r) for r in range(8)],RI[j],QF(t,j),pk=s.pkepi): e(x)
                gi+=1
        s.stamp(sc,5,True)
        last=(s.oring+1-16384)
        e(salu("s_mov_b32",sWr,last))
        if not s.early_op:
            for x in advN(sNgN,sNgC): e(x)
            e(barrier())
            for q in range(4,7): s.emit_item(sc,s.item_O(('P',q),(q&3)*114688,sNgN))
        for x in advN(sNgNN,sNgN): e(x)
        itP=lambda d:(lambda en:('P',4*en['g']+d))
        e(wait_vm(('P',0))); e(barrier())
        for x in s.adv_rd('O'): e(x)
        for x in s.addr_ops('O'): e(x)
        ksmaj=list(range(16)); Tmaj=[ks*4+T for T in range(4) for ks in range(4)]
        for f in range(3):
            for x in s.rdV(f,('P',0),"On"): e(x)
        e(wait_lgkm(("On",0,0),("On",0,1)))
        e(salu("s_mov_b32",sCNT,7)); e(salu("s_mov_b32",sPs,"0x40000000")); e(salu("s_mov_b32",sPs2,"0x40000000"))
        s.stamp(sc,13)
        oppro=sc.out
        def Bop(kq,ks,j):
            hh=kq>>1; t=4*(kq&1)+ks
            return PARK_A(t*3+j) if hh==0 else QF(t,j)
        sc=Sched(); e=sc.emit
        e(label("L_k1_oploop"))
        def cv(h,j):
            a=OPA(2*h,j); b=OPA(2*h+1,j); d=OPK(h,j)
            return [valu("v_cvt_pk_bf16_f32",sub(d,0),sub(a,0),sub(a,1)),valu("v_cvt_pk_bf16_f32",sub(d,1),sub(a,2),sub(a,3)),
                    valu("v_cvt_pk_bf16_f32",sub(d,2),sub(b,0),sub(b,1)),valu("v_cvt_pk_bf16_f32",sub(d,3),sub(b,2),sub(b,3))]
        def stores(h): return [vstore(OPK(h,j),vPst,sP,(sPs if j<2 else sPs2),((j*2048)%4096)+h*1024,tag='p',mod=s.stmod) for j in range(3)]
        carry_cv=[]
        for j in range(3): carry_cv+=cv(1,j)[2:]
        carry_st=stores(1)
        for kq in range(4):
            fo = Tmaj if kq==3 else ksmaj
            nfo = Tmaj if kq==2 else ksmaj
            mf=[]
            for f in range(16):
                ks,T=divmod(fo[f],4)
                for j in range(3): mf.append(mfma(OPA(T,j),VF(f),Bop(kq,ks,j),0 if (kq==0 and ks==0) else OPA(T,j)))
            late=s.item_O(itP(kq+7),((kq+7)&3)*114688,sNgN if kq==0 else sNgNN)
            q=[]; xs=[]; xe=[]; nd=None; XG=(5,14,23)
            if kq==0:
                q=[Filler(x) for x in carry_cv]
                def nd(gi,q0=list(carry_cv)): return q0 if gi==9 else ()
                xe=carry_st; XG=(11,17,23)
            if kq==1:
                xs=[(12,salu("s_cmp_eq_u32",None,sCNT,2)),(12,salu("s_cselect_b32",sub(sWo,2),0,sub(sWo,2))),
                    (13,salu("s_mul_i32",sPs,sNgC,48)),(15,salu("s_add_u32",sPs2,sPs,4096))]
            if kq==3:
                c0=[]
                for j in range(3): c0+=[Filler(x,[mf[(7*3)+j]]) for x in cv(0,j)]
                c2=[]
                for j in range(3): c2+=[Filler(x,[mf[(11*3)+j]]) for x in cv(1,j)[:2]]
                q=c0+c2; xe=stores(0); XG=(38,41,44)
                def nd(gi,c=[f.ins for f in c0]): return c if gi==38 else ()
                adv=advN(sNgNN,sNgNN)
                xs=[(42,salu("s_mov_b32",sNgC,sNgN)),(42,salu("s_mov_b32",sNgN,sNgNN)),(43,adv[0]),(45,adv[1]),(45,adv[2])]
            s.step(sc,'O','O',mf,None,itP(kq),itP(kq+1),late=late,extra_shadow=xs,xearly=xe,XG=XG,needs=nd,
                   vmwait=[itP(kq+1)],qfree=[q],qds=[q],forder=fo,nxt_forder=nfo,LG=(29,32,35,47) if kq==3 else (29,35,41,47))
            s.flush_all(sc,[q])
        e(salu("s_sub_u32",sCNT,sCNT,1)); e(salu("s_cmp_lg_u32",None,sCNT,0)); e(branch("s_cbranch_scc1 L_k1_oploop"))
        for x in [y for j in range(3) for y in cv(1,j)[2:]]: e(x)
        for x in stores(1): e(x)
        s.stamp(sc,14)
        if s.fuse:
            if s.prof:
                for x in s.dump_code(): e(x)
            s.reduce_tail(sc)
        e(branch("s_branch L_k1_fin" if (s.prof and not s.fuse) else "s_branch L_k1_end"))
        oploop=sc.out
        sc=Sched(); s.rare(sc,1,"L_k1_rareF","L_k1_retF"); s.rare(sc,0,"L_k1_rare0","L_k1_ret0"); s.rare(sc,1,"L_k1_rare1","L_k1_ret1"); rare=sc.out
        endb=s.end_block()
        def add(tr,blk,**en):
            tr+=[(x,en) for x in blk if s.cond.get(id(x),lambda e_:True)(en)]
        def att(tr,G,u,w):
            add(tr,mblk,G=G,u=u,w=w,i=0)
            for it in range(7):
                add(tr,hB,G=G,u=u,w=w,i=2*it+1); add(tr,hA,G=G,u=u,w=w,i=2*it+2)
            add(tr,tail,G=G,u=u,w=w)
        def fin(tr,G):
            add(tr,oppro,G=G,u=1,w=1)
            for g in range(7): add(tr,oploop,G=G,g=g)
        t0=[]; add(t0,pro,G=0,u=0,w=0)
        add(t0,wblk,G=0,u=0,w=0); add(t0,qk0c,G=0,u=0,w=0); att(t0,0,0,0); add(t0,park,G=0,u=0,w=0)
        add(t0,wblk,G=0,u=1,w=1); add(t0,qk0c,G=0,u=1,w=1); att(t0,0,1,1); fin(t0,0)
        traces=[t0]
        if s.mix:
            t1=[]; add(t1,pro,G=1,u=0,w=0)
            add(t1,wblk,G=1,u=0,w=0,noA=True); add(t1,noatt,G=1,u=0,w=0)
            add(t1,wblk,G=1,u=0,w=1); add(t1,qk0c,G=1,u=0,w=1); att(t1,1,0,1); add(t1,swap,G=1,u=0,w=1)
            att(t1,1,1,1); fin(t1,1)
            traces.append(t1)
        resolve_waits_multi(traces)
        errs=[]
        for t in traces: errs+=check(t)
        code=pro+wblk+qk0c+mblk+hB+hA+tail+park+noatt+swap+oppro+oploop+rare+endb
        return code,errs
    def prologue_g(s, sc):
        n0=len(sc.out)
        K1F.prologue(s, sc)
        for idx,x in enumerate(sc.out):
            if x.text=="s_mov_b32 s36, 0":
                if s.mix: sc.out[idx:idx+1]=[raw(f"s_lshr_b32 s60, s2, {s.gbit}"),raw("s_and_b32 s60, s60, 1")]+([raw("s_xor_b32 s60, s60, 1")] if s.ginv else [])+[raw("s_lshl_b32 s36, s60, 9")]
                else: sc.out[idx:idx+1]=[raw("s_mov_b32 s60, 0"),x]
                break
        else: raise AssertionError("sWu init not found")
        sc.emit(salu("s_mov_b32",sWn,0))
        if s.tlbw:
            e=sc.emit
            e(valu("v_mov_b32",V(64),0))
            for srd,off in ((sK,0),(sK,262144),(sV,0),(sV,262144),(sWo,0),(sWo,229376),(sP,0)):
                e(salu("s_mov_b32",sT0,off)); e(touch(V(65),V(64),srd,sT0,mod=" nt"))
    def end_block(s):
        endb=[]
        if s.prof:
            endb=[label("L_k1_fin"),raw("v_mov_b32 v3, v1","valu"),raw("v_mov_b32 v4, v15","valu"),wait_fixed(vm=0),raw("s_memtime s[98:99]"),raw("s_memrealtime s[100:101]"),raw("s_waitcnt lgkmcnt(0)"),
                  raw("s_mov_b32 s4, s98"),raw("s_mov_b32 s5, s100"),
                  raw("s_add_u32 s8, s96, 0x8000000"),raw("s_addc_u32 s9, s97, 0"),raw("s_and_b32 s9, s9, 0xffff"),raw("s_mov_b32 s10, 0x100000"),raw("s_mov_b32 s11, 0x20000"),
                  raw("s_lshl_b32 s3, s2, 10"),raw("s_lshl_b32 s38, s24, 8"),raw("s_add_u32 s3, s3, s38"),raw("v_mov_b32 v1, s3","valu")]
            for i,r in enumerate(list(range(66,96))+[4,5]):
                endb+=[raw(f"v_mov_b32 v2, s{r}","valu"),raw(f"buffer_store_dword v2, v1, s[8:11], 0 offen offset:{4*i}","valu"),raw("s_nop 1")]
            if s.fine:
                endb+=[raw("v_mbcnt_lo_u32_b32 v2, -1, 0","valu"),raw("v_mbcnt_hi_u32_b32 v2, -1, v2","valu"),raw("v_lshlrev_b32 v2, 2, v2","valu"),raw("s_lshl_b32 s3, s2, 11"),raw("s_lshl_b32 s38, s24, 9"),raw("s_add_u32 s3, s3, s38"),
                       raw("s_add_u32 s3, s3, 0x40000"),raw("v_add_u32 v2, s3, v2","valu"),raw("buffer_store_dword v3, v2, s[8:11], 0 offen","valu"),
                       raw("buffer_store_dword v4, v2, s[8:11], 0 offen offset:256","valu")]
            endb+=[raw("s_waitcnt vmcnt(0)")]
        endb+=[label("L_k1_end"),wait_fixed(vm=0),raw("s_endpgm","branch")]
        return endb

if __name__=="__main__":
    for mix in (False,True):
        k=K1G(mix=mix); code,errs=k.build()
        print("mix",mix,len(code),"instructions;",len(errs),"errors")
        for x in errs[:30]: print(x)
```

```python
from ir import *
from sched import *
import k1f
from k1f import *
from k1f import XBASE, XKEEP, XF, PARK_A, OPA, OPK, sNgNN, sXw, sXl, vXr, vXrl, sDum, sC, sCinv, PW
from k1 import KD_K1

sG=S(60); sWn=S(45); sInc=S(61); sCx=S(38); sCy=S(54); sWp=[S(28),S(98),S(99),S(100)]; sPd=S(101)

class K1G(K1F):
    def __init__(s, mix=False, kvmod=None, spread=True, early_op=True, gbit=5, ginv=False, tlbw=False, pkepi=True, lookc=1, **kw):
        kw.setdefault("stmod"," sc1"); kw.setdefault("touch",False); kw.setdefault("prokv",())
        kw.setdefault("kvpos",{9:['K0'],11:['K1'],12:['V0','K2'],13:['V1']})
        super().__init__(**kw); s.mix=mix; s.cond={}; s.spread=spread; s.early_op=early_op; s.gbit=gbit; s.tlbw=tlbw; s.pkepi=pkepi; s.lookc=lookc; s.ginv=ginv
        if kvmod is not None: s.kvmod=kvmod
    def only(s, sc, n0, pred):
        for x in sc.out[n0:]: s.cond[id(x)]=pred
    def prologue(s, sc):
        super().prologue(sc)
        e=sc.emit
        if s.mix: e(raw("s_lshr_b32 s60, s2, 5")); e(raw("s_and_b32 s60, s60, 1"))
        else: e(raw("s_mov_b32 s60, 0"))
        e(salu("s_mov_b32",sWn,0))
    def cond_item(s, typ, n):
        first=lambda en:en['w']==en['G']
        item=lambda en:(typ,n) if first(en) else None
        if typ=='K': st,wr,base,end,wv,srd,ring=sKs,sKw,K_BASE,V_BASE,sWvK,sK,'K'
        else: st,wr,base,end,wv,srd,ring=sVs,sVw,V_BASE,LDS_END,sWvV,sV,'V'
        cx = sCx if typ=='K' else sCy
        pre=[[salu("s_add_u32",st,st,sInc), salu("s_add_u32",wr,wr,sInc)],
             [salu("s_cmp_eq_u32",None,wr,end),salu("s_cselect_b32",wr,base,wr)],
             [salu("s_cmp_eq_u32",None,sWn,sG),salu("s_cselect_b32",cx,wr,"0x28000")]]
        L=[]
        for p in range(4):
            if typ=='K': d=dma(vKg[p>>1],sK,sKs,(p&1)*256,item,(lambda e,n=n:('K',n%3)),s.kvmod)
            else: d=dma(vVg,sV,sVs,p*128,item,(lambda e,n=n:('V',n%3)),s.kvmod)
            L.append((salu("s_add_u32","m0",cx,wv[p]),d))
        return pre,L
    def item_Wx(s, q):
        item=lambda en:(('W',14*en['w']+14+q) if en['w']==0 else ('P',q))
        slot=lambda en:('W',(14*en['w']+14+q)%4)
        pre=[salu("s_add_u32",sWk,sWk,262144),[salu("s_cmp_eq_u32",None,sWk,14*262144),salu("s_cselect_b32",sWk,0,sWk)],
             [salu("s_add_u32",sWw,sWw,16384),salu("s_and_b32",sWw,sWw,0xffff)],
             [salu("s_add_u32",sWp[0],sWk,sWu),salu("s_add_u32",sWp[1],sNgC,q*114688)],
             [salu("s_cmp_eq_u32",None,sWn,1),salu("s_cselect_b32",sWp[0],sWp[1],sWp[0]),salu("s_cselect_b32",sPd,28544,0)],
             [salu("s_add_u32",sWp[1],sWp[0],sPd),salu("s_add_u32",sWp[2],sWp[1],sPd)],
             salu("s_add_u32",sWp[3],sWp[2],sPd)]
        L=[(salu("s_add_u32","m0",sWw,sWvV[p]), dma(vWg,sW,sWp[p],p*128,item,slot,s.wmod)) for p in range(4)]
        return pre,L
    def build(s):
        XBASE[0]=192; XKEEP[0]=True; s._fl=[]
        sc=Sched(); s.prologue_g(sc)
        if s.fine: sc.emit(raw('s_mov_b32 s3, 0')); sc.emit(raw('v_mov_b32 v1, 0','valu')); sc.emit(raw('v_mov_b32 v15, 0','valu'))
        sc.emit(wait_vm(('W',0),('x',0,0))); sc.emit(barrier())
        pro=sc.out
        itW=lambda k:(lambda en:('W',14*en['w']+k))
        itK=lambda n:(lambda en:('K',16*en['u']+n))
        itKa=lambda n:(lambda en:None if en.get('noA') else ('K',16*en['u']+n))
        xt=lambda k:(lambda en:('x',en['w'],k))
        kmaj=[(kt,t) for kt in range(2) for t in range(8)]
        tmaj=[(kt,t) for t in range(8) for kt in range(2)]
        RI0=[V(56+2*j,1) for j in range(3)]
        def PT(i4):
            t,j=divmod(i4,3); return PARK_A(i4) if 12<=i4<16 else OA(2*t,j)
        def PQ(i4):
            t,j=divmod(i4,3); return OA(2*t+1,j)
        sc=Sched(); e=sc.emit
        e(label("L_k1_unit"))
        s.stamp(sc,0,True)
        e(salu("s_andn2_b32",sT0,sWn,sG)); e(salu("s_cmp_eq_u32",None,sT0,1)); e(salu("s_cselect_b32",sXl,0,32768)); e(salu("s_add_u32",sXl,sXl,V_BASE))
        e(salu("s_lshl_b32",sT0,sWAVE,12)); e(salu("s_add_u32",sXl,sXl,sT0)); e(valu("v_add_u32",vXr,sXl,vXrl))
        for x in s.adv_rd('W'): e(x)
        for x in s.addr_ops('W'): e(x)
        for f in range(3):
            for x in s.rdV(f,itW(0),"Wn"): e(x)
        e(wait_lgkm(("Wn",0,0),("Wn",0,1)))
        qconv=[]; convdone={}; qepi=[]
        for n,i4 in enumerate([6,7,8,9,10,11,12,13,14,15,0,1,2,3,4,5]+list(range(16,24))):
            t,j=divmod(i4,3); base=24+8*(n&1)
            qepi+=[Filler(x) for x in s.drain_group(t,j,[V(base+r) for r in range(8)],RI0[j],PT(i4))]
        xslot=lambda en:('V',(16*en['u']*(1 if en['w']==1 and en['G']==0 else 0)+2)%3)
        xitem=lambda p:(lambda en:('X',14*en['w']+p))
        for k in range(14):
            mf=[mfma(QA(T,j),VF(T),XF(k,j),0 if k==0 else QA(T,j)) for T in range(16) for j in range(3)]
            xp=[]; xd=[]; xs2=[]; xf2=[]
            if k<=11:
                L,_=s.item_X(k+2,xitem,xslot); xd=list(zip((14,17,20),L))
                if k%2==0: xp=s.xpre()+[salu("s_add_u32",sXw[1],sXk,14336),salu("s_add_u32",sXw[2],sXk,28672)]
            if 1<=k<=12:
                _,R=s.item_X(k+1,xitem,xslot)
                xs2=[(1,wait_vm(xitem(k+1))),(12,wait_lgkm(('xr',(k+1)&3,0),('xr',(k+1)&3,1),('xr',(k+1)&3,2)))]
                xf2=list(zip((2,5,8),R))
            late=s.item_W(itW(k+3)) if k>=1 else None
            xs=[]; xfx=[]
            if k==11:
                xs=[(0,salu("s_xor_b32",sWu,sWu,512)),(15,salu("s_cmp_eq_u32",None,sWn,1)),(15,salu("s_cselect_b32",sub(sW,2),0,sub(sW,2)))]
            if s.early_op and k>=11:
                pre_,L_=s.item_Wx(k-11); late=([],L_); head_=s.flat(pre_)
                if k==11:
                    xs=[(0,salu("s_xor_b32",sWu,sWu,512)),(15,salu("s_cmp_eq_u32",None,sWn,1))]+[(15,salu("s_cselect_b32",sub(sW,r),sub(sWo,r),sub(sW,r))) for r in range(3)]
                    xs+=[(21,raw("s_cmp_eq_u32 s45, 1")),(21,raw("s_cselect_b64 vcc, -1, 0","salu",wr=VCC))]
                    xfx=[(23,Ins("v_cndmask_b32 v11, v11, v22, vcc","valu",rd=rs(V(11),V(22))|VCC,wr=rs(V(11))))]
            if s.early_op and k>=11:
                if k==11: e(salu("s_xor_b32",sWu,sWu,512)); xs=[x for x in xs if x[0]!=0]
                for x in head_: e(x)
            cd=[]; cp=[]
            if s.spread:
                tab={11:[('K',0,(26,32,38,44),(4,24))],12:[('K',1,(11,14,17,20),(0,9)),('V',0,(26,32,38,44),(6,24))],13:[('K',2,(8,14,20,23),(0,6))]}
                for typ,n,gaps,(lo,hi) in tab.get(k,[]):
                    pre,L=s.cond_item(typ,n); cd+=list(zip(gaps,L)); cp.append((pre,lo,hi))
                if k==11:
                    xs=xs+[(3,salu("s_cmp_eq_u32",None,sWn,sG)),(3,salu("s_cselect_b32",sub(sK,2),524288,0)),(3,salu("s_cselect_b32",sub(sV,2),524288,0)),(3,salu("s_cselect_b32",sInc,16384,0))]
            if k in s.kvpos and not s.spread:
                its=[s.item_K(('K',int(nm[1]))) if nm[0]=='K' else s.item_V(('V',int(nm[1]))) for nm in s.kvpos[k]]
                e(salu("s_cmp_eq_u32",None,sWn,sG)); e(branch(f"s_cbranch_scc0 L_k1_skip{k}"))
                n0=len(sc.out)
                for it in its: s.emit_item(sc,it)
                e(branch(f"s_branch L_k1_join{k}"))
                s.only(sc,n0,lambda en:en['w']==en['G'])
                e(label(f"L_k1_skip{k}"))
                n0=len(sc.out)
                for q in range(4*len(its)): e(touch(V(0),vKa,sDum,0))
                s.only(sc,n0,lambda en:en['w']!=en['G'])
                e(label(f"L_k1_join{k}"))
            queues=[qepi] if k<=12 else []
            if k==13:
                groups=[]
                for t in range(8):
                    for j in range(3): groups.append((t,j,mf[(2*t+1)*3+j],s.conv_ops(t,j)))
                n=len(groups)
                for i in range(n+2):
                    if i<n:
                        t,j,last,(m,c,p1,p2)=groups[i]
                        for x in c: qconv.append(Filler(x,[last]))
                    if 0<=i-1<n:
                        for x in groups[i-1][3][2]: qconv.append(Filler(x))
                    if 0<=i-2<n:
                        t,j,last,(m,c,p1,p2)=groups[i-2]
                        for x in p2: qconv.append(Filler(x))
                        convdone[(t,j)]=p2
                queues=[qconv]
            if k<13:
                vw=[itW(k+1)]+([xt(k+1)] if k+1<2 else [])
                s.step(sc,'W','W',mf,None,itW(k),itW(k+1),late=late,extra_shadow=list(xs)+xs2,extra_fixed=xf2+xfx,dmas=xd+cd,
                       pres=([(xp,0,11)] if xp else [])+cp,vmwait=vw,qfree=queues,qds=queues)
                if k==12: s.flush_all(sc,[qepi])
            else:
                s.step(sc,'W','K',mf,None,itW(k),itKa(0),late=late,extra_shadow=list(xs)+xs2,extra_fixed=xf2,dmas=cd,pres=cp,
                       vmwait=[itK(0)],qfree=queues,qds=queues,nxt_korder=tmaj,keep_addr=True)
        rest=[clone(f.ins) for f in qconv]
        s.stamp(sc,1,True)
        if s.mix: e(salu("s_cmp_gt_u32",None,sG,sWn)); e(branch("s_cbranch_scc1 L_k1_noatt"))
        wblk=sc.out
        sc2=Sched(); sc2.done=set(sc.done); sc2.out=[]; sc=sc2; e=sc.emit
        e(nop(0))
        mf=[]
        for f,(kt,t) in enumerate(tmaj):
            for j in range(3): mf.append(mfma(SB(0,kt,j),KF(f),QF(t,j),0 if t==0 else SB(0,kt,j)))
        def needs0(gi):
            f,j=divmod(gi,3); kt,t=tmaj[f]
            nd=list(convdone[(t,j)])
            if t==0 and kt==1: nd+=convdone[(1,j)]
            if s.lookc and kt==0:
                g2=t*3+j+s.lookc
                if g2<24: nd+=convdone[(g2//3,g2%3)]
            return nd
        cd=[]; cp=[]
        if s.spread:
            pre,L=s.cond_item('V',1); cd=list(zip((8,14,20,23),L)); cp=[(pre,0,6)]
        if s.early_op:
            pre_,L_=s.item_Wx(3)
            for x in s.flat(pre_): e(x)
            lt=([],L_)
        else: lt=s.item_W(itW(17))
        s.step(sc,'K','K',mf,tmaj,itK(0),itK(1),late=lt,vmwait=[itK(1)],qfree=[qconv],qds=[qconv],needs=needs0,nxt_korder=kmaj,dmas=cd,pres=cp)
        assert not qconv
        qk0c=sc.out
        sc=Sched(); e=sc.emit
        e(label("L_k1_max"))
        m=[V(208+j) for j in range(3)]; tm=[V(211+j) for j in range(3)]
        e(barrier())
        if s.spread: e(salu("s_mov_b32",sub(sK,2),524288)); e(salu("s_mov_b32",sub(sV,2),524288))
        pre,L=s.item_K(itK(3))
        for x in s.flat(pre): e(x)
        for m_,d_ in L[:2]: e(m_); e(d_)
        e(salu("s_lshl_b32",sT0,sG,1)); e(salu("s_add_u32",sT0,sT0,sU)); e(salu("s_cmp_eq_u32",None,sT0,1)); e(branch("s_cbranch_scc0 L_k1_nomva"))
        n0=len(sc.out)
        for i4 in range(0,12):
            for r in range(4): e(s.accmov(sub(PARK_A(i4),r),sub(PT(i4),r)))
        for i4 in range(16,24):
            for r in range(4): e(accrd(sub(PARK_A(i4),r),sub(PT(i4),r)))
        s.only(sc,n0,lambda en:en['G']==0 and en['u']==1)
        e(label("L_k1_nomva"))
        if s.mix:
            e(salu("s_cmp_eq_u32",None,sT0,2)); e(branch("s_cbranch_scc0 L_k1_nomvb"))
            n0=len(sc.out)
            for i4 in range(0,16):
                for r in range(4): e(s.accmov(sub(PARK_A(i4),r),sub(PQ(i4),r)))
            for i4 in range(16,24):
                for r in range(4): e(accrd(sub(PARK_A(i4),r),sub(PQ(i4),r)))
            s.only(sc,n0,lambda en:en['G']==1 and en['u']==0)
            e(label("L_k1_nomvb"))
        for j in range(3):
            a=SB(0,0,j); e(valu("v_max3_f32",m[j],sub(a,0),sub(a,1),sub(a,2)))
        for j in range(3):
            a=SB(0,0,j); b=SB(0,1,j); e(valu("v_max3_f32",m[j],m[j],sub(a,3),sub(b,0)))
        for j in range(3):
            b=SB(0,1,j); e(valu("v_max3_f32",m[j],m[j],sub(b,1),sub(b,2)))
        for j in range(3):
            b=SB(0,1,j); e(valu("v_max_f32",m[j],m[j],sub(b,3)))
        for x in s.allreduce("v_max_f32",m,tm): e(x)
        for j in range(3):
            for r in range(4): e(valu("v_sub_f32",sub(CI(j),r),0,m[j]))
        for j in range(3): e(valu("v_mov_b32",vL[j],0))
        for j in range(3): e(valu("v_mul_f32",tm[j],sC,m[j]))
        for j in range(3):
            for kt in range(2):
                for r in range(4):
                    x=sub(SB(0,kt,j),r)
                    e(Ins(f"v_fma_f32 {rt(x)}, {rt(x)}, {rt(sC)}, -{rt(tm[j])}","valu",rd=rs(x,sC,tm[j]),wr=rs(x)))
        s.stamp(sc,2,True)
        def half(sc,buf,first=False):
            nb=1-buf
            iK=lambda d:(lambda en:('K',16*en['u']+en['i']+d))
            iV=lambda d:(lambda en:('V',16*en['u']+en['i']+d))
            qe,qc,pd=s.sm_exp(buf); qa=s.sm_add2(buf,qe)
            mf=[]
            for f,(kt,t) in enumerate(kmaj):
                for j in range(3): mf.append(mfma(SB(nb,kt,j),KF(f),QF(t,j),CI(j) if t==0 else SB(nb,kt,j)))
            preV,LV=s.item_V(iV(2)); _,LKprev=s.item_K(iK(3)); preK,LK=s.item_K(iK(4))
            s.step(sc,'K','V',mf,kmaj,iK(1),iV(0),vmwait=[iV(0)],qfree=[qe,qc,qa],qds=[qc,qa],
                   dmas=[(5,LKprev[2]),(17,LKprev[3]),(29,LV[0]),(41,LV[1])],pres=[(preV,18,27)])
            qm=s.sm_mul(nb)+s.sm_max(nb)
            mf=[mfma(OA(T,j),VF(T),PF(j),0 if first else OA(T,j)) for T in range(16) for j in range(3)]
            s.step(sc,'V','K',mf,None,iV(0),iK(2),vmwait=[iK(2)],qfree=[qe,qc,qm,qa],qds=[qc,qm,qa],needs=lambda gi:(list(pd[gi]) if gi<3 else []),nxt_korder=kmaj,
                   dmas=[(5,LV[2]),(17,LV[3]),(29,LK[0]),(41,LK[1])],pres=[(preK,18,27)])
            s.flush_all(sc,[qe,qc,qa,qm])
        half(sc,0,first=True)
        e(branch("s_cbranch_vccnz L_k1_rareF")); e(label("L_k1_retF"))
        e(salu("s_mov_b32",sCNT,7))
        mblk=sc.out
        sc=Sched(); sc.emit(label("L_k1_loop"))
        half(sc,1); sc.emit(branch("s_cbranch_vccnz L_k1_rare0")); sc.emit(label("L_k1_ret0"))
        hB=sc.out
        sc=Sched()
        half(sc,0); sc.emit(branch("s_cbranch_vccnz L_k1_rare1")); sc.emit(label("L_k1_ret1"))
        sc.emit(salu("s_sub_u32",sCNT,sCNT,1)); sc.emit(salu("s_cmp_lg_u32",None,sCNT,0)); sc.emit(branch("s_cbranch_scc1 L_k1_loop"))
        hA=sc.out
        sc=Sched(); e=sc.emit
        s.stamp(sc,3,True)
        iV=lambda d:(lambda en:('V',16*en['u']+15+d))
        e(wait_fixed(lgkm=0)); e(wait_vm(iV(0))); e(barrier())
        _,L=s.item_K(lambda en:('K',16*en['u']+18))
        for m_,d_ in L[2:]: e(m_); e(d_)
        def advN(dst,src): return [salu("s_add_u32",dst,src,128),salu("s_cmp_eq_u32",None,dst,896),salu("s_cselect_b32",dst,0,dst)]
        if s.early_op:
            e(salu("s_cmp_eq_u32",None,sU,1)); e(branch("s_cbranch_scc0 L_k1_nop4"))
            n0=len(sc.out)
            for p in range(4): e(valu("v_add_u32",vWo[p],p*28672,V(22)))
            e(salu("s_mov_b32",sWw,49152))
            for x in advN(sNgN,sNgC): e(x)
            for q in range(4,7): s.emit_item(sc,s.item_O(('P',q),(q&3)*114688,sNgN))
            s.only(sc,n0,lambda en:en['u']==1)
            e(label("L_k1_nop4"))
        for x in s.adv_rd('V'): e(x)
        for x in s.addr_ops('V'): e(x)
        for f in range(3):
            for x in s.rdV(f,iV(0),"Vn"): e(x)
        qe,qc,pd=s.sm_exp(1)
        for j in range(3):
            for _ in range(8): e(qe.pop(0).ins)
            for _ in range(4): e(qc.pop(0).ins)
        e(wait_lgkm(("Vn",0,0),("Vn",0,1)))
        qa=s.sm_add(1)
        mf=[mfma(OA(T,j),VF(T),PF(j),OA(T,j)) for T in range(16) for j in range(3)]
        s.step(sc,'V',None,mf,None,iV(0),None,early=s.item_V(iV(2)),nobarrier=True,qfree=[qa],qds=[qa])
        s.flush_all(sc,[qa])
        s.stamp(sc,4,True)
        tm=[V(208+j) for j in range(3)]
        for x in s.allreduce("v_add_f32",vL,tm): e(x)
        e(salu("s_cmp_eq_u32",None,sU,1)); e(branch("s_cbranch_scc1 L_k1_epi1"))
        if s.mix: e(salu("s_cmp_eq_u32",None,sG,1)); e(branch("s_cbranch_scc1 L_k1_swap"))
        tail=sc.out
        sc=Sched(); e=sc.emit
        for j in range(3): e(trans("v_rcp_f32",RI0[j],vL[j]))
        s.stamp(sc,5,True)
        e(salu("s_mov_b32",sU,1)); e(salu("s_mov_b32",sWn,1))
        for x in s.flat(s.xpre()): e(x)
        e(wait_vm(('W',14))); e(barrier()); e(branch("s_branch L_k1_unit"))
        park=sc.out
        noatt=[]; swap=[]; qk0n=[]
        if s.mix:
            sc=Sched(); e=sc.emit
            e(label("L_k1_noatt")); e(nop(1))
            for x in rest: e(x)
            e(barrier())
            s.emit_item(sc,s.item_Wx(3) if s.early_op else s.item_W(('W',17)))
            for i4 in range(24):
                t,j=divmod(i4,3)
                for r in range(4): e(accwr(sub(PQ(i4),r),sub(QF(t,j),r)))
            e(salu("s_mov_b32",sWn,1))
            for x in s.flat(s.xpre()): e(x)
            e(wait_vm(('W',14))); e(barrier()); e(branch("s_branch L_k1_unit"))
            noatt=sc.out
            sc=Sched(); e=sc.emit
            e(label("L_k1_swap"))
            RI=[V(220+j) for j in range(3)]
            for j in range(3): e(trans("v_rcp_f32",RI[j],vL[j]))
            for i4 in range(24):
                t,j=divmod(i4,3); p=PARK_A(i4)
                for r in range(4):
                    e(accrd(sub(QF(t,j),r),sub(p,r)) if p[0]=='a' else valu("v_mov_b32",sub(QF(t,j),r),sub(p,r)))
            gi=0
            for t in range(8):
                for j in range(3):
                    base=160+8*(gi%6)
                    for x in s.drain_group(t,j,[V(base+r) for r in range(8)],RI[j],PARK_A(t*3+j)): e(x)
                    gi+=1
            s.stamp(sc,5,True)
            e(salu("s_mov_b32",sU,1))
            mf=[]
            for f,(kt,t) in enumerate(kmaj):
                for j in range(3): mf.append(mfma(SB(0,kt,j),KF(f),QF(t,j),0 if t==0 else SB(0,kt,j)))
            s.step(sc,'K','K',mf,kmaj,lambda en:('K',16),lambda en:('K',17),vmwait=[('K',17)],nxt_korder=kmaj)
            e(branch("s_branch L_k1_max"))
            swap=sc.out
        sc=Sched(); e=sc.emit
        e(label("L_k1_epi1"))
        if not s.early_op:
            for p in range(4): e(valu("v_add_u32",vWo[p],p*28672,V(22)))
            e(salu("s_mov_b32",sWw,s.oring+1-16384))
            e(barrier())
            for q in range(4): s.emit_item(sc,s.item_O(('P',q),q*114688,sNgC))
        RI=[V(220+2*j,2 if s.pkepi else 1) for j in range(3)]
        for j in range(3): e(trans("v_rcp_f32",sub(RI[j],0),vL[j]))
        if s.pkepi:
            for j in range(3): e(valu("v_mov_b32",sub(RI[j],1),sub(RI[j],0)))
        gi=0
        for t in range(8):
            for j in range(3):
                base=160+8*(gi%6)
                for x in s.drain_group(t,j,[V(base+r) for r in range(8)],RI[j],QF(t,j),pk=s.pkepi): e(x)
                gi+=1
        s.stamp(sc,5,True)
        last=(s.oring+1-16384)
        e(salu("s_mov_b32",sWr,last))
        if not s.early_op:
            for x in advN(sNgN,sNgC): e(x)
            e(barrier())
            for q in range(4,7): s.emit_item(sc,s.item_O(('P',q),(q&3)*114688,sNgN))
        for x in advN(sNgNN,sNgN): e(x)
        itP=lambda d:(lambda en:('P',4*en['g']+d))
        e(wait_vm(('P',0))); e(barrier())
        for x in s.adv_rd('O'): e(x)
        for x in s.addr_ops('O'): e(x)
        ksmaj=list(range(16)); Tmaj=[ks*4+T for T in range(4) for ks in range(4)]
        for f in range(3):
            for x in s.rdV(f,('P',0),"On"): e(x)
        e(wait_lgkm(("On",0,0),("On",0,1)))
        e(salu("s_mov_b32",sCNT,7)); e(salu("s_mov_b32",sPs,"0x40000000")); e(salu("s_mov_b32",sPs2,"0x40000000"))
        s.stamp(sc,13)
        oppro=sc.out
        def Bop(kq,ks,j):
            hh=kq>>1; t=4*(kq&1)+ks
            return PARK_A(t*3+j) if hh==0 else QF(t,j)
        sc=Sched(); e=sc.emit
        e(label("L_k1_oploop"))
        def cv(h,j):
            a=OPA(2*h,j); b=OPA(2*h+1,j); d=OPK(h,j)
            return [valu("v_cvt_pk_bf16_f32",sub(d,0),sub(a,0),sub(a,1)),valu("v_cvt_pk_bf16_f32",sub(d,1),sub(a,2),sub(a,3)),
                    valu("v_cvt_pk_bf16_f32",sub(d,2),sub(b,0),sub(b,1)),valu("v_cvt_pk_bf16_f32",sub(d,3),sub(b,2),sub(b,3))]
        def stores(h): return [vstore(OPK(h,j),vPst,sP,(sPs if j<2 else sPs2),((j*2048)%4096)+h*1024,tag='p',mod=s.stmod) for j in range(3)]
        carry_cv=[]
        for j in range(3): carry_cv+=cv(1,j)[2:]
        carry_st=stores(1)
        for kq in range(4):
            fo = Tmaj if kq==3 else ksmaj
            nfo = Tmaj if kq==2 else ksmaj
            mf=[]
            for f in range(16):
                ks,T=divmod(fo[f],4)
                for j in range(3): mf.append(mfma(OPA(T,j),VF(f),Bop(kq,ks,j),0 if (kq==0 and ks==0) else OPA(T,j)))
            late=s.item_O(itP(kq+7),((kq+7)&3)*114688,sNgN if kq==0 else sNgNN)
            q=[]; xs=[]; xe=[]; nd=None; XG=(5,14,23)
            if kq==0:
                q=[Filler(x) for x in carry_cv]
                def nd(gi,q0=list(carry_cv)): return q0 if gi==9 else ()
                xe=carry_st; XG=(11,17,23)
            if kq==1:
                xs=[(12,salu("s_cmp_eq_u32",None,sCNT,2)),(12,salu("s_cselect_b32",sub(sWo,2),0,sub(sWo,2))),
                    (13,salu("s_mul_i32",sPs,sNgC,48)),(15,salu("s_add_u32",sPs2,sPs,4096))]
            if kq==3:
                c0=[]
                for j in range(3): c0+=[Filler(x,[mf[(7*3)+j]]) for x in cv(0,j)]
                c2=[]
                for j in range(3): c2+=[Filler(x,[mf[(11*3)+j]]) for x in cv(1,j)[:2]]
                q=c0+c2; xe=stores(0); XG=(38,41,44)
                def nd(gi,c=[f.ins for f in c0]): return c if gi==38 else ()
                adv=advN(sNgNN,sNgNN)
                xs=[(42,salu("s_mov_b32",sNgC,sNgN)),(42,salu("s_mov_b32",sNgN,sNgNN)),(43,adv[0]),(45,adv[1]),(45,adv[2])]
            s.step(sc,'O','O',mf,None,itP(kq),itP(kq+1),late=late,extra_shadow=xs,xearly=xe,XG=XG,needs=nd,
                   vmwait=[itP(kq+1)],qfree=[q],qds=[q],forder=fo,nxt_forder=nfo,LG=(29,32,35,47) if kq==3 else (29,35,41,47))
            s.flush_all(sc,[q])
        e(salu("s_sub_u32",sCNT,sCNT,1)); e(salu("s_cmp_lg_u32",None,sCNT,0)); e(branch("s_cbranch_scc1 L_k1_oploop"))
        for x in [y for j in range(3) for y in cv(1,j)[2:]]: e(x)
        for x in stores(1): e(x)
        s.stamp(sc,14)
        if s.fuse:
            if s.prof:
                for x in s.dump_code(): e(x)
            s.reduce_tail(sc)
        e(branch("s_branch L_k1_fin" if (s.prof and not s.fuse) else "s_branch L_k1_end"))
        oploop=sc.out
        sc=Sched(); s.rare(sc,1,"L_k1_rareF","L_k1_retF"); s.rare(sc,0,"L_k1_rare0","L_k1_ret0"); s.rare(sc,1,"L_k1_rare1","L_k1_ret1"); rare=sc.out
        endb=s.end_block()
        def add(tr,blk,**en):
            tr+=[(x,en) for x in blk if s.cond.get(id(x),lambda e_:True)(en)]
        def att(tr,G,u,w):
            add(tr,mblk,G=G,u=u,w=w,i=0)
            for it in range(7):
                add(tr,hB,G=G,u=u,w=w,i=2*it+1); add(tr,hA,G=G,u=u,w=w,i=2*it+2)
            add(tr,tail,G=G,u=u,w=w)
        def fin(tr,G):
            add(tr,oppro,G=G,u=1,w=1)
            for g in range(7): add(tr,oploop,G=G,g=g)
        t0=[]; add(t0,pro,G=0,u=0,w=0)
        add(t0,wblk,G=0,u=0,w=0); add(t0,qk0c,G=0,u=0,w=0); att(t0,0,0,0); add(t0,park,G=0,u=0,w=0)
        add(t0,wblk,G=0,u=1,w=1); add(t0,qk0c,G=0,u=1,w=1); att(t0,0,1,1); fin(t0,0)
        traces=[t0]
        if s.mix:
            t1=[]; add(t1,pro,G=1,u=0,w=0)
            add(t1,wblk,G=1,u=0,w=0,noA=True); add(t1,noatt,G=1,u=0,w=0)
            add(t1,wblk,G=1,u=0,w=1); add(t1,qk0c,G=1,u=0,w=1); att(t1,1,0,1); add(t1,swap,G=1,u=0,w=1)
            att(t1,1,1,1); fin(t1,1)
            traces.append(t1)
        resolve_waits_multi(traces)
        errs=[]
        for t in traces: errs+=check(t)
        code=pro+wblk+qk0c+mblk+hB+hA+tail+park+noatt+swap+oppro+oploop+rare+endb
        return code,errs
    def prologue_g(s, sc):
        n0=len(sc.out)
        K1F.prologue(s, sc)
        for idx,x in enumerate(sc.out):
            if x.text=="s_mov_b32 s36, 0":
                if s.mix: sc.out[idx:idx+1]=[raw(f"s_lshr_b32 s60, s2, {s.gbit}"),raw("s_and_b32 s60, s60, 1")]+([raw("s_xor_b32 s60, s60, 1")] if s.ginv else [])+[raw("s_lshl_b32 s36, s60, 9")]
                else: sc.out[idx:idx+1]=[raw("s_mov_b32 s60, 0"),x]
                break
        else: raise AssertionError("sWu init not found")
        sc.emit(salu("s_mov_b32",sWn,0))
        if s.tlbw:
            e=sc.emit
            e(valu("v_mov_b32",V(64),0))
            for srd,off in ((sK,0),(sK,262144),(sV,0),(sV,262144),(sWo,0),(sWo,229376),(sP,0)):
                e(salu("s_mov_b32",sT0,off)); e(touch(V(65),V(64),srd,sT0,mod=" nt"))
    def end_block(s):
        endb=[]
        if s.prof:
            endb=[label("L_k1_fin"),raw("v_mov_b32 v3, v1","valu"),raw("v_mov_b32 v4, v15","valu"),wait_fixed(vm=0),raw("s_memtime s[98:99]"),raw("s_memrealtime s[100:101]"),raw("s_waitcnt lgkmcnt(0)"),
                  raw("s_mov_b32 s4, s98"),raw("s_mov_b32 s5, s100"),
                  raw("s_add_u32 s8, s96, 0x8000000"),raw("s_addc_u32 s9, s97, 0"),raw("s_and_b32 s9, s9, 0xffff"),raw("s_mov_b32 s10, 0x100000"),raw("s_mov_b32 s11, 0x20000"),
                  raw("s_lshl_b32 s3, s2, 10"),raw("s_lshl_b32 s38, s24, 8"),raw("s_add_u32 s3, s3, s38"),raw("v_mov_b32 v1, s3","valu")]
            for i,r in enumerate(list(range(66,96))+[4,5]):
                endb+=[raw(f"v_mov_b32 v2, s{r}","valu"),raw(f"buffer_store_dword v2, v1, s[8:11], 0 offen offset:{4*i}","valu"),raw("s_nop 1")]
            if s.fine:
                endb+=[raw("v_mbcnt_lo_u32_b32 v2, -1, 0","valu"),raw("v_mbcnt_hi_u32_b32 v2, -1, v2","valu"),raw("v_lshlrev_b32 v2, 2, v2","valu"),raw("s_lshl_b32 s3, s2, 11"),raw("s_lshl_b32 s38, s24, 9"),raw("s_add_u32 s3, s3, s38"),
                       raw("s_add_u32 s3, s3, 0x40000"),raw("v_add_u32 v2, s3, v2","valu"),raw("buffer_store_dword v3, v2, s[8:11], 0 offen","valu"),
                       raw("buffer_store_dword v4, v2, s[8:11], 0 offen offset:256","valu")]
            endb+=[raw("s_waitcnt vmcnt(0)")]
        endb+=[label("L_k1_end"),wait_fixed(vm=0),raw("s_endpgm","branch")]
        return endb

if __name__=="__main__":
    for mix in (False,True):
        k=K1G(mix=mix); code,errs=k.build()
        print("mix",mix,len(code),"instructions;",len(errs),"errors")
        for x in errs[:30]: print(x)
```

```python
from ir import *
from sched import *
import k1f
from k1f import *
from k1f import XBASE, XKEEP, XF, PARK_A, OPA, OPK, sNgNN, sXw, sXl, vXr, vXrl, sDum, sC, sCinv, PW
from k1 import KD_K1

sG=S(60); sWn=S(45); sInc=S(61); sCx=S(38); sCy=S(54); sWp=[S(28),S(98),S(99),S(100)]; sPd=S(101)

class K1G(K1F):
    def __init__(s, mix=False, kvmod=None, spread=True, early_op=True, gbit=5, ginv=False, tlbw=False, pkepi=True, lookc=1, wlate=False, **kw):
        kw.setdefault("stmod"," sc1"); kw.setdefault("touch",False); kw.setdefault("prokv",())
        kw.setdefault("kvpos",{9:['K0'],11:['K1'],12:['V0','K2'],13:['V1']})
        super().__init__(**kw); s.mix=mix; s.cond={}; s.spread=spread; s.early_op=early_op; s.gbit=gbit; s.tlbw=tlbw; s.pkepi=pkepi; s.lookc=lookc; s.wlate=wlate and not mix; s.ginv=ginv
        if kvmod is not None: s.kvmod=kvmod
    def only(s, sc, n0, pred):
        for x in sc.out[n0:]: s.cond[id(x)]=pred
    def prologue(s, sc):
        super().prologue(sc)
        e=sc.emit
        if s.mix: e(raw("s_lshr_b32 s60, s2, 5")); e(raw("s_and_b32 s60, s60, 1"))
        else: e(raw("s_mov_b32 s60, 0"))
        e(salu("s_mov_b32",sWn,0))
    def cond_item(s, typ, n):
        first=lambda en:en['w']==en['G']
        item=lambda en:(typ,n) if first(en) else None
        if typ=='K': st,wr,base,end,wv,srd,ring=sKs,sKw,K_BASE,V_BASE,sWvK,sK,'K'
        else: st,wr,base,end,wv,srd,ring=sVs,sVw,V_BASE,LDS_END,sWvV,sV,'V'
        cx = sCx if typ=='K' else sCy
        pre=[[salu("s_add_u32",st,st,sInc), salu("s_add_u32",wr,wr,sInc)],
             [salu("s_cmp_eq_u32",None,wr,end),salu("s_cselect_b32",wr,base,wr)],
             [salu("s_cmp_eq_u32",None,sWn,sG),salu("s_cselect_b32",cx,wr,"0x28000")]]
        L=[]
        for p in range(4):
            if typ=='K': d=dma(vKg[p>>1],sK,sKs,(p&1)*256,item,(lambda e,n=n:('K',n%3)),s.kvmod)
            else: d=dma(vVg,sV,sVs,p*128,item,(lambda e,n=n:('V',n%3)),s.kvmod)
            L.append((salu("s_add_u32","m0",cx,wv[p]),d))
        return pre,L
    def item_Wx(s, q):
        item=lambda en:(('W',14*en['w']+14+q) if en['w']==0 else ('P',q))
        slot=lambda en:('W',(14*en['w']+14+q)%4)
        pre=[salu("s_add_u32",sWk,sWk,262144),[salu("s_cmp_eq_u32",None,sWk,14*262144),salu("s_cselect_b32",sWk,0,sWk)],
             [salu("s_add_u32",sWw,sWw,16384),salu("s_and_b32",sWw,sWw,0xffff)],
             [salu("s_add_u32",sWp[0],sWk,sWu),salu("s_add_u32",sWp[1],sNgC,q*114688)],
             [salu("s_cmp_eq_u32",None,sWn,1),salu("s_cselect_b32",sWp[0],sWp[1],sWp[0]),salu("s_cselect_b32",sPd,28544,0)],
             [salu("s_add_u32",sWp[1],sWp[0],sPd),salu("s_add_u32",sWp[2],sWp[1],sPd)],
             salu("s_add_u32",sWp[3],sWp[2],sPd)]
        L=[(salu("s_add_u32","m0",sWw,sWvV[p]), dma(vWg,sW,sWp[p],p*128,item,slot,s.wmod)) for p in range(4)]
        return pre,L
    def build(s):
        XBASE[0]=192; XKEEP[0]=True; s._fl=[]
        sc=Sched(); s.prologue_g(sc)
        if s.fine: sc.emit(raw('s_mov_b32 s3, 0')); sc.emit(raw('v_mov_b32 v1, 0','valu')); sc.emit(raw('v_mov_b32 v15, 0','valu'))
        sc.emit(wait_vm(('W',0),('x',0,0))); sc.emit(barrier())
        pro=sc.out
        itW=lambda k:(lambda en:('W',14*en['w']+k))
        itK=lambda n:(lambda en:('K',16*en['u']+n))
        itKa=lambda n:(lambda en:None if en.get('noA') else ('K',16*en['u']+n))
        xt=lambda k:(lambda en:('x',en['w'],k))
        kmaj=[(kt,t) for kt in range(2) for t in range(8)]
        tmaj=[(kt,t) for t in range(8) for kt in range(2)]
        RI0=[V(56+2*j,1) for j in range(3)]
        def PT(i4):
            t,j=divmod(i4,3); return PARK_A(i4) if 12<=i4<16 else OA(2*t,j)
        def PQ(i4):
            t,j=divmod(i4,3); return OA(2*t+1,j)
        sc=Sched(); e=sc.emit
        e(label("L_k1_unit"))
        s.stamp(sc,0,True)
        e(salu("s_andn2_b32",sT0,sWn,sG)); e(salu("s_cmp_eq_u32",None,sT0,1)); e(salu("s_cselect_b32",sXl,0,32768)); e(salu("s_add_u32",sXl,sXl,V_BASE))
        e(salu("s_lshl_b32",sT0,sWAVE,12)); e(salu("s_add_u32",sXl,sXl,sT0)); e(valu("v_add_u32",vXr,sXl,vXrl))
        for x in s.adv_rd('W'): e(x)
        for x in s.addr_ops('W'): e(x)
        for f in range(3):
            for x in s.rdV(f,itW(0),"Wn"): e(x)
        e(wait_lgkm(("Wn",0,0),("Wn",0,1)))
        qconv=[]; convdone={}; qepi=[]
        for n,i4 in enumerate([6,7,8,9,10,11,12,13,14,15,0,1,2,3,4,5]+list(range(16,24))):
            t,j=divmod(i4,3); base=24+8*(n&1)
            qepi+=[Filler(x) for x in s.drain_group(t,j,[V(base+r) for r in range(8)],RI0[j],PT(i4))]
        xslot=lambda en:('V',(16*en['u']*(1 if en['w']==1 and en['G']==0 else 0)+2)%3)
        xitem=lambda p:(lambda en:('X',14*en['w']+p))
        for k in range(14):
            mf=[mfma(QA(T,j),VF(T),XF(k,j),0 if k==0 else QA(T,j)) for T in range(16) for j in range(3)]
            xp=[]; xd=[]; xs2=[]; xf2=[]
            if k<=11:
                L,_=s.item_X(k+2,xitem,xslot); xd=list(zip((14,17,20),L))
                if k%2==0: xp=s.xpre()+[salu("s_add_u32",sXw[1],sXk,14336),salu("s_add_u32",sXw[2],sXk,28672)]
            if 1<=k<=12:
                _,R=s.item_X(k+1,xitem,xslot)
                xs2=[(1,wait_vm(xitem(k+1))),(12,wait_lgkm(('xr',(k+1)&3,0),('xr',(k+1)&3,1),('xr',(k+1)&3,2)))]
                xf2=list(zip((2,5,8),R))
            late=s.item_W(itW(k+3)) if k>=1 else None
            xs=[]; xfx=[]
            if k==11:
                xs=[(0,salu("s_xor_b32",sWu,sWu,512)),(15,salu("s_cmp_eq_u32",None,sWn,1)),(15,salu("s_cselect_b32",sub(sW,2),0,sub(sW,2)))]
            if s.early_op and k>=11:
                if s.wlate:
                    if k==13: pre_,L_=s.item_Wx(0); late=([],L_); head_=s.flat(pre_)
                    else: late=None; head_=[]
                else:
                    pre_,L_=s.item_Wx(k-11); late=([],L_); head_=s.flat(pre_)
                if k==11:
                    xs=[(0,salu("s_xor_b32",sWu,sWu,512)),(15,salu("s_cmp_eq_u32",None,sWn,1))]+[(15,salu("s_cselect_b32",sub(sW,r),sub(sWo,r),sub(sW,r))) for r in range(3)]
                    xs+=[(21,raw("s_cmp_eq_u32 s45, 1")),(21,raw("s_cselect_b64 vcc, -1, 0","salu",wr=VCC))]
                    xfx=[(23,Ins("v_cndmask_b32 v11, v11, v22, vcc","valu",rd=rs(V(11),V(22))|VCC,wr=rs(V(11))))]
            if s.early_op and k>=11:
                if k==11: e(salu("s_xor_b32",sWu,sWu,512)); xs=[x for x in xs if x[0]!=0]
                for x in head_: e(x)
            cd=[]; cp=[]
            if s.spread:
                tab={11:[('K',0,(26,32,38,44),(4,24))],12:[('K',1,(11,14,17,20),(0,9)),('V',0,(26,32,38,44),(6,24))],13:[('K',2,(8,14,20,23),(0,6))]}
                for typ,n,gaps,(lo,hi) in tab.get(k,[]):
                    pre,L=s.cond_item(typ,n); cd+=list(zip(gaps,L)); cp.append((pre,lo,hi))
                if k==11:
                    xs=xs+[(3,salu("s_cmp_eq_u32",None,sWn,sG)),(3,salu("s_cselect_b32",sub(sK,2),524288,0)),(3,salu("s_cselect_b32",sub(sV,2),524288,0)),(3,salu("s_cselect_b32",sInc,16384,0))]
            if k in s.kvpos and not s.spread:
                its=[s.item_K(('K',int(nm[1]))) if nm[0]=='K' else s.item_V(('V',int(nm[1]))) for nm in s.kvpos[k]]
                e(salu("s_cmp_eq_u32",None,sWn,sG)); e(branch(f"s_cbranch_scc0 L_k1_skip{k}"))
                n0=len(sc.out)
                for it in its: s.emit_item(sc,it)
                e(branch(f"s_branch L_k1_join{k}"))
                s.only(sc,n0,lambda en:en['w']==en['G'])
                e(label(f"L_k1_skip{k}"))
                n0=len(sc.out)
                for q in range(4*len(its)): e(touch(V(0),vKa,sDum,0))
                s.only(sc,n0,lambda en:en['w']!=en['G'])
                e(label(f"L_k1_join{k}"))
            queues=[qepi] if k<=12 else []
            if k==13:
                groups=[]
                for t in range(8):
                    for j in range(3): groups.append((t,j,mf[(2*t+1)*3+j],s.conv_ops(t,j)))
                n=len(groups)
                for i in range(n+2):
                    if i<n:
                        t,j,last,(m,c,p1,p2)=groups[i]
                        for x in m: qconv.append(Filler(x,[last]))
                        for x in c: qconv.append(Filler(x,[last]))
                    if 0<=i-1<n:
                        for x in groups[i-1][3][2]: qconv.append(Filler(x))
                    if 0<=i-2<n:
                        t,j,last,(m,c,p1,p2)=groups[i-2]
                        for x in p2: qconv.append(Filler(x))
                        convdone[(t,j)]=p2
                queues=[qconv]
            if k<13:
                vw=[itW(k+1)]+([xt(k+1)] if k+1<2 else [])
                s.step(sc,'W','W',mf,None,itW(k),itW(k+1),late=late,extra_shadow=list(xs)+xs2,extra_fixed=xf2+xfx,dmas=xd+cd,
                       pres=([(xp,0,11)] if xp else [])+cp,vmwait=vw,qfree=queues,qds=queues)
                if k==12: s.flush_all(sc,[qepi])
            else:
                s.step(sc,'W','K',mf,None,itW(k),itKa(0),late=late,extra_shadow=list(xs)+xs2,extra_fixed=xf2,dmas=cd,pres=cp,
                       vmwait=[itK(0)],qfree=queues,qds=queues,nxt_korder=tmaj,keep_addr=True)
        rest=[clone(f.ins) for f in qconv]
        s.stamp(sc,1,True)
        if s.mix: e(salu("s_cmp_gt_u32",None,sG,sWn)); e(branch("s_cbranch_scc1 L_k1_noatt"))
        wblk=sc.out
        sc2=Sched(); sc2.done=set(sc.done); sc2.out=[]; sc=sc2; e=sc.emit
        e(nop(0))
        mf=[]
        for f,(kt,t) in enumerate(tmaj):
            for j in range(3): mf.append(mfma(SB(0,kt,j),KF(f),QF(t,j),0 if t==0 else SB(0,kt,j)))
        def needs0(gi):
            f,j=divmod(gi,3); kt,t=tmaj[f]
            nd=list(convdone[(t,j)])
            if t==0 and kt==1: nd+=convdone[(1,j)]
            if s.lookc and kt==0:
                g2=t*3+j+s.lookc
                if g2<24: nd+=convdone[(g2//3,g2%3)]
            return nd
        cd=[]; cp=[]
        if s.spread:
            pre,L=s.cond_item('V',1); cd=list(zip((8,14,20,23),L)); cp=[(pre,0,6)]
        if s.early_op:
            pre_,L_=s.item_Wx(1 if s.wlate else 3)
            for x in s.flat(pre_): e(x)
            lt=([],L_)
        else: lt=s.item_W(itW(17))
        s.step(sc,'K','K',mf,tmaj,itK(0),itK(1),late=lt,vmwait=[itK(1)],qfree=[qconv],qds=[qconv],needs=needs0,nxt_korder=kmaj,dmas=cd,pres=cp)
        assert not qconv
        qk0c=sc.out
        sc=Sched(); e=sc.emit
        e(label("L_k1_max"))
        m=[V(208+j) for j in range(3)]; tm=[V(211+j) for j in range(3)]
        e(barrier())
        if s.spread: e(salu("s_mov_b32",sub(sK,2),524288)); e(salu("s_mov_b32",sub(sV,2),524288))
        pre,L=s.item_K(itK(3))
        for x in s.flat(pre): e(x)
        for m_,d_ in L[:2]: e(m_); e(d_)
        if s.wlate:
            for q in (2,3): s.emit_item(sc,s.item_Wx(q))
        e(salu("s_lshl_b32",sT0,sG,1)); e(salu("s_add_u32",sT0,sT0,sU)); e(salu("s_cmp_eq_u32",None,sT0,1)); e(branch("s_cbranch_scc0 L_k1_nomva"))
        n0=len(sc.out)
        for i4 in range(0,12):
            for r in range(4): e(s.accmov(sub(PARK_A(i4),r),sub(PT(i4),r)))
        for i4 in range(16,24):
            for r in range(4): e(accrd(sub(PARK_A(i4),r),sub(PT(i4),r)))
        s.only(sc,n0,lambda en:en['G']==0 and en['u']==1)
        e(label("L_k1_nomva"))
        if s.mix:
            e(salu("s_cmp_eq_u32",None,sT0,2)); e(branch("s_cbranch_scc0 L_k1_nomvb"))
            n0=len(sc.out)
            for i4 in range(0,16):
                for r in range(4): e(s.accmov(sub(PARK_A(i4),r),sub(PQ(i4),r)))
            for i4 in range(16,24):
                for r in range(4): e(accrd(sub(PARK_A(i4),r),sub(PQ(i4),r)))
            s.only(sc,n0,lambda en:en['G']==1 and en['u']==0)
            e(label("L_k1_nomvb"))
        for j in range(3):
            a=SB(0,0,j); e(valu("v_max3_f32",m[j],sub(a,0),sub(a,1),sub(a,2)))
        for j in range(3):
            a=SB(0,0,j); b=SB(0,1,j); e(valu("v_max3_f32",m[j],m[j],sub(a,3),sub(b,0)))
        for j in range(3):
            b=SB(0,1,j); e(valu("v_max3_f32",m[j],m[j],sub(b,1),sub(b,2)))
        for j in range(3):
            b=SB(0,1,j); e(valu("v_max_f32",m[j],m[j],sub(b,3)))
        for x in s.allreduce("v_max_f32",m,tm): e(x)
        for j in range(3):
            for r in range(4): e(valu("v_sub_f32",sub(CI(j),r),0,m[j]))
        for j in range(3): e(valu("v_mov_b32",vL[j],0))
        if s.lscale:
            for j in range(3): e(valu("v_mul_f32",tm[j],sC,m[j]))
            for j in range(3):
                for kt in range(2):
                    for r in range(4):
                        x=sub(SB(0,kt,j),r)
                        e(Ins(f"v_fma_f32 {rt(x)}, {rt(x)}, {rt(sC)}, -{rt(tm[j])}","valu",rd=rs(x,sC,tm[j]),wr=rs(x)))
        else:
            for j in range(3):
                for kt in range(2):
                    for r in range(4): e(valu("v_sub_f32",sub(SB(0,kt,j),r),sub(SB(0,kt,j),r),m[j]))
        s.stamp(sc,2,True)
        def half(sc,buf,first=False):
            nb=1-buf
            iK=lambda d:(lambda en:('K',16*en['u']+en['i']+d))
            iV=lambda d:(lambda en:('V',16*en['u']+en['i']+d))
            qe,qc,pd=s.sm_exp(buf); qa=s.sm_add2(buf,qe)
            mf=[]
            for f,(kt,t) in enumerate(kmaj):
                for j in range(3): mf.append(mfma(SB(nb,kt,j),KF(f),QF(t,j),CI(j) if t==0 else SB(nb,kt,j)))
            preV,LV=s.item_V(iV(2)); _,LKprev=s.item_K(iK(3)); preK,LK=s.item_K(iK(4))
            s.step(sc,'K','V',mf,kmaj,iK(1),iV(0),vmwait=[iV(0)],qfree=[qe,qc,qa],qds=[qc,qa],
                   dmas=[(5,LKprev[2]),(17,LKprev[3]),(29,LV[0]),(41,LV[1])],pres=[(preV,18,27)])
            qm=(s.sm_mul(nb) if s.lscale else [])+s.sm_max(nb)
            mf=[mfma(OA(T,j),VF(T),PF(j),0 if first else OA(T,j)) for T in range(16) for j in range(3)]
            s.step(sc,'V','K',mf,None,iV(0),iK(2),vmwait=[iK(2)],qfree=[qe,qc,qm,qa],qds=[qc,qm,qa],needs=lambda gi:(list(pd[gi]) if gi<3 else []),nxt_korder=kmaj,
                   dmas=[(5,LV[2]),(17,LV[3]),(29,LK[0]),(41,LK[1])],pres=[(preK,18,27)])
            s.flush_all(sc,[qe,qc,qa,qm])
        half(sc,0,first=True)
        e(branch("s_cbranch_vccnz L_k1_rareF")); e(label("L_k1_retF"))
        e(salu("s_mov_b32",sCNT,7))
        mblk=sc.out
        sc=Sched(); sc.emit(label("L_k1_loop"))
        half(sc,1); sc.emit(branch("s_cbranch_vccnz L_k1_rare0")); sc.emit(label("L_k1_ret0"))
        hB=sc.out
        sc=Sched()
        half(sc,0); sc.emit(branch("s_cbranch_vccnz L_k1_rare1")); sc.emit(label("L_k1_ret1"))
        sc.emit(salu("s_sub_u32",sCNT,sCNT,1)); sc.emit(salu("s_cmp_lg_u32",None,sCNT,0)); sc.emit(branch("s_cbranch_scc1 L_k1_loop"))
        hA=sc.out
        sc=Sched(); e=sc.emit
        s.stamp(sc,3,True)
        iV=lambda d:(lambda en:('V',16*en['u']+15+d))
        e(wait_fixed(lgkm=0)); e(wait_vm(iV(0))); e(barrier())
        _,L=s.item_K(lambda en:('K',16*en['u']+18))
        for m_,d_ in L[2:]: e(m_); e(d_)
        def advN(dst,src): return [salu("s_add_u32",dst,src,128),salu("s_cmp_eq_u32",None,dst,896),salu("s_cselect_b32",dst,0,dst)]
        if s.early_op:
            e(salu("s_cmp_eq_u32",None,sU,1)); e(branch("s_cbranch_scc0 L_k1_nop4"))
            n0=len(sc.out)
            for p in range(4): e(valu("v_add_u32",vWo[p],p*28672,V(22)))
            e(salu("s_mov_b32",sWw,49152))
            for x in advN(sNgN,sNgC): e(x)
            for q in range(4,7): s.emit_item(sc,s.item_O(('P',q),(q&3)*114688,sNgN))
            s.only(sc,n0,lambda en:en['u']==1)
            e(label("L_k1_nop4"))
        for x in s.adv_rd('V'): e(x)
        for x in s.addr_ops('V'): e(x)
        for f in range(3):
            for x in s.rdV(f,iV(0),"Vn"): e(x)
        qe,qc,pd=s.sm_exp(1)
        for j in range(3):
            for _ in range(8): e(qe.pop(0).ins)
            for _ in range(4): e(qc.pop(0).ins)
        e(wait_lgkm(("Vn",0,0),("Vn",0,1)))
        qa=s.sm_add(1)
        mf=[mfma(OA(T,j),VF(T),PF(j),OA(T,j)) for T in range(16) for j in range(3)]
        s.step(sc,'V',None,mf,None,iV(0),None,early=s.item_V(iV(2)),nobarrier=True,qfree=[qa],qds=[qa])
        s.flush_all(sc,[qa])
        s.stamp(sc,4,True)
        tm=[V(208+j) for j in range(3)]
        for x in s.allreduce("v_add_f32",vL,tm): e(x)
        e(salu("s_cmp_eq_u32",None,sU,1)); e(branch("s_cbranch_scc1 L_k1_epi1"))
        if s.mix: e(salu("s_cmp_eq_u32",None,sG,1)); e(branch("s_cbranch_scc1 L_k1_swap"))
        tail=sc.out
        sc=Sched(); e=sc.emit
        for j in range(3): e(trans("v_rcp_f32",RI0[j],vL[j]))
        s.stamp(sc,5,True)
        e(salu("s_mov_b32",sU,1)); e(salu("s_mov_b32",sWn,1))
        for x in s.flat(s.xpre()): e(x)
        e(wait_vm(('W',14))); e(barrier()); e(branch("s_branch L_k1_unit"))
        park=sc.out
        noatt=[]; swap=[]; qk0n=[]
        if s.mix:
            sc=Sched(); e=sc.emit
            e(label("L_k1_noatt")); e(nop(1))
            for x in rest: e(x)
            e(barrier())
            s.emit_item(sc,s.item_Wx(3) if s.early_op else s.item_W(('W',17)))
            for i4 in range(24):
                t,j=divmod(i4,3)
                for r in range(4): e(accwr(sub(PQ(i4),r),sub(QF(t,j),r)))
            e(salu("s_mov_b32",sWn,1))
            for x in s.flat(s.xpre()): e(x)
            e(wait_vm(('W',14))); e(barrier()); e(branch("s_branch L_k1_unit"))
            noatt=sc.out
            sc=Sched(); e=sc.emit
            e(label("L_k1_swap"))
            RI=[V(220+j) for j in range(3)]
            for j in range(3): e(trans("v_rcp_f32",RI[j],vL[j]))
            for i4 in range(24):
                t,j=divmod(i4,3); p=PARK_A(i4)
                for r in range(4):
                    e(accrd(sub(QF(t,j),r),sub(p,r)) if p[0]=='a' else valu("v_mov_b32",sub(QF(t,j),r),sub(p,r)))
            gi=0
            for t in range(8):
                for j in range(3):
                    base=160+8*(gi%6)
                    for x in s.drain_group(t,j,[V(base+r) for r in range(8)],RI[j],PARK_A(t*3+j)): e(x)
                    gi+=1
            s.stamp(sc,5,True)
            e(salu("s_mov_b32",sU,1))
            mf=[]
            for f,(kt,t) in enumerate(kmaj):
                for j in range(3): mf.append(mfma(SB(0,kt,j),KF(f),QF(t,j),0 if t==0 else SB(0,kt,j)))
            s.step(sc,'K','K',mf,kmaj,lambda en:('K',16),lambda en:('K',17),vmwait=[('K',17)],nxt_korder=kmaj)
            e(branch("s_branch L_k1_max"))
            swap=sc.out
        sc=Sched(); e=sc.emit
        e(label("L_k1_epi1"))
        if not s.early_op:
            for p in range(4): e(valu("v_add_u32",vWo[p],p*28672,V(22)))
            e(salu("s_mov_b32",sWw,s.oring+1-16384))
            e(barrier())
            for q in range(4): s.emit_item(sc,s.item_O(('P',q),q*114688,sNgC))
        RI=[V(220+2*j,2 if s.pkepi else 1) for j in range(3)]
        for j in range(3): e(trans("v_rcp_f32",sub(RI[j],0),vL[j]))
        if s.pkepi:
            for j in range(3): e(valu("v_mov_b32",sub(RI[j],1),sub(RI[j],0)))
        gi=0
        for t in range(8):
            for j in range(3):
                base=160+8*(gi%6)
                for x in s.drain_group(t,j,[V(base+r) for r in range(8)],RI[j],QF(t,j),pk=s.pkepi): e(x)
                gi+=1
        s.stamp(sc,5,True)
        last=(s.oring+1-16384)
        e(salu("s_mov_b32",sWr,last))
        if not s.early_op:
            for x in advN(sNgN,sNgC): e(x)
            e(barrier())
            for q in range(4,7): s.emit_item(sc,s.item_O(('P',q),(q&3)*114688,sNgN))
        for x in advN(sNgNN,sNgN): e(x)
        itP=lambda d:(lambda en:('P',4*en['g']+d))
        e(wait_vm(('P',0))); e(barrier())
        for x in s.adv_rd('O'): e(x)
        for x in s.addr_ops('O'): e(x)
        ksmaj=list(range(16)); Tmaj=[ks*4+T for T in range(4) for ks in range(4)]
        for f in range(3):
            for x in s.rdV(f,('P',0),"On"): e(x)
        e(wait_lgkm(("On",0,0),("On",0,1)))
        e(salu("s_mov_b32",sCNT,7)); e(salu("s_mov_b32",sPs,"0x40000000")); e(salu("s_mov_b32",sPs2,"0x40000000"))
        s.stamp(sc,13)
        oppro=sc.out
        def Bop(kq,ks,j):
            hh=kq>>1; t=4*(kq&1)+ks
            return PARK_A(t*3+j) if hh==0 else QF(t,j)
        sc=Sched(); e=sc.emit
        e(label("L_k1_oploop"))
        def cv(h,j):
            a=OPA(2*h,j); b=OPA(2*h+1,j); d=OPK(h,j)
            return [valu("v_cvt_pk_bf16_f32",sub(d,0),sub(a,0),sub(a,1)),valu("v_cvt_pk_bf16_f32",sub(d,1),sub(a,2),sub(a,3)),
                    valu("v_cvt_pk_bf16_f32",sub(d,2),sub(b,0),sub(b,1)),valu("v_cvt_pk_bf16_f32",sub(d,3),sub(b,2),sub(b,3))]
        def stores(h): return [vstore(OPK(h,j),vPst,sP,(sPs if j<2 else sPs2),((j*2048)%4096)+h*1024,tag='p',mod=s.stmod) for j in range(3)]
        carry_cv=[]
        for j in range(3): carry_cv+=cv(1,j)[2:]
        carry_st=stores(1)
        for kq in range(4):
            fo = Tmaj if kq==3 else ksmaj
            nfo = Tmaj if kq==2 else ksmaj
            mf=[]
            for f in range(16):
                ks,T=divmod(fo[f],4)
                for j in range(3): mf.append(mfma(OPA(T,j),VF(f),Bop(kq,ks,j),0 if (kq==0 and ks==0) else OPA(T,j)))
            late=s.item_O(itP(kq+7),((kq+7)&3)*114688,sNgN if kq==0 else sNgNN)
            q=[]; xs=[]; xe=[]; nd=None; XG=(5,14,23)
            if kq==0:
                q=[Filler(x) for x in carry_cv]
                def nd(gi,q0=list(carry_cv)): return q0 if gi==9 else ()
                xe=carry_st; XG=(11,17,23)
            if kq==1:
                xs=[(12,salu("s_cmp_eq_u32",None,sCNT,2)),(12,salu("s_cselect_b32",sub(sWo,2),0,sub(sWo,2))),
                    (13,salu("s_mul_i32",sPs,sNgC,48)),(15,salu("s_add_u32",sPs2,sPs,4096))]
            if kq==3:
                c0=[]
                for j in range(3): c0+=[Filler(x,[mf[(7*3)+j]]) for x in cv(0,j)]
                c2=[]
                for j in range(3): c2+=[Filler(x,[mf[(11*3)+j]]) for x in cv(1,j)[:2]]
                q=c0+c2; xe=stores(0); XG=(38,41,44)
                def nd(gi,c=[f.ins for f in c0]): return c if gi==38 else ()
                adv=advN(sNgNN,sNgNN)
                xs=[(42,salu("s_mov_b32",sNgC,sNgN)),(42,salu("s_mov_b32",sNgN,sNgNN)),(43,adv[0]),(45,adv[1]),(45,adv[2])]
            s.step(sc,'O','O',mf,None,itP(kq),itP(kq+1),late=late,extra_shadow=xs,xearly=xe,XG=XG,needs=nd,
                   vmwait=[itP(kq+1)],qfree=[q],qds=[q],forder=fo,nxt_forder=nfo,LG=(29,32,35,47) if kq==3 else (29,35,41,47))
            s.flush_all(sc,[q])
        e(salu("s_sub_u32",sCNT,sCNT,1)); e(salu("s_cmp_lg_u32",None,sCNT,0)); e(branch("s_cbranch_scc1 L_k1_oploop"))
        for x in [y for j in range(3) for y in cv(1,j)[2:]]: e(x)
        for x in stores(1): e(x)
        s.stamp(sc,14)
        if s.fuse:
            if s.prof:
                for x in s.dump_code(): e(x)
            s.reduce_tail(sc)
        e(branch("s_branch L_k1_fin" if (s.prof and not s.fuse) else "s_branch L_k1_end"))
        oploop=sc.out
        sc=Sched(); s.rare(sc,1,"L_k1_rareF","L_k1_retF"); s.rare(sc,0,"L_k1_rare0","L_k1_ret0"); s.rare(sc,1,"L_k1_rare1","L_k1_ret1"); rare=sc.out
        endb=s.end_block()
        def add(tr,blk,**en):
            tr+=[(x,en) for x in blk if s.cond.get(id(x),lambda e_:True)(en)]
        def att(tr,G,u,w):
            add(tr,mblk,G=G,u=u,w=w,i=0)
            for it in range(7):
                add(tr,hB,G=G,u=u,w=w,i=2*it+1); add(tr,hA,G=G,u=u,w=w,i=2*it+2)
            add(tr,tail,G=G,u=u,w=w)
        def fin(tr,G):
            add(tr,oppro,G=G,u=1,w=1)
            for g in range(7): add(tr,oploop,G=G,g=g)
        t0=[]; add(t0,pro,G=0,u=0,w=0)
        add(t0,wblk,G=0,u=0,w=0); add(t0,qk0c,G=0,u=0,w=0); att(t0,0,0,0); add(t0,park,G=0,u=0,w=0)
        add(t0,wblk,G=0,u=1,w=1); add(t0,qk0c,G=0,u=1,w=1); att(t0,0,1,1); fin(t0,0)
        traces=[t0]
        if s.mix:
            t1=[]; add(t1,pro,G=1,u=0,w=0)
            add(t1,wblk,G=1,u=0,w=0,noA=True); add(t1,noatt,G=1,u=0,w=0)
            add(t1,wblk,G=1,u=0,w=1); add(t1,qk0c,G=1,u=0,w=1); att(t1,1,0,1); add(t1,swap,G=1,u=0,w=1)
            att(t1,1,1,1); fin(t1,1)
            traces.append(t1)
        resolve_waits_multi(traces)
        errs=[]
        for t in traces: errs+=check(t)
        code=pro+wblk+qk0c+mblk+hB+hA+tail+park+noatt+swap+oppro+oploop+rare+endb
        return code,errs
    def prologue_g(s, sc):
        n0=len(sc.out)
        K1F.prologue(s, sc)
        for idx,x in enumerate(sc.out):
            if x.text=="s_mov_b32 s36, 0":
                if s.mix: sc.out[idx:idx+1]=[raw(f"s_lshr_b32 s60, s2, {s.gbit}"),raw("s_and_b32 s60, s60, 1")]+([raw("s_xor_b32 s60, s60, 1")] if s.ginv else [])+[raw("s_lshl_b32 s36, s60, 9")]
                else: sc.out[idx:idx+1]=[raw("s_mov_b32 s60, 0"),x]
                break
        else: raise AssertionError("sWu init not found")
        sc.emit(salu("s_mov_b32",sWn,0))
        if s.tlbw:
            e=sc.emit
            e(valu("v_mov_b32",V(64),0))
            for srd,off in ((sK,0),(sK,262144),(sV,0),(sV,262144),(sWo,0),(sWo,229376),(sP,0)):
                e(salu("s_mov_b32",sT0,off)); e(touch(V(65),V(64),srd,sT0,mod=" nt"))
    def end_block(s):
        endb=[]
        if s.prof:
            endb=[label("L_k1_fin"),raw("v_mov_b32 v3, v1","valu"),raw("v_mov_b32 v4, v15","valu"),wait_fixed(vm=0),raw("s_memtime s[98:99]"),raw("s_memrealtime s[100:101]"),raw("s_waitcnt lgkmcnt(0)"),
                  raw("s_mov_b32 s4, s98"),raw("s_mov_b32 s5, s100"),
                  raw("s_add_u32 s8, s96, 0x8000000"),raw("s_addc_u32 s9, s97, 0"),raw("s_and_b32 s9, s9, 0xffff"),raw("s_mov_b32 s10, 0x100000"),raw("s_mov_b32 s11, 0x20000"),
                  raw("s_lshl_b32 s3, s2, 10"),raw("s_lshl_b32 s38, s24, 8"),raw("s_add_u32 s3, s3, s38"),raw("v_mov_b32 v1, s3","valu")]
            for i,r in enumerate(list(range(66,96))+[4,5]):
                endb+=[raw(f"v_mov_b32 v2, s{r}","valu"),raw(f"buffer_store_dword v2, v1, s[8:11], 0 offen offset:{4*i}","valu"),raw("s_nop 1")]
            if s.fine:
                endb+=[raw("v_mbcnt_lo_u32_b32 v2, -1, 0","valu"),raw("v_mbcnt_hi_u32_b32 v2, -1, v2","valu"),raw("v_lshlrev_b32 v2, 2, v2","valu"),raw("s_lshl_b32 s3, s2, 11"),raw("s_lshl_b32 s38, s24, 9"),raw("s_add_u32 s3, s3, s38"),
                       raw("s_add_u32 s3, s3, 0x40000"),raw("v_add_u32 v2, s3, v2","valu"),raw("buffer_store_dword v3, v2, s[8:11], 0 offen","valu"),
                       raw("buffer_store_dword v4, v2, s[8:11], 0 offen offset:256","valu")]
            endb+=[raw("s_waitcnt vmcnt(0)")]
        endb+=[label("L_k1_end"),wait_fixed(vm=0),raw("s_endpgm","branch")]
        return endb

if __name__=="__main__":
    for mix in (False,True):
        k=K1G(mix=mix); code,errs=k.build()
        print("mix",mix,len(code),"instructions;",len(errs),"errors")
        for x in errs[:30]: print(x)
```
